```python
import torch

def _softmax(x, axis=-1):
    return torch.softmax(x, dim=axis)
def _gelu(x):
    return torch.nn.functional.gelu(x, approximate="tanh")
def _silu(x):
    return torch.nn.functional.silu(x)
def _sigmoid(x):
    return torch.sigmoid(x)
def _layernorm(x, axis=-1, eps=1e-5):
    m = x.mean(dim=axis, keepdim=True)
    v = x.var(dim=axis, keepdim=True, unbiased=False)
    return (x - m) / torch.sqrt(v + eps)
def _scatter_add(tgt, idx, src, axis=0):
    return tgt.clone().index_add_(axis, idx, src)
def _segment_sum(src, seg, n):
    out = torch.zeros((n,) + src.shape[1:], dtype=src.dtype)
    return out.index_add_(0, seg, src)
def _pad(x, pw):
    flat = tuple(v for pair in reversed(pw) for v in pair)
    return torch.nn.functional.pad(x, flat)

kernel_name = 'concat_heads__ssm_conv_h3__grouped_kv_mqa__prompt'

def setup_inputs():

    _w = (lambda a: (lambda t: t.to(torch.bfloat16) if t.is_floating_point() else t)(torch.as_tensor(a)))
    def _A_setup():
        B, S, D = 1, 2048, 640
        ks = 4
        return {
            "q": _w((lambda *s: torch.randn(*s, dtype=torch.bfloat16) * 0.05)(B, S, D)),
            "k": _w((lambda *s: torch.randn(*s, dtype=torch.bfloat16) * 0.4)(B, S, D)),
            "v": _w((lambda *s: torch.randn(*s, dtype=torch.bfloat16) * 0.2)(B, S, D)),
            "shift_k": _w((lambda *s: torch.randn(*s, dtype=torch.bfloat16) * 0.4)(D, ks) * 0.5),
            "ssm_k": _w((lambda *s: torch.randn(*s, dtype=torch.bfloat16) * 0.4)(D, S) * (1.0 / S ** 0.5)),
            "ssm_D": _w((lambda *s: torch.randn(*s, dtype=torch.bfloat16) * 0.2)(D)),
        }
    _A_in = _A_setup()

    def _B_setup():
        B, S, D, H = 1, 2048, 640, 32
        Dh = D // H
        return {
            "x": _w((lambda *s: torch.randn(*s, dtype=torch.bfloat16) * 0.05)(B, S, D)),
            "wq": _w((lambda *s: torch.randn(*s, dtype=torch.bfloat16) * 0.8)(D, H * Dh)),
            "wk": _w((lambda *s: torch.randn(*s, dtype=torch.bfloat16) * 0.8)(D, Dh)),
            "wv": _w((lambda *s: torch.randn(*s, dtype=torch.bfloat16) * 0.05)(D, Dh)),
            "wo": _w((lambda *s: torch.randn(*s, dtype=torch.bfloat16) * 0.05)(H * Dh, D)),
        }
    _B_in = _B_setup()

    return {
        "A_q": _A_in["q"],
        "A_k": _A_in["k"],
        "A_v": _A_in["v"],
        "A_shift_k": _A_in["shift_k"],
        "A_ssm_k": _A_in["ssm_k"],
        "A_ssm_D": _A_in["ssm_D"],
        "B_x": _B_in["x"],
        "B_wq": _B_in["wq"],
        "B_wk": _B_in["wk"],
        "B_wv": _B_in["wv"],
        "B_wo": _B_in["wo"],
    }

def reference(A_q, A_k, A_v, A_shift_k, A_ssm_k, A_ssm_D, B_x, B_wq, B_wk, B_wv, B_wo):
    def _A_ref(q, k, v, shift_k, ssm_k, ssm_D):
        B, S, D = q.shape
        ks = shift_k.shape[-1]
        k_pad = _pad(k, ((0, 0), (ks - 1, 0), (0, 0)))
        k_shift = torch.zeros_like(k)
        for t in range(ks):
            k_shift = k_shift + k_pad[:, t:t + S, :] * shift_k[:, ks - 1 - t][None, None, :]
        kv = k_shift * v
        L = 2 * S
        kv_pad = _pad(kv, ((0, 0), (0, S), (0, 0)))
        kf_pad = _pad(ssm_k, ((0, 0), (0, S)))
        kv_f = (lambda x, axes=(-2,-1): torch.fft.rfft2(x.float(), dim=axes))(kv_pad[:, None, :, :], axes=(1, 2))
        kf_f = (lambda x, axes=(-2,-1): torch.fft.rfft2(x.float(), dim=axes))(kf_pad[:, None, :], axes=(1, 2))
        kf_f = (lambda x, *d: x.permute(*d))(kf_f, 1, 2, 0)
        y_f = kv_f * kf_f[None, :, :, :]
        y = (lambda x, s, axes=(-2,-1): torch.fft.irfft2(x, s=s, dim=axes).to(torch.bfloat16))(y_f, (1, L), axes=(1, 2))[:, 0, :S, :]
        y = y + kv * ssm_D[None, None, :]
        return q * y

    def _B_ref(x, wq, wk, wv, wo):
        B, S, D = x.shape
        H = 32
        Dh = D // H
        q = (lambda x, *d: x.permute(*d))((x @ wq).reshape(B, S, H, Dh), 0, 2, 1, 3)
        k = x @ wk
        v = x @ wv
        scores = torch.einsum("bhqd,bkd->bhqk", q, k) * (Dh ** -0.5)
        p = _softmax(scores, axis=-1)
        o = torch.einsum("bhqk,bkd->bhqd", p, v)
        return (lambda x, *d: x.permute(*d))(o, 0, 2, 1, 3).reshape(B, S, H * Dh) @ wo

    a = _A_ref(A_q, A_k, A_v, A_shift_k, A_ssm_k, A_ssm_D)
    b = _B_ref(B_x, B_wq, B_wk, B_wv, B_wo)
    return torch.concatenate([a, b], axis=-1)
```

```python
import re

TRANS = ("v_exp_f32", "v_log_f32", "v_rcp_f32", "v_rsq_f32", "v_sqrt_f32", "v_sin_f32", "v_cos_f32",
         "v_exp_f16", "v_rcp_iflag_f32")

def regs_of(tok):
    tok = tok.strip()
    neg = tok.startswith("-")
    if neg: tok = tok[1:]
    m = re.fullmatch(r"abs\((.*)\)|\|(.*)\|", tok)
    if m: tok = m.group(1) or m.group(2)
    m = re.fullmatch(r"([vsa])(\d+)", tok)
    if m: return [(m.group(1), int(m.group(2)))]
    m = re.fullmatch(r"([vsa])\[(\d+):(\d+)\]", tok)
    if m: return [(m.group(1), i) for i in range(int(m.group(2)), int(m.group(3)) + 1)]
    if tok == "vcc": return [("x", "vcc")]
    if tok in ("vcc_lo", "vcc_hi"): return [("x", "vcc")]
    if tok in ("exec", "exec_lo", "exec_hi"): return [("x", "exec")]
    if tok == "m0": return [("x", "m0")]
    return []

def mfma_passes(mn):
    if "_2b_" in mn: return 16
    if "_4b_" in mn: return 8
    if "32x32" in mn: return 8
    if "16x16" in mn: return 4
    raise ValueError(mn)

class Ins:
    def __init__(self, text):
        self.text = text
        t = text.split(";")[0].strip()
        self.label = None; self.mn = None
        self.w = []; self.r = []; self.kind = "other"; self.states = 1
        self.srcc = []; self.srcab = []; self.target = None
        self.mods = ""
        if not t or t.startswith("."):
            self.kind = "dir"; self.states = 0; return
        if t.endswith(":"):
            self.kind = "label"; self.label = t[:-1]; self.states = 0; return
        parts = t.split(None, 1)
        mn = parts[0]; self.mn = mn
        rest = parts[1] if len(parts) > 1 else ""
        ops = [o.strip() for o in rest.split(",")] if rest else []
        if ops:
            last = ops[-1].split()
            ops[-1] = last[0] if last else ""
            self.mods = " ".join(last[1:])
        R = [regs_of(o) for o in ops]
        base = re.sub(r"_(e32|e64|dpp|sdwa)$", "", mn)
        self.base = base
        if mn == "s_nop":
            self.kind = "nop"; self.states = int(ops[0], 0) + 1
        elif mn.startswith("v_mfma"):
            self.kind = "mfma"; self.passes = mfma_passes(mn)
            self.w = R[0]; self.srcab = R[1] + R[2]; self.srcc = R[3]; self.r = self.srcab + self.srcc
        elif mn.startswith("v_"):
            self.kind = "valu"
            self.w = list(R[0]); self.r = [x for o in R[1:] for x in o]
            if base.startswith("v_permlane") and "swap" in base:
                self.w = R[0] + R[1]; self.r = R[0] + R[1]
            if base in ("v_fmac_f32", "v_dot2c_f32_bf16", "v_pk_fmac_f16", "v_writelane_b32"):
                self.r += R[0]
            if base.startswith(("v_add_co", "v_sub_co", "v_addc_co", "v_subb_co", "v_mad_u64")):
                self.w = R[0] + R[1]; self.r = [x for o in R[2:] for x in o]
            if base.startswith("v_dot"): self.dot_ab = R[1] + R[2]
            if base.startswith("v_cmpx"): self.w += [("x", "exec")]
            self.dpp = mn.endswith("_dpp") or "row_" in self.mods or "wave_" in self.mods or "quad_perm" in self.mods
            if self.dpp: self.r += R[0]
            self.sdwa = mn.endswith("_sdwa") or "op_sel" in self.mods
            self.trans = base in TRANS
        elif mn.startswith("ds_"):
            self.kind = "ds"
            if mn.startswith(("ds_read", "ds_bpermute", "ds_permute", "ds_swizzle")) or "_rtn" in mn:
                self.w = R[0]; self.r = [x for o in R[1:] for x in o]
            else:
                self.r = [x for o in R for x in o]
        elif mn.startswith(("buffer_", "global_")):
            self.kind = "vmem"
            allm = self.mods.split()
            self.lds = "lds" in allm or "_lds_" in mn
            if mn.startswith(("buffer_wbl2", "buffer_inv")):
                pass
            elif "load" in mn and not self.lds:
                self.w = R[0]; self.r = [x for o in R[1:] for x in o]
            elif "atomic" in mn and "sc0" in allm:
                self.w = R[0]; self.r = [x for o in R for x in o]
            else:
                self.r = [x for o in R for x in o]
            if self.lds: self.r += [("x", "m0")]
            self.wide_store = ("store" in mn and ("x3" in mn or "x4" in mn))
            if self.wide_store:
                self.sdata = R[0] if mn.startswith("buffer_") else R[1]
        elif mn.startswith("s_"):
            self.kind = "salu"
            if mn.startswith(("s_cbranch", "s_branch")):
                self.kind = "branch"; self.target = ops[0]
            elif mn.startswith(("s_cmp", "s_waitcnt", "s_barrier", "s_endpgm", "s_setprio", "s_sleep", "s_bitcmp")):
                self.r = [x for o in R for x in o]
            else:
                self.w = list(R[0]) if R else []; self.r = [x for o in R[1:] for x in o]
                if "saveexec" in mn: self.w += [("x", "exec")]

def need(p, c):
    n = 0
    pw = set(p.w); cr = set(c.r); cw = set(c.w)
    if p.kind == "valu":
        vw = {x for x in pw if x[0] in "va"}
        sw = {x for x in pw if x[0] == "s" or x == ("x", "vcc")}
        if c.kind == "mfma" and vw & cr: n = max(n, 2)
        if c.kind == "valu":
            if p.trans and not c.trans and vw & cr: n = max(n, 1)
            if p.trans and c.trans and vw & cr: n = max(n, 1)
            if c.base.startswith("v_permlane") and vw & cr: n = max(n, 2)
            if c.dpp and vw & cr: n = max(n, 2)
            if c.base in ("v_readlane_b32", "v_readfirstlane_b32") and vw & cr: n = max(n, 1)
            if sw & cr:
                n = max(n, 4 if c.base in ("v_readlane_b32", "v_writelane_b32", "v_div_fmas_f32") else 2)
            if p.sdwa and vw & (cr | cw): n = max(n, 1)
            if ("x", "exec") in pw: n = max(n, 5)
        if p.base.startswith("v_dot") and c.kind in ("valu", "mfma", "vmem", "ds") and vw & (cr | cw):
            same_c = c.kind == "valu" and c.base == p.base and not (vw & set(getattr(c, "dot_ab", [])))
            if not same_c: n = max(n, 3)
        if c.kind == "mfma" and ("x", "exec") in pw: n = max(n, 4)
        if c.kind == "vmem" and sw & cr: n = max(n, 5)
        if c.kind in ("salu", "branch") and sw & cr: n = max(n, 1)
        if c.kind == "branch" and ("x", "vcc") in pw and "vcc" in c.mn: n = max(n, 5)
    if p.kind == "mfma":
        P = p.passes
        big = {2: 5, 4: 8, 8: 12, 16: 20}[P]
        if c.kind == "mfma":
            if pw & set(c.srcab): n = max(n, big)
            if pw & set(c.srcc):
                if p.w == c.srcc and c.passes == P: n = max(n, 2 if P == 2 else 0)
                else: n = max(n, {2: 4, 4: 6, 8: 10, 16: 18}[P])
            elif pw & cw:
                if c.passes < P: n = max(n, big)
        if c.kind in ("valu", "vmem", "ds") and pw & (cr | cw): n = max(n, big)
        if c.kind == "valu" and set(p.srcc) & cw: n = max(n, {2: 1, 4: 3, 8: 7, 16: 15}[P])
        if c.kind in ("vmem", "ds") and set(p.srcc) & cw: n = max(n, {2: 1, 4: 3, 8: 7, 16: 15}[P])
    if p.kind == "salu" and ("x", "m0") in pw and ("x", "m0") in cr and c.kind in ("vmem", "ds"): n = max(n, 1)
    if p.kind == "vmem" and p.wide_store and set(p.sdata) & cw:
        n = max(n, 2 if c.kind in ("valu", "mfma") else 1)
    return n

MAXD = 20

def check_seq(seq):
    out = []
    for j, c in enumerate(seq):
        if c.states == 0: continue
        d = 0
        worst = 0
        for i in range(j - 1, -1, -1):
            p = seq[i]
            if d >= MAXD: break
            if p.states and p.kind != "nop":
                k = need(p, c)
                if k > d: worst = max(worst, k - d)
            d += p.states
        if worst: out.append((j, worst))
    return out

class Asm:
    def __init__(self):
        self.lines = []
        self.uid = 0
    def __call__(self, text):
        for l in text.split("\n"):
            if l.strip(): self.lines.append(l.strip())
    def label(self, name): self.lines.append(name + ":")
    def newlabel(self, p="L"):
        self.uid += 1; return f"{p}_{self.uid}"
    def finalize(self, verbose=False):
        seq = [Ins(l) for l in self.lines]
        res = []
        ninserted = 0
        for c in seq:
            if c.states:
                d = 0; worst = 0
                for p in reversed(res):
                    if d >= MAXD: break
                    if p.kind == "branch" and p.mn == "s_branch": break
                    if p.mn == "s_endpgm": break
                    if p.states and p.kind != "nop":
                        k = need(p, c)
                        if k > d: worst = max(worst, k - d)
                    d += p.states
                while worst > 0:
                    n = min(worst, 16)
                    res.append(Ins(f"s_nop {n-1}")); ninserted += 1
                    if verbose: print(f"  inserted s_nop {n-1} before: {c.text}")
                    worst -= n
            res.append(c)
        labels = {x.label: i for i, x in enumerate(res) if x.kind == "label"}
        for b, x in enumerate(res):
            if x.kind == "branch":
                a = labels[x.target]
                pre = res[max(0, b - 40):b + 1]
                post = res[a:a + 40]
                for j, miss in check_seq(pre + post):
                    if j >= len(pre):
                        if not [1 for jj, _ in check_seq(post) if jj == j - len(pre)]:
                            raise RuntimeError(f"hazard across branch {x.text} -> {(pre+post)[j].text} missing {miss}")
        return "\n".join(("" if x.kind == "label" else "    ") + x.text for x in res) + "\n"
```

```python
import sys, math, struct
sys.path.insert(0, "gen")
from asmlib import Asm

NAME = "concat_heads__ssm_conv_h3__grouped_kv_mqa__prompt"
S, D, H, DH = 2048, 640, 32, 20
ACT_BYTES = S * D * 2
WS_Q = 0
WS_O = WS_Q + ACT_BYTES
WS_Z = WS_O + ACT_BYTES
WS_XT = WS_Z + ACT_BYTES
WS_KV = WS_XT + 2 * ACT_BYTES
TILE = 2816
KR_OFF, K1_OFF, V0_OFF, V1_OFF = 0, 256, 1280, 2048
WS_HP = WS_KV + 72 * TILE
WS_ST = WS_HP + 640 * 256
WS_END = WS_ST + 1024
QSCALE = (DH ** -0.5) * math.log2(math.e)

def f2u(x): return struct.unpack("<I", struct.pack("<f", x))[0]

P_AQ, P_AK, P_AV, P_SH, P_SK, P_SD, P_X, P_WQ, P_WK, P_WV, P_WO, P_OUT, P_DBG, P_WS = [16 + 2 * i for i in range(14)]

def srd(a, r, ptr, nbytes, off=0):
    if off:
        a(f"s_add_u32 s{r}, s{ptr}, {off}")
        a(f"s_addc_u32 s{r+1}, s{ptr+1}, 0")
    else:
        a(f"s_mov_b32 s{r}, s{ptr}")
        a(f"s_mov_b32 s{r+1}, s{ptr+1}")
    a(f"s_mov_b32 s{r+2}, {nbytes}")
    a(f"s_mov_b32 s{r+3}, 0x20000")

def common_prologue(a, endlabel):
    a(f"""
    s_cmp_ge_u32 s2, 256
    s_cbranch_scc1 {endlabel}
    s_load_dwordx16 s[16:31], s[0:1], 0
    s_load_dwordx8 s[32:39], s[0:1], 64
    s_load_dwordx4 s[40:43], s[0:1], 96
    v_lshrrev_b32 v1, 6, v0
    s_and_b32 s3, s2, 7
    s_lshl_b32 s3, s3, 2
    s_lshr_b32 s4, s2, 3
    v_readfirstlane_b32 s5, v1
    s_and_b32 s6, s4, 3
    s_add_u32 s3, s3, s6
    s_lshr_b32 s4, s4, 2
    v_and_b32 v1, 63, v0          ; v1 = lane
    v_mov_b32 v48, -1
    """)

LDS_W = 0
LDS_WKV = 102400
LDS_SCR = 128000
XF = 64
AF = 104
ACC = 144
V_DMA = 40
V_X, V_TR1, V_TR2 = 45, 46, 47
S_X, S_W = 44, 48

def gemm_addr(a):
    a(f"""
    s_lshr_b32 s6, s5, 1
    s_and_b32 s7, s5, 1
    s_lshl_b32 s8, s3, 6
    s_lshl_b32 s9, s6, 4
    s_add_u32 s8, s8, s9
    s_mul_i32 s8, s8, 1280
    s_mul_i32 s9, s7, 640
    s_add_u32 s8, s8, s9
    v_and_b32 v2, 15, v1
    v_lshrrev_b32 v3, 4, v1
    v_mul_u32_u24 v{V_X}, 1280, v2
    v_lshl_add_u32 v{V_X}, v3, 4, v{V_X}
    v_add_u32 v{V_X}, s8, v{V_X}
    s_lshl_b32 s8, s6, 6
    s_mul_i32 s9, s7, {320*1280}
    s_mul_i32 s10, s4, 160
    s_add_u32 s9, s9, s10
    """)
    for n in range(5):
        a(f"""
        v_add_u32 v4, s8, v1
        v_add_u32 v4, {256*n}, v4
        v_mul_u32_u24 v5, 6554, v4
        v_lshrrev_b32 v5, 16, v5
        v_mul_u32_u24 v6, 10, v5
        v_sub_u32 v6, v4, v6
        v_lshrrev_b32 v7, 1, v5
        v_and_b32 v7, 4, v7
        v_xor_b32 v5, v5, v7
        v_mul_u32_u24 v5, 1280, v5
        v_lshl_add_u32 v5, v6, 4, v5
        v_add_u32 v{V_DMA+n}, s9, v5
        """)
    a(f"""
    v_bfe_u32 v4, v1, 2, 2
    v_lshl_add_u32 v4, v3, 3, v4
    v_and_b32 v5, 1, v3
    v_lshlrev_b32 v5, 2, v5
    v_add_u32 v6, v4, v5
    v_xor_b32 v7, 4, v6
    v_and_b32 v5, 3, v1
    v_lshlrev_b32 v5, 3, v5
    s_mul_i32 s8, s7, {320*160}
    v_add_u32 v5, s8, v5
    v_mad_u32_u24 v{V_TR1}, v6, s11, v5
    v_mad_u32_u24 v{V_TR2}, v7, s11, v5
    """.replace("s11", "s11"))

def gemm_dma(a, n):
    a(f"s_add_u32 m0, s12, {LDS_W + 4096*n}")
    a(f"buffer_load_dwordx4 v{V_DMA + n % 5}, s[{S_W}:{S_W+3}], s{13 + n // 5} offen lds")

def gemm_issue(a, mid=None):
    a(f"""
    s_mul_i32 s12, s7, 50
    s_add_u32 s12, s12, s6
    s_lshl_b32 s12, s12, 10
    s_mov_b32 s13, 0
    s_mov_b32 s14, {128*1280}
    s_mov_b32 s15, {256*1280}
    """)
    skip = a.newlabel()
    a(f"s_cmp_ge_u32 s6, 2\ns_cbranch_scc1 {skip}")
    gemm_dma(a, 12)
    a.label(skip)
    if mid: mid(a)
    for ks in range(10):
        a(f"buffer_load_dwordx4 v[{XF+4*ks}:{XF+4*ks+3}], v{V_X}, s[{S_X}:{S_X+3}], 0 offen offset:{64*ks}")
    for n in range(12):
        gemm_dma(a, n)

def gemm_reads(a, ks):
    b = AF + 20 * (ks % 2)
    for nb in range(5):
        a(f"ds_read_b64_tr_b16 v[{b+4*nb}:{b+4*nb+1}], v{V_TR1} offset:{LDS_W + ks*5120 + nb*32}")
        a(f"ds_read_b64_tr_b16 v[{b+4*nb+2}:{b+4*nb+3}], v{V_TR2} offset:{LDS_W + ks*5120 + nb*32}")

def gemm_mfma(a, ks):
    b = AF + 20 * (ks % 2)
    for nb in range(5):
        c = "0" if ks == 0 else f"v[{ACC+4*nb}:{ACC+4*nb+3}]"
        a(f"v_mfma_f32_16x16x32_bf16 v[{ACC+4*nb}:{ACC+4*nb+3}], v[{b+4*nb}:{b+4*nb+3}], v[{XF+4*ks}:{XF+4*ks+3}], {c}")

def gemm_compute(a):
    stages = [(0, 4, 7), (4, 8, 2), (8, 10, 0)]
    for (k0, k1, vm) in stages:
        a(f"s_waitcnt vmcnt({vm})\ns_barrier")
        gemm_reads(a, k0)
        for ks in range(k0, k1):
            if ks + 1 < k1:
                gemm_reads(a, ks + 1)
                a("s_waitcnt lgkmcnt(10)")
            else:
                a("s_waitcnt lgkmcnt(0)")
            gemm_mfma(a, ks)

def gemm_exchange(a, nextra):
    a(f"""
    s_lshl_b32 s8, s5, 12
    v_lshlrev_b32 v2, 4, v1
    s_add_u32 s9, s8, {LDS_SCR}
    v_add_u32 v3, s9, v2
    s_xor_b32 s8, s8, 4096
    s_add_u32 s9, s8, {LDS_SCR}
    v_add_u32 v2, s9, v2
    """)
    l1, l2 = a.newlabel(), a.newlabel()
    give0 = [3, 4] + list(range(5, 5 + nextra)); give1 = [0, 1, 2]
    a(f"s_cmp_eq_u32 s7, 1\ns_cbranch_scc1 {l1}")
    for i, nb in enumerate(give0):
        a(f"ds_write_b128 v3, v[{ACC+4*nb}:{ACC+4*nb+3}] offset:{1024*i}")
    a(f"s_branch {l2}")
    a.label(l1)
    a("s_nop 7")
    for i, nb in enumerate(give1):
        a(f"ds_write_b128 v3, v[{ACC+4*nb}:{ACC+4*nb+3}] offset:{1024*i}")
    a.label(l2)
    a("s_waitcnt lgkmcnt(0)\ns_barrier")
    for i in range(max(len(give0), 3)):
        a(f"ds_read_b128 v[{AF+4*i}:{AF+4*i+3}], v2 offset:{1024*i}")
    a("s_waitcnt lgkmcnt(0)")
    return give1, give0

def add_partner(a, blocks):
    for i, nb in enumerate(blocks):
        for r in range(4):
            a(f"v_add_f32 v{ACC+4*nb+r}, v{ACC+4*nb+r}, v{AF+4*i+r}")

def kernel_prep():
    a = Asm()
    END = "prep_end"
    common_prologue(a, END)
    a("s_movk_i32 s11, 160")
    gemm_addr(a)
    a("s_waitcnt lgkmcnt(0)")
    srd(a, S_X, P_X, ACT_BYTES)
    srd(a, S_W, P_WQ, D * D * 2)
    S_K, S_V, S_SH, S_WS, S_WKV, S_SK, S_SD = 52, 56, 60, 64, 68, 72, 76
    srd(a, S_WS, P_WS, WS_END)
    a(f"""
    s_cmp_ge_u32 s4, 4
    s_cselect_b32 s{S_WKV}, s{P_WV}, s{P_WK}
    s_cselect_b32 s{S_WKV+1}, s{P_WV+1}, s{P_WK+1}
    s_mov_b32 s{S_WKV+2}, 25600
    s_mov_b32 s{S_WKV+3}, 0x20000
    """)
    KR, VR, WR = 176, 188, 197
    WR = 198
    l_role_done, l_hp = a.newlabel(), a.newlabel()
    a(f"s_cmp_ge_u32 s5, 5\ns_cbranch_scc1 {l_hp}")
    srd(a, S_K, P_AK, ACT_BYTES)
    srd(a, S_V, P_AV, ACT_BYTES)
    srd(a, S_SH, P_SH, D * 8)
    a(f"""
    v_and_b32 v2, 7, v1
    v_lshrrev_b32 v3, 3, v1
    s_lshl_b32 s8, s5, 4
    s_mul_i32 s9, s4, 80
    s_add_u32 s8, s8, s9
    v_lshl_add_u32 v3, v3, 1, s8          ; c0
    s_lshl_b32 s8, s3, 3
    v_add_u32 v2, s8, v2                  ; g = t0/8
    v_mul_u32_u24 v4, {8*1280}, v2
    v_lshl_add_u32 v4, v3, 1, v4          ; vbase
    v_subrev_u32 v5, {4*1280}, v4         ; vneg
    v_lshlrev_b32 v6, 3, v3
    v_sub_u32 v48, 255, v2
    v_lshlrev_b32 v48, 5, v48
    v_lshl_add_u32 v48, v3, 13, v48
    s_movk_i32 s8, {4*1280}
    """)
    a(f"buffer_load_dwordx4 v[{WR}:{WR+3}], v6, s[{S_SH}:{S_SH+3}], 0 offen")
    for r in range(12):
        va, so = ("v5", "0") if r < 4 else (("v4", "0") if r < 8 else ("v4", "s8"))
        a(f"buffer_load_dword v{KR+r}, {va}, s[{S_K}:{S_K+3}], {so} offen offset:{1280*(r%4)}")
    for r in range(9):
        rr = r + 3
        va, so = ("v5", "0") if rr < 4 else (("v4", "0") if rr < 8 else ("v4", "s8"))
        a(f"buffer_load_dword v{VR+r}, {va}, s[{S_V}:{S_V+3}], {so} offen offset:{1280*(rr%4)}")
    a(f"s_branch {l_role_done}")
    a.label(l_hp)
    srd(a, S_SK, P_SK, ACT_BYTES)
    srd(a, S_SD, P_SD, D * 2)
    a(f"""
    s_sub_u32 s8, s5, 5
    s_lshl_b32 s8, s8, 8
    s_add_u32 s8, s8, s2
    s_lshl_b32 s9, s8, 12
    v_subrev_u32 v2, 16, v1
    v_lshlrev_b32 v2, 2, v2
    v_add_u32 v3, s9, v2
    v_ashrrev_i32 v2, 31, v2
    v_or_b32 v3, v2, v3
    s_lshl_b32 s9, s8, 1
    v_mov_b32 v4, s9
    s_lshl_b32 s9, s8, 8
    s_add_u32 s9, s9, {WS_HP}
    s_cmp_ge_u32 s8, 640
    s_cselect_b32 s9, 0x7fffff00, s9
    v_lshl_add_u32 v48, v1, 2, s9
    buffer_load_dword v{KR}, v3, s[{S_SK}:{S_SK+3}], 0 offen
    buffer_load_ushort v{KR+1}, v4, s[{S_SD}:{S_SD+3}], 0 offen
    """)
    a.label(l_role_done)
    def wkv(a):
        a(f"""
        v_lshlrev_b32 v2, 4, v1
        s_lshl_b32 s8, s5, 10
        """)
        sk = a.newlabel()
        a(f"s_cmp_lg_u32 s5, 0\ns_cbranch_scc1 {sk}")
        a(f"s_mov_b32 m0, {LDS_WKV + 24*1024}\ns_movk_i32 s9, {24*1024}")
        a(f"buffer_load_dwordx4 v2, s[{S_WKV}:{S_WKV+3}], s9 offen lds")
        a.label(sk)
        for i in range(3):
            a(f"s_add_u32 s9, s8, {8192*i}\ns_add_u32 m0, s9, {LDS_WKV}")
            a(f"buffer_load_dwordx4 v2, s[{S_WKV}:{S_WKV+3}], s9 offen lds")
    gemm_issue(a, wkv)
    l_c_done, l_c_hp = a.newlabel(), a.newlabel()
    a("s_waitcnt vmcnt(25)")
    a(f"s_cmp_ge_u32 s5, 5\ns_cbranch_scc1 {l_c_hp}")
    KU, VU, WU, KV, PK = 204, 228, 8, 16, 176
    a("s_mov_b32 s8, 0xffff0000")
    for j in range(4):
        for c in range(2):
            src = WR + 2 * c + j // 2
            if j % 2 == 0: a(f"v_lshlrev_b32 v{WU+2*j+c}, 16, v{src}")
            else: a(f"v_and_b32 v{WU+2*j+c}, s8, v{src}")
    for r in range(12):
        a(f"v_lshlrev_b32 v{KU+2*r}, 16, v{KR+r}\nv_and_b32 v{KU+2*r+1}, s8, v{KR+r}")
    for r in range(9):
        a(f"v_lshlrev_b32 v{VU+2*r}, 16, v{VR+r}\nv_and_b32 v{VU+2*r+1}, s8, v{VR+r}")
    def pr(b): return f"v[{b}:{b+1}]"
    for i in range(9):
        a(f"v_pk_mul_f32 {pr(KV+2*i)}, {pr(KU+2*(i+0))}, {pr(WU+6)}")
    for j in (2, 1, 0):
        for i in range(9):
            a(f"v_pk_fma_f32 {pr(KV+2*i)}, {pr(KU+2*(i+3-j))}, {pr(WU+2*j)}, {pr(KV+2*i)}")
    for i in range(9):
        a(f"v_pk_mul_f32 {pr(KV+2*i)}, {pr(KV+2*i)}, {pr(VU+2*i)}")
    for c in range(2):
        for cp in range(2):
            for d in range(4):
                lo = 7 - cp - 2 * d; hi = lo - 1
                a(f"v_cvt_pk_bf16_f32 v{PK+8*c+4*cp+d}, v{KV+2*(lo+1)+c}, v{KV+2*(hi+1)+c}")
    a(f"s_branch {l_c_done}")
    a.label(l_c_hp)
    a(f"""
    v_lshlrev_b32 v2, 16, v{KR}
    v_lshlrev_b32 v3, 16, v{KR+1}
    v_add_f32 v2, v2, v3
    v_and_b32 v3, 0xffff0000, v{KR}
    v_cvt_pk_bf16_f32 v2, v2, v3
    s_mov_b64 s[8:9], 0x10000
    v_cndmask_b32 v{KR}, v{KR}, v2, s[8:9]
    """)
    a.label(l_c_done)
    gemm_compute(a)
    l_s_done, l_s_hp = a.newlabel(), a.newlabel()
    a(f"s_cmp_ge_u32 s5, 5\ns_cbranch_scc1 {l_s_hp}")
    a(f"s_mov_b32 s8, {WS_XT}\ns_mov_b32 s9, {WS_XT + 8192}")
    for c in range(2):
        for cp in range(2):
            a(f"buffer_store_dwordx4 v[{PK+8*c+4*cp}:{PK+8*c+4*cp+3}], v48, s[{S_WS}:{S_WS+3}], s{8+c} offen offset:{16*cp}")
    a(f"s_branch {l_s_done}")
    a.label(l_s_hp)
    a(f"buffer_store_dword v{KR}, v48, s[{S_WS}:{S_WS+3}], 0 offen")
    a.label(l_s_done)
    l_nokv, l_v, l_kvdone = a.newlabel(), a.newlabel(), a.newlabel()
    a(f"""
    s_and_b32 s8, s4, 3
    s_cmp_lg_u32 s8, s6
    s_cbranch_scc1 {l_nokv}
    v_lshrrev_b32 v3, 4, v1
    v_bfe_u32 v4, v1, 2, 2
    v_lshl_add_u32 v4, v3, 3, v4
    v_mul_u32_u24 v4, 40, v4
    s_mul_i32 s8, s7, {320*40}
    s_add_u32 s8, s8, {LDS_WKV}
    v_add_u32 v4, s8, v4
    v_and_b32 v5, 3, v1
    v_lshl_add_u32 v5, v5, 3, v4
    """)
    T0 = 204
    def kvpart(isv):
        for half in range(2):
            for i in range(5):
                ks = 5 * half + i
                b = T0 + 8 * i
                a(f"ds_read_b64_tr_b16 v[{b}:{b+1}], v5 offset:{ks*1280}")
                a(f"ds_read_b64_tr_b16 v[{b+2}:{b+3}], v5 offset:{ks*1280+160}")
                a(f"ds_read_b64_tr_b16 v[{b+4}:{b+5}], v4 offset:{ks*1280+32}")
                a(f"ds_read_b64_tr_b16 v[{b+6}:{b+7}], v4 offset:{ks*1280+192}")
                if i == 2: a("s_waitcnt lgkmcnt(0)")
            a("s_waitcnt lgkmcnt(0)")
            for i in range(5):
                ks = 5 * half + i
                for blk in range(2):
                    b = T0 + 8 * i + 4 * blk
                    d = f"v[{ACC+20+4*blk}:{ACC+23+4*blk}]"
                    c = "0" if ks == 0 else d
                    w_, x_ = f"v[{b}:{b+3}]", f"v[{XF+4*ks}:{XF+4*ks+3}]"
                    a(f"v_mfma_f32_16x16x32_bf16 {d}, {x_ if isv else w_}, {w_ if isv else x_}, {c}")
    a(f"s_cmp_ge_u32 s4, 4\ns_cbranch_scc1 {l_v}")
    kvpart(False)
    a(f"s_branch {l_nokv}")
    a.label(l_v)
    kvpart(True)
    a.label(l_nokv)
    a("s_nop 7")
    keep0, keep1 = gemm_exchange(a, 2)
    a(f"""
    s_lshl_b32 s8, s3, 6
    s_lshl_b32 s9, s6, 4
    s_add_u32 s8, s8, s9
    s_mul_i32 s8, s8, 1280
    s_mul_i32 s9, s4, 160
    s_add_u32 s8, s8, s9
    v_and_b32 v2, 15, v1
    v_lshrrev_b32 v3, 4, v1
    v_mul_u32_u24 v4, 1280, v2
    v_lshl_add_u32 v4, v3, 3, v4
    v_add_u32 v4, s8, v4
    s_mov_b32 s8, 0xffff0000
    s_mov_b32 s9, {f2u(QSCALE)}
    """)
    def qstore(nb):
        b = ACC + 4 * nb
        for p in range(2):
            a(f"""
            v_cvt_pk_bf16_f32 v6, v{b+2*p}, v{b+2*p+1}
            v_lshlrev_b32 v7, 16, v6
            v_and_b32 v6, s8, v6
            v_mul_f32 v7, s9, v7
            v_mul_f32 v6, s9, v6
            v_cvt_pk_bf16_f32 v{b+p}, v7, v6
            """)
        a(f"buffer_store_dwordx2 v[{b}:{b+1}], v4, s[{S_WS}:{S_WS+3}], 0 offen offset:{WS_Q + 32*nb}")
    l_k1 = a.newlabel()
    a(f"s_cmp_eq_u32 s7, 1\ns_cbranch_scc1 {l_k1}")
    add_partner(a, keep0)
    for nb in keep0: qstore(nb)
    a(f"s_branch {END}")
    a.label(l_k1)
    add_partner(a, keep1)
    for nb in (3, 4): qstore(nb)
    a(f"""
    s_and_b32 s10, s4, 3
    s_cmp_lg_u32 s10, s6
    s_cbranch_scc1 {END}
    s_lshr_b32 s12, s10, 1
    s_lshl_b32 s13, s3, 1
    s_add_u32 s12, s12, s13
    s_mul_i32 s12, s12, {TILE}
    s_add_u32 s12, s12, {WS_KV}
    s_and_b32 s13, s10, 1
    s_lshl_b32 s14, s3, 2
    s_add_u32 s14, s14, s10
    s_lshl_b32 s14, s14, 2
    s_add_u32 s14, s14, {WS_ST}
    """)
    B0, B1 = ACC + 20, ACC + 24
    for b in (B0, B1):
        a(f"v_cvt_pk_bf16_f32 v{b}, v{b}, v{b+1}\nv_cvt_pk_bf16_f32 v{b+1}, v{b+2}, v{b+3}")
    l_vst = a.newlabel()
    a(f"s_cmp_ge_u32 s4, 4\ns_cbranch_scc1 {l_vst}")
    a(f"""
    s_lshl_b32 s13, s13, 4
    v_add_u32 v5, s13, v2
    v_lshrrev_b32 v6, 1, v3
    v_lshl_add_u32 v6, v6, 5, v5
    v_lshlrev_b32 v6, 4, v6
    v_and_b32 v7, 1, v3
    v_lshl_add_u32 v6, v7, 3, v6
    buffer_store_dwordx2 v[{B0}:{B0+1}], v6, s[{S_WS}:{S_WS+3}], s12 offen offset:{K1_OFF}
    v_lshlrev_b32 v5, 3, v5
    buffer_store_dwordx2 v[{B1}:{B1+1}], v5, s[{S_WS}:{S_WS+3}], s12 offen offset:{KR_OFF}
    v_mov_b32 v8, 0
    v_dot2c_f32_bf16 v8, v{B0}, v{B0}
    v_dot2c_f32_bf16 v8, v{B0+1}, v{B0+1}
    s_nop 2
    v_mov_b32 v9, v8
    v_permlane16_swap_b32 v8, v9
    v_add_f32 v8, v8, v9
    v_mov_b32 v9, v8
    v_permlane32_swap_b32 v8, v9
    v_add_f32 v8, v8, v9
    v_dot2c_f32_bf16 v8, v{B1}, v{B1}
    v_dot2c_f32_bf16 v8, v{B1+1}, v{B1+1}
    """)
    l_stat = a.newlabel()
    a(f"s_branch {l_stat}")
    a.label(l_vst)
    a(f"""
    s_mul_i32 s13, s13, {V1_OFF - V0_OFF}
    s_add_u32 s12, s12, s13
    s_add_u32 s14, s14, 512
    v_and_b32 v5, 1, v3
    v_mul_u32_u24 v5, 20, v5
    v_lshrrev_b32 v7, 1, v3
    v_lshlrev_b32 v7, 3, v7
    v_add_u32 v6, v5, v2
    v_lshl_add_u32 v6, v6, 4, v7
    buffer_store_dwordx2 v[{B0}:{B0+1}], v6, s[{S_WS}:{S_WS+3}], s12 offen offset:{V0_OFF}
    v_and_b32 v6, 3, v2
    v_add_u32 v6, v5, v6
    v_lshl_add_u32 v6, v6, 4, v7
    buffer_store_dwordx2 v[{B1}:{B1+1}], v6, s[{S_WS}:{S_WS+3}], s12 offen offset:{V0_OFF + 256}
    v_mov_b32 v10, 0x3f803f80
    v_and_b32 v6, 3, v1
    v_lshlrev_b32 v6, 2, v6
    buffer_store_dword v10, v6, s[{S_WS}:{S_WS+3}], s12 offen offset:{V0_OFF + 640}
    s_mov_b32 s15, 0x7fff0000
    v_mov_b32 v8, 0
    """)
    for b in (B0, B0 + 1, B1, B1 + 1):
        a(f"""
        v_lshlrev_b32 v9, 16, v{b}
        v_and_b32 v9, s15, v9
        v_and_b32 v10, s15, v{b}
        v_max3_f32 v8, v8, v9, v10
        """)
    a("""
    v_mov_b32 v9, v8
    v_permlane16_swap_b32 v8, v9
    v_max_f32 v8, v8, v9
    v_mov_b32 v9, v8
    v_permlane32_swap_b32 v8, v9
    v_max_f32 v8, v8, v9
    """)
    a.label(l_stat)
    a("s_nop 2")
    for sh in (1, 2, 4, 8):
        a(f"v_max_f32_dpp v8, v8, v8 row_shr:{sh} row_mask:0xf bank_mask:0xf")
    a(f"""
    v_readlane_b32 s15, v8, 15
    v_mov_b32 v9, 0
    v_mov_b32 v8, s15
    buffer_store_dword v8, v9, s[{S_WS}:{S_WS+3}], s14 offen
    """)
    a.label(END)
    a("s_endpgm")
    return a.finalize()

def kernel_final():
    a = Asm()
    END = "fin_end"
    common_prologue(a, END)
    a("s_movk_i32 s11, 160")
    gemm_addr(a)
    a("s_waitcnt lgkmcnt(0)")
    srd(a, S_X, P_WS, ACT_BYTES, WS_O)
    srd(a, S_W, P_WO, D * D * 2)
    S_Q, S_Z, S_OUT = 52, 56, 60
    srd(a, S_OUT, P_OUT, 2 * ACT_BYTES)
    ZR, QR = 176, 184
    l_role_done = a.newlabel()
    a(f"s_cmp_ge_u32 s5, 5\ns_cbranch_scc1 {l_role_done}")
    srd(a, S_Q, P_AQ, ACT_BYTES)
    srd(a, S_Z, P_WS, ACT_BYTES, WS_Z)
    a(f"""
    v_and_b32 v2, 15, v1
    v_lshrrev_b32 v3, 4, v1
    s_lshl_b32 s8, s5, 4
    s_mul_i32 s9, s4, 80
    s_add_u32 s8, s8, s9
    v_lshl_add_u32 v3, v3, 2, s8          ; c0
    s_lshl_b32 s8, s3, 6
    v_lshl_add_u32 v2, v2, 2, s8          ; t0
    v_lshlrev_b32 v4, 12, v3
    v_lshl_add_u32 v4, v2, 1, v4          ; z offset
    v_mul_u32_u24 v5, 1280, v2
    v_lshlrev_b32 v48, 1, v5
    v_lshl_add_u32 v5, v3, 1, v5          ; q offset
    v_lshl_add_u32 v48, v3, 1, v48
    """)
    for i in range(4):
        a(f"s_movk_i32 s8, {4096*i}")
        a(f"buffer_load_dwordx2 v[{ZR+2*i}:{ZR+2*i+1}], v4, s[{S_Z}:{S_Z+3}], s8 offen")
    for j in range(4):
        a(f"buffer_load_dwordx2 v[{QR+2*j}:{QR+2*j+1}], v5, s[{S_Q}:{S_Q+3}], 0 offen offset:{1280*j}")
    a.label(l_role_done)
    gemm_issue(a)
    l_c_done = a.newlabel()
    a("s_waitcnt vmcnt(22)")
    a(f"s_cmp_ge_u32 s5, 5\ns_cbranch_scc1 {l_c_done}")
    a("s_mov_b32 s8, 0xffff0000")
    ZU, QU, PK = 200, 216, 192
    def unp(dst, src, hi):
        if hi: a(f"v_and_b32 v{dst}, s8, v{src}")
        else: a(f"v_lshlrev_b32 v{dst}, 16, v{src}")
    for j in range(4):
        for i in range(4):
            unp(ZU + 4 * j + i, ZR + 2 * i + j // 2, j % 2)
            unp(QU + 4 * j + i, QR + 2 * j + i // 2, i % 2)
    for e in range(0, 16, 2):
        a(f"v_pk_mul_f32 v[{ZU+e}:{ZU+e+1}], v[{ZU+e}:{ZU+e+1}], v[{QU+e}:{QU+e+1}]")
    for e in range(0, 16, 2):
        a(f"v_cvt_pk_bf16_f32 v{PK+e//2}, v{ZU+e}, v{ZU+e+1}")
    a.label(l_c_done)
    gemm_compute(a)
    l_s_done = a.newlabel()
    a(f"s_cmp_ge_u32 s5, 5\ns_cbranch_scc1 {l_s_done}")
    a("s_movk_i32 s8, 5120")
    for j in range(4):
        a(f"buffer_store_dwordx2 v[{PK+2*j}:{PK+2*j+1}], v48, s[{S_OUT}:{S_OUT+3}], {'s8' if j >= 2 else '0'} offen offset:{2560*(j%2)}")
    a.label(l_s_done)
    a("s_nop 7")
    keep0, keep1 = gemm_exchange(a, 0)
    a(f"""
    s_lshl_b32 s8, s3, 6
    s_lshl_b32 s9, s6, 4
    s_add_u32 s8, s8, s9
    s_mul_i32 s8, s8, 2560
    s_mul_i32 s9, s4, 160
    s_add_u32 s8, s8, s9
    v_and_b32 v2, 15, v1
    v_lshrrev_b32 v3, 4, v1
    v_mul_u32_u24 v4, 2560, v2
    v_lshl_add_u32 v4, v3, 3, v4
    v_add_u32 v4, s8, v4
    """)
    def ostore(nb):
        b = ACC + 4 * nb
        a(f"v_cvt_pk_bf16_f32 v{b}, v{b}, v{b+1}\nv_cvt_pk_bf16_f32 v{b+1}, v{b+2}, v{b+3}")
        a(f"buffer_store_dwordx2 v[{b}:{b+1}], v4, s[{S_OUT}:{S_OUT+3}], 0 offen offset:{1280 + 32*nb}")
    l_k1 = a.newlabel()
    a(f"s_cmp_eq_u32 s7, 1\ns_cbranch_scc1 {l_k1}")
    add_partner(a, keep0)
    for nb in keep0: ostore(nb)
    a(f"s_branch {END}")
    a.label(l_k1)
    add_partner(a, keep1)
    for nb in keep1: ostore(nb)
    a.label(END)
    a("s_endpgm")
    return a.finalize()

def kernel_attn():
    a = Asm()
    END = "att_end"
    common_prologue(a, END)
    V_K1, V_KR, V_V, V_A, V_B, V_Z = 2, 3, 4, 5, 6, 7
    QM, QR = 8, 24
    KB = [28, 42]
    T = 56
    O, SR, C = 64, 128, 192
    S_WS, S_H, S_SP, S_XT = 44, 48, 52, 56
    ZST = 8840
    RED = 32768
    a(f"""
    s_and_b32 s6, s5, 1                 ; g
    s_lshr_b32 s7, s5, 1                ; kq
    v_and_b32 v{T}, 31, v1
    v_lshrrev_b32 v{T+1}, 5, v1
    v_lshlrev_b32 v{V_K1}, 4, v1
    v_lshlrev_b32 v{V_KR}, 3, v{T}
    v_lshrrev_b32 v{T+2}, 3, v{T}
    v_and_b32 v{T+3}, 3, v{T}
    v_lshl_add_u32 v{T+2}, v{T+2}, 2, v{T+3}
    v_bfe_u32 v{T+3}, v{T}, 2, 1
    v_mad_u32_u24 v{T+3}, v{T+3}, 10, v{T+2}
    v_mad_u32_u24 v{T+3}, v{T+1}, 20, v{T+3}
    v_cmp_gt_u32 s[8:9], 10, v{T+2}
    v_mov_b32 v{T+4}, 40
    v_cndmask_b32 v{T+3}, v{T+4}, v{T+3}, s[8:9]
    v_lshlrev_b32 v{V_V}, 4, v{T+3}
    ; Q address
    s_lshl_b32 s8, s3, 6
    s_lshl_b32 s9, s6, 5
    s_add_u32 s8, s8, s9
    s_mul_i32 s8, s8, 1280
    s_mul_i32 s9, s4, 160
    s_add_u32 s10, s8, s9
    v_mul_u32_u24 v{T+2}, 1280, v{T}
    v_lshl_add_u32 v{T+3}, v{T+1}, 4, v{T+2}
    v_mad_u32_u24 v{T+4}, v{T+1}, 40, v{T+2}
    v_lshlrev_b32 v{T+5}, 3, v1
    s_mul_i32 s11, s7, {16*TILE}
    s_add_u32 s11, s11, {WS_KV}         ; s11 = tile base of this wave's first tile
    s_mov_b32 s12, {WS_ST}
    s_waitcnt lgkmcnt(0)
    """)
    srd(a, S_WS, P_WS, WS_END)
    W = f"s[{S_WS}:{S_WS+3}]"
    for j in range(4):
        a(f"buffer_load_dwordx4 v[{QM+4*j}:{QM+4*j+3}], v{T+3}, {W}, s10 offen offset:{WS_Q + 40*j}")
    for p in range(2):
        a(f"buffer_load_dwordx2 v[{QR+2*p}:{QR+2*p+1}], v{T+4}, {W}, s10 offen offset:{WS_Q + 80*p + 32}")
    def loadK(buf, off):
        a(f"buffer_load_dwordx4 v[{buf}:{buf+3}], v{V_K1}, {W}, s11 offen offset:{off + K1_OFF}")
        a(f"buffer_load_dwordx2 v[{buf+4}:{buf+5}], v{V_KR}, {W}, s11 offen offset:{off + KR_OFF}")
    def loadV(buf, off):
        a(f"buffer_load_dwordx4 v[{buf+6}:{buf+9}], v{V_V}, {W}, s11 offen offset:{off + V0_OFF}")
        a(f"buffer_load_dwordx4 v[{buf+10}:{buf+13}], v{V_V}, {W}, s11 offen offset:{off + V1_OFF}")
    a(f"buffer_load_dwordx2 v[{KB[1]+6}:{KB[1]+7}], v{T+5}, {W}, s12 offen")
    a(f"buffer_load_dwordx2 v[{KB[1]+8}:{KB[1]+9}], v{T+5}, {W}, s12 offen offset:512")
    loadK(KB[0], 0); loadV(KB[0], 0); loadK(KB[1], TILE)
    a(f"s_add_u32 s11, s11, {TILE}")
    a(f"v_lshlrev_b32 v{T+5}, 4, v0")
    for i in range(4): a(f"v_mov_b32 v{O+i}, 0")
    for i in range(4): a(f"ds_write_b128 v{T+5}, v[{O}:{O+3}] offset:{8192*i}")
    l_noconv = a.newlabel()
    a(f"s_cmp_ge_u32 s5, 4\ns_cbranch_scc1 {l_noconv}")
    a(f"""
    v_lshlrev_b32 v{V_A}, 2, v{T}
    v_lshlrev_b32 v{T+2}, 4, v{T+1}
    v_sub_u32 v{V_A}, v{V_A}, v{T+2}
    v_add_u32 v{V_A}, 16, v{V_A}
    v_lshrrev_b32 v{T+2}, 1, v{T}
    v_and_b32 v{T+3}, 1, v{T}
    v_lshl_add_u32 v{T+4}, v{T+2}, 2, v{T+1}
    v_sub_u32 v{T+4}, 61, v{T+4}
    v_lshlrev_b32 v{T+4}, 5, v{T+4}
    v_lshl_add_u32 v{V_B}, v{T+3}, 4, v{T+4}
    v_mul_u32_u24 v{T+4}, 34, v{T+2}
    v_sub_u32 v{T+4}, v{T+4}, v{T+3}
    v_lshl_add_u32 v{T+4}, v{T+1}, 3, v{T+4}
    v_lshlrev_b32 v{T+4}, 2, v{T+4}
    v_add_u32 v{V_Z}, 4, v{T+4}
    s_lshl_b32 s60, s5, 8               ; A soffset = 256 w
    s_lshl_b32 s8, s5, 9
    s_add_u32 s61, s8, 6144
    s_add_u32 s62, s8, 4096
    s_add_u32 s63, s8, 2048
    s_mov_b32 s64, s8
    s_mov_b32 s65, s2
    s_mov_b32 s{S_H+3}, 0x20000
    s_mov_b32 s{S_SP+3}, 0x20000
    s_mov_b32 s{S_XT+3}, 0x20000
    """)
    def conv_srds():
        a(f"""
        s_lshl_b32 s8, s65, 12
        s_add_u32 s{S_H}, s{P_SK}, s8
        s_addc_u32 s{S_H+1}, s{P_SK+1}, 0
        s_add_u32 s66, s{S_H}, s60
        s_addc_u32 s67, s{S_H+1}, 0
        s_sub_u32 s66, s66, 60
        s_subb_u32 s67, s67, 0
        s_lshl_b32 s8, s65, 8
        s_add_u32 s8, s8, {WS_HP + 4}
        s_add_u32 s68, s{P_WS}, s8
        s_addc_u32 s69, s{P_WS+1}, 0
        s_cmp_eq_u32 s5, 0
        s_cselect_b32 s{S_SP}, s68, s66
        s_cselect_b32 s{S_SP+1}, s69, s67
        s_lshl_b32 s8, s65, 13
        s_add_u32 s8, s8, {WS_XT}
        s_add_u32 s{S_XT}, s{P_WS}, s8
        s_addc_u32 s{S_XT+1}, s{P_WS+1}, 0
        s_cmp_lt_u32 s65, 640
        s_cselect_b32 s{S_H+2}, 4096, 0
        s_cselect_b32 s{S_SP+2}, 240, 0
        s_cselect_b32 s{S_XT+2}, 8192, 0
        """)
    F = SR
    AIMM = [-60, -28, 68, 100]; BIMM = [0, 64, 256, 320]
    def conv_loads(e):
        for u in range(4):
            fa, fb = F + 32 * e + 4 * u, F + 32 * e + 16 + 4 * u
            if u == 0 and e < 2:
                a(f"buffer_load_dwordx4 v[{fa}:{fa+3}], v{V_A}, s[{S_SP}:{S_SP+3}], 0 offen offset:{32*e}")
            else:
                a(f"buffer_load_dwordx4 v[{fa}:{fa+3}], v{V_A}, s[{S_H}:{S_H+3}], s60 offen offset:{1024*u + AIMM[e]}")
            a(f"buffer_load_dwordx4 v[{fb}:{fb+3}], v{V_B}, s[{S_XT}:{S_XT+3}], s{61+u} offen offset:{BIMM[e]}")
    conv_srds()
    for e in range(4): conv_loads(e)
    a("s_waitcnt lgkmcnt(0)\ns_barrier")
    l_conv = a.newlabel()
    a.label(l_conv)
    a("s_add_u32 s65, s65, 256")
    conv_srds()
    for e in range(4):
        a("s_waitcnt vmcnt(24)")
        for u in range(4):
            for nb in range(u, 4):
                fa, fb = F + 32 * e + 4 * u, F + 32 * e + 16 + 4 * (nb - u)
                d = f"v[{O+16*nb}:{O+16*nb+15}]"
                a(f"v_mfma_f32_32x32x16_bf16 {d}, v[{fa}:{fa+3}], v[{fb}:{fb+3}], {'0' if (e == 0 and u == 0) else d}")
        conv_loads(e)
    for nb in range(4):
        for rho in range(16):
            imm = 4 * (34 * 16 * nb + 2 * (8 * (rho // 4) + rho % 4) + (2 if rho >= 8 else 0))
            a(f"ds_add_f32 v{V_Z}, v{O+16*nb+rho} offset:{imm}")
    a(f"""
    v_add_u32 v{V_Z}, {ZST}, v{V_Z}
    s_cmp_lt_u32 s65, 640
    s_cbranch_scc1 {l_conv}
    """)
    l_join = a.newlabel()
    a(f"s_branch {l_join}")
    a.label(l_noconv)
    a("s_waitcnt lgkmcnt(0)\ns_barrier")
    a.label(l_join)
    ks0, vs0 = KB[1] + 6, KB[1] + 8
    a(f"""
    s_waitcnt vmcnt(0)
    v_max_f32 v{T}, v{ks0}, v{ks0+1}
    v_max_f32 v{T+1}, v{vs0}, v{vs0+1}
    """)
    for m in ("row_shr:1 row_mask:0xf", "row_shr:2 row_mask:0xf", "row_shr:4 row_mask:0xf", "row_shr:8 row_mask:0xf",
              "row_bcast:15 row_mask:0xa", "row_bcast:31 row_mask:0xc"):
        a(f"v_max_f32_dpp v{T}, v{T}, v{T} {m} bank_mask:0xf")
        a(f"v_max_f32_dpp v{T+1}, v{T+1}, v{T+1} {m} bank_mask:0xf")
    for i in range(6): a(f"v_mov_b32 v{T+2+i}, 0")
    for r in range(4):
        for j in range(4):
            a(f"v_dot2c_f32_bf16 v{T+2+j}, v{QM+4*j+r}, v{QM+4*j+r}")
        if r < 2:
            for p in range(2):
                a(f"v_dot2c_f32_bf16 v{T+6+p}, v{QR+2*p+r}, v{QR+2*p+r}")
    a(f"""
    v_readlane_b32 s8, v{T}, 63
    v_readlane_b32 s9, v{T+1}, 63
    v_max3_f32 v{T+2}, v{T+2}, v{T+3}, v{T+4}
    v_max3_f32 v{T+5}, v{T+5}, v{T+6}, v{T+7}
    v_max_f32 v{T+2}, v{T+2}, v{T+5}
    v_mul_f32 v{T+2}, s8, v{T+2}
    v_cmp_nge_f32 vcc, {f2u(64.0*64.0/3.0)}, v{T+2}
    """)
    for i in range(64): a(f"v_mov_b32 v{O+i}, 0")
    for i in range(64): a(f"v_mov_b32 v{C+i}, 0")
    for i in range(4): a(f"v_mov_b32 v{SR+56+i}, 0\nv_mov_b32 v{KB[1]+10+i}, 0")
    l_fb, l_main = a.newlabel(), a.newlabel()
    a(f"""
    s_cbranch_vccnz {l_fb}
    s_cmp_lt_u32 s9, {f2u(2.0**-28)}
    s_cbranch_scc1 {l_fb}
    s_cmp_gt_u32 s9, {f2u(2.0**50)}
    s_cbranch_scc1 {l_fb}
    """)
    a.label(l_main)
    def qk(t, kb, cz=False):
        c = "0" if cz else f"v[{C+16*t}:{C+16*t+15}]"
        return f"v_mfma_f32_32x32x16_bf16 v[{SR+16*t}:{SR+16*t+15}], v[{kb}:{kb+3}], v[{QM+4*t}:{QM+4*t+3}], {c}"
    def qr(p, kb):
        d = f"v[{SR+32*p}:{SR+32*p+31}]"
        return f"v_mfma_f32_32x32x4_2b_bf16 {d}, v[{kb+4}:{kb+5}], v[{QR+2*p}:{QR+2*p+1}], {d}"
    def pv(t, hf, vb):
        d = f"v[{O+16*t}:{O+16*t+15}]"
        b = SR + 16 * t + 8 * hf
        return f"v_mfma_f32_32x32x16_bf16 {d}, v[{vb+6+4*hf}:{vb+9+4*hf}], v[{b}:{b+3}], {d}"
    def unit(t, hf):
        bb = SR + 16 * t + 8 * hf
        r = []
        for i in range(8):
            r.append(f"v_exp_f32 v{bb+i}, v{bb+i}")
            if i % 2 == 1 and i >= 3:
                j = (i - 3) // 2
                r.append(f"v_cvt_pk_bf16_f32 v{bb+j}, v{bb+2*j}, v{bb+2*j+1}")
        r.append(f"v_cvt_pk_bf16_f32 v{bb+3}, v{bb+6}, v{bb+7}")
        return r
    def phase(p, kq_, vcur, vprev, extra):
        ta, tb = 2 * p, 2 * p + 1
        na, nb_ = 2 * (1 - p), 2 * (1 - p) + 1
        valu = unit(ta, 0) + unit(ta, 1) + unit(tb, 0) + unit(tb, 1)
        ins = {2: [pv(nb_, 1, vprev)], 8: [qk(na, kq_)], 14: [qk(nb_, kq_)], 20: [pv(ta, 0, vcur)],
               26: [qr(1 - p, kq_)], 36: [pv(ta, 1, vcur)], 42: [pv(tb, 0, vcur)]}
        for k, v in extra.items():
            ins[k] = ins.get(k, []) + v if k != 20 else v + ins[k]
        for i, x in enumerate(valu):
            for y in ins.get(i, []):
                if callable(y): y()
                else: a(y)
            a(x)
    a(qk(0, KB[0])); a(qk(1, KB[0])); a(qr(0, KB[0]))
    a("s_mov_b32 s13, 8")
    a("s_nop 15\ns_nop 1")
    l_loop = a.newlabel()
    a(".p2align 6")
    a.label(l_loop)
    for par in range(2):
        cur, oth = KB[par], KB[1 - par]
        phase(0, cur, cur, oth, {20: ["s_waitcnt vmcnt(0)"],
                                 28: [lambda: loadV(oth, 0)], 32: [lambda: loadK(cur, TILE)],
                                 34: [f"s_add_u32 s11, s11, {TILE}"]})
        ex = {}
        if par == 1: ex = {44: ["s_sub_u32 s13, s13, 1", "s_cmp_lg_u32 s13, 0"]}
        phase(1, oth, cur, cur, ex)
    a(f"s_cbranch_scc1 {l_loop}")
    a(pv(3, 1, KB[1]))
    a(f"""
    s_lshl_b32 s8, s6, 4
    s_add_u32 s8, s8, s7
    s_mul_i32 s8, s8, 3072
    s_add_u32 s8, s8, {RED}
    v_add_u32 v{T}, s8, v{V_K1}
    s_lshl_b32 s8, s6, 2
    s_add_u32 s8, s8, s7
    s_mul_i32 s8, s8, 12288
    s_add_u32 s8, s8, {RED}
    v_add_u32 v{T+1}, s8, v{V_K1}
    """)
    for j in range(4):
        for r in range(3):
            a(f"ds_write_b128 v{T}, v[{O+16*j+4*r}:{O+16*j+4*r+3}] offset:{12288*j + 1024*r}")
    a(f"""
    v_lshrrev_b32 v{T+2}, 3, v0
    v_lshlrev_b32 v{T+2}, 3, v{T+2}
    v_lshl_add_u32 v{T+2}, v0, 4, v{T+2}
    v_lshlrev_b32 v{T+3}, 3, v0
    v_and_b32 v{T+4}, 31, v1
    v_lshrrev_b32 v{T+5}, 5, v1
    v_mul_u32_u24 v{T+4}, 1280, v{T+4}
    v_mad_u32_u24 v{T+4}, v{T+5}, 20, v{T+4}
    s_mul_i32 s8, s7, 40
    s_add_u32 s10, s10, s8
    s_add_u32 s10, s10, {WS_O}
    s_waitcnt vmcnt(0) lgkmcnt(0)
    s_barrier
    """)
    for k in range(4):
        for r in range(3):
            a(f"ds_read_b128 v[{SR+12*k+4*r}:{SR+12*k+4*r+3}], v{T+1} offset:{3072*k + 1024*r}")
    a("s_waitcnt lgkmcnt(6)")
    for ch in range(3):
        a(f"ds_read_b64 v[{C+4*ch}:{C+4*ch+1}], v{T+2} offset:{ZST*ch}")
        a(f"ds_read_b64 v[{C+4*ch+2}:{C+4*ch+3}], v{T+2} offset:{ZST*ch+8}")
    for i in range(11): a(f"v_add_f32 v{SR+i}, v{SR+i}, v{SR+12+i}")
    a("s_waitcnt lgkmcnt(6)")
    for i in range(11): a(f"v_add_f32 v{SR+24+i}, v{SR+24+i}, v{SR+36+i}")
    for i in range(11): a(f"v_add_f32 v{SR+i}, v{SR+i}, v{SR+24+i}")
    a(f"v_rcp_f32 v{SR+10}, v{SR+10}")
    for i in range(10): a(f"v_mul_f32 v{SR+i}, v{SR+i}, v{SR+10}")
    for i in range(5): a(f"v_cvt_pk_bf16_f32 v{SR+16+i}, v{SR+2*i}, v{SR+2*i+1}")
    a(f"buffer_store_dwordx4 v[{SR+16}:{SR+19}], v{T+4}, {W}, s10 offen")
    a(f"buffer_store_dword v{SR+20}, v{T+4}, {W}, s10 offen offset:16")
    a("s_waitcnt lgkmcnt(0)")
    a(f"s_lshl_b32 s8, s2, 12\ns_add_u32 s8, s8, {WS_Z}")
    for ch in range(3):
        if ch == 2: a(f"s_cmp_ge_u32 s2, 128\ns_cbranch_scc1 {END}")
        a(f"v_cvt_pk_bf16_f32 v{C+4*ch}, v{C+4*ch}, v{C+4*ch+1}\nv_cvt_pk_bf16_f32 v{C+4*ch+1}, v{C+4*ch+2}, v{C+4*ch+3}")
        a(f"buffer_store_dwordx2 v[{C+4*ch}:{C+4*ch+1}], v{T+3}, {W}, s8 offen")
        a(f"s_add_u32 s8, s8, {256*4096}")
    a.label(END)
    a("s_endpgm")
    a.label(l_fb)
    TB = O
    M = O + 8
    for j in range(4): a(f"v_mov_b32 v{M+j}, 0xff800000")
    a(f"s_mov_b32 s14, {WS_KV}\ns_mov_b32 s13, 64")
    l_f = a.newlabel()
    a.label(l_f)
    a(f"buffer_load_dwordx4 v[{TB}:{TB+3}], v{V_K1}, {W}, s14 offen offset:{K1_OFF}")
    a(f"buffer_load_dwordx2 v[{TB+4}:{TB+5}], v{V_KR}, {W}, s14 offen offset:{KR_OFF}")
    a("s_waitcnt vmcnt(0)")
    for t in range(4): a(qk(t, TB, True))
    a(qr(0, TB)); a(qr(1, TB))
    for t in range(4):
        for i in range(8):
            a(f"v_max3_f32 v{M+t}, v{M+t}, v{SR+16*t+2*i}, v{SR+16*t+2*i+1}")
    a(f"""
    s_add_u32 s14, s14, {TILE}
    s_sub_u32 s13, s13, 1
    s_cmp_lg_u32 s13, 0
    s_cbranch_scc1 {l_f}
    """)
    for t in range(4):
        a(f"""
        v_mov_b32 v{T}, v{M+t}
        v_permlane32_swap_b32 v{M+t}, v{T}
        v_max_f32 v{T}, v{T}, v{M+t}
        """)
        for i in range(16): a(f"v_sub_f32 v{C+16*t+i}, 0, v{T}")
    for i in range(12): a(f"v_mov_b32 v{O+i}, 0")
    for i in range(4): a(f"v_mov_b32 v{SR+56+i}, 0")
    a(f"s_nop 1\ns_branch {l_main}")
    return a.finalize()

def descriptor(name, vgpr, sgpr=96):
    return f"""
.amdhsa_kernel {name}
  .amdhsa_next_free_vgpr {vgpr}
  .amdhsa_next_free_sgpr {sgpr}
  .amdhsa_accum_offset {vgpr}
  .amdhsa_group_segment_fixed_size 0
  .amdhsa_kernarg_size 112
  .amdhsa_user_sgpr_count 2
  .amdhsa_user_sgpr_kernarg_segment_ptr 1
  .amdhsa_system_sgpr_workgroup_id_x 1
.end_amdhsa_kernel
"""

def build():
    hdr = open(f"cdna_kernels/{NAME}.s.ref").read().split("; Override launch")[0]
    ks = [("prep_kernel", kernel_prep(), 160768), ("attn_kernel", kernel_attn(), 131072), ("final_kernel", kernel_final(), 160768)]
    out = hdr
    for n, _, lds in ks:
        out += f"; @launch kernel={n} grid=(256,1,1) block=(512,1,1) lds={lds}\n"
    out += '.amdgcn_target "amdgcn-amd-amdhsa--gfx950"\n.text\n'
    for n, body, _ in ks:
        body = body.replace("L_", f"L{n[:3]}_")
        out += f".globl {n}\n.p2align 8\n.type {n},@function\n{n}:\n{body}"
    out += '.section .rodata,"a"\n'
    for n, _, _ in ks:
        out += ".p2align 6" + descriptor(n, 256)
    return out

if __name__ == "__main__":
    path = sys.argv[1] if len(sys.argv) > 1 else f"cdna_kernels/{NAME}.s"
    open(path, "w").write(build())
    print("wrote", path)
```

```python
import sys, math, struct, os
sys.path.insert(0, "gen")
from asmlib import Asm

NAME = "concat_heads__ssm_conv_h3__grouped_kv_mqa__prompt"
S, D, H, DH = 2048, 640, 32, 20
ACT = S * D * 2
WS_E, WS_F1, WS_F2, WS_F3, WS_F4 = 0, 1024, 4096, 12288, 16384
WS_KV = 32768
TILE = 2816
KR_OFF, K1_OFF, V0_OFF, V1_OFF = 0, 256, 1280, 2048
WS_O = 0x40000
OPB = 20480
WS_Z = WS_O + ACT
WS_XT = WS_Z + ACT
WS_END = WS_XT + 2 * ACT
WS_STAMP = 0x2000000
QSCALE = (DH ** -0.5) * math.log2(math.e)
E = os.environ.get
STAMP = E("STAMP", "0") == "1"
TAILST = E("TAILST")
SPIN = 1 << 17
KVSC = "" if E("KVPLAIN") else " sc1"

def f2u(x): return struct.unpack("<I", struct.pack("<f", x))[0]
P_AQ, P_AK, P_AV, P_SH, P_SK, P_SD, P_X, P_WQ, P_WK, P_WV, P_WO, P_OUT, P_DBG, P_WS = [16 + 2 * i for i in range(14)]
S_WS, S_A, S_B, S_C, S_D = 44, 48, 52, 56, 60
TAG = 78
def R(b, n=4): return f"v[{b}:{b+n-1}]"
def SR_(b): return f"s[{b}:{b+3}]"
W = SR_(S_WS)

L_W = 81920; GSLOT = 20480
L_WKV = 163840 - 25600
L_Q = 102400; QSTR = 176
L_STAT = L_Q + 64 * QSTR
L_RED = 113920
L_CONV = 113920; CVS = 15360
L_OUT = 102400
L_SK, L_SV, L_KT = 0, 16384, 27648
WO_LOW = 45

a = Asm()
def srd(r, ptr, nbytes, off=0):
    if off:
        a(f"s_add_u32 s{r}, s{ptr}, {off}\ns_addc_u32 s{r+1}, s{ptr+1}, 0")
    else:
        a(f"s_mov_b32 s{r}, s{ptr}\ns_mov_b32 s{r+1}, s{ptr+1}")
    a(f"s_mov_b32 s{r+2}, {nbytes}\ns_mov_b32 s{r+3}, 0x20000")
def _st(i, op="s_memtime"): a(f"{op} s[98:99]\ns_waitcnt lgkmcnt(0)\ns_mov_b32 s{80+i}, s98")
def stamp(i):
    if STAMP and not (TAILST and 1 <= i <= 7): _st(i)
def tstamp(i):
    if STAMP and TAILST: _st(i)
def rstamp(i):
    if STAMP: _st(i, "s_memrealtime")
def br_wave(op, n, lab): a(f"s_cmp_{op}_u32 s5, {n}\ns_cbranch_scc1 {lab}")
def poll(load_fn, tagregs, sleep=2, cnt="vmcnt", val=None, op="ne"):
    val = val or f"s{TAG}"
    l, d = a.newlabel(), a.newlabel()
    a(f"s_mov_b32 s96, {SPIN}")
    a.label(l)
    load_fn()
    a(f"s_waitcnt {cnt}(0)")
    for i, t in enumerate(tagregs):
        if i == 0: a(f"v_cmp_{op}_u32 s[8:9], {val}, v{t}")
        else: a(f"v_cmp_ne_u32 vcc, {val}, v{t}\ns_or_b64 s[8:9], s[8:9], vcc")
    a(f"""
    s_cmp_eq_u64 s[8:9], 0
    s_cbranch_scc1 {d}
    s_sleep {sleep}
    s_sub_u32 s96, s96, 1
    s_cmp_lg_u32 s96, 0
    s_cbranch_scc1 {l}
    """)
    a.label(d)
def flag_store(soff_sgpr, vt):
    a(f"v_mov_b32 v{vt}, s{TAG}\nv_mov_b32 v{vt+1}, 0")
    a(f"s_mov_b64 exec, 1")
    a(f"buffer_store_dword v{vt}, v{vt+1}, {W}, s{soff_sgpr} offen sc1")
    a(f"s_mov_b64 exec, -1")
def wpat(dst, qbase, x4):
    a(f"""
    v_add_u32 v4, {qbase}, v1
    v_mul_u32_u24 v5, 6554, v4
    v_lshrrev_b32 v5, 16, v5
    v_mul_u32_u24 v6, 10, v5
    v_sub_u32 v6, v4, v6
    """)
    if x4: a("v_lshrrev_b32 v7, 1, v5\nv_and_b32 v7, 4, v7\nv_xor_b32 v5, v5, v7")
    a(f"v_mul_u32_u24 v5, 1280, v5\nv_lshl_add_u32 v{dst}, v6, 4, v5")

def build_kernel():
    a(f"""
    s_cmp_ge_u32 s2, 256
    s_cbranch_scc1 L_exit
    s_load_dwordx16 s[16:31], s[0:1], 0
    s_load_dwordx8 s[32:39], s[0:1], 64
    s_load_dwordx4 s[40:43], s[0:1], 96
    v_lshrrev_b32 v1, 6, v0
    s_and_b32 s7, s2, 7
    s_lshl_b32 s3, s7, 2
    s_lshr_b32 s4, s2, 3
    v_readfirstlane_b32 s5, v1
    s_and_b32 s6, s4, 3
    s_add_u32 s3, s3, s6          ; s3 = pb64
    s_lshr_b32 s4, s4, 2          ; s4 = hg
    v_and_b32 v1, 63, v0          ; lane
    v_and_b32 v2, 15, v1          ; p
    v_lshrrev_b32 v3, 4, v1       ; kg
    s_mul_i32 s64, s3, {64*1280}
    s_mul_i32 s65, s4, 160
    s_add_u32 s66, s6, s7
    s_mul_i32 s8, s66, 52
    s_lshr_b32 s8, s8, 8
    s_mul_i32 s8, s8, 5
    s_sub_u32 s66, s66, s8
    s_and_b32 s67, s4, 3          ; pbk
    """)
    stamp(0); rstamp(13)
    VD, VXR, VTR = 28, 34, 36
    XFB, WFB, ACC = 64, 72, 96
    def gwrap(sreg, step):
        a(f"s_add_u32 s{sreg}, s{sreg}, {step}\ns_cmp_ge_u32 s{sreg}, {5*step}\ns_cselect_b32 s{sreg}, 0, s{sreg}")
    l_hi0, l_b0, l_x = a.newlabel(), a.newlabel(), a.newlabel()
    br_wave("ge", 4, l_hi0)
    VKW, VKR, VK4, VK5 = 30, 40, 42, 43
    a(f"""
    v_lshrrev_b32 v4, 3, v1
    v_mul_u32_u24 v4, 1280, v4
    v_and_b32 v5, 7, v1
    v_xor_b32 v5, v5, v3
    v_lshl_add_u32 v{VD}, v5, 4, v4
    v_xor_b32 v{VD+1}, 64, v{VD}
    v_lshlrev_b32 v{VKW}, 4, v1
    v_mov_b32 v{VD+3}, -1
    v_mov_b32 v{VD+4}, -1
    s_add_u32 s8, s67, s5
    s_and_b32 s8, s8, 3
    s_mul_i32 s10, s8, {16*1280}
    s_add_u32 s10, s10, s64
    s_lshl_b32 s11, s8, 11
    s_lshl_b32 s12, s66, 8
    s_mul_i32 s13, s66, 5120
    s_waitcnt lgkmcnt(0)
    s_load_dword s{TAG}, s[{P_WS}:{P_WS+1}], {WS_E}
    """)
    srd(S_A, P_X, ACT)
    a(f"""
    s_cmp_ge_u32 s4, 4
    s_cselect_b32 s{S_C}, s{P_WV}, s{P_WK}
    s_cselect_b32 s{S_C+1}, s{P_WV+1}, s{P_WK+1}
    s_mov_b32 s{S_C+2}, 25600
    s_mov_b32 s{S_C+3}, 0x20000
    """)
    def x_issue(g):
        a(f"s_add_u32 s8, s10, s12\ns_add_u32 s9, s8, {8*1280}")
        for hs in range(2):
            for par in range(2):
                a(f"s_add_u32 m0, s11, {(2*g+hs)*8192 + 1024*par - 128*hs}")
                a(f"buffer_load_dwordx4 v{VD+par}, {SR_(S_A)}, s{8+par} offen offset:{128*hs} lds")
        if g < 4: gwrap(12, 256)
    def wkv_issue(g):
        a(f"s_mov_b32 m0, {L_WKV + 5120*g}")
        for i in range(4):
            a(f"buffer_load_dwordx4 v{VKW}, {SR_(S_C)}, s13 offen offset:{1024*i} lds")
        a(f"s_mov_b32 m0, {L_WKV + 5120*g + 4096}\ns_add_u32 s8, s13, 4096")
        a(f"buffer_load_dwordx4 v{VKW}, {SR_(S_C)}, s8 offen lds")
        if g < 4: gwrap(13, 5120)
    br_wave("lg", 0, l_x)
    for g in range(5): x_issue(g)
    for g in range(5):
        wkv_issue(g)
        if g == int(E("B0", "4")): a("s_barrier")
    a(f"s_branch {l_b0}")
    a.label(l_x)
    srd(S_WS, P_WS, WS_END)
    l = a.newlabel()
    a(f"""
    v_lshlrev_b32 v4, 7, v1
    s_sub_u32 s8, s5, 1
    s_lshl_b32 s8, s8, 13
    s_cmp_ge_u32 s2, 8
    s_cbranch_scc1 {l}
    buffer_load_dword v5, v4, {W}, s8 offen sc1
    """)
    a.label(l)
    a("s_barrier")
    for g in range(5): x_issue(g)
    a(f"s_branch {l_b0}")
    a.label(l_hi0)
    for n in range(5): wpat(VD + n, 64 * n, True)
    a(f"""
    s_sub_u32 s8, s5, 4
    s_mul_i32 s11, s8, 5120
    s_add_u32 s11, s11, {L_W}
    s_mul_i32 s10, s8, {32*1280}
    s_add_u32 s10, s10, s65
    s_mul_i32 s12, s66, {128*1280}
    s_waitcnt lgkmcnt(0)
    s_load_dword s{TAG}, s[{P_WS}:{P_WS+1}], {WS_E}
    """)
    srd(S_B, P_WQ, D * D * 2); srd(S_C, P_WK, 25600)
    a("s_barrier")
    def w_issue(g):
        a(f"s_add_u32 s8, s10, s12")
        for n in range(5):
            a(f"s_add_u32 m0, s11, {(g % 4)*GSLOT + 1024*n}")
            a(f"buffer_load_dwordx4 v{VD+n}, {SR_(S_B)}, s8 offen lds")
        if g < 4: gwrap(12, 128 * 1280)
    w_issue(0)
    a.label(l_b0)
    stamp(1)
    srd(S_WS, P_WS, WS_END); srd(S_B, P_WQ, D * D * 2)
    l_addr = a.newlabel()
    a(f"""
    v_lshrrev_b32 v4, 1, v2
    v_xor_b32 v4, v4, v3
    v_lshlrev_b32 v5, 7, v2
    v_lshl_add_u32 v39, v4, 4, v5
    s_and_b32 s6, s5, 3                 ; pb
    s_lshr_b32 s7, s5, 2                ; cg
    s_lshl_b32 s8, s6, 11
    v_add_u32 v{VXR}, s8, v39
    v_xor_b32 v{VXR+1}, 64, v{VXR}
    v_bfe_u32 v4, v1, 2, 2
    v_lshl_add_u32 v4, v3, 3, v4
    v_and_b32 v5, 1, v3
    v_lshl_add_u32 v6, v5, 2, v4
    v_xor_b32 v7, 4, v6
    v_and_b32 v5, 3, v1
    v_lshlrev_b32 v5, 3, v5
    s_mul_i32 s8, s7, 96
    s_add_u32 s9, s8, {L_W}
    v_add_u32 v5, s9, v5
    s_movk_i32 s9, 160
    v_mad_u32_u24 v{VTR}, v6, s9, v5
    v_mad_u32_u24 v{VTR+1}, v7, s9, v5
    s_mul_i32 s9, s6, {16*QSTR}
    s_add_u32 s8, s8, s9
    s_add_u32 s8, s8, {L_Q}
    v_mul_u32_u24 v4, {QSTR}, v2
    v_lshl_add_u32 v4, v3, 3, v4
    v_add_u32 v38, s8, v4
    s_waitcnt lgkmcnt(0)
    s_mul_i32 s{TAG}, s{TAG}, 0x9E3779B1
    s_add_u32 s{TAG}, s{TAG}, 0x7F4A7C15
    """)
    def shift2(r, d): a(f"v_add_u32 v{r}, {d & 0xffffffff}, v{r}\nv_add_u32 v{r+1}, {d & 0xffffffff}, v{r+1}")
    def q_stage(nblk, gs, xb, wb):
        steps = [(g, k) for g in gs for k in range(4)]
        NB3 = 3
        def rd(n):
            g, k = steps[n]; par = n % NB3
            a(f"ds_read_b128 {R(XF3+4*par)}, v{VXR+(k&1)} offset:{(2*g + (k>>1))*8192 - xb}")
            for nb in range(nblk):
                b = WF3 + 12 * par + 4 * nb
                off = (g % 4) * GSLOT + k * 5120 + nb * 32 - wb
                a(f"ds_read_b64_tr_b16 {R(b,2)}, v{VTR} offset:{off}")
                a(f"ds_read_b64_tr_b16 {R(b+2,2)}, v{VTR+1} offset:{off}")
        rd(0); rd(1)
        per = 1 + 2 * nblk
        for n in range(len(steps)):
            if n + 2 < len(steps): rd(n + 2)
            a(f"s_waitcnt lgkmcnt({per * min(2, len(steps) - 1 - n)})")
            par = n % NB3
            for nb in range(nblk):
                d = R(ACC + 4 * nb)
                a(f"v_mfma_f32_16x16x32_bf16 {d}, {R(WF3+12*par+4*nb)}, {R(XF3+4*par)}, {'0' if (gs[0] == 0 and n == 0) else d}")
    XF3, WF3 = 128, 140
    QM, QR = 8, 24
    O, SR, C = 64, 128, 192
    KBH = [192, 206, 220, 234]
    AK1, AKR, AV = 62, 63, 61
    PV = 56
    QA = 176
    VS, VT, AE = 44, 52, 48
    def loadK(buf, off):
        a(f"buffer_load_dwordx4 {R(buf)}, v{AK1}, {W}, s11 offen offset:{off + K1_OFF}{KVSC}")
        a(f"buffer_load_dwordx2 {R(buf+4,2)}, v{AKR}, {W}, s11 offen offset:{off + KR_OFF}{KVSC}")
    def loadV(buf, off):
        a(f"buffer_load_dwordx4 {R(buf+6)}, v{AV}, {W}, s11 offen offset:{off + V0_OFF}{KVSC}")
        a(f"buffer_load_dwordx4 {R(buf+10)}, v{AV}, {W}, s11 offen offset:{off + V1_OFF}{KVSC}")
    def kv_prologue(kb, part=None):
        nb = len(kb)
        if part != 1:
            a("s_mov_b32 s11, s79")
            loadK(kb[0], 0)
        for j in range(nb - 1):
            if (part == 0 and j > 0) or (part == 1 and j == 0): continue
            loadV(kb[j], 0); loadK(kb[j + 1], TILE); a(f"s_add_u32 s11, s11, {TILE}")
    def tail_addr(hi):
        T = 192
        a(f"""
        s_and_b32 s76, s5, 1
        s_lshr_b32 s77, s5, 1
        v_lshlrev_b32 v{AK1}, 4, v1
        v_bfe_u32 v{T}, v1, 4, 1
        v_mul_u32_u24 v{T}, {OPB}, v{T}
        v_lshl_add_u32 v{PV+3}, v2, 3, v{T}
        v_lshl_add_u32 v{T}, v2, 4, v{T}
        v_lshrrev_b32 v{T+1}, 5, v1
        v_lshl_add_u32 v{PV+2}, v{T+1}, 8, v{T}
        s_lshl_b32 s8, s3, 2
        s_lshl_b32 s9, s76, 1
        s_add_u32 s8, s8, s9
        s_mul_i32 s8, s8, {OPB}
        s_add_u32 s8, s8, {WS_O}
        s_lshl_b32 s9, s4, 2
        s_add_u32 s9, s9, s77
        s_lshl_b32 s72, s9, 9
        s_add_u32 s72, s72, s8
        s_lshl_b32 s73, s9, 7
        s_add_u32 s73, s73, s8
        s_add_u32 s73, s73, 16384
        s_lshl_b32 s74, s3, 1
        s_add_u32 s74, s74, s76
        s_lshl_b32 s74, s74, 5
        s_add_u32 s74, s74, s9
        s_lshl_b32 s74, s74, 2
        s_add_u32 s74, s74, {WS_F4}
        """)
        for j, i in enumerate((0, 1) if hi else (2, 3)):
            a(f"""
            s_xor_b32 s8, s5, {2*i}
            s_and_b32 s8, s8, 3
            s_mul_i32 s8, s8, 9216
            s_add_u32 s8, s8, {L_RED + 3072*max(i-1, 0)}
            v_add_u32 v{PV+j}, s8, v{AK1}
            """)
    def hi_addr():
        T = 192
        a(f"""
        v_and_b32 v{T}, 31, v1
        v_lshlrev_b32 v{AKR}, 3, v{T}
        v_lshrrev_b32 v{T+2}, 3, v{T}
        v_and_b32 v{T+3}, 3, v{T}
        v_lshl_add_u32 v{T+2}, v{T+2}, 2, v{T+3}
        v_bfe_u32 v{T+3}, v{T}, 2, 1
        v_mad_u32_u24 v{T+3}, v{T+3}, 10, v{T+2}
        v_mad_u32_u24 v{T+3}, v{T+1}, 20, v{T+3}
        v_cmp_gt_u32 s[8:9], 10, v{T+2}
        v_cmp_lt_u32 vcc, 10, v{T+2}
        v_mov_b32 v{T+4}, 40
        v_cndmask_b32 v{T+3}, v{T+4}, v{T+3}, s[8:9]
        v_lshlrev_b32 v{AV}, 4, v{T+3}
        v_mov_b32 v{T+4}, 0x40000000
        v_cndmask_b32 v{AV}, v{AV}, v{T+4}, vcc
        s_and_b32 s8, s77, 1
        s_mul_i32 s79, s8, {32*TILE}
        s_add_u32 s79, s79, {WS_KV}
        s_mul_i32 s8, s76, {32*QSTR}
        s_add_u32 s8, s8, {L_Q}
        v_mul_u32_u24 v{T+2}, {QSTR}, v{T}
        v_add_u32 v{T+2}, s8, v{T+2}
        v_lshl_add_u32 v{T+3}, v{T+1}, 4, v{T+2}
        v_xor_b32 v{T+4}, s77, v{T+1}
        v_xor_b32 v{T+5}, 2, v{T+4}
        v_mad_u32_u24 v{QA+4}, v{T+4}, 40, v{T+2}
        v_mad_u32_u24 v{QA+5}, v{T+5}, 40, v{T+2}
        """)
        for i in range(4):
            a(f"s_xor_b32 s8, s77, {i}\ns_mul_i32 s8, s8, 40\nv_add_u32 v{QA+i}, s8, v{T+3}")
        for i in range(4): a(f"v_mov_b32 v{KBH[-1]+10+i}, 0")
    def kv_compute():
        a(f"""
        v_add_u32 v{VKR}, s11, v39
        v_xor_b32 v{VKR+1}, 64, v{VKR}
        v_bfe_u32 v4, v1, 2, 2
        v_lshl_add_u32 v4, v3, 3, v4
        v_mul_u32_u24 v4, 40, v4
        v_add_u32 v{VK4}, {L_WKV}, v4
        v_and_b32 v5, 3, v1
        v_lshl_add_u32 v{VK5}, v5, 3, v{VK4}
        s_lshr_b32 s12, s67, 1
        s_lshl_b32 s14, s3, 1
        s_add_u32 s12, s12, s14
        s_mul_i32 s12, s12, {TILE}
        s_add_u32 s12, s12, {WS_KV}
        s_and_b32 s10, s67, 1
        """)
        def kvpart(isv):
            for g in range(5):
                if g == 4: a(f"v_add_u32 v{VKR}, 0x10000, v{VKR}\nv_add_u32 v{VKR+1}, 0x10000, v{VKR+1}")
                a(f"s_waitcnt vmcnt({5*(4-g)})")
                for s_ in range(4):
                    ks = 4 * g + s_
                    b = T0 + 12 * s_
                    a(f"ds_read_b128 {R(b+8)}, v{VKR+(s_&1)} offset:{((2*g + (s_>>1)) % 8) * 8192}")
                    a(f"ds_read_b64_tr_b16 {R(b,2)}, v{VK5} offset:{ks*1280}")
                    a(f"ds_read_b64_tr_b16 {R(b+2,2)}, v{VK5} offset:{ks*1280+160}")
                    a(f"ds_read_b64_tr_b16 {R(b+4,2)}, v{VK4} offset:{ks*1280+32}")
                    a(f"ds_read_b64_tr_b16 {R(b+6,2)}, v{VK4} offset:{ks*1280+192}")
                for s_ in range(4):
                    a(f"s_waitcnt lgkmcnt({5*(3-s_)})")
                    b2 = T0 + 12 * s_
                    for blk in range(2):
                        d = R(B0 + 4 * blk); c = "0" if (g == 0 and s_ == 0) else d
                        w_, x_ = R(b2 + 4 * blk), R(b2 + 8)
                        a(f"v_mfma_f32_16x16x32_bf16 {d}, {x_ if isv else w_}, {w_ if isv else x_}, {c}")
        def pack(b, dst, swap):
            a(f"""
            v_cvt_pk_bf16_f32 v{dst}, v{b}, v{b+1}
            v_cvt_pk_bf16_f32 v{dst+1}, v{b+2}, v{b+3}
            v_cvt_pk_bf16_f32 v{dst+2}, v{b}, v{b+1}
            v_cvt_pk_bf16_f32 v{dst+3}, v{b+2}, v{b+3}
            {swap} v{dst}, v{dst+2}
            {swap} v{dst+1}, v{dst+3}
            """)
        l_v = a.newlabel()
        a("s_waitcnt lgkmcnt(0)")
        a(f"s_cmp_ge_u32 s4, 4\ns_cbranch_scc1 {l_v}")
        a(f"""
        s_lshl_b32 s10, s10, 4
        v_add_u32 v5, s10, v2
        v_lshrrev_b32 v6, 1, v3
        v_lshl_add_u32 v6, v6, 5, v5
        v_lshlrev_b32 v6, 4, v6
        v_lshlrev_b32 v5, 3, v5
        """)
        kvpart(False)
        pack(B0, PA, "v_permlane16_swap_b32")
        a(f"""
        v_cvt_pk_bf16_f32 v{PB}, v{B1}, v{B1+1}
        v_cvt_pk_bf16_f32 v{PB+1}, v{B1+2}, v{B1+3}
        s_mov_b32 exec_lo, 0xffff
        s_mov_b32 exec_hi, 0xffff
        buffer_store_dwordx4 {R(PA)}, v6, {W}, s12 offen offset:{K1_OFF} sc1
        s_mov_b64 exec, 0xffff
        buffer_store_dwordx2 {R(PB,2)}, v5, {W}, s12 offen offset:{KR_OFF} sc1
        s_mov_b64 exec, -1
        s_branch {l_addr}
        """)
        a.label(l_v)
        a(f"""
        s_mul_i32 s10, s10, {V1_OFF - V0_OFF}
        s_add_u32 s12, s12, s10
        v_and_b32 v5, 1, v3
        v_mul_u32_u24 v5, 20, v5
        v_add_u32 v6, v5, v2
        v_lshlrev_b32 v6, 4, v6
        v_cmp_lt_u32 s[14:15], 3, v2
        v_mov_b32 v10, 0x3f803f80
        """)
        kvpart(True)
        pack(B0, PA, "v_permlane32_swap_b32")
        pack(B1, PB, "v_permlane32_swap_b32")
        a(f"s_mov_b32 exec_hi, 0")
        a(f"buffer_store_dwordx4 {R(PA)}, v6, {W}, s12 offen offset:{V0_OFF} sc1")
        for i in range(4): a(f"v_cndmask_b32 v{12+i}, v{PB+i}, v10, s[14:15]")
        a(f"""
        s_mov_b32 exec_lo, 0x00ff000f
        buffer_store_dwordx4 v[12:15], v6, {W}, s12 offen offset:{V0_OFF + 256} sc1
        s_mov_b64 exec, -1
        """)

    def only(w, fn):
        l = a.newlabel(); br_wave("lg", w, l); fn(); a.label(l)
    def publish_kv():
        l_v2, l_stat = a.newlabel(), a.newlabel()
        a(f"v_mov_b32 v8, 0\ns_cmp_ge_u32 s4, 4\ns_cbranch_scc1 {l_v2}")
        for i in range(4): a(f"v_dot2c_f32_bf16 v8, v{PA+i}, v{PA+i}")
        a(f"""
        v_mov_b32 v9, v8
        v_permlane32_swap_b32 v8, v9
        v_add_f32 v8, v8, v9
        v_dot2c_f32_bf16 v8, v{PB}, v{PB}
        v_dot2c_f32_bf16 v8, v{PB+1}, v{PB+1}
        s_nop 2
        s_branch {l_stat}
        """)
        a.label(l_v2)
        for b in range(B0, B0 + 8, 2): a(f"v_max3_f32 v8, v8, |v{b}|, |v{b+1}|")
        a("""
        v_mov_b32 v9, v8
        v_permlane16_swap_b32 v8, v9
        v_max_f32 v8, v8, v9
        v_mov_b32 v9, v8
        v_permlane32_swap_b32 v8, v9
        v_max_f32 v8, v8, v9
        s_nop 1
        """)
        a.label(l_stat)
        for sh in (1, 2, 4, 8):
            a(f"v_max_f32_dpp v8, v8, v8 row_shr:{sh} row_mask:0xf bank_mask:0xf")
        a("v_readlane_b32 s69, v8, 15")
        a(f"""
        s_lshl_b32 s8, s3, 3
        s_add_u32 s8, s8, s4
        s_lshl_b32 s8, s8, 3
        s_getreg_b32 s9, hwreg(HW_REG_XCC_ID, 0, 4)
        s_andn2_b32 s69, s69, 15
        s_or_b32 s69, s69, s9
        v_mov_b32 v4, s69
        v_mov_b32 v5, s{TAG}
        v_mov_b32 v6, 0
        s_waitcnt vmcnt(0)
        s_mov_b64 exec, 1
        buffer_store_dwordx2 v[4:5], v6, {W}, s8 offen offset:{WS_F1} sc1
        s_mov_b64 exec, -1
        """)
    def poll_kv():
        stamp(6)
        a("v_lshlrev_b32 v4, 5, v1")
        def ld1():
            a(f"buffer_load_dwordx4 v[8:11], v4, {W}, 0 offen offset:{WS_F1} sc1")
            a(f"buffer_load_dwordx4 v[12:15], v4, {W}, 0 offen offset:{WS_F1+16} sc1")
        poll(ld1, [9, 11, 13, 15], 1)

    T0, B0, B1, PA, PB = 128, 112, 116, 120, 124
    KT_W, KT_R, KT_G, KT_S, VW2 = 240, 241, 242, 243, 244
    VA, V_B, V_ZW, V_ZS, V_HD, V_F2 = 228, 232, 233, 234, 235, 236
    WRAW = [216, 220]
    def out_addr():
        a(f"""
        v_mov_b32 v{VS}, {L_STAT}
        v_bfe_u32 v5, v1, 2, 2
        v_mad_u32_u24 v6, v3, 10, v5
        v_lshrrev_b32 v7, 1, v5
        v_lshl_add_u32 v7, v7, 3, v5
        v_mad_u32_u24 v7, v3, 40, v7
        v_add_u32 v7, 8, v7
        v_and_b32 v5, 3, v1
        v_lshlrev_b32 v5, 3, v5
        s_mul_i32 s8, s76, {320*160}
        v_add_u32 v5, s8, v5
        s_movk_i32 s9, 160
        v_mad_u32_u24 v{VT}, v6, s9, v5
        v_mad_u32_u24 v{VT+1}, v7, s9, v5
        """)
    def lo_addr():
        T = 192
        for n in range(5): wpat(VW2 + n, 64 * n, False)
        a(f"""
        s_mul_i32 s68, s5, 4224
        s_add_u32 s68, s68, {L_KT}
        v_and_b32 v4, 7, v1
        v_mul_u32_u24 v{T}, 528, v4
        v_lshrrev_b32 v5, 3, v1
        v_sub_u32 v{T+1}, 7, v5
        v_bfe_u32 v{T+2}, v{T+1}, 1, 1
        v_lshl_add_u32 v{T}, v{T+2}, 7, v{T}
        v_lshrrev_b32 v{T+2}, 2, v{T+1}
        v_lshl_add_u32 v{T}, v{T+2}, 6, v{T}
        v_and_b32 v{T+2}, 1, v{T+1}
        v_lshl_add_u32 v{T}, v{T+2}, 5, v{T}
        v_add_u32 v{KT_W}, s68, v{T}
        v_lshrrev_b32 v{T+1}, 5, v1
        v_lshlrev_b32 v{T+2}, 4, v{T+1}
        v_add3_u32 v{KT_R}, v{AK1}, v{T+2}, s68
        v_lshlrev_b32 v{T+3}, 12, v5
        v_lshl_add_u32 v{KT_G}, v4, 4, v{T+3}
        v_mul_u32_u24 v{T+3}, 1280, v5
        v_lshl_add_u32 v{T+3}, v4, 2, v{T+3}
        s_lshl_b32 s8, s5, 5
        v_add_u32 v{KT_S}, s8, v{T+3}
        ; convolution
        s_mul_i32 s68, s5, {CVS}
        s_add_u32 s68, s68, {L_CONV}
        v_and_b32 v{T}, 31, v1
        v_lshlrev_b32 v{V_F2}, 2, v{T}
        v_sub_u32 v{T+3}, v{V_F2}, v{T+2}
        v_add3_u32 v{VA}, v{T+3}, 16, s68
        v_add_u32 v{VA+1}, 1024, v{VA}
        v_add_u32 v{VA+2}, 2048, v{VA}
        v_add_u32 v{VA+3}, 3072, v{VA}
        v_lshrrev_b32 v{T+2}, 1, v{T}
        v_lshl_add_u32 v{T+2}, v{T+2}, 1, v{T+1}
        v_sub_u32 v{T+2}, 31, v{T+2}
        v_lshlrev_b32 v{T+2}, 5, v{T+2}
        v_and_b32 v{T+3}, 1, v{T}
        v_lshl_add_u32 v{T+2}, v{T+3}, 4, v{T+2}
        v_add_u32 v{V_B}, s68, v{T+2}
        v_mul_u32_u24 v{T+2}, 2080, v{T+1}
        v_lshl_add_u32 v{T+2}, v{T}, 4, v{T+2}
        v_add_u32 v{V_ZW}, s68, v{T+2}
        v_lshrrev_b32 v{T+2}, 2, v{T}
        v_lshlrev_b32 v{T+2}, 7, v{T+2}
        v_lshl_add_u32 v{T+2}, v{T+1}, 6, v{T+2}
        v_and_b32 v{T+3}, 3, v{T}
        v_lshl_add_u32 v{V_ZS}, v{T+3}, 4, v{T+2}
        v_subrev_u32 v{V_HD}, 64, v{AK1}
        v_cmp_lt_u32 s[8:9], 19, v1
        v_cndmask_b32 v{T}, 0, 1, s[8:9]
        v_mul_u32_u24 v{T+1}, 20, v{T}
        v_sub_u32 v{T+1}, v1, v{T+1}
        s_lshl_b32 s8, s76, 5
        s_lshl_b32 s9, s77, 3
        s_add_u32 s8, s8, s9
        s_add_u32 s8, s8, 1
        v_sub_u32 v{T+2}, s8, v{T}
        v_mul_u32_u24 v{T+2}, 1280, v{T+2}
        v_add_u32 v{T+2}, s64, v{T+2}
        v_lshl_add_u32 v{T+3}, v{T+1}, 3, s65
        v_lshl_add_u32 v{AE+1}, v{T+2}, 1, v{T+3}
        v_add_u32 v{AE}, v{T+2}, v{T+3}
        v_lshlrev_b32 v{AE+2}, 1, v{T+3}
        v_lshlrev_b32 v{T+3}, 11, v{T+3}
        v_lshl_add_u32 v{AE+3}, v{T}, 4, v{T+3}
        """)
    def stage(ptr, halo, base):
        srd(S_D, ptr, ACT)
        a(f"s_add_u32 s8, s64, s65\ns_sub_u32 s8, s8, {halo*1280}")
        for i in range(11):
            if i < 5:
                a(f"v_add_u32 v4, s8, v{VW2 + i}\ns_mov_b32 m0, {base + 1024*i}\nbuffer_load_dwordx4 v4, {SR_(S_D)}, 0 offen lds")
            else:
                if i % 5 == 0: a(f"s_add_u32 s8, s8, {32*1280}")
                a(f"s_mov_b32 m0, {base + 1024*i}\nbuffer_load_dwordx4 v{VW2 + i % 5}, {SR_(S_D)}, s8 offen lds")
    def sync_init():
        a(f"""
        v_mov_b32 v4, 0
        v_mov_b32 v5, 0
        v_mov_b32 v6, 0
        v_mov_b32 v7, 8
        ds_write_b64 v{VS}, v[4:5]
        ds_write_b32 v{VS}, v4 offset:8
        ds_write_b32 v{VS}, v7 offset:16
        """)
    def q_path(cg):
        nblk = 3 if cg == 0 else 2
        tail_addr(bool(cg)); out_addr()
        if cg:
            hi_addr()
            a("s_waitcnt vmcnt(2)"); w_issue(1); a("s_waitcnt vmcnt(5)")
        else:
            lo_addr()
            l = a.newlabel()
            br_wave("lg", 0, l); kv_compute(); a.label(l_addr); stamp(6); publish_kv(); a.label(l)
            a("s_waitcnt vmcnt(16)")
        stamp(2)
        a("s_barrier")
        stamp(3)
        if cg: w_issue(2); w_issue(3)
        q_stage(nblk, [0], 0, 0)
        a(f"s_waitcnt vmcnt({10 if cg else 0})")
        a("s_barrier")
        if cg: w_issue(4)
        q_stage(nblk, [1], 0, 0)
        if not cg and not E("NOSVC"): only(3, lambda: stage(P_AK, 4, L_SK))
        shift2(VTR, 2 * GSLOT)
        if cg: a("s_waitcnt vmcnt(5)")
        a("s_barrier")
        stamp(4)
        q_stage(nblk, [2, 3], 0, 2 * GSLOT)
        shift2(VTR, -2 * GSLOT); shift2(VXR, 65536)
        if cg: a("s_waitcnt vmcnt(0)")
        else: only(1, poll_kv); only(2, sync_init)
        a("s_barrier")
        stamp(5)
        if cg: kv_prologue(KBH, 0)
        q_stage(nblk, [4], 65536, 0)
        a(f"s_mov_b32 s8, 0xffff0000\ns_mov_b32 s9, {f2u(QSCALE)}")
        for nb in range(nblk):
            b = ACC + 4 * nb
            for p in range(2):
                a(f"""
                v_cvt_pk_bf16_f32 v6, v{b+2*p}, v{b+2*p+1}
                v_lshlrev_b32 v7, 16, v6
                v_and_b32 v6, s8, v6
                v_mul_f32 v7, s9, v7
                v_mul_f32 v6, s9, v6
                v_cvt_pk_bf16_f32 v{b+p}, v7, v6
                """)
            a(f"ds_write_b64 v38, {R(b,2)} offset:{32*nb}")
        if cg:
            Z4 = KBH[-1] + 10
            a("s_nop 1")
            for t in range(4): a(f"v_mfma_f32_32x32x16_bf16 {R(O+16*t,16)}, {R(Z4)}, {R(Z4)}, 0")
            kv_prologue(KBH, 1)
        a("s_waitcnt lgkmcnt(0)\ns_barrier")
        stamp(7)
    def lds_add(off, val):
        a(f"v_mov_b32 v4, {val}\ns_mov_b64 exec, 1\nds_add_u32 v{VS}, v4 offset:{off}\ns_mov_b64 exec, -1")
    def lds_wait(off, val, op, sleep):
        poll(lambda: a(f"ds_read_b32 v4, v{VS} offset:{off}"), [4], sleep, "lgkmcnt", str(val), op)
    l_cg1, l_R = a.newlabel(), a.newlabel()
    br_wave("ge", 4, l_cg1)
    q_path(0)
    l_svcend = a.newlabel()
    if E("NOSVC"):
        lds_add(8, 1); a(f"s_branch {l_svcend}")
    only(3, lambda: stage(P_AV, 1, L_SV))
    srd(S_D, P_SH, D * 8); srd(S_B, P_WO, D * D * 2)
    a(f"""
    s_setprio {E('PKVT', '2')}
    v_and_b32 v4, 7, v1
    v_lshlrev_b32 v4, 4, v4
    s_lshl_b32 s8, s5, 7
    s_lshl_b32 s9, s65, 2
    s_add_u32 s8, s8, s9
    buffer_load_dwordx4 {R(WRAW[0])}, v4, {SR_(S_D)}, s8 offen
    buffer_load_dwordx4 {R(WRAW[1])}, v4, {SR_(S_D)}, s9 offen offset:512
    s_mov_b32 s12, 0xffff0000
    """)
    def decide():
        a(f"v_mul_u32_u24 v4, {QSTR}, v1\nv_add_u32 v4, {L_Q}, v4")
        for i in range(10): a(f"ds_read_b128 {R(128+4*i)}, v4 offset:{16*i}")
        a(f"""
        s_getreg_b32 s9, hwreg(HW_REG_XCC_ID, 0, 4)
        v_xor_b32 v5, s9, v8
        v_xor_b32 v6, s9, v10
        v_or_b32 v5, v5, v6
        v_xor_b32 v6, s9, v12
        v_xor_b32 v7, s9, v14
        v_or3_b32 v5, v5, v6, v7
        v_and_b32 v5, 15, v5
        v_cmp_ne_u32 vcc, 0, v5
        s_lshl_b32 s8, s3, 1
        s_lshr_b64 s[10:11], vcc, s8
        v_max_f32 v8, v8, v10
        v_max3_f32 v8, v8, v12, v14
        s_mov_b32 s8, 0x55555555
        s_mov_b32 s9, 0x55555555
        v_cndmask_b32 v10, 0, v8, s[8:9]
        v_cndmask_b32 v11, v8, 0, s[8:9]
        """)
        for m in ("row_shr:1 row_mask:0xf", "row_shr:2 row_mask:0xf", "row_shr:4 row_mask:0xf", "row_shr:8 row_mask:0xf",
                  "row_bcast:15 row_mask:0xa", "row_bcast:31 row_mask:0xc"):
            a(f"v_max_f32_dpp v10, v10, v10 {m} bank_mask:0xf\nv_max_f32_dpp v11, v11, v11 {m} bank_mask:0xf")
        for j in range(4): a(f"v_mov_b32 v{12+j}, 0")
        a("v_readlane_b32 s14, v10, 63\nv_readlane_b32 s15, v11, 63\ns_waitcnt lgkmcnt(0)")
        for r in range(10):
            for j in range(4): a(f"v_dot2c_f32_bf16 v{12+j}, v{128+10*j+r}, v{128+10*j+r}")
        a(f"""
        v_max3_f32 v12, v12, v13, v14
        v_max_f32 v12, v12, v15
        v_mul_f32 v12, s14, v12
        v_cmp_nge_f32 vcc, {f2u(64.0*64.0)}, v12
        s_mov_b32 s8, 1
        s_cmp_lg_u64 vcc, 0
        s_cselect_b32 s8, 0x101, s8
        s_cmp_lt_u32 s15, {f2u(2.0**-28)}
        s_cselect_b32 s8, 0x101, s8
        s_cmp_gt_u32 s15, {f2u(2.0**50)}
        s_cselect_b32 s8, 0x101, s8
        s_and_b32 s10, s10, 3
        s_cselect_b32 s9, 0, {0 if E("NOFAST") else 0x200}
        s_or_b32 s8, s8, s9
        """)
        lds_add(8, "s8")
    only(1, decide)
    l = a.newlabel()
    a(f"s_or_b32 s8, s2, s5\ns_cmp_lg_u32 s8, 0\ns_cbranch_scc1 {l}\ns_mov_b32 s8, {WS_E}")
    flag_store(8, 6)
    a.label(l)
    a("s_waitcnt vmcnt(0)")
    only(3, lambda: lds_add(0, 1))
    lds_wait(0, 1, "ne", 2)
    stamp(10)
    KRW, KU, VU, WU, KV, PK = 192, 128, 152, 170, 64, 84
    def kvt_compute(ps, pass_sgpr):
        kr = KRW; vr = kr + 12; wr = WRAW[ps]
        for r in range(12): a(f"ds_read_b32 v{kr+r}, v{KT_S} offset:{L_SK + 160*r + 32*ps}")
        for r in range(9): a(f"ds_read_b32 v{vr+r}, v{KT_S} offset:{L_SV + 160*r + 32*ps}")
        for j in range(4):
            for c in range(2):
                src = wr + 2 * c + j // 2
                a(f"v_lshlrev_b32 v{WU+2*j+c}, 16, v{src}" if j % 2 == 0 else f"v_and_b32 v{WU+2*j+c}, s12, v{src}")
        a("s_waitcnt lgkmcnt(9)")
        for r in range(12): a(f"v_lshlrev_b32 v{KU+2*r}, 16, v{kr+r}\nv_and_b32 v{KU+2*r+1}, s12, v{kr+r}")
        for i in range(18): a(f"v_mul_f32 v{KV+i}, v{KU+i}, v{WU+6+(i&1)}")
        for j in (2, 1, 0):
            for i in range(18): a(f"v_fmac_f32 v{KV+i}, v{KU+i+2*(3-j)}, v{WU+2*j+(i&1)}")
        a("s_waitcnt lgkmcnt(0)")
        for r in range(9): a(f"v_lshlrev_b32 v{VU+2*r}, 16, v{vr+r}\nv_and_b32 v{VU+2*r+1}, s12, v{vr+r}")
        for i in range(18): a(f"v_mul_f32 v{KV+i}, v{KV+i}, v{VU+i}")
        for c in range(2):
            for cp in range(2):
                for d in range(4):
                    lo = 7 - cp - 2 * d; hi = lo - 1
                    a(f"v_cvt_pk_bf16_f32 v{PK+8*c+4*cp+d}, v{KV+2*(lo+1)+c}, v{KV+2*(hi+1)+c}")
                a(f"ds_write_b128 v{KT_W}, {R(PK+8*c+4*cp)} offset:{256*c + 16*cp}")
        for k in range(4): a(f"ds_read_b128 {R(PK+16+4*k)}, v{KT_R} offset:{1056*k}")
        a(f"""
        s_mul_i32 s8, s4, 80
        s_lshl_b32 s9, s{pass_sgpr}, 4
        s_add_u32 s8, s8, s9
        s_lshl_b32 s8, s8, 13
        s_sub_u32 s9, 31, s3
        s_lshl_b32 s9, s9, 7
        s_add_u32 s8, s8, s9
        s_add_u32 s8, s8, {WS_XT}
        """)
        for k in range(4):
            a(f"s_waitcnt lgkmcnt({3-k})")
            a(f"buffer_store_dwordx4 {R(PK+16+4*k)}, v{KT_G}, {W}, s8 offen sc1")
            if k < 3: a(f"s_add_u32 s8, s8, {4*8192}")
    def f2_flag(pass_sgpr):
        a(f"""
        s_mul_i32 s8, s4, 5
        s_add_u32 s8, s8, s{pass_sgpr}
        s_lshl_b32 s8, s8, 5
        s_add_u32 s8, s8, s3
        s_lshl_b32 s8, s8, 2
        s_add_u32 s8, s8, {WS_F2}
        """)
        flag_store(8, 6)
    kvt_compute(0, 5)
    l_conv, l_aepi, l_cdone = a.newlabel(), a.newlabel(), a.newlabel()
    br_wave("lg", 3, l_conv)
    a("s_mov_b32 s10, 4")
    kvt_compute(1, 10)
    a("s_waitcnt vmcnt(0)")
    f2_flag(10); f2_flag(5)
    a("s_setprio 0")
    stamp(8)
    def wo_loop(i0, i1):
        a(f"s_add_u32 s8, s65, {(i0//5)*32*1280}\ns_mov_b32 s9, {i0*1024}")
        l = a.newlabel()
        a.label(l)
        for n in range(5):
            a(f"s_add_u32 m0, s9, {1024*n}")
            a(f"buffer_load_dwordx4 v{VW2+n}, {SR_(S_B)}, s8 offen lds")
        a(f"""
        s_add_u32 s8, s8, {32*1280}
        s_add_u32 s9, s9, 5120
        s_waitcnt vmcnt({E('WOV', '5')})
        s_cmp_lt_u32 s9, {i1*1024}
        s_cbranch_scc1 {l}
        """)
    wo_loop(WO_LOW, 100)
    lds_wait(4, 3, "ne", 8)
    wo_loop(0, WO_LOW)
    a("s_waitcnt vmcnt(0)")
    lds_add(0, 1)
    a(f"s_branch {l_aepi}")
    a.label(l_conv)
    lds_add(4, 1)
    a(f"""
    s_lshl_b32 s12, s5, 8
    s_add_u32 s12, s12, s2              ; channel
    s_min_u32 s13, s12, 639
    s_lshl_b32 s8, s13, 12
    s_add_u32 s{S_A}, s{P_SK}, s8
    s_addc_u32 s{S_A+1}, s{P_SK+1}, 0
    s_mov_b32 s{S_A+2}, 4096
    s_lshl_b32 s8, s13, 13
    s_add_u32 s8, s8, {WS_XT}
    s_add_u32 s{S_B}, s{P_WS}, s8
    s_addc_u32 s{S_B+1}, s{P_WS+1}, 0
    s_mov_b32 s{S_B+2}, 4096
    s_add_u32 s{S_C}, s{S_B}, 4096
    s_addc_u32 s{S_C+1}, s{S_B+1}, 0
    s_mov_b32 s{S_C+2}, 4096
    s_load_dword s14, s[{S_A}:{S_A+1}], 0
    s_lshr_b32 s8, s13, 1
    s_lshl_b32 s8, s8, 2
    s_load_dword s15, s[{P_SD}:{P_SD+1}], s8
    s_mul_i32 s8, s13, 52429
    s_lshr_b32 s8, s8, 22
    s_mul_i32 s9, s8, 80
    s_sub_u32 s9, s13, s9
    s_lshr_b32 s9, s9, 4
    s_mul_i32 s8, s8, 5
    s_add_u32 s8, s8, s9
    s_lshl_b32 s13, s8, 7
    s_add_u32 s13, s13, {WS_F2}
    s_waitcnt vmcnt(0)
    """)
    f2_flag(5)
    a(f"s_waitcnt lgkmcnt(0)\ns_cmp_ge_u32 s12, 640\ns_cbranch_scc1 {l_cdone}")
    if E("NOCONV"): a(f"s_branch {l_cdone}")
    a(f"s_mov_b32 m0, s68\nbuffer_load_dwordx4 v{V_HD}, {SR_(S_A)}, 0 offen lds")
    a(f"s_add_u32 m0, s68, 1024\ns_movk_i32 s8, 960")
    for i in range(4): a(f"buffer_load_dwordx4 v{AK1}, {SR_(S_A)}, s8 offen offset:{1024*i} lds")
    for i in range(4): a(f"v_mov_b32 v{8+i}, 0")
    for t in range(4): a(f"v_mfma_f32_32x32x16_bf16 {R(O+16*t,16)}, {R(8)}, {R(8)}, 0")
    a(f"""
    s_bitcmp1_b32 s12, 0
    s_cselect_b32 s8, 0, 16
    s_lshl_b32 s15, s15, s8
    s_and_b32 s15, s15, 0xffff0000
    s_lshl_b32 s8, s14, 16
    v_mov_b32 v5, s8
    v_add_f32 v5, s15, v5
    v_cvt_pk_bf16_f32 v5, v5, v5
    v_mov_b32 v6, s68
    s_waitcnt vmcnt(0)
    ds_write_b16 v6, v5 offset:64
    """)
    lds_wait(16, int(E("PF2", "6")), "lt", 8)
    poll(lambda: a(f"buffer_load_dword v4, v{V_F2}, {W}, s13 offen sc1"), [4], 16)
    stamp(8)
    a("s_movk_i32 s8, 4096")
    for cl_ in range(2):
        a(f"s_add_u32 m0, s68, {5120 + 5120*cl_}")
        for i in range(4): a(f"buffer_load_dwordx4 v{AK1}, {SR_(S_C if cl_ else S_B)}, 0 offen offset:{1024*i} sc1 lds")
        a(f"s_add_u32 m0, s68, {5120 + 5120*cl_ + 4096}")
        a(f"buffer_load_dwordx4 v{AK1}, {SR_(S_C if cl_ else S_B)}, s8 offen sc1 lds")
    a(f"s_waitcnt vmcnt(0)\ns_setprio {E('PCONV', '0')}")
    F = SR
    def c_reads(sp):
        j, e = sp >> 1, sp & 1; b = F + 32 * (sp & 1)
        for u in range(4):
            o = (4 + 32 * e + 128 * j) // 4
            a(f"ds_read2_b32 {R(b+4*u,2)}, v{VA+u} offset0:{o} offset1:{o+1}")
            a(f"ds_read2_b32 {R(b+4*u+2,2)}, v{VA+u} offset0:{o+2} offset1:{o+3}")
            a(f"ds_read_b128 {R(b+16+4*u)}, v{V_B} offset:{5120 + 5120*e + 3072 - 1024*u + 128*j}")
    c_reads(0)
    for sp in range(16):
        if sp < 15: c_reads(sp + 1)
        a(f"s_waitcnt lgkmcnt({12 if sp < 15 else 0})")
        b = F + 32 * (sp & 1)
        for u in range(4):
            for nb in range(u, 4):
                d = R(O + 16 * nb, 16)
                a(f"v_mfma_f32_32x32x16_bf16 {d}, {R(b+4*u)}, {R(b+16+4*(nb-u))}, {d}")
    a("s_setprio 2")
    a(f"ds_write_b128 v{V_ZW}, {R(8)}\nds_write_b128 v{V_ZW}, {R(8)} offset:4160")
    for nb in range(4):
        for q in range(2): a(f"ds_write_b128 v{V_ZW}, {R(O+16*nb+8+4*q)} offset:{4160*q + 512*nb + 32}")
    for nb in range(4):
        for q in range(2): a(f"ds_read_b128 {R(F+8*nb+4*q)}, v{V_ZW} offset:{4160*q + 512*nb}")
    a(f"s_lshl_b32 s8, s12, 12\ns_add_u32 s8, s8, {WS_Z}")
    for nb in range(4):
        a(f"s_waitcnt lgkmcnt({6-2*nb})")
        for r in range(8): a(f"v_add_f32 v{O+16*nb+r}, v{O+16*nb+r}, v{F+8*nb+r}")
        for k in range(4): a(f"v_cvt_pk_bf16_f32 v{F+32+4*nb+k}, v{O+16*nb+2*k}, v{O+16*nb+2*k+1}")
        a(f"buffer_store_dwordx4 {R(F+32+4*nb)}, v{V_ZS}, {W}, s8 offen offset:{1024*nb} sc1")
    a(f"s_lshl_b32 s8, s12, 2\ns_add_u32 s8, s8, {WS_F3}\ns_waitcnt vmcnt(0)")
    flag_store(8, 6)
    a.label(l_cdone)
    lds_add(8, 1)
    a.label(l_aepi)
    stamp(9)
    a("s_setprio 2")
    XF, AF, AC = 8, 96, 64
    def o_reads(ks):
        b = AF + 20 * (ks % 8); pr_, m = ks // 5, ks % 5
        for nb in range(5):
            for z in range(2):
                off = pr_ * 25600 + nb * 32 + (6400 * m + 640 * z if m < 4 else 3200 * z)
                a(f"ds_read_b64_tr_b16 {R(b+4*nb+2*z,2)}, v{VT + (m == 4)} offset:{off}")
    QRW, ZR, U = 8, 24, 64
    X40 = "s_mov_b32 exec_lo, -1\ns_mov_b32 exec_hi, 0xff"
    srd(S_A, P_AQ, ACT)
    a(X40)
    for e in range(8):
        a(f"s_movk_i32 s8, {(16*(e>>2) + 2*(e&3))*1280}")
        a(f"buffer_load_dwordx2 {R(QRW+2*e,2)}, v{AE}, {SR_(S_A)}, s8 offen")
    a("s_mov_b64 exec, -1")
    a(f"""
    buffer_load_dwordx4 {R(64)}, v{PV+2}, {W}, s72 offen sc1
    buffer_load_dwordx4 {R(64)}, v{PV+2}, {W}, s72 offen offset:1024 sc1
    buffer_load_dwordx2 {R(64,2)}, v{PV+3}, {W}, s73 offen sc1
    buffer_load_dwordx2 {R(64,2)}, v{PV+3}, {W}, s73 offen offset:256 sc1
    v_mov_b32 v4, 0
    buffer_load_dword v64, v4, {W}, s74 offen sc1
    """)
    lds_wait(0, 2, "ne", 16)
    for ks in range(8): o_reads(ks)
    if not E("NOAEPI"):
        lds_wait(16, 1, "lt", 8)
        a(f"""
        s_lshl_b32 s12, s3, 7
        s_lshl_b32 s8, s5, 5
        s_add_u32 s12, s12, s8
        s_add_u32 s12, s12, {WS_Z}
        s_mov_b32 s13, {WS_F3}
        {X40}
        """)
        poll(lambda: a(f"buffer_load_dwordx4 {R(40)}, v{AE+2}, {W}, s13 offen sc1"), [40, 41, 42, 43], 16)
        stamp(11)
        for i in range(4):
            a(f"buffer_load_dwordx4 {R(ZR+4*i)}, v{AE+3}, {W}, s12 offen sc1")
            if i < 3: a("s_add_u32 s12, s12, 4096")
        a("s_mov_b64 exec, -1")
    a.label(l_svcend)
    a("s_waitcnt vmcnt(0) lgkmcnt(0)")
    stamp(12)
    a("s_barrier")
    a(f"ds_read_b32 v5, v{VS} offset:8")
    OWN = O
    for j in range(2):
        for r in range(3): a(f"ds_read_b128 {R(OWN+12*j+4*r)}, v{PV+j} offset:{1024*r}")
    a(f"s_branch {l_R}")
    a.label(l_cg1)
    q_path(1)
    for i in range(4): a(f"ds_read2_b64 {R(QM+4*i)}, v{QA+i} offset0:0 offset1:1")
    a(f"ds_read_b64 {R(QR,2)}, v{QA+4} offset:32\nds_read_b64 {R(QR+2,2)}, v{QA+5} offset:32")
    a(f"s_setprio 1\ns_movk_i32 s13, 8\ns_movk_i32 s70, 0x100")
    l_fb, l_after = a.newlabel(), a.newlabel()
    def qk(t, kb, usec):
        return f"v_mfma_f32_32x32x16_bf16 {R(SR+16*t,16)}, {R(kb)}, {R(QM+4*t)}, {R(C+16*t,16) if usec else '0'}"
    def qr(p, kb):
        d = R(SR + 32 * p, 32)
        return f"v_mfma_f32_32x32x4_2b_bf16 {d}, {R(kb+4,2)}, {R(QR+2*p,2)}, {d}"
    def pv(t, hf, vb):
        d = R(O + 16 * t, 16)
        return f"v_mfma_f32_32x32x16_bf16 {d}, {R(vb+6+4*hf)}, {R(SR+16*t+8*hf)}, {d}"
    MP = [int(x) for x in E("MP", "0,8,13,20,25,36,44").split(",")]
    LP = [int(x) for x in E("LP", "12,36,60,84").split(",")]
    def phase(p, kq_, vcur, vprev, extra, usec):
        ta, tb = 2 * p, 2 * p + 1
        na, nb_ = 2 * (1 - p), 2 * (1 - p) + 1
        base, pbase = SR + 32 * p, SR + 32 * (1 - p)
        def cv(b, j):
            bb = b + 8 * (j // 4); k = j % 4
            return f"v_cvt_pk_bf16_f32 v{bb+k}, v{bb+2*k}, v{bb+2*k+1}"
        valu = []
        for grp in range(8):
            for i in range(4): valu.append(f"v_exp_f32 v{base+4*grp+i}, v{base+4*grp+i}")
            for j in (2 * grp - 2, 2 * grp - 1): valu.append(cv(base, j) if j >= 0 else cv(pbase, 16 + j))
        ins = dict(zip(MP, [[qk(na, kq_, usec)], [pv(nb_, 1, vprev)], [qk(nb_, kq_, usec)], [pv(ta, 0, vcur)],
               [qr(1 - p, kq_)], [pv(ta, 1, vcur)], [pv(tb, 0, vcur)]]))
        for k, v in extra.items():
            if k == "wait": ins[MP[3]] = v + ins[MP[3]]
            else: ins[k] = ins.get(k, []) + v
        for i, x in enumerate(valu):
            for y in ins.get(i, []): a(y)
            a(x)
        return [cv(base, 14), cv(base, 15)]
    def main_loop(kb, usec):
        nb = len(kb)
        a(f"s_waitcnt vmcnt({4*(nb-1)}) lgkmcnt(0)")
        stamp(8); rstamp(14)
        a(qk(0, kb[0], usec)); a(qk(1, kb[0], usec))
        for i in range(8): a(f"v_mov_b32 v{SR+56+i}, 0")
        a(qr(0, kb[0]))
        a("s_nop 15\ns_nop 3")
        l_loop = a.newlabel()
        a(".p2align 6")
        a.label(l_loop)
        for par in range(nb):
            cur, nxt, prv = kb[par], kb[(par + 1) % nb], kb[par - 1]
            lds_ = [f"buffer_load_dwordx4 {R(prv+6)}, v{AV}, {W}, s11 offen offset:{V0_OFF}{KVSC}",
                    f"buffer_load_dwordx4 {R(prv+10)}, v{AV}, {W}, s11 offen offset:{V1_OFF}{KVSC}",
                    f"buffer_load_dwordx4 {R(cur)}, v{AK1}, {W}, s11 offen offset:{TILE + K1_OFF}{KVSC}",
                    f"buffer_load_dwordx2 {R(cur+4,2)}, v{AKR}, {W}, s11 offen offset:{TILE + KR_OFF}{KVSC}"]
            ex = [{"wait": [f"s_waitcnt vmcnt({4*(nb-2) + sum(1 for p_ in LP if p_ < MP[3])})"]}, {}]
            for p_, l_ in zip(LP, lds_): ex[p_ // 48].setdefault(p_ % 48, []).append(l_)
            pm = max(LP) + 3
            ex[pm // 48].setdefault(pm % 48, []).append(f"s_add_u32 s11, s11, {TILE}")
            if par == nb - 1:
                ex[1].setdefault(22, []).append("s_sub_u32 s13, s13, 1")
                if not usec: ex[1].setdefault(24, []).extend(["v_mov_b32 v4, s13", f"ds_write_b32 v{VS}, v4 offset:16", f"ds_read_b32 v5, v{VS} offset:8"])
                ex[1].setdefault(45, []).append("s_cmp_lg_u32 s13, 0")
            phase(0, cur, cur, prv, ex[0], usec)
            tail = phase(1, nxt, cur, cur, ex[1], usec)
        a(f"s_cbranch_scc1 {l_loop}")
        for x in tail: a(x)
        a(pv(3, 1, kb[-1]))
    main_loop(KBH, False)
    l_w, l_ok = a.newlabel(), a.newlabel()
    a(f"s_mov_b32 s96, {SPIN}")
    a.label(l_w)
    a(f"""
    s_waitcnt lgkmcnt(0)
    v_readfirstlane_b32 s8, v5
    s_and_b32 s9, s8, 0xff
    s_cmp_eq_u32 s9, 4
    s_cbranch_scc1 {l_ok}
    s_sleep 2
    ds_read_b32 v5, v{VS} offset:8
    s_sub_u32 s96, s96, 1
    s_cmp_lg_u32 s96, 0
    s_cbranch_scc1 {l_w}
    """)
    a.label(l_ok)
    a(f"s_bitcmp1_b32 s8, 8\ns_cbranch_scc1 {l_fb}")
    a.label(l_after)
    stamp(9); rstamp(15)
    for i in (1, 2, 3):
        for r in range(3): a(f"ds_write_b128 v{PV}, {R(O+16*i+4*r)} offset:{3072*(i-1) + 1024*r}")
    a("s_waitcnt lgkmcnt(0)")
    stamp(12)
    a("s_barrier")
    for r in range(3): a(f"ds_read_b128 {R(OWN+12+4*r)}, v{PV+1} offset:{1024*r}")
    a.label(l_R)
    a("s_waitcnt lgkmcnt(0)\nv_readfirstlane_b32 s71, v5")
    for r in (10, 8, 9, 0, 1, 2, 3, 4, 5, 6, 7): a(f"v_add_f32 v{OWN+r}, v{OWN+r}, v{OWN+12+r}")
    a(f"v_rcp_f32 v{OWN+10}, v{OWN+10}")
    for i in (8, 9, 0, 1, 2, 3, 4, 5, 6, 7): a(f"v_mul_f32 v{OWN+i}, v{OWN+i}, v{OWN+10}")
    PO = 88
    a(f"v_cvt_pk_bf16_f32 v{PO+4}, v{OWN+8}, v{OWN+9}\nv_cvt_pk_bf16_f32 v{PO+5}, v{OWN+8}, v{OWN+9}")
    for i in range(4): a(f"v_cvt_pk_bf16_f32 v{PO+i}, v{OWN+2*i}, v{OWN+2*i+1}")
    a(f"""
    v_permlane32_swap_b32 v{PO+4}, v{PO+5}
    s_waitcnt vmcnt(0)
    s_bitcmp1_b32 s71, 9
    s_cbranch_scc1 L_fast1
    buffer_store_dwordx4 {R(PO)}, v{PV+2}, {W}, s72 offen sc1
    s_mov_b32 exec_hi, 0
    buffer_store_dwordx2 {R(PO+4,2)}, v{PV+3}, {W}, s73 offen sc1
    s_branch L_fast2
    L_fast1:
    buffer_store_dwordx4 {R(PO)}, v{PV+2}, {W}, s72 offen
    s_mov_b32 exec_hi, 0
    buffer_store_dwordx2 {R(PO+4,2)}, v{PV+3}, {W}, s73 offen
    L_fast2:
    s_mov_b32 exec_hi, -1
    """)
    tstamp(1)
    srd(S_C, P_OUT, 2 * ACT)
    OSTR = 336; OKH = 64 * OSTR
    a(f"""
    s_lshl_b32 s12, s3, 1
    s_lshr_b32 s8, s77, 1
    s_add_u32 s12, s12, s8
    s_lshl_b32 s12, s12, 1
    s_add_u32 s12, s12, s76
    s_lshl_b32 s12, s12, 6
    s_add_u32 s12, s12, {WS_F4}
    v_lshlrev_b32 v4, 2, v2
    v_lshlrev_b32 v5, 8, v3
    v_lshl_add_u32 v5, v2, 3, v5
    s_lshl_b32 s13, s3, 2
    s_add_u32 s13, s13, s77
    s_mul_i32 s13, s13, {OPB}
    s_add_u32 s13, s13, {WS_O}
    s_lshl_b32 s8, s76, 11
    s_add_u32 s15, s13, s8
    s_add_u32 s15, s15, 16384
    s_lshl_b32 s8, s76, 13
    s_add_u32 s13, s13, s8
    s_add_u32 s10, s13, 4096
    v_mov_b32 v6, s{TAG}
    v_mov_b32 v7, 0
    """)
    l = a.newlabel()
    br_wave("lt", 4, l)
    for ks in range(2): o_reads(ks)
    a.label(l)
    tstamp(2)
    a(f"""
    s_waitcnt vmcnt(0)
    s_mov_b64 exec, 1
    s_bitcmp1_b32 s71, 9
    s_cbranch_scc1 L_fast3
    buffer_store_dword v6, v7, {W}, s74 offen sc1
    s_branch L_fast4
    L_fast3:
    buffer_store_dword v6, v7, {W}, s74 offen
    L_fast4:
    s_mov_b64 exec, -1
    """)
    tstamp(3)
    a("s_barrier")
    l, l2 = a.newlabel(), a.newlabel()
    br_wave("lt", 4, l)
    for ks in range(2, 8): o_reads(ks)
    a(f"s_branch {l2}")
    a.label(l)
    a("s_mov_b32 s14, 0xffff0000")
    def unp(dst, src, hi): a(f"v_and_b32 v{dst}, s14, v{src}" if hi else f"v_lshlrev_b32 v{dst}, 16, v{src}")
    AO = 72
    for e in range(8):
        for i in range(4):
            unp(U + i, QRW + 2 * e + i // 2, i % 2); unp(U + 4 + i, ZR + 4 * i + e // 2, e % 2)
        for i in range(4): a(f"v_mul_f32 v{U+i}, v{U+i}, v{U+4+i}")
        for i in (0, 2): a(f"v_cvt_pk_bf16_f32 v{AO+2*e+i//2}, v{U+i}, v{U+i+1}")
    a.label(l2)
    tstamp(4)
    poll(lambda: a(f"buffer_load_dword v6, v4, {W}, s12 offen sc1"), [6], 1)
    tstamp(5)
    l = a.newlabel()
    br_wave("ge", 4, l)
    if not E("NOAEPI") and not E("NOSVC"):
        a(X40)
        for e in range(8):
            a(f"s_mov_b32 s8, {(16*(e>>2) + 2*(e&3))*2560}")
            a(f"buffer_store_dwordx2 {R(AO+2*e,2)}, v{AE+1}, {SR_(S_C)}, s8 offen")
        a("s_mov_b64 exec, -1")
    a.label(l)
    nld = []
    for ks in range(10):
        pr_, m = ks // 5, ks % 5
        if m < 4:
            a(f"buffer_load_dwordx4 {R(XF+4*ks)}, v{AK1}, {W}, s{10 if pr_ else 13} offen offset:{1024*m} sc1"); nld.append(1)
        else:
            for z in range(2): a(f"buffer_load_dwordx2 {R(XF+4*ks+2*z,2)}, v5, {W}, s15 offen offset:{1024*pr_ + 128*z} sc1")
            nld.append(2)
    a(f"""
    v_mul_u32_u24 v54, {OSTR}, v2
    v_lshl_add_u32 v54, v3, 4, v54
    s_mul_i32 s8, s77, {16*OSTR}
    s_mul_i32 s9, s76, {OKH}
    s_add_u32 s8, s8, s9
    s_add_u32 s8, s8, {L_OUT}
    v_add_u32 v54, s8, v54
    """)
    for i in range(2):
        a(f"""
        v_add_u32 v55, {512*i}, v0
        v_mul_u32_u24 v6, 6554, v55
        v_lshrrev_b32 v6, 16, v6
        v_mul_u32_u24 v7, 10, v6
        v_sub_u32 v7, v55, v7
        v_mul_u32_u24 v{56+i}, {OSTR}, v6
        v_lshl_add_u32 v{56+i}, v7, 5, v{56+i}
        v_add_u32 v{56+i}, {L_OUT}, v{56+i}
        v_mul_u32_u24 v{58+i}, 2560, v6
        v_lshl_add_u32 v{58+i}, v7, 4, v{58+i}
        """)
    a(f"s_lshl_b32 s14, s64, 1\ns_add_u32 s14, s14, s65\ns_add_u32 s14, s14, 1280")
    tstamp(6)
    for ks in range(10):
        a(f"s_waitcnt vmcnt({sum(nld[ks+1:])})" + (" lgkmcnt(0)" if ks in (0, 8) else ""))
        b = AF + 20 * (ks % 8)
        for nb in range(5):
            d = R(AC + 4 * nb)
            a(f"v_mfma_f32_16x16x32_bf16 {d}, {R(b+4*nb)}, {R(XF+4*ks)}, {'0' if ks == 0 else d}")
        if ks < 2: o_reads(8 + ks)
    tstamp(7)
    for nb in range(5): a(f"ds_write_b128 v54, {R(AC+4*nb)} offset:{64*nb}")
    a("s_waitcnt lgkmcnt(0)\ns_barrier")
    for i in range(2):
        if i == 1: br_wave("ge", 2, "L_fin")
        b = 96 + 16 * i
        a(f"ds_read_b128 {R(b)}, v{56+i}\nds_read_b128 {R(b+4)}, v{56+i} offset:16")
        a(f"ds_read_b128 {R(b+8)}, v{56+i} offset:{OKH}\nds_read_b128 {R(b+12)}, v{56+i} offset:{OKH+16}")
        a("s_waitcnt lgkmcnt(0)")
        for r in range(8): a(f"v_add_f32 v{b+r}, v{b+r}, v{b+8+r}")
        for r in range(4): a(f"v_cvt_pk_bf16_f32 v{b+8+r}, v{b+2*r}, v{b+2*r+1}")
        a(f"buffer_store_dwordx4 {R(b+8)}, v{58+i}, {SR_(S_C)}, s14 offen")
    a.label("L_fin")
    if STAMP:
        a(f"""
        s_memtime s[98:99]
        s_waitcnt lgkmcnt(0)
        s_mov_b32 s96, s98
        s_memrealtime s[98:99]
        s_waitcnt lgkmcnt(0)
        s_mov_b32 s97, s98
        s_add_u32 s72, s{P_WS}, {WS_STAMP}
        s_addc_u32 s73, s{P_WS+1}, 0
        s_mov_b32 s74, 0x40000
        s_mov_b32 s75, 0x20000
        s_lshl_b32 s76, s2, 3
        s_add_u32 s76, s76, s5
        s_lshl_b32 s76, s76, 7
        v_mov_b32 v2, 0
        """)
        for i in range(18): a(f"v_mov_b32 v3, s{80+i}\nbuffer_store_dword v3, v2, s[72:75], s76 offen offset:{4*i}")
    a.label("L_exit")
    a("s_endpgm")
    a.label(l_fb)
    FB = [28, 240]
    FB = [28, 114]
    a("s_waitcnt vmcnt(0)\ns_nop 15\ns_nop 3")
    raise_fb = True
    TB, M = 28, 36
    for j in range(4): a(f"v_mov_b32 v{M+j}, 0xff800000")
    a(f"s_mov_b32 s11, {WS_KV}\ns_mov_b32 s14, 64\ns_mov_b32 s13, 16")
    l_f = a.newlabel()
    a.label(l_f)
    loadK(TB, 0)
    a("s_waitcnt vmcnt(0)")
    for t in range(4): a(qk(t, TB, False))
    a(qr(0, TB)); a(qr(1, TB))
    for t in range(4):
        for i in range(8): a(f"v_max3_f32 v{M+t}, v{M+t}, v{SR+16*t+2*i}, v{SR+16*t+2*i+1}")
    a(f"s_add_u32 s11, s11, {TILE}\ns_sub_u32 s14, s14, 1\ns_cmp_lg_u32 s14, 0\ns_cbranch_scc1 {l_f}")
    for t in range(4):
        a(f"v_mov_b32 v{M+4}, v{M+t}\nv_permlane32_swap_b32 v{M+t}, v{M+4}\nv_max_f32 v{M+4}, v{M+4}, v{M+t}")
        for i in range(16): a(f"v_sub_f32 v{C+16*t+i}, 0, v{M+4}")
    a(f"v_mov_b32 v6, v{VT}\nv_mov_b32 v7, v{VT+1}")
    for i in range(4): a(f"v_mov_b32 v{52+i}, 0")
    for t in range(4): a(f"v_mfma_f32_32x32x16_bf16 {R(O+16*t,16)}, {R(52)}, {R(52)}, 0")
    kv_prologue([28, 42])
    main_loop([28, 42], True)
    a(f"s_waitcnt vmcnt(0)\nv_mov_b32 v{VT}, v6\nv_mov_b32 v{VT+1}, v7\ns_nop 7\ns_nop 7\ns_branch {l_after}")
    return a.finalize(verbose=bool(E("VERB")))

def build():
    hdr = open(f"cdna_kernels/{NAME}.s.ref").read().split("; @launch")[0]
    k = NAME + "_kernel"
    body = build_kernel()
    return hdr + f"""; @launch grid=(256,1,1) block=(512,1,1) lds=163840
.amdgcn_target "amdgcn-amd-amdhsa--gfx950"
.text
.globl {k}
.p2align 8
.type {k},@function
{k}:
{body}.section .rodata,"a"
.p2align 6
.amdhsa_kernel {k}
  .amdhsa_next_free_vgpr 256
  .amdhsa_next_free_sgpr 100
  .amdhsa_accum_offset 256
  .amdhsa_group_segment_fixed_size 0
  .amdhsa_kernarg_size 112
  .amdhsa_user_sgpr_count 2
  .amdhsa_user_sgpr_kernarg_segment_ptr 1
  .amdhsa_system_sgpr_workgroup_id_x 1
.end_amdhsa_kernel
"""

if __name__ == "__main__":
    path = sys.argv[1] if len(sys.argv) > 1 else "fused4.s"
    open(path, "w").write(build())
    print("wrote", path)
```

```python
import sys, math, struct, os
sys.path.insert(0, "gen")
from asmlib import Asm

NAME = "concat_heads__ssm_conv_h3__grouped_kv_mqa__prompt"
S, D, H, DH = 2048, 640, 32, 20
ACT = S * D * 2
WS_E, WS_F1, WS_F2, WS_F3, WS_F4 = 0, 1024, 4096, 12288, 16384
WS_KV = 32768
TILE = 2816
KR_OFF, K1_OFF, V0_OFF, V1_OFF = 0, 256, 1280, 2048
WS_O = 0x40000
OPB = 20480
WS_Z = WS_O + ACT
WS_XT = WS_Z + ACT
WS_END = WS_XT + 2 * ACT
WS_STAMP = 0x2000000
QSCALE = (DH ** -0.5) * math.log2(math.e)
E = os.environ.get
STAMP = E("STAMP", "0") == "1"
TAILST = E("TAILST")
SPIN = 1 << 17
OSFX = (" " + E("OSFX")) if E("OSFX") else ""
KVSC = "" if E("KVPLAIN") else " sc1"

def f2u(x): return struct.unpack("<I", struct.pack("<f", x))[0]
P_AQ, P_AK, P_AV, P_SH, P_SK, P_SD, P_X, P_WQ, P_WK, P_WV, P_WO, P_OUT, P_DBG, P_WS = [16 + 2 * i for i in range(14)]
S_WS, S_A, S_B, S_C, S_D = 44, 48, 52, 56, 60
TAG = 78
def R(b, n=4): return f"v[{b}:{b+n-1}]"
def SR_(b): return f"s[{b}:{b+3}]"
W = SR_(S_WS)

L_W = 81920; GSLOT = 20480
L_WKV = 163840 - 25600
L_Q = 102400; QSTR = 176
L_STAT = L_Q + 64 * QSTR
L_RED = 113920
L_CONV = 113920; CVS = 15360
L_OUT = 102400
L_SK, L_SV, L_KT = 0, 16384, 27648
WO_LOW = 45

a = Asm()
def srd(r, ptr, nbytes, off=0):
    if off:
        a(f"s_add_u32 s{r}, s{ptr}, {off}\ns_addc_u32 s{r+1}, s{ptr+1}, 0")
    else:
        a(f"s_mov_b32 s{r}, s{ptr}\ns_mov_b32 s{r+1}, s{ptr+1}")
    a(f"s_mov_b32 s{r+2}, {nbytes}\ns_mov_b32 s{r+3}, 0x20000")
def _st(i, op="s_memtime"): a(f"{op} s[98:99]\ns_waitcnt lgkmcnt(0)\ns_mov_b32 s{80+i}, s98")
def stamp(i):
    if STAMP and not (TAILST and 1 <= i <= 7): _st(i)
def tstamp(i):
    if STAMP and TAILST: _st(i)
def rstamp(i):
    if STAMP: _st(i, "s_memrealtime")
def br_wave(op, n, lab): a(f"s_cmp_{op}_u32 s5, {n}\ns_cbranch_scc1 {lab}")
def poll(load_fn, tagregs, sleep=2, cnt="vmcnt", val=None, op="ne", skipfirst=False, fail=None):
    val = val or f"s{TAG}"
    l, d = a.newlabel(), a.newlabel()
    a(f"s_mov_b32 s96, {SPIN}")
    if skipfirst:
        l0 = a.newlabel(); a(f"s_branch {l0}")
    a.label(l)
    load_fn()
    if skipfirst: a.label(l0)
    a(f"s_waitcnt {cnt}(0)")
    for i, t in enumerate(tagregs):
        if i == 0: a(f"v_cmp_{op}_u32 s[8:9], {val}, v{t}")
        else: a(f"v_cmp_ne_u32 vcc, {val}, v{t}\ns_or_b64 s[8:9], s[8:9], vcc")
    if fail:
        a(f"s_cmp_eq_u64 s[8:9], 0\ns_cbranch_scc0 {fail}"); return
    a(f"""
    s_cmp_eq_u64 s[8:9], 0
    s_cbranch_scc1 {d}
    s_sleep {sleep}
    s_sub_u32 s96, s96, 1
    s_cmp_lg_u32 s96, 0
    s_cbranch_scc1 {l}
    """)
    a.label(d)
def flag_store(soff_sgpr, vt):
    a(f"v_mov_b32 v{vt}, s{TAG}\nv_mov_b32 v{vt+1}, 0")
    a(f"s_mov_b64 exec, 1")
    a(f"buffer_store_dword v{vt}, v{vt+1}, {W}, s{soff_sgpr} offen sc1")
    a(f"s_mov_b64 exec, -1")
def wpat(dst, qbase, x4):
    a(f"""
    v_add_u32 v4, {qbase}, v1
    v_mul_u32_u24 v5, 6554, v4
    v_lshrrev_b32 v5, 16, v5
    v_mul_u32_u24 v6, 10, v5
    v_sub_u32 v6, v4, v6
    """)
    if x4: a("v_lshrrev_b32 v7, 1, v5\nv_and_b32 v7, 4, v7\nv_xor_b32 v5, v5, v7")
    a(f"v_mul_u32_u24 v5, 1280, v5\nv_lshl_add_u32 v{dst}, v6, 4, v5")

def build_kernel():
    if STAMP: a("s_memtime s[80:81]\ns_memrealtime s[92:93]")
    a(f"""
    s_cmp_ge_u32 s2, 256
    s_cbranch_scc1 L_exit
    s_load_dwordx16 s[16:31], s[0:1], 0
    s_load_dwordx8 s[32:39], s[0:1], 64
    s_load_dwordx4 s[40:43], s[0:1], 96
    v_lshrrev_b32 v1, 6, v0
    s_and_b32 s7, s2, 7
    s_lshl_b32 s3, s7, 2
    s_lshr_b32 s4, s2, 3
    v_readfirstlane_b32 s5, v1
    s_and_b32 s6, s4, 3
    s_add_u32 s3, s3, s6          ; s3 = pb64
    s_lshr_b32 s4, s4, 2          ; s4 = hg
    v_and_b32 v1, 63, v0          ; lane
    v_and_b32 v2, 15, v1          ; p
    v_lshrrev_b32 v3, 4, v1       ; kg
    s_mul_i32 s64, s3, {64*1280}
    s_mul_i32 s65, s4, 160
    s_add_u32 s66, s6, s7
    s_mul_i32 s8, s66, 52
    s_lshr_b32 s8, s8, 8
    s_mul_i32 s8, s8, 5
    s_sub_u32 s66, s66, s8
    s_and_b32 s67, s4, 3          ; pbk
    """)
    VD, VXR, VTR, VQW, VEX = 28, 34, 36, 38, 46
    VKR, VK4, VK5 = 40, 42, 43
    ACC, GF = 64, 96
    QM, QR = 8, 24
    O, SR, C = 64, 128, 192
    KBH = [192, 206, 220, 234]
    AK1, AKR, AV = 62, 63, 61
    PV, QA, VS, VT, AE = 56, 176, 44, 52, 48
    B0, B1, PA, PB = 16, 20, 64, 68
    KT_W, KT_R, KT_G, KT_S, VW2 = 240, 241, 242, 243, 244
    VA, V_B, V_ZW, V_ZS, V_HD, V_F2 = 228, 232, 233, 234, 235, 236
    VWO = 224
    WRAW = [216, 220]
    L_EX = 32768
    def gwrap(sreg, step):
        a(f"s_add_u32 s{sreg}, s{sreg}, {step}\ns_cmp_ge_u32 s{sreg}, {5*step}\ns_cselect_b32 s{sreg}, 0, s{sreg}")
    def shift2(r, d): a(f"v_add_u32 v{r}, {d & 0xffffffff}, v{r}\nv_add_u32 v{r+1}, {d & 0xffffffff}, v{r+1}")
    def loadK(buf, off):
        a(f"buffer_load_dwordx4 {R(buf)}, v{AK1}, {W}, s11 offen offset:{off + K1_OFF}{KVSC}")
        a(f"buffer_load_dwordx2 {R(buf+4,2)}, v{AKR}, {W}, s11 offen offset:{off + KR_OFF}{KVSC}")
    def loadV(buf, off):
        a(f"buffer_load_dwordx4 {R(buf+6)}, v{AV}, {W}, s11 offen offset:{off + V0_OFF}{KVSC}")
        a(f"buffer_load_dwordx4 {R(buf+10)}, v{AV}, {W}, s11 offen offset:{off + V1_OFF}{KVSC}")
    def kv_prologue(kb, part=None):
        nb = len(kb)
        if part != 1:
            a("s_mov_b32 s11, s79")
            loadK(kb[0], 0)
        for j in range(nb - 1):
            if (part == 0 and j > 0) or (part == 1 and j == 0): continue
            loadV(kb[j], 0); loadK(kb[j + 1], TILE); a(f"s_add_u32 s11, s11, {TILE}")
    def tail_addr(hi):
        T = 192
        a(f"""
        s_and_b32 s76, s5, 1
        s_lshr_b32 s77, s5, 1
        v_lshlrev_b32 v{AK1}, 4, v1
        v_bfe_u32 v{T}, v1, 4, 1
        v_mul_u32_u24 v{T}, {OPB}, v{T}
        v_lshl_add_u32 v{PV+3}, v2, 3, v{T}
        v_lshl_add_u32 v{T}, v2, 4, v{T}
        v_lshrrev_b32 v{T+1}, 5, v1
        v_lshl_add_u32 v{PV+2}, v{T+1}, 8, v{T}
        s_lshl_b32 s8, s3, 2
        s_lshl_b32 s9, s76, 1
        s_add_u32 s8, s8, s9
        s_mul_i32 s8, s8, {OPB}
        s_add_u32 s8, s8, {WS_O}
        s_lshl_b32 s9, s4, 2
        s_add_u32 s9, s9, s77
        s_lshl_b32 s72, s9, 9
        s_add_u32 s72, s72, s8
        s_lshl_b32 s73, s9, 7
        s_add_u32 s73, s73, s8
        s_add_u32 s73, s73, 16384
        s_lshl_b32 s74, s3, 1
        s_add_u32 s74, s74, s76
        s_lshl_b32 s74, s74, 5
        s_add_u32 s74, s74, s9
        s_lshl_b32 s74, s74, 2
        s_add_u32 s74, s74, {WS_F4}
        """)
        for j, i in enumerate((0, 1) if hi else (2, 3)):
            a(f"""
            s_xor_b32 s8, s5, {2*i}
            s_and_b32 s8, s8, 3
            s_mul_i32 s8, s8, 9216
            s_add_u32 s8, s8, {L_RED + 3072*max(i-1, 0)}
            v_add_u32 v{PV+j}, s8, v{AK1}
            """)
    def hi_addr():
        T = 192
        a(f"""
        v_and_b32 v{T}, 31, v1
        v_lshlrev_b32 v{AKR}, 3, v{T}
        v_lshrrev_b32 v{T+2}, 3, v{T}
        v_and_b32 v{T+3}, 3, v{T}
        v_lshl_add_u32 v{T+2}, v{T+2}, 2, v{T+3}
        v_bfe_u32 v{T+3}, v{T}, 2, 1
        v_mad_u32_u24 v{T+3}, v{T+3}, 10, v{T+2}
        v_mad_u32_u24 v{T+3}, v{T+1}, 20, v{T+3}
        v_cmp_gt_u32 s[8:9], 10, v{T+2}
        v_cmp_lt_u32 vcc, 10, v{T+2}
        v_mov_b32 v{T+4}, 40
        v_cndmask_b32 v{T+3}, v{T+4}, v{T+3}, s[8:9]
        v_lshlrev_b32 v{AV}, 4, v{T+3}
        v_mov_b32 v{T+4}, 0x40000000
        v_cndmask_b32 v{AV}, v{AV}, v{T+4}, vcc
        s_and_b32 s8, s77, 1
        s_mul_i32 s79, s8, {32*TILE}
        s_add_u32 s79, s79, {WS_KV}
        s_mul_i32 s8, s76, {32*QSTR}
        s_add_u32 s8, s8, {L_Q}
        v_mul_u32_u24 v{T+2}, {QSTR}, v{T}
        v_add_u32 v{T+2}, s8, v{T+2}
        v_lshl_add_u32 v{T+3}, v{T+1}, 4, v{T+2}
        v_xor_b32 v{T+4}, s77, v{T+1}
        v_xor_b32 v{T+5}, 2, v{T+4}
        v_mad_u32_u24 v{QA+4}, v{T+4}, 40, v{T+2}
        v_mad_u32_u24 v{QA+5}, v{T+5}, 40, v{T+2}
        """)
        for i in range(4):
            a(f"s_xor_b32 s8, s77, {i}\ns_mul_i32 s8, s8, 40\nv_add_u32 v{QA+i}, s8, v{T+3}")
        for i in range(4): a(f"v_mov_b32 v{KBH[-1]+10+i}, 0")
    def lo_addr():
        T = 192
        a(f"""
        s_mul_i32 s68, s5, 4224
        s_add_u32 s68, s68, {L_KT}
        v_and_b32 v4, 7, v1
        v_mul_u32_u24 v{T}, 528, v4
        v_lshrrev_b32 v5, 3, v1
        v_sub_u32 v{T+1}, 7, v5
        v_bfe_u32 v{T+2}, v{T+1}, 1, 1
        v_lshl_add_u32 v{T}, v{T+2}, 7, v{T}
        v_lshrrev_b32 v{T+2}, 2, v{T+1}
        v_lshl_add_u32 v{T}, v{T+2}, 6, v{T}
        v_and_b32 v{T+2}, 1, v{T+1}
        v_lshl_add_u32 v{T}, v{T+2}, 5, v{T}
        v_add_u32 v{KT_W}, s68, v{T}
        v_lshrrev_b32 v{T+1}, 5, v1
        v_lshlrev_b32 v{T+2}, 4, v{T+1}
        v_add3_u32 v{KT_R}, v{AK1}, v{T+2}, s68
        v_lshlrev_b32 v{T+3}, 12, v5
        v_lshl_add_u32 v{KT_G}, v4, 4, v{T+3}
        v_mul_u32_u24 v{T+3}, 1280, v5
        v_lshl_add_u32 v{T+3}, v4, 2, v{T+3}
        s_lshl_b32 s8, s5, 5
        v_add_u32 v{KT_S}, s8, v{T+3}
        ; convolution
        s_mul_i32 s68, s5, {CVS}
        s_add_u32 s68, s68, {L_CONV}
        v_and_b32 v{T}, 31, v1
        v_lshlrev_b32 v{V_F2}, 2, v{T}
        v_sub_u32 v{T+3}, v{V_F2}, v{T+2}
        v_add3_u32 v{VA}, v{T+3}, 16, s68
        v_add_u32 v{VA+1}, 1024, v{VA}
        v_add_u32 v{VA+2}, 2048, v{VA}
        v_add_u32 v{VA+3}, 3072, v{VA}
        v_lshrrev_b32 v{T+2}, 1, v{T}
        v_lshl_add_u32 v{T+2}, v{T+2}, 1, v{T+1}
        v_sub_u32 v{T+2}, 31, v{T+2}
        v_lshlrev_b32 v{T+2}, 5, v{T+2}
        v_and_b32 v{T+3}, 1, v{T}
        v_lshl_add_u32 v{T+2}, v{T+3}, 4, v{T+2}
        v_add_u32 v{V_B}, s68, v{T+2}
        v_mul_u32_u24 v{T+2}, 2080, v{T+1}
        v_lshl_add_u32 v{T+2}, v{T}, 4, v{T+2}
        v_add_u32 v{V_ZW}, s68, v{T+2}
        v_lshrrev_b32 v{T+2}, 2, v{T}
        v_lshlrev_b32 v{T+2}, 7, v{T+2}
        v_lshl_add_u32 v{T+2}, v{T+1}, 6, v{T+2}
        v_and_b32 v{T+3}, 3, v{T}
        v_lshl_add_u32 v{V_ZS}, v{T+3}, 4, v{T+2}
        v_subrev_u32 v{V_HD}, 64, v{AK1}
        v_cmp_lt_u32 s[8:9], 19, v1
        v_cndmask_b32 v{T}, 0, 1, s[8:9]
        v_mul_u32_u24 v{T+1}, 20, v{T}
        v_sub_u32 v{T+1}, v1, v{T+1}
        s_lshl_b32 s8, s76, 5
        s_lshl_b32 s9, s77, 3
        s_add_u32 s8, s8, s9
        s_add_u32 s8, s8, 1
        v_sub_u32 v{T+2}, s8, v{T}
        v_mul_u32_u24 v{T+2}, 1280, v{T+2}
        v_add_u32 v{T+2}, s64, v{T+2}
        v_lshl_add_u32 v{T+3}, v{T+1}, 3, s65
        v_lshl_add_u32 v{AE+1}, v{T+2}, 1, v{T+3}
        v_add_u32 v{AE}, v{T+2}, v{T+3}
        v_lshlrev_b32 v{AE+2}, 1, v{T+3}
        v_lshlrev_b32 v{T+3}, 11, v{T+3}
        v_lshl_add_u32 v{AE+3}, v{T}, 4, v{T+3}
        """)
    def stage(ptr, halo, base):
        if E("NOSTG"): return
        srd(S_D, ptr, ACT)
        a(f"s_add_u32 s8, s64, s65\ns_sub_u32 s8, s8, {halo*1280}")
        for i in range(11):
            if i < 5:
                a(f"v_add_u32 v4, s8, v{VW2 + i}\ns_mov_b32 m0, {base + 1024*i}\nbuffer_load_dwordx4 v4, {SR_(S_D)}, 0 offen lds")
            else:
                if i % 5 == 0: a(f"s_add_u32 s8, s8, {32*1280}")
                a(f"s_mov_b32 m0, {base + 1024*i}\nbuffer_load_dwordx4 v{VW2 + i % 5}, {SR_(S_D)}, s8 offen lds")
    def sync_init():
        a(f"""
        v_mov_b32 v4, 0
        v_mov_b32 v5, 0
        v_mov_b32 v6, 0
        v_mov_b32 v7, 8
        ds_write_b64 v{VS}, v[4:5]
        ds_write_b32 v{VS}, v4 offset:8
        ds_write_b32 v{VS}, v7 offset:16
        """)
    def only(w, fn):
        l = a.newlabel(); br_wave("lg", w, l); fn(); a.label(l)
    def publish_kv():
        l_v2, l_stat = a.newlabel(), a.newlabel()
        a(f"v_mov_b32 v8, 0\ns_cmp_ge_u32 s4, 4\ns_cbranch_scc1 {l_v2}")
        for i in range(4): a(f"v_dot2c_f32_bf16 v8, v{PA+i}, v{PA+i}")
        a(f"""
        v_mov_b32 v9, v8
        v_permlane32_swap_b32 v8, v9
        v_add_f32 v8, v8, v9
        v_dot2c_f32_bf16 v8, v{PB}, v{PB}
        v_dot2c_f32_bf16 v8, v{PB+1}, v{PB+1}
        s_nop 2
        s_branch {l_stat}
        """)
        a.label(l_v2)
        for b in range(B0, B0 + 8, 2): a(f"v_max3_f32 v8, v8, |v{b}|, |v{b+1}|")
        a("""
        v_mov_b32 v9, v8
        v_permlane16_swap_b32 v8, v9
        v_max_f32 v8, v8, v9
        v_mov_b32 v9, v8
        v_permlane32_swap_b32 v8, v9
        v_max_f32 v8, v8, v9
        s_nop 1
        """)
        a.label(l_stat)
        for sh in (1, 2, 4, 8):
            a(f"v_max_f32_dpp v8, v8, v8 row_shr:{sh} row_mask:0xf bank_mask:0xf")
        a("v_readlane_b32 s69, v8, 15")
        a(f"""
        s_lshl_b32 s8, s3, 3
        s_add_u32 s8, s8, s4
        s_lshl_b32 s8, s8, 3
        s_getreg_b32 s9, hwreg(HW_REG_XCC_ID, 0, 4)
        s_andn2_b32 s69, s69, 15
        s_or_b32 s69, s69, s9
        v_mov_b32 v4, s69
        v_mov_b32 v5, s{TAG}
        v_mov_b32 v6, 0
        s_waitcnt vmcnt(0)
        s_mov_b64 exec, 1
        buffer_store_dwordx2 v[4:5], v6, {W}, s8 offen offset:{WS_F1} sc1
        s_mov_b64 exec, -1
        """)

    def gemm_addr(cg):
        a(f"""
        v_mov_b32 v{VS}, {L_STAT}
        s_and_b32 s6, s77, 1
        v_lshrrev_b32 v4, 1, v2
        v_xor_b32 v4, v4, v3
        v_lshlrev_b32 v5, 7, v2
        v_lshl_add_u32 v39, v4, 4, v5
        s_lshl_b32 s7, s76, 1
        s_add_u32 s7, s7, s6
        s_lshl_b32 s8, s7, 11
        s_lshl_b32 s9, s6, 6
        v_xor_b32 v4, s9, v39
        v_add_u32 v{VXR}, s8, v4
        v_xor_b32 v{VXR+1}, 0x800, v{VXR}
        v_bfe_u32 v4, v1, 2, 2
        v_lshl_add_u32 v4, v3, 3, v4
        v_and_b32 v5, 1, v3
        v_lshl_add_u32 v6, v5, 2, v4
        v_xor_b32 v7, 4, v6
        v_and_b32 v5, 3, v1
        v_lshlrev_b32 v5, 3, v5
        s_movk_i32 s9, 160
        v_mad_u32_u24 v6, v6, s9, v5
        v_mad_u32_u24 v7, v7, s9, v5
        s_mul_i32 s8, s6, 5120
        s_add_u32 s8, s8, {L_W + 96*cg}
        v_add_u32 v{VTR}, s8, v6
        v_add_u32 v{VTR+1}, s8, v7
        s_mul_i32 s8, s76, 51200
        v_add_u32 v{VT}, s8, v6
        v_add_u32 v{VT+1}, s8, v7
        s_mul_i32 s8, s7, {16*QSTR}
        s_add_u32 s8, s8, {L_Q + 96*cg}
        v_mul_u32_u24 v4, {QSTR}, v2
        v_lshl_add_u32 v4, v3, 3, v4
        v_add_u32 v{VQW}, s8, v4
        s_mul_i32 s8, s5, 3072
        s_add_u32 s8, s8, {L_EX}
        v_add_u32 v{VEX}, s8, v{AK1}
        s_xor_b32 s8, s5, 2
        s_mul_i32 s8, s8, 3072
        s_add_u32 s8, s8, {L_EX}
        v_add_u32 v{VEX+1}, s8, v{AK1}
        """)
    def got_args():
        a(f"s_waitcnt lgkmcnt(0)\ns_load_dword s{TAG}, s[{P_WS}:{P_WS+1}], {WS_E}")
        if STAMP: a("s_mov_b32 s93, s92")
    def got_tag():
        a(f"s_waitcnt lgkmcnt(0)\ns_mul_i32 s{TAG}, s{TAG}, 0x9E3779B1\ns_add_u32 s{TAG}, s{TAG}, 0x7F4A7C15")
    def x_issue(g):
        a(f"s_add_u32 s8, s10, s12\ns_add_u32 s9, s8, {8*1280}")
        for hs in range(2):
            for par in range(2):
                a(f"s_add_u32 m0, s11, {(2*g+hs)*8192 + 1024*par - 128*hs}")
                a(f"buffer_load_dwordx4 v{VD+par}, {SR_(S_A)}, s{8+par} offen offset:{128*hs} lds")
        if g < 4: gwrap(12, 256)
    def wkv_issue(g):
        a(f"s_mov_b32 m0, {L_WKV + 5120*g}")
        for i in range(4):
            a(f"buffer_load_dwordx4 v{AK1}, {SR_(S_C)}, s13 offen offset:{1024*i} lds")
        a(f"s_mov_b32 m0, {L_WKV + 5120*g + 4096}\ns_add_u32 s8, s13, 4096")
        a(f"buffer_load_dwordx4 v{AK1}, {SR_(S_C)}, s8 offen lds")
        if g < 4: gwrap(13, 5120)
    def w_issue(g):
        a(f"s_add_u32 s8, s10, s12")
        for n in range(5):
            a(f"s_add_u32 m0, s11, {(g % 4)*GSLOT + 1024*n}")
            a(f"buffer_load_dwordx4 v{VD+n}, {SR_(S_B)}, s8 offen lds")
        if g < 4: gwrap(12, 128 * 1280)
    def q_stage(nblk, gs, xb, wb, mid=None):
        steps = [(g, hs) for g in gs for hs in range(2)]
        per = 2 + 2 * nblk
        for n, (g, hs) in enumerate(steps):
            b = GF + 20 * n
            for pl in range(2): a(f"ds_read_b128 {R(b+4*pl)}, v{VXR+pl} offset:{(2*g + hs)*8192 - xb}")
            for nb in range(nblk):
                off = (g % 4) * GSLOT + hs * 10240 + nb * 32 - wb
                for z in range(2): a(f"ds_read_b64_tr_b16 {R(b+8+4*nb+2*z,2)}, v{VTR+z} offset:{off}")
        if mid: mid()
        for n in range(len(steps)):
            a(f"s_waitcnt lgkmcnt({min(15, per * (len(steps) - 1 - n))})")
            b = GF + 20 * n
            for nb in range(nblk):
                for pl in range(2):
                    d = R(ACC + 12 * pl + 4 * nb)
                    a(f"v_mfma_f32_16x16x32_bf16 {d}, {R(b+8+4*nb)}, {R(b+4*pl)}, {'0' if (gs[0] == 0 and n == 0) else d}")
    def ld1():
        a(f"buffer_load_dwordx4 v[8:11], v45, {W}, 0 offen offset:{WS_F1} sc1")
        a(f"buffer_load_dwordx4 v[12:15], v45, {W}, 0 offen offset:{WS_F1+16} sc1")
    def q_path(cg):
        nblk = 3 if cg == 0 else 2
        stamp(2)
        a("s_barrier")
        stamp(3)
        q_stage(nblk, [0], 0, 0, (lambda: (only(7, lambda: w_issue(2)), w_issue(3))) if cg else None)
        a(f"s_waitcnt vmcnt({10 if cg else 0})")
        a("s_barrier")
        q_stage(nblk, [1], 0, 0, (lambda: w_issue(4)) if cg else None)
        shift2(VTR, 2 * GSLOT)
        if cg: a("s_waitcnt vmcnt(5)")
        a("s_barrier")
        stamp(4)
        q_stage(nblk, [2, 3], 0, 2 * GSLOT, None if cg else (lambda: only(1, ld1)))
        shift2(VTR, -2 * GSLOT); shift2(VXR, 65536)
        if cg: a("s_waitcnt vmcnt(0)")
        else: only(1, lambda: poll(ld1, [9, 11, 13, 15], 1, skipfirst=True)); only(2, sync_init)
        a("s_barrier")
        stamp(5)
        q_stage(nblk, [4], 65536, 0, (lambda: kv_prologue(KBH, 0)) if cg else None)
        for nb in range(nblk): a(f"ds_write_b128 v{VEX}, {R(ACC+12+4*nb)} offset:{1024*nb}")
        if not cg and not E("NOSVC") and E("EARLYK"): only(3, lambda: stage(P_AK, 4, L_SK))
        a(f"s_mov_b32 s8, 0xffff0000\ns_mov_b32 s9, {f2u(QSCALE)}")
        a("s_waitcnt lgkmcnt(0)\ns_barrier")
        for nb in range(nblk): a(f"ds_read_b128 {R(ACC+12+4*nb)}, v{VEX+1} offset:{1024*nb}")
        for nb in range(nblk):
            b = ACC + 4 * nb
            a(f"s_waitcnt lgkmcnt({min(nblk - 1, nblk - 1 - nb + nb)})" if nb == 0 else f"s_waitcnt lgkmcnt({nblk - 1})")
            for r in range(4): a(f"v_add_f32 v{b+r}, v{b+r}, v{b+12+r}")
            for r in range(4): a(f"v_mul_f32 v{b+r}, s9, v{b+r}")
            for p in range(2): a(f"v_cvt_pk_bf16_f32 v{88+2*nb+p}, v{b+2*p}, v{b+2*p+1}")
            a(f"ds_write_b64 v{VQW}, {R(88+2*nb,2)} offset:{32*nb}")
        a("s_waitcnt lgkmcnt(0)\ns_barrier")
        stamp(7)
    def lds_add(off, val):
        a(f"v_mov_b32 v4, {val}\ns_mov_b64 exec, 1\nds_add_u32 v{VS}, v4 offset:{off}\ns_mov_b64 exec, -1")
    def lds_wait(off, val, op, sleep):
        poll(lambda: a(f"ds_read_b32 v4, v{VS} offset:{off}"), [4], sleep, "lgkmcnt", str(val), op)
    l_cg1, l_R, l_x, l_lo1 = a.newlabel(), a.newlabel(), a.newlabel(), a.newlabel()
    br_wave("ge", 4, l_cg1)
    a(f"""
    v_lshrrev_b32 v4, 3, v1
    v_mul_u32_u24 v4, 1280, v4
    v_and_b32 v5, 7, v1
    v_xor_b32 v5, v5, v3
    v_lshl_add_u32 v{VD}, v5, 4, v4
    v_xor_b32 v{VD+1}, 64, v{VD}
    s_add_u32 s8, s67, s5
    s_and_b32 s8, s8, 3
    s_mul_i32 s10, s8, {16*1280}
    s_add_u32 s10, s10, s64
    s_lshl_b32 s11, s8, 11
    s_lshl_b32 s12, s66, 8
    s_mul_i32 s13, s66, 5120
    v_lshlrev_b32 v45, 5, v1
    """)
    tail_addr(False); gemm_addr(0)
    br_wave("lg", 0, l_x)
    a(f"""
    v_add_u32 v{VKR}, s11, v39
    v_xor_b32 v{VKR+1}, 64, v{VKR}
    v_bfe_u32 v4, v1, 2, 2
    v_lshl_add_u32 v4, v3, 3, v4
    v_mul_u32_u24 v4, 40, v4
    v_add_u32 v{VK4}, {L_WKV}, v4
    v_and_b32 v5, 3, v1
    v_lshl_add_u32 v{VK5}, v5, 3, v{VK4}
    """)
    for n in range(15): a(f"v_mov_b32 v{(VW2 + n) if n < 5 else (VWO + n - 5)}, -1")
    got_args()
    a(f"""
    s_cmp_ge_u32 s4, 4
    s_cselect_b32 s{S_C}, s{P_WV}, s{P_WK}
    s_cselect_b32 s{S_C+1}, s{P_WV+1}, s{P_WK+1}
    s_mov_b32 s{S_C+2}, 25600
    s_mov_b32 s{S_C+3}, 0x20000
    """)
    srd(S_A, P_X, ACT)
    KORD = E("KORD", "wx")
    if KORD == "wx":
        for g in range(5): wkv_issue(g)
        for g in range(5): x_issue(g)
        wv = [40 - 5 * g for g in range(5)]; xv = [16 - 4 * g for g in range(5)]
    else:
        for g in range(5): x_issue(g)
        for g in range(5): wkv_issue(g)
        wv = [20 - 5 * g for g in range(5)]; xv = [0] * 5
    a("s_barrier")
    stamp(1)
    srd(S_WS, P_WS, WS_END)
    got_tag()
    WPF, XT_ = 96, 72
    for g in range(5):
        a(f"s_waitcnt vmcnt({wv[g]})")
        for s_ in range(4):
            ks = 4 * g + s_; b = WPF + 8 * ks
            a(f"ds_read_b64_tr_b16 {R(b,2)}, v{VK5} offset:{ks*1280}")
            a(f"ds_read_b64_tr_b16 {R(b+2,2)}, v{VK5} offset:{ks*1280+160}")
            a(f"ds_read_b64_tr_b16 {R(b+4,2)}, v{VK4} offset:{ks*1280+32}")
            a(f"ds_read_b64_tr_b16 {R(b+6,2)}, v{VK4} offset:{ks*1280+192}")
    a(f"""
    s_lshr_b32 s12, s67, 1
    s_lshl_b32 s14, s3, 1
    s_add_u32 s12, s12, s14
    s_mul_i32 s12, s12, {TILE}
    s_add_u32 s12, s12, {WS_KV}
    s_and_b32 s10, s67, 1
    """)
    def kvpart(isv):
        for g in range(5):
            if g == 4: shift2(VKR, 65536)
            a(f"s_waitcnt vmcnt({xv[g]})")
            for s_ in range(4): a(f"ds_read_b128 {R(XT_+4*s_)}, v{VKR+(s_&1)} offset:{((2*g + (s_>>1)) % 8) * 8192}")
            for s_ in range(4):
                a(f"s_waitcnt lgkmcnt({3-s_})")
                for blk in range(2):
                    d = R(B0 + 4 * blk); c = "0" if (g == 0 and s_ == 0) else d
                    w_, x_ = R(WPF + 8 * (4 * g + s_) + 4 * blk), R(XT_ + 4 * s_)
                    a(f"v_mfma_f32_16x16x32_bf16 {d}, {x_ if isv else w_}, {w_ if isv else x_}, {c}")
    def pack(b, dst, swap):
        a(f"""
        v_cvt_pk_bf16_f32 v{dst}, v{b}, v{b+1}
        v_cvt_pk_bf16_f32 v{dst+1}, v{b+2}, v{b+3}
        v_cvt_pk_bf16_f32 v{dst+2}, v{b}, v{b+1}
        v_cvt_pk_bf16_f32 v{dst+3}, v{b+2}, v{b+3}
        {swap} v{dst}, v{dst+2}
        {swap} v{dst+1}, v{dst+3}
        """)
    l_v, l_pub = a.newlabel(), a.newlabel()
    a(f"s_cmp_ge_u32 s4, 4\ns_cbranch_scc1 {l_v}")
    a(f"""
    s_lshl_b32 s10, s10, 4
    v_add_u32 v5, s10, v2
    v_lshrrev_b32 v6, 1, v3
    v_lshl_add_u32 v6, v6, 5, v5
    v_lshlrev_b32 v6, 4, v6
    v_lshlrev_b32 v5, 3, v5
    """)
    kvpart(False)
    pack(B0, PA, "v_permlane16_swap_b32")
    a(f"""
    v_cvt_pk_bf16_f32 v{PB}, v{B1}, v{B1+1}
    v_cvt_pk_bf16_f32 v{PB+1}, v{B1+2}, v{B1+3}
    s_mov_b32 exec_lo, 0xffff
    s_mov_b32 exec_hi, 0xffff
    buffer_store_dwordx4 {R(PA)}, v6, {W}, s12 offen offset:{K1_OFF} sc1
    s_mov_b64 exec, 0xffff
    buffer_store_dwordx2 {R(PB,2)}, v5, {W}, s12 offen offset:{KR_OFF} sc1
    s_mov_b64 exec, -1
    s_branch {l_pub}
    """)
    a.label(l_v)
    a(f"""
    s_mul_i32 s10, s10, {V1_OFF - V0_OFF}
    s_add_u32 s12, s12, s10
    v_and_b32 v5, 1, v3
    v_mul_u32_u24 v5, 20, v5
    v_add_u32 v6, v5, v2
    v_lshlrev_b32 v6, 4, v6
    v_cmp_lt_u32 s[14:15], 3, v2
    v_mov_b32 v10, 0x3f803f80
    """)
    kvpart(True)
    pack(B0, PA, "v_permlane32_swap_b32")
    pack(B1, PB, "v_permlane32_swap_b32")
    a(f"s_mov_b32 exec_hi, 0")
    a(f"buffer_store_dwordx4 {R(PA)}, v6, {W}, s12 offen offset:{V0_OFF} sc1")
    for i in range(4): a(f"v_cndmask_b32 v{12+i}, v{PB+i}, v10, s[14:15]")
    a(f"""
    s_mov_b32 exec_lo, 0x00ff000f
    buffer_store_dwordx4 v[12:15], v6, {W}, s12 offen offset:{V0_OFF + 256} sc1
    s_mov_b64 exec, -1
    """)
    a.label(l_pub)
    stamp(6)
    publish_kv()
    lo_addr()
    a(f"s_branch {l_lo1}")
    a.label(l_x)
    lo_addr()
    for n in range(5): wpat(VW2 + n, 64 * n, False)
    def wo_pat():
        for n in range(5):
            a(f"""
            v_add_u32 v4, {64*n}, v1
            v_mul_u32_u24 v5, 6554, v4
            v_lshrrev_b32 v5, 16, v5
            v_mul_u32_u24 v6, 10, v5
            v_sub_u32 v6, v4, v6
            v_lshlrev_b32 v6, 4, v6
            v_lshrrev_b32 v7, 1, v5
            v_and_b32 v7, 4, v7
            v_xor_b32 v5, v5, v7
            v_lshrrev_b32 v7, 3, v5
            v_lshl_add_u32 v4, v7, 1, v5
            v_mul_u32_u24 v4, 1280, v4
            v_add_u32 v{VWO+n}, v4, v6
            v_lshrrev_b32 v7, 1, v5
            v_lshl_add_u32 v4, v7, 3, v5
            v_add_u32 v4, 8, v4
            v_mul_u32_u24 v4, 1280, v4
            v_add_u32 v{VWO+5+n}, v4, v6
            """)
    for n in range(4): a(f"v_mov_b32 v{VWO+n}, -1")
    only(3, wo_pat)
    got_args()
    srd(S_A, P_X, ACT); srd(S_WS, P_WS, WS_END); srd(S_C, P_WK, 25600)
    l = a.newlabel()
    a(f"""
    v_lshlrev_b32 v4, 7, v1
    s_sub_u32 s8, s5, 1
    s_lshl_b32 s8, s8, 13
    s_cmp_ge_u32 s2, 8
    s_cbranch_scc1 {l}
    buffer_load_dword v5, v4, {W}, s8 offen sc1
    """)
    a.label(l)
    got_tag()
    a("s_barrier")
    for g in range(5): x_issue(g)
    stamp(1)
    a("s_waitcnt vmcnt(16)")
    a.label(l_lo1)
    q_path(0)
    l_svcend = a.newlabel()
    if E("NOSVC"):
        lds_add(8, 1); a(f"s_branch {l_svcend}")
    only(3, lambda: (None if E("EARLYK") else stage(P_AK, 4, L_SK), a(f"s_waitcnt vmcnt({E('STG', '6')})"), stage(P_AV, 1, L_SV)))
    srd(S_D, P_SH, D * 8); srd(S_B, P_WO, D * D * 2)
    a(f"""
    s_setprio {E('PKVT', '2')}
    v_and_b32 v4, 7, v1
    v_lshlrev_b32 v4, 4, v4
    s_lshl_b32 s8, s5, 7
    s_lshl_b32 s9, s65, 2
    s_add_u32 s8, s8, s9
    buffer_load_dwordx4 {R(WRAW[0])}, v4, {SR_(S_D)}, s8 offen
    buffer_load_dwordx4 {R(WRAW[1])}, v4, {SR_(S_D)}, s9 offen offset:512
    s_mov_b32 s12, 0xffff0000
    """)
    def decide():
        a(f"v_mul_u32_u24 v4, {QSTR}, v1\nv_add_u32 v4, {L_Q}, v4")
        for i in range(10): a(f"ds_read_b128 {R(128+4*i)}, v4 offset:{16*i}")
        a(f"""
        s_getreg_b32 s9, hwreg(HW_REG_XCC_ID, 0, 4)
        v_xor_b32 v5, s9, v8
        v_xor_b32 v6, s9, v10
        v_or_b32 v5, v5, v6
        v_xor_b32 v6, s9, v12
        v_xor_b32 v7, s9, v14
        v_or3_b32 v5, v5, v6, v7
        v_and_b32 v5, 15, v5
        v_cmp_ne_u32 vcc, 0, v5
        s_lshl_b32 s8, s3, 1
        s_lshr_b64 s[10:11], vcc, s8
        v_max_f32 v8, v8, v10
        v_max3_f32 v8, v8, v12, v14
        s_mov_b32 s8, 0x55555555
        s_mov_b32 s9, 0x55555555
        v_cndmask_b32 v10, 0, v8, s[8:9]
        v_cndmask_b32 v11, v8, 0, s[8:9]
        """)
        for m in ("row_shr:1 row_mask:0xf", "row_shr:2 row_mask:0xf", "row_shr:4 row_mask:0xf", "row_shr:8 row_mask:0xf",
                  "row_bcast:15 row_mask:0xa", "row_bcast:31 row_mask:0xc"):
            a(f"v_max_f32_dpp v10, v10, v10 {m} bank_mask:0xf\nv_max_f32_dpp v11, v11, v11 {m} bank_mask:0xf")
        for j in range(4): a(f"v_mov_b32 v{12+j}, 0")
        a("v_readlane_b32 s14, v10, 63\nv_readlane_b32 s15, v11, 63\ns_waitcnt lgkmcnt(0)")
        for r in range(10):
            for j in range(4): a(f"v_dot2c_f32_bf16 v{12+j}, v{128+10*j+r}, v{128+10*j+r}")
        a(f"""
        v_max3_f32 v12, v12, v13, v14
        v_max_f32 v12, v12, v15
        v_mul_f32 v12, s14, v12
        v_cmp_nge_f32 vcc, {f2u(64.0*64.0)}, v12
        s_mov_b32 s8, 1
        s_cmp_lg_u64 vcc, 0
        s_cselect_b32 s8, 0x101, s8
        s_cmp_lt_u32 s15, {f2u(2.0**-28)}
        s_cselect_b32 s8, 0x101, s8
        s_cmp_gt_u32 s15, {f2u(2.0**50)}
        s_cselect_b32 s8, 0x101, s8
        s_and_b32 s10, s10, 3
        s_cselect_b32 s9, 0, {0 if E("NOFAST") else 0x200}
        s_or_b32 s8, s8, s9
        """)
        lds_add(8, "s8")
    only(1, decide)
    l = a.newlabel()
    a(f"s_or_b32 s8, s2, s5\ns_cmp_lg_u32 s8, 0\ns_cbranch_scc1 {l}\ns_mov_b32 s8, {WS_E}")
    flag_store(8, 6)
    a.label(l)
    a("s_waitcnt vmcnt(0)")
    only(3, lambda: lds_add(0, 1))
    lds_wait(0, 1, "ne", 2)
    stamp(10)
    KRW, KU, VU, WU, KV, PK = 192, 128, 152, 170, 64, 84
    def kvt_compute(ps, pass_sgpr):
        if E("NOKVT"): return
        kr = KRW; vr = kr + 12; wr = WRAW[ps]
        for r in range(12): a(f"ds_read_b32 v{kr+r}, v{KT_S} offset:{L_SK + 160*r + 32*ps}")
        for r in range(9): a(f"ds_read_b32 v{vr+r}, v{KT_S} offset:{L_SV + 160*r + 32*ps}")
        for j in range(4):
            for c in range(2):
                src = wr + 2 * c + j // 2
                a(f"v_lshlrev_b32 v{WU+2*j+c}, 16, v{src}" if j % 2 == 0 else f"v_and_b32 v{WU+2*j+c}, s12, v{src}")
        a("s_waitcnt lgkmcnt(9)")
        for r in range(12): a(f"v_lshlrev_b32 v{KU+2*r}, 16, v{kr+r}\nv_and_b32 v{KU+2*r+1}, s12, v{kr+r}")
        for i in range(18): a(f"v_mul_f32 v{KV+i}, v{KU+i}, v{WU+6+(i&1)}")
        for j in (2, 1, 0):
            for i in range(18): a(f"v_fmac_f32 v{KV+i}, v{KU+i+2*(3-j)}, v{WU+2*j+(i&1)}")
        a("s_waitcnt lgkmcnt(0)")
        for r in range(9): a(f"v_lshlrev_b32 v{VU+2*r}, 16, v{vr+r}\nv_and_b32 v{VU+2*r+1}, s12, v{vr+r}")
        for i in range(18): a(f"v_mul_f32 v{KV+i}, v{KV+i}, v{VU+i}")
        for c in range(2):
            for cp in range(2):
                for d in range(4):
                    lo = 7 - cp - 2 * d; hi = lo - 1
                    a(f"v_cvt_pk_bf16_f32 v{PK+8*c+4*cp+d}, v{KV+2*(lo+1)+c}, v{KV+2*(hi+1)+c}")
                a(f"ds_write_b128 v{KT_W}, {R(PK+8*c+4*cp)} offset:{256*c + 16*cp}")
        for k in range(4): a(f"ds_read_b128 {R(PK+16+4*k)}, v{KT_R} offset:{1056*k}")
        a(f"""
        s_mul_i32 s8, s4, 80
        s_lshl_b32 s9, s{pass_sgpr}, 4
        s_add_u32 s8, s8, s9
        s_lshl_b32 s8, s8, 13
        s_sub_u32 s9, 31, s3
        s_lshl_b32 s9, s9, 7
        s_add_u32 s8, s8, s9
        s_add_u32 s8, s8, {WS_XT}
        """)
        for k in range(4):
            a(f"s_waitcnt lgkmcnt({3-k})")
            a(f"buffer_store_dwordx4 {R(PK+16+4*k)}, v{KT_G}, {W}, s8 offen sc1")
            if k < 3: a(f"s_add_u32 s8, s8, {4*8192}")
    def f2_flag(pass_sgpr):
        a(f"""
        s_mul_i32 s8, s4, 5
        s_add_u32 s8, s8, s{pass_sgpr}
        s_lshl_b32 s8, s8, 5
        s_add_u32 s8, s8, s3
        s_lshl_b32 s8, s8, 2
        s_add_u32 s8, s8, {WS_F2}
        """)
        flag_store(8, 6)
    kvt_compute(0, 5)
    l_conv, l_aepi, l_cdone = a.newlabel(), a.newlabel(), a.newlabel()
    br_wave("lg", 3, l_conv)
    a("s_mov_b32 s10, 4")
    kvt_compute(1, 10)
    a("s_waitcnt vmcnt(0)")
    f2_flag(10); f2_flag(5)
    a("s_setprio 0")
    stamp(8)
    def wo_loop(p0):
        a(f"s_add_u32 s8, s65, {p0*160*1280}\ns_mov_b32 s9, {p0*25600}")
        l = a.newlabel()
        a.label(l)
        for m in range(5):
            a(f"s_add_u32 s10, s8, {(40*1280*m) if m < 4 else 0}")
            for n in range(5):
                a(f"s_add_u32 m0, s9, {5120*m + 1024*n}")
                a(f"buffer_load_dwordx4 v{VWO + n + (5 if m == 4 else 0)}, {SR_(S_B)}, s10 offen lds")
            a(f"s_waitcnt vmcnt({E('WOV', '5')})")
        a(f"""
        s_add_u32 s8, s8, {160*1280}
        s_add_u32 s9, s9, 25600
        s_cmp_lt_u32 s9, {(p0+2)*25600}
        s_cbranch_scc1 {l}
        """)
    if not E("NOWO"):
        wo_loop(2)
        lds_wait(4, 3, "ne", 8)
        wo_loop(0)
    a("s_waitcnt vmcnt(0)")
    lds_add(0, 1)
    a(f"s_branch {l_aepi}")
    a.label(l_conv)
    lds_add(4, 1)
    a(f"""
    s_lshl_b32 s12, s5, 8
    s_add_u32 s12, s12, s2              ; channel
    s_min_u32 s13, s12, 639
    s_lshl_b32 s8, s13, 12
    s_add_u32 s{S_A}, s{P_SK}, s8
    s_addc_u32 s{S_A+1}, s{P_SK+1}, 0
    s_mov_b32 s{S_A+2}, 4096
    s_lshl_b32 s8, s13, 13
    s_add_u32 s8, s8, {WS_XT}
    s_add_u32 s{S_B}, s{P_WS}, s8
    s_addc_u32 s{S_B+1}, s{P_WS+1}, 0
    s_mov_b32 s{S_B+2}, 4096
    s_add_u32 s{S_C}, s{S_B}, 4096
    s_addc_u32 s{S_C+1}, s{S_B+1}, 0
    s_mov_b32 s{S_C+2}, 4096
    s_load_dword s14, s[{S_A}:{S_A+1}], 0
    s_lshr_b32 s8, s13, 1
    s_lshl_b32 s8, s8, 2
    s_load_dword s15, s[{P_SD}:{P_SD+1}], s8
    s_mul_i32 s8, s13, 52429
    s_lshr_b32 s8, s8, 22
    s_mul_i32 s9, s8, 80
    s_sub_u32 s9, s13, s9
    s_lshr_b32 s9, s9, 4
    s_mul_i32 s8, s8, 5
    s_add_u32 s8, s8, s9
    s_lshl_b32 s13, s8, 7
    s_add_u32 s13, s13, {WS_F2}
    s_waitcnt vmcnt(0)
    """)
    f2_flag(5)
    a(f"s_waitcnt lgkmcnt(0)\ns_cmp_ge_u32 s12, 640\ns_cbranch_scc1 {l_cdone}")
    if E("NOCONV"): a(f"s_branch {l_cdone}")
    a(f"s_mov_b32 m0, s68\nbuffer_load_dwordx4 v{V_HD}, {SR_(S_A)}, 0 offen lds")
    a(f"s_add_u32 m0, s68, 1024\ns_movk_i32 s8, 960")
    for i in range(4): a(f"buffer_load_dwordx4 v{AK1}, {SR_(S_A)}, s8 offen offset:{1024*i} lds")
    for i in range(4): a(f"v_mov_b32 v{8+i}, 0")
    for t in range(4): a(f"v_mfma_f32_32x32x16_bf16 {R(O+16*t,16)}, {R(8)}, {R(8)}, 0")
    a(f"""
    s_bitcmp1_b32 s12, 0
    s_cselect_b32 s8, 0, 16
    s_lshl_b32 s15, s15, s8
    s_and_b32 s15, s15, 0xffff0000
    s_lshl_b32 s8, s14, 16
    v_mov_b32 v5, s8
    v_add_f32 v5, s15, v5
    v_cvt_pk_bf16_f32 v5, v5, v5
    v_mov_b32 v6, s68
    s_waitcnt vmcnt(0)
    ds_write_b16 v6, v5 offset:64
    """)
    lds_wait(16, int(E("PF2", "6")), "lt", 8)
    poll(lambda: a(f"buffer_load_dword v4, v{V_F2}, {W}, s13 offen sc1"), [4], 16)
    stamp(8)
    a("s_movk_i32 s8, 4096")
    for cl_ in range(2):
        a(f"s_add_u32 m0, s68, {5120 + 5120*cl_}")
        for i in range(4): a(f"buffer_load_dwordx4 v{AK1}, {SR_(S_C if cl_ else S_B)}, 0 offen offset:{1024*i} sc1 lds")
        a(f"s_add_u32 m0, s68, {5120 + 5120*cl_ + 4096}")
        a(f"buffer_load_dwordx4 v{AK1}, {SR_(S_C if cl_ else S_B)}, s8 offen sc1 lds")
    a(f"s_waitcnt vmcnt(0)\ns_setprio {E('PCONV', '0')}")
    F = SR
    def c_reads(sp):
        j, e = sp >> 1, sp & 1; b = F + 32 * (sp & 1)
        for u in range(4):
            o = (4 + 32 * e + 128 * j) // 4
            a(f"ds_read2_b32 {R(b+4*u,2)}, v{VA+u} offset0:{o} offset1:{o+1}")
            a(f"ds_read2_b32 {R(b+4*u+2,2)}, v{VA+u} offset0:{o+2} offset1:{o+3}")
            a(f"ds_read_b128 {R(b+16+4*u)}, v{V_B} offset:{5120 + 5120*e + 3072 - 1024*u + 128*j}")
    c_reads(0)
    for sp in range(16):
        if sp < 15 and not (E("CNORD") and sp > 0): c_reads(sp + 1)
        a(f"s_waitcnt lgkmcnt({12 if sp < 15 else 0})")
        b = F + 32 * (sp & 1)
        for u in range(4):
            for nb in range(u, 4):
                d = R(O + 16 * nb, 16)
                if E("CNOM"): a("s_sleep 1")
                elif E("CZERO"): a(f"v_mfma_f32_32x32x16_bf16 {d}, {R(8)}, {R(8)}, {d}")
                else: a(f"v_mfma_f32_32x32x16_bf16 {d}, {R(b+4*u)}, {R(b+16+4*(nb-u))}, {d}")
    a("s_setprio 2")
    a(f"ds_write_b128 v{V_ZW}, {R(8)}\nds_write_b128 v{V_ZW}, {R(8)} offset:4160")
    for nb in range(4):
        for q in range(2): a(f"ds_write_b128 v{V_ZW}, {R(O+16*nb+8+4*q)} offset:{4160*q + 512*nb + 32}")
    for nb in range(4):
        for q in range(2): a(f"ds_read_b128 {R(F+8*nb+4*q)}, v{V_ZW} offset:{4160*q + 512*nb}")
    a(f"s_lshl_b32 s8, s12, 12\ns_add_u32 s8, s8, {WS_Z}")
    for nb in range(4):
        a(f"s_waitcnt lgkmcnt({6-2*nb})")
        for r in range(8): a(f"v_add_f32 v{O+16*nb+r}, v{O+16*nb+r}, v{F+8*nb+r}")
        for k in range(4): a(f"v_cvt_pk_bf16_f32 v{F+32+4*nb+k}, v{O+16*nb+2*k}, v{O+16*nb+2*k+1}")
        a(f"buffer_store_dwordx4 {R(F+32+4*nb)}, v{V_ZS}, {W}, s8 offen offset:{1024*nb} sc1")
    a(f"s_lshl_b32 s8, s12, 2\ns_add_u32 s8, s8, {WS_F3}\ns_waitcnt vmcnt(0)")
    flag_store(8, 6)
    a.label(l_cdone)
    lds_add(8, 1)
    a.label(l_aepi)
    stamp(9)
    a("s_setprio 2")
    XF, AF, AC = 8, 96, 64
    def o_reads(ks):
        b = AF + 20 * (ks % 8)
        for nb in range(5):
            for z in range(2): a(f"ds_read_b64_tr_b16 {R(b+4*nb+2*z,2)}, v{VT+z} offset:{ks*5120 + nb*32}")
    QRW, ZR, U = 8, 24, 64
    X40 = "s_mov_b32 exec_lo, -1\ns_mov_b32 exec_hi, 0xff"
    srd(S_A, P_AQ, ACT)
    a(X40)
    for e in range(8):
        a(f"s_movk_i32 s8, {(16*(e>>2) + 2*(e&3))*1280}")
        a(f"buffer_load_dwordx2 {R(QRW+2*e,2)}, v{AE}, {SR_(S_A)}, s8 offen")
    a(f"""
    s_mov_b64 exec, -1
    buffer_load_dwordx4 {R(64)}, v{PV+2}, {W}, s72 offen sc1
    buffer_load_dwordx4 {R(64)}, v{PV+2}, {W}, s72 offen offset:1024 sc1
    buffer_load_dwordx2 {R(64,2)}, v{PV+3}, {W}, s73 offen sc1
    buffer_load_dwordx2 {R(64,2)}, v{PV+3}, {W}, s73 offen offset:256 sc1
    v_mov_b32 v4, 0
    buffer_load_dword v64, v4, {W}, s74 offen sc1
    """)
    lds_wait(0, 2, "ne", 16)
    for ks in range(8): o_reads(ks)
    def z_fetch(once):
        a(f"""
        s_lshl_b32 s11, s3, 7
        s_lshl_b32 s8, s5, 5
        s_add_u32 s11, s11, s8
        s_add_u32 s11, s11, {WS_Z}
        s_mov_b32 s14, {WS_F3}
        {X40}
        """)
        l = a.newlabel()
        poll(lambda: a(f"buffer_load_dwordx4 {R(40)}, v{AE+2}, {W}, s14 offen sc1"), [40, 41, 42, 43], 4, fail=l if once else None)
        stamp(11)
        for i in range(4):
            a(f"buffer_load_dwordx4 {R(ZR+4*i)}, v{AE+3}, {W}, s11 offen sc1")
            if i < 3: a("s_add_u32 s11, s11, 4096")
        a("s_mov_b32 s70, 1")
        a.label(l)
        a("s_mov_b64 exec, -1")
    if not E("NOAEPI"):
        a("s_mov_b32 s70, 0")
        lds_wait(16, 1, "lt", 8)
        a(f"s_sleep {E('ZS', '16')}")
        z_fetch(True)
    a.label(l_svcend)
    a("s_waitcnt vmcnt(0) lgkmcnt(0)")
    stamp(12)
    a("s_barrier")
    a(f"ds_read_b32 v5, v{VS} offset:8")
    OWN = O
    for j in range(2):
        for r in range(3): a(f"ds_read_b128 {R(OWN+12*j+4*r)}, v{PV+j} offset:{1024*r}")
    a(f"s_branch {l_R}")
    a.label(l_cg1)
    for n in range(5): wpat(VD + n, 64 * n, True)
    a(f"""
    s_sub_u32 s8, s5, 4
    s_mul_i32 s11, s8, 5120
    s_add_u32 s11, s11, {L_W}
    s_mul_i32 s10, s8, {32*1280}
    s_add_u32 s10, s10, s65
    s_mul_i32 s12, s66, {128*1280}
    """)
    tail_addr(True); hi_addr(); gemm_addr(1); a(f"v_mov_b32 v{AE+1}, -1\nv_mov_b32 v{AE+2}, -1\nv_mov_b32 v{AE+3}, -1")
    got_args()
    srd(S_B, P_WQ, D * D * 2); srd(S_WS, P_WS, WS_END)
    got_tag()
    a(f"s_setprio {E('PHI', '0')}\ns_barrier")
    w_issue(0)
    stamp(1)
    a(f"s_waitcnt vmcnt({E('W1', '2')})"); w_issue(1); a("s_waitcnt vmcnt(5)")
    l = a.newlabel(); br_wave("eq", 7, l); w_issue(2); a.label(l)
    q_path(1)
    for i in range(4): a(f"ds_read2_b64 {R(QM+4*i)}, v{QA+i} offset0:0 offset1:1")
    a(f"ds_read_b64 {R(QR,2)}, v{QA+4} offset:32\nds_read_b64 {R(QR+2,2)}, v{QA+5} offset:32")
    a(f"s_setprio 1\ns_movk_i32 s13, 8")
    for t in range(4): a(f"v_mfma_f32_32x32x16_bf16 {R(O+16*t,16)}, {R(KBH[-1]+10)}, {R(KBH[-1]+10)}, 0")
    l_fb, l_after = a.newlabel(), a.newlabel()
    def qk(t, kb, usec):
        return f"v_mfma_f32_32x32x16_bf16 {R(SR+16*t,16)}, {R(kb)}, {R(QM+4*t)}, {R(C+16*t,16) if usec else '0'}"
    def qr(p, kb):
        d = R(SR + 32 * p, 32)
        if E("QR8"): return "\n".join(f"v_mfma_f32_32x32x8_bf16 {R(SR+32*p+16*i,16)}, {R(kb+4,2)}, {R(QR+2*p,2)}, {R(SR+32*p+16*i,16)}" for i in range(2))
        if E("NOQR"): return "s_nop 0\ns_nop 0"
        return f"v_mfma_f32_32x32x4_2b_bf16 {d}, {R(kb+4,2)}, {R(QR+2*p,2)}, {d}"
    def pv(t, hf, vb):
        d = R(O + 16 * t, 16)
        if E("PVSWAP"): return f"v_mfma_f32_32x32x16_bf16 {d}, {R(SR+16*t+8*hf)}, {R(vb+6+4*hf)}, {d}"
        return f"v_mfma_f32_32x32x16_bf16 {d}, {R(vb+6+4*hf)}, {R(SR+16*t+8*hf)}, {d}"
    MP = [int(x) for x in E("MP", "16,8,12,20,26,35,4").split(",")]
    DEFER = MP[6] < 40
    LP = [int(x) for x in E("LP", "12,36,60,84").split(",")]
    def phase(p, kq_, vcur, vprev, extra, usec):
        ta, tb = 2 * p, 2 * p + 1
        na, nb_ = 2 * (1 - p), 2 * (1 - p) + 1
        base, pbase = SR + 32 * p, SR + 32 * (1 - p)
        def cv(b, j):
            bb = b + 8 * (j // 4); k = j % 4
            return f"v_cvt_pk_bf16_f32 v{bb+k}, v{bb+2*k}, v{bb+2*k+1}"
        valu = []
        for grp in range(8):
            for i in range(4): valu.append(f"v_exp_f32 v{base+4*grp+i}, v{base+4*grp+i}")
            for j in (2 * grp - 2, 2 * grp - 1): valu.append(cv(base, j) if j >= 0 else cv(pbase, 16 + j))
        ins = dict(zip(MP, [[qk(na, kq_, usec)], [pv(nb_, 1, vprev)], [qk(nb_, kq_, usec)], [pv(ta, 0, vcur)],
               [qr(1 - p, kq_)], [pv(ta, 1, vcur)], [pv(nb_, 0, vprev) if DEFER else pv(tb, 0, vcur)]]))
        for k, v in extra.items():
            if k == "wait": ins[MP[3]] = v + ins[MP[3]]
            else: ins[k] = ins.get(k, []) + v
        for i, x in enumerate(valu):
            for y in ins.get(i, []): a(y)
            a(x)
        return [cv(base, 14), cv(base, 15)]
    def main_loop(kb, usec):
        nb = len(kb)
        a(f"s_waitcnt vmcnt(4) lgkmcnt(0)")
        stamp(8); rstamp(14)
        a(qk(0, kb[0], usec)); a(qk(1, kb[0], usec))
        for i in range(8): a(f"v_mov_b32 v{SR+56+i}, 0")
        for i in range(4): a(f"v_mov_b32 v{SR+48+i}, 0\nv_mov_b32 v{kb[-1]+6+i}, 0")
        a(qr(0, kb[0]))
        if usec: a("s_nop 15\ns_nop 3")
        else: kv_prologue(kb, 1); a("s_nop 9")
        l_loop = a.newlabel()
        a(".p2align 6")
        a.label(l_loop)
        n0 = len(a.lines)
        for par in range(nb):
            cur, nxt, prv = kb[par], kb[(par + 1) % nb], kb[par - 1]
            lds_ = [f"buffer_load_dwordx4 {R(prv+6)}, v{AV}, {W}, s11 offen offset:{V0_OFF}{KVSC}",
                    f"buffer_load_dwordx4 {R(prv+10)}, v{AV}, {W}, s11 offen offset:{V1_OFF}{KVSC}",
                    f"buffer_load_dwordx4 {R(cur)}, v{AK1}, {W}, s11 offen offset:{TILE + K1_OFF}{KVSC}",
                    f"buffer_load_dwordx2 {R(cur+4,2)}, v{AKR}, {W}, s11 offen offset:{TILE + KR_OFF}{KVSC}"]
            ex = [{"wait": [f"s_waitcnt vmcnt({4*(nb-2) + sum(1 for p_ in LP if p_ < MP[3])})"]}, {}]
            for p_, l_ in zip(LP, lds_): ex[p_ // 48].setdefault(p_ % 48, []).append(l_)
            pm = max(LP) + 3
            ex[pm // 48].setdefault(pm % 48, []).append(f"s_add_u32 s11, s11, {TILE}")
            if par == nb - 1:
                ex[1].setdefault(22, []).append("s_sub_u32 s13, s13, 1")
                if not usec: ex[1].setdefault(24, []).extend(["v_mov_b32 v4, s13", f"ds_write_b32 v{VS}, v4 offset:16", f"ds_read_b32 v5, v{VS} offset:8"])
                ex[1].setdefault(45, []).append("s_cmp_lg_u32 s13, 0")
            phase(0, cur, cur, prv, ex[0], usec)
            tail = phase(1, nxt, cur, cur, ex[1], usec)
        if not E("NOALIGN"):
            par_ = 0; last4 = None
            for i in range(n0, len(a.lines)):
                t = a.lines[i]
                small = t.startswith(("v_exp_f32 ", "v_mov_b32 ", "s_waitcnt", "s_sub_u32", "s_cmp_"))
                if small:
                    par_ ^= 1
                    if t.startswith("v_"): last4 = i
                elif par_:
                    assert last4 is not None and all(a.lines[j].startswith(("v_exp_f32 ", "v_mov_b32 ", "s_waitcnt", "s_sub_u32", "s_cmp_")) for j in range(last4, i)), a.lines[last4:i+1]
                    a.lines[last4] = a.lines[last4].replace(" ", "_e64 ", 1); par_ = 0
        a(f"s_cbranch_scc1 {l_loop}")
        if DEFER: a(pv(3, 0, kb[-1]))
        for x in tail: a(x)
        a(pv(3, 1, kb[-1]))
    main_loop(KBH, False)
    l_w, l_ok = a.newlabel(), a.newlabel()
    a(f"s_mov_b32 s96, {SPIN}")
    a.label(l_w)
    a(f"""
    s_waitcnt lgkmcnt(0)
    v_readfirstlane_b32 s8, v5
    s_and_b32 s9, s8, 0xff
    s_cmp_eq_u32 s9, 4
    s_cbranch_scc1 {l_ok}
    s_sleep 2
    ds_read_b32 v5, v{VS} offset:8
    s_sub_u32 s96, s96, 1
    s_cmp_lg_u32 s96, 0
    s_cbranch_scc1 {l_w}
    """)
    a.label(l_ok)
    a(f"s_bitcmp1_b32 s8, 8\ns_cbranch_scc1 {l_fb}")
    a.label(l_after)
    stamp(9); rstamp(15)
    for i in (1, 2, 3):
        for r in range(3): a(f"ds_write_b128 v{PV}, {R(O+16*i+4*r)} offset:{3072*(i-1) + 1024*r}")
    a("s_waitcnt lgkmcnt(0)")
    stamp(12)
    a("s_barrier")
    for r in range(3): a(f"ds_read_b128 {R(OWN+12+4*r)}, v{PV+1} offset:{1024*r}")
    a.label(l_R)
    a("s_waitcnt lgkmcnt(0)\nv_readfirstlane_b32 s71, v5")
    for r in (10, 8, 9, 0, 1, 2, 3, 4, 5, 6, 7): a(f"v_add_f32 v{OWN+r}, v{OWN+r}, v{OWN+12+r}")
    a(f"v_rcp_f32 v{OWN+10}, v{OWN+10}")
    for i in (8, 9, 0, 1, 2, 3, 4, 5, 6, 7): a(f"v_mul_f32 v{OWN+i}, v{OWN+i}, v{OWN+10}")
    PO = 88
    a(f"v_cvt_pk_bf16_f32 v{PO+4}, v{OWN+8}, v{OWN+9}\nv_cvt_pk_bf16_f32 v{PO+5}, v{OWN+8}, v{OWN+9}")
    for i in range(4): a(f"v_cvt_pk_bf16_f32 v{PO+i}, v{OWN+2*i}, v{OWN+2*i+1}")
    a(f"""
    v_permlane32_swap_b32 v{PO+4}, v{PO+5}
    s_waitcnt vmcnt(0)
    s_bitcmp1_b32 s71, 9
    s_cbranch_scc1 L_fast1
    buffer_store_dwordx4 {R(PO)}, v{PV+2}, {W}, s72 offen sc1
    s_mov_b32 exec_hi, 0
    buffer_store_dwordx2 {R(PO+4,2)}, v{PV+3}, {W}, s73 offen sc1
    s_branch L_fast2
    L_fast1:
    buffer_store_dwordx4 {R(PO)}, v{PV+2}, {W}, s72 offen{E('FSFX', '')}
    s_mov_b32 exec_hi, 0
    buffer_store_dwordx2 {R(PO+4,2)}, v{PV+3}, {W}, s73 offen{E('FSFX', '')}
    L_fast2:
    s_mov_b32 exec_hi, -1
    """)
    tstamp(1)
    srd(S_C, P_OUT, 2 * ACT)
    OSTR = 336; OKH = 64 * OSTR
    a(f"""
    s_lshl_b32 s12, s3, 1
    s_lshr_b32 s8, s77, 1
    s_add_u32 s12, s12, s8
    s_lshl_b32 s12, s12, 1
    s_add_u32 s12, s12, s76
    s_lshl_b32 s12, s12, 6
    s_add_u32 s12, s12, {WS_F4}
    v_lshlrev_b32 v4, 2, v2
    v_lshlrev_b32 v5, 8, v3
    v_lshl_add_u32 v5, v2, 3, v5
    s_lshl_b32 s13, s3, 2
    s_add_u32 s13, s13, s77
    s_mul_i32 s13, s13, {OPB}
    s_add_u32 s13, s13, {WS_O}
    s_lshl_b32 s8, s76, 11
    s_add_u32 s15, s13, s8
    s_add_u32 s15, s15, 16384
    s_lshl_b32 s8, s76, 13
    s_add_u32 s13, s13, s8
    s_add_u32 s10, s13, 4096
    v_mov_b32 v6, s{TAG}
    v_mov_b32 v7, 0
    """)
    l = a.newlabel()
    br_wave("lt", 4, l)
    for ks in range(2): o_reads(ks)
    a.label(l)
    tstamp(2)
    a(f"""
    s_waitcnt vmcnt(0)
    s_mov_b64 exec, 1
    s_bitcmp1_b32 s71, 9
    s_cbranch_scc1 L_fast3
    buffer_store_dword v6, v7, {W}, s74 offen sc1
    s_branch L_fast4
    L_fast3:
    buffer_store_dword v6, v7, {W}, s74 offen
    L_fast4:
    s_mov_b64 exec, -1
    """)
    tstamp(3)
    a("s_barrier")
    l, l2 = a.newlabel(), a.newlabel()
    br_wave("lt", 4, l)
    for ks in range(2, 6): o_reads(ks)
    a(f"s_branch {l2}")
    a.label(l)
    if not E("NOAEPI") and not E("NOSVC"):
        l3 = a.newlabel()
        a(f"s_cmp_eq_u32 s70, 1\ns_cbranch_scc1 {l3}")
        z_fetch(False)
        a("s_waitcnt vmcnt(0)")
        a.label(l3)
    a("s_mov_b32 s14, 0xffff0000")
    def unp(dst, src, hi): a(f"v_and_b32 v{dst}, s14, v{src}" if hi else f"v_lshlrev_b32 v{dst}, 16, v{src}")
    AO = [84, 86, 88, 90, 92, 94, 60, 50]
    for e in range(8):
        for i in range(4):
            unp(U + i, QRW + 2 * e + i // 2, i % 2); unp(U + 4 + i, ZR + 4 * i + e // 2, e % 2)
        for i in range(4): a(f"v_mul_f32 v{U+i}, v{U+i}, v{U+4+i}")
        for i in (0, 2): a(f"v_cvt_pk_bf16_f32 v{AO[e]+i//2}, v{U+i}, v{U+i+1}")
    a.label(l2)
    tstamp(4)
    poll(lambda: a(f"buffer_load_dword v6, v4, {W}, s12 offen sc1"), [6], 1)
    tstamp(5)
    nld = []
    for ks in range(10):
        pr_, m = ks // 5, ks % 5
        if m < 4:
            a(f"buffer_load_dwordx4 {R(XF+4*ks)}, v{AK1}, {W}, s{10 if pr_ else 13} offen offset:{1024*m} sc1"); nld.append(1)
        else:
            for z in range(2): a(f"buffer_load_dwordx2 {R(XF+4*ks+2*z,2)}, v5, {W}, s15 offen offset:{1024*pr_ + 128*z} sc1")
            nld.append(2)
    l = a.newlabel()
    br_wave("lt", 4, l)
    for ks in range(6, 8): o_reads(ks)
    a.label(l)
    a(f"""
    v_mul_u32_u24 v54, {OSTR}, v2
    v_lshl_add_u32 v54, v3, 4, v54
    s_mul_i32 s8, s77, {16*OSTR}
    s_mul_i32 s9, s76, {OKH}
    s_add_u32 s8, s8, s9
    s_add_u32 s8, s8, {L_OUT}
    v_add_u32 v54, s8, v54
    """)
    for i in range(2):
        a(f"""
        v_add_u32 v55, {512*i}, v0
        v_mul_u32_u24 v6, 6554, v55
        v_lshrrev_b32 v6, 16, v6
        v_mul_u32_u24 v7, 10, v6
        v_sub_u32 v7, v55, v7
        v_mul_u32_u24 v{56+i}, {OSTR}, v6
        v_lshl_add_u32 v{56+i}, v7, 5, v{56+i}
        v_add_u32 v{56+i}, {L_OUT}, v{56+i}
        v_mul_u32_u24 v{58+i}, 2560, v6
        v_lshl_add_u32 v{58+i}, v7, 4, v{58+i}
        """)
    a(f"s_lshl_b32 s14, s64, 1\ns_add_u32 s14, s14, s65\ns_add_u32 s14, s14, 1280")
    tstamp(6)
    for ks in range(10):
        a(f"s_waitcnt vmcnt({sum(nld[ks+1:])})" + (" lgkmcnt(0)" if ks in (0, 8) else ""))
        b = AF + 20 * (ks % 8)
        for nb in range(5):
            d = R(AC + 4 * nb)
            a(f"v_mfma_f32_16x16x32_bf16 {d}, {R(b+4*nb)}, {R(XF+4*ks)}, {'0' if ks == 0 else d}")
        if ks < 2: o_reads(8 + ks)
    tstamp(7)
    for nb in range(5): a(f"ds_write_b128 v54, {R(AC+4*nb)} offset:{64*nb}")
    if not E("NOAEPI") and not E("NOSVC"):
        l = a.newlabel()
        br_wave("ge", 4, l)
        a(X40)
        for e in range(8):
            a(f"s_mov_b32 s8, {(16*(e>>2) + 2*(e&3))*2560}")
            a(f"buffer_store_dwordx2 {R(AO[e],2)}, v{AE+1}, {SR_(S_C)}, s8 offen{OSFX}")
        a("s_mov_b64 exec, -1")
        a.label(l)
    a("s_waitcnt lgkmcnt(0)\ns_barrier")
    def fin_rd(i):
        b = 96 + 16 * i
        a(f"ds_read_b128 {R(b)}, v{56+i}\nds_read_b128 {R(b+4)}, v{56+i} offset:16")
        a(f"ds_read_b128 {R(b+8)}, v{56+i} offset:{OKH}\nds_read_b128 {R(b+12)}, v{56+i} offset:{OKH+16}")
    def fin_st(i):
        b = 96 + 16 * i
        for r in range(8): a(f"v_add_f32 v{b+r}, v{b+r}, v{b+8+r}")
        for r in range(4): a(f"v_cvt_pk_bf16_f32 v{b+8+r}, v{b+2*r}, v{b+2*r+1}")
        a(f"buffer_store_dwordx4 {R(b+8)}, v{58+i}, {SR_(S_C)}, s14 offen{OSFX}")
    l = a.newlabel()
    fin_rd(0)
    br_wave("ge", 2, l)
    fin_rd(1); a("s_waitcnt lgkmcnt(0)"); fin_st(1)
    a.label(l)
    a("s_waitcnt lgkmcnt(0)"); fin_st(0)
    a.label("L_fin")
    if STAMP:
        a(f"""
        s_memtime s[98:99]
        s_waitcnt lgkmcnt(0)
        s_mov_b32 s96, s98
        s_memrealtime s[98:99]
        s_waitcnt lgkmcnt(0)
        s_mov_b32 s97, s98
        s_add_u32 s72, s{P_WS}, {WS_STAMP}
        s_addc_u32 s73, s{P_WS+1}, 0
        s_mov_b32 s74, 0x40000
        s_mov_b32 s75, 0x20000
        s_lshl_b32 s76, s2, 3
        s_add_u32 s76, s76, s5
        s_lshl_b32 s76, s76, 7
        v_mov_b32 v2, 0
        """)
        for i in range(18): a(f"v_mov_b32 v3, s{80+i}\nbuffer_store_dword v3, v2, s[72:75], s76 offen offset:{4*i}")
    a.label("L_exit")
    a("s_endpgm")
    a.label(l_fb)
    FB = [28, 240]
    FB = [28, 114]
    a("s_waitcnt vmcnt(0)\ns_nop 15\ns_nop 3")
    raise_fb = True
    TB, M = 28, 36
    for j in range(4): a(f"v_mov_b32 v{M+j}, 0xff800000")
    a(f"s_mov_b32 s11, {WS_KV}\ns_mov_b32 s14, 64\ns_mov_b32 s13, 16")
    l_f = a.newlabel()
    a.label(l_f)
    loadK(TB, 0)
    a("s_waitcnt vmcnt(0)")
    for t in range(4): a(qk(t, TB, False))
    a(qr(0, TB)); a(qr(1, TB))
    for t in range(4):
        for i in range(8): a(f"v_max3_f32 v{M+t}, v{M+t}, v{SR+16*t+2*i}, v{SR+16*t+2*i+1}")
    a(f"s_add_u32 s11, s11, {TILE}\ns_sub_u32 s14, s14, 1\ns_cmp_lg_u32 s14, 0\ns_cbranch_scc1 {l_f}")
    for t in range(4):
        a(f"v_mov_b32 v{M+4}, v{M+t}\nv_permlane32_swap_b32 v{M+t}, v{M+4}\nv_max_f32 v{M+4}, v{M+4}, v{M+t}")
        for i in range(16): a(f"v_sub_f32 v{C+16*t+i}, 0, v{M+4}")
    a(f"v_mov_b32 v6, v{VT}\nv_mov_b32 v7, v{VT+1}")
    for i in range(4): a(f"v_mov_b32 v{52+i}, 0")
    for t in range(4): a(f"v_mfma_f32_32x32x16_bf16 {R(O+16*t,16)}, {R(52)}, {R(52)}, 0")
    kv_prologue([28, 42])
    main_loop([28, 42], True)
    a(f"s_waitcnt vmcnt(0)\nv_mov_b32 v{VT}, v6\nv_mov_b32 v{VT+1}, v7\ns_nop 7\ns_nop 7\ns_branch {l_after}")
    return a.finalize(verbose=bool(E("VERB")))

def build():
    hdr = open(f"cdna_kernels/{NAME}.s.ref").read().split("; @launch")[0]
    k = NAME + "_kernel"
    body = build_kernel()
    return hdr + f"""; @launch grid=(256,1,1) block=(512,1,1) lds=163840
.amdgcn_target "amdgcn-amd-amdhsa--gfx950"
.text
.globl {k}
.p2align 8
.type {k},@function
{k}:
{body}.section .rodata,"a"
.p2align 6
.amdhsa_kernel {k}
  .amdhsa_next_free_vgpr 256
  .amdhsa_next_free_sgpr 100
  .amdhsa_accum_offset 256
  .amdhsa_group_segment_fixed_size 0
  .amdhsa_kernarg_size 112
  .amdhsa_user_sgpr_count 2
  .amdhsa_user_sgpr_kernarg_segment_ptr 1
  .amdhsa_system_sgpr_workgroup_id_x 1
.end_amdhsa_kernel
"""

if __name__ == "__main__":
    path = sys.argv[1] if len(sys.argv) > 1 else "fused5.s"
    open(path, "w").write(build())
    print("wrote", path)
```

```python
import sys, math, struct, os
sys.path.insert(0, "gen")
from asmlib import Asm

NAME = "concat_heads__ssm_conv_h3__grouped_kv_mqa__prompt"
S, D, H, DH = 2048, 640, 32, 20
ACT = S * D * 2
WS_E, WS_F1, WS_F2, WS_F3, WS_F4 = 0, 1024, 4096, 12288, 16384
WS_KV = 32768
TILE = 2816
KR_OFF, K1_OFF, V0_OFF, V1_OFF = 0, 256, 1280, 2048
WS_O = 0x40000
OPB = 20480
WS_Z = WS_O + ACT
WS_XT = WS_Z + ACT
WS_END = WS_XT + 2 * ACT
WS_STAMP = 0x2000000
QSCALE = (DH ** -0.5) * math.log2(math.e)
E = os.environ.get
STAMP = E("STAMP", "0") == "1"
TAILST = E("TAILST")
SPIN = 1 << 17
OSFX = " " + E("OSFX", "nt")
KVSC = "" if E("KVPLAIN") else " sc1"

def f2u(x): return struct.unpack("<I", struct.pack("<f", x))[0]
P_AQ, P_AK, P_AV, P_SH, P_SK, P_SD, P_X, P_WQ, P_WK, P_WV, P_WO, P_OUT, P_DBG, P_WS = [16 + 2 * i for i in range(14)]
S_WS, S_A, S_B, S_C, S_D = 44, 48, 52, 56, 60
TAG = 78
def R(b, n=4): return f"v[{b}:{b+n-1}]"
def SR_(b): return f"s[{b}:{b+3}]"
W = SR_(S_WS)

L_W = 81920; GSLOT = 20480
L_WKV = 163840 - 25600
L_Q = 102400; QSTR = 176
L_STAT = L_Q + 64 * QSTR
L_RED = 113920
L_CONV = 113920; CVS = 15360
L_OUT = 102400
L_SK, L_SV, L_KT = 0, 16384, 27648
WO_LOW = 45

a = Asm()
def srd(r, ptr, nbytes, off=0):
    if off:
        a(f"s_add_u32 s{r}, s{ptr}, {off}\ns_addc_u32 s{r+1}, s{ptr+1}, 0")
    else:
        a(f"s_mov_b32 s{r}, s{ptr}\ns_mov_b32 s{r+1}, s{ptr+1}")
    a(f"s_mov_b32 s{r+2}, {nbytes}\ns_mov_b32 s{r+3}, 0x20000")
def _st(i, op="s_memtime"): a(f"{op} s[98:99]\ns_waitcnt lgkmcnt(0)\ns_mov_b32 s{80+i}, s98")
def stamp(i):
    if STAMP and not (TAILST and 1 <= i <= 7): _st(i)
def tstamp(i):
    if STAMP and TAILST: _st(i)
def rstamp(i):
    if STAMP: _st(i, "s_memrealtime")
def br_wave(op, n, lab): a(f"s_cmp_{op}_u32 s5, {n}\ns_cbranch_scc1 {lab}")
def poll(load_fn, tagregs, sleep=2, cnt="vmcnt", val=None, op="ne", skipfirst=False, fail=None):
    val = val or f"s{TAG}"
    l, d = a.newlabel(), a.newlabel()
    a(f"s_mov_b32 s96, {SPIN}")
    if skipfirst:
        l0 = a.newlabel(); a(f"s_branch {l0}")
    a.label(l)
    load_fn()
    if skipfirst: a.label(l0)
    a(f"s_waitcnt {cnt}(0)")
    for i, t in enumerate(tagregs):
        if i == 0: a(f"v_cmp_{op}_u32 s[8:9], {val}, v{t}")
        else: a(f"v_cmp_ne_u32 vcc, {val}, v{t}\ns_or_b64 s[8:9], s[8:9], vcc")
    if fail:
        a(f"s_cmp_eq_u64 s[8:9], 0\ns_cbranch_scc0 {fail}"); return
    a(f"""
    s_cmp_eq_u64 s[8:9], 0
    s_cbranch_scc1 {d}
    s_sleep {sleep}
    s_sub_u32 s96, s96, 1
    s_cmp_lg_u32 s96, 0
    s_cbranch_scc1 {l}
    """)
    a.label(d)
def flag_store(soff_sgpr, vt):
    a(f"v_mov_b32 v{vt}, s{TAG}\nv_mov_b32 v{vt+1}, 0")
    a(f"s_mov_b64 exec, 1")
    a(f"buffer_store_dword v{vt}, v{vt+1}, {W}, s{soff_sgpr} offen sc1")
    a(f"s_mov_b64 exec, -1")
def wpat(dst, qbase, x4):
    a(f"""
    v_add_u32 v4, {qbase}, v1
    v_mul_u32_u24 v5, 6554, v4
    v_lshrrev_b32 v5, 16, v5
    v_mul_u32_u24 v6, 10, v5
    v_sub_u32 v6, v4, v6
    """)
    if x4: a("v_lshrrev_b32 v7, 1, v5\nv_and_b32 v7, 4, v7\nv_xor_b32 v5, v5, v7")
    a(f"v_mul_u32_u24 v5, 1280, v5\nv_lshl_add_u32 v{dst}, v6, 4, v5")

def build_kernel():
    if STAMP: a("s_memtime s[80:81]\ns_memrealtime s[92:93]")
    a(f"""
    s_cmp_ge_u32 s2, 256
    s_cbranch_scc1 L_exit
    s_load_dwordx16 s[16:31], s[0:1], 0
    s_load_dwordx8 s[32:39], s[0:1], 64
    s_load_dwordx4 s[40:43], s[0:1], 96
    v_lshrrev_b32 v1, 6, v0
    s_and_b32 s7, s2, 7
    s_lshl_b32 s3, s7, 2
    s_lshr_b32 s4, s2, 3
    v_readfirstlane_b32 s5, v1
    s_and_b32 s6, s4, 3
    s_add_u32 s3, s3, s6          ; s3 = pb64
    s_lshr_b32 s4, s4, 2          ; s4 = hg
    v_and_b32 v1, 63, v0          ; lane
    v_and_b32 v2, 15, v1          ; p
    v_lshrrev_b32 v3, 4, v1       ; kg
    s_mul_i32 s64, s3, {64*1280}
    s_mul_i32 s65, s4, 160
    s_add_u32 s66, s6, s7
    s_mul_i32 s8, s66, 52
    s_lshr_b32 s8, s8, 8
    s_mul_i32 s8, s8, 5
    s_sub_u32 s66, s66, s8
    s_and_b32 s67, s4, 3          ; pbk
    """)
    VD, VXR, VTR, VQW, VEX = 28, 34, 36, 38, 46
    VKR, VK4, VK5 = 40, 42, 43
    ACC, GF = 64, 96
    QM, QR = 8, 24
    O, SR, C = 64, 128, 192
    KBH = [192, 206, 220, 234]
    AK1, AKR, AV = 62, 63, 61
    PV, QA, VS, VT, AE = 56, 176, 44, 52, 48
    B0, B1, PA, PB = 16, 20, 64, 68
    KT_W, KT_R, KT_G, KT_S, VW2 = 240, 241, 242, 243, 244
    VA, V_B, V_ZW, V_ZS, V_HD, V_F2 = 228, 232, 233, 234, 235, 236
    VWO = 224
    WRAW = [216, 220]
    L_EX = 32768
    PW = int(E('PW', '3'))
    def gwrap(sreg, step):
        a(f"s_add_u32 s{sreg}, s{sreg}, {step}\ns_cmp_ge_u32 s{sreg}, {5*step}\ns_cselect_b32 s{sreg}, 0, s{sreg}")
    def shift2(r, d): a(f"v_add_u32 v{r}, {d & 0xffffffff}, v{r}\nv_add_u32 v{r+1}, {d & 0xffffffff}, v{r+1}")
    def loadK(buf, off):
        a(f"buffer_load_dwordx4 {R(buf)}, v{AK1}, {W}, s11 offen offset:{off + K1_OFF}{KVSC}")
        a(f"buffer_load_dwordx2 {R(buf+4,2)}, v{AKR}, {W}, s11 offen offset:{off + KR_OFF}{KVSC}")
    def loadV(buf, off):
        a(f"buffer_load_dwordx4 {R(buf+6)}, v{AV}, {W}, s11 offen offset:{off + V0_OFF}{KVSC}")
        a(f"buffer_load_dwordx4 {R(buf+10)}, v{AV}, {W}, s11 offen offset:{off + V1_OFF}{KVSC}")
    def kv_prologue(kb, part=None):
        nb = len(kb)
        if part != 1:
            a("s_mov_b32 s11, s79")
            loadK(kb[0], 0)
        for j in range(nb - 1):
            if (part == 0 and j > 0) or (part == 1 and j == 0): continue
            loadV(kb[j], 0); loadK(kb[j + 1], TILE); a(f"s_add_u32 s11, s11, {TILE}")
    def tail_addr(hi):
        T = 192
        a(f"""
        s_and_b32 s76, s5, 1
        s_lshr_b32 s77, s5, 1
        v_lshlrev_b32 v{AK1}, 4, v1
        v_bfe_u32 v{T}, v1, 4, 1
        v_mul_u32_u24 v{T}, {OPB}, v{T}
        v_lshl_add_u32 v{PV+3}, v2, 3, v{T}
        v_lshl_add_u32 v{T}, v2, 4, v{T}
        v_lshrrev_b32 v{T+1}, 5, v1
        v_lshl_add_u32 v{PV+2}, v{T+1}, 8, v{T}
        s_lshl_b32 s8, s3, 2
        s_lshl_b32 s9, s76, 1
        s_add_u32 s8, s8, s9
        s_mul_i32 s8, s8, {OPB}
        s_add_u32 s8, s8, {WS_O}
        s_lshl_b32 s9, s4, 2
        s_add_u32 s9, s9, s77
        s_lshl_b32 s72, s9, 9
        s_add_u32 s72, s72, s8
        s_lshl_b32 s73, s9, 7
        s_add_u32 s73, s73, s8
        s_add_u32 s73, s73, 16384
        s_lshl_b32 s74, s3, 1
        s_add_u32 s74, s74, s76
        s_lshl_b32 s74, s74, 5
        s_add_u32 s74, s74, s9
        s_lshl_b32 s74, s74, 2
        s_add_u32 s74, s74, {WS_F4}
        """)
        for j, i in enumerate((0, 1) if hi else (2, 3)):
            a(f"""
            s_xor_b32 s8, s5, {2*i}
            s_and_b32 s8, s8, 3
            s_mul_i32 s8, s8, 9216
            s_add_u32 s8, s8, {L_RED + 3072*max(i-1, 0)}
            v_add_u32 v{PV+j}, s8, v{AK1}
            """)
    def hi_addr():
        T = 192
        a(f"""
        v_and_b32 v{T}, 31, v1
        v_lshlrev_b32 v{AKR}, 3, v{T}
        v_lshrrev_b32 v{T+2}, 3, v{T}
        v_and_b32 v{T+3}, 3, v{T}
        v_lshl_add_u32 v{T+2}, v{T+2}, 2, v{T+3}
        v_bfe_u32 v{T+3}, v{T}, 2, 1
        v_mad_u32_u24 v{T+3}, v{T+3}, 10, v{T+2}
        v_mad_u32_u24 v{T+3}, v{T+1}, 20, v{T+3}
        v_cmp_gt_u32 s[8:9], 10, v{T+2}
        v_cmp_lt_u32 vcc, 10, v{T+2}
        v_mov_b32 v{T+4}, 40
        v_cndmask_b32 v{T+3}, v{T+4}, v{T+3}, s[8:9]
        v_lshlrev_b32 v{AV}, 4, v{T+3}
        v_mov_b32 v{T+4}, 0x40000000
        v_cndmask_b32 v{AV}, v{AV}, v{T+4}, vcc
        s_and_b32 s8, s77, 1
        s_mul_i32 s79, s8, {32*TILE}
        s_add_u32 s79, s79, {WS_KV}
        s_mul_i32 s8, s76, {32*QSTR}
        s_add_u32 s8, s8, {L_Q}
        v_mul_u32_u24 v{T+2}, {QSTR}, v{T}
        v_add_u32 v{T+2}, s8, v{T+2}
        v_lshl_add_u32 v{T+3}, v{T+1}, 4, v{T+2}
        v_xor_b32 v{T+4}, s77, v{T+1}
        v_xor_b32 v{T+5}, 2, v{T+4}
        v_mad_u32_u24 v{QA+4}, v{T+4}, 40, v{T+2}
        v_mad_u32_u24 v{QA+5}, v{T+5}, 40, v{T+2}
        """)
        for i in range(4):
            a(f"s_xor_b32 s8, s77, {i}\ns_mul_i32 s8, s8, 40\nv_add_u32 v{QA+i}, s8, v{T+3}")
        for i in range(4): a(f"v_mov_b32 v{KBH[-1]+10+i}, 0")
    def lo_addr():
        T = 192
        a(f"""
        s_mul_i32 s68, s5, 4224
        s_add_u32 s68, s68, {L_KT}
        v_and_b32 v4, 7, v1
        v_mul_u32_u24 v{T}, 528, v4
        v_lshrrev_b32 v5, 3, v1
        v_sub_u32 v{T+1}, 7, v5
        v_bfe_u32 v{T+2}, v{T+1}, 1, 1
        v_lshl_add_u32 v{T}, v{T+2}, 7, v{T}
        v_lshrrev_b32 v{T+2}, 2, v{T+1}
        v_lshl_add_u32 v{T}, v{T+2}, 6, v{T}
        v_and_b32 v{T+2}, 1, v{T+1}
        v_lshl_add_u32 v{T}, v{T+2}, 5, v{T}
        v_add_u32 v{KT_W}, s68, v{T}
        v_lshrrev_b32 v{T+1}, 5, v1
        v_lshlrev_b32 v{T+2}, 4, v{T+1}
        v_add3_u32 v{KT_R}, v{AK1}, v{T+2}, s68
        v_lshlrev_b32 v{T+3}, 12, v5
        v_lshl_add_u32 v{KT_G}, v4, 4, v{T+3}
        v_mul_u32_u24 v{T+3}, 1280, v5
        v_lshl_add_u32 v{T+3}, v4, 2, v{T+3}
        s_lshl_b32 s8, s5, 5
        v_add_u32 v{KT_S}, s8, v{T+3}
        ; convolution
        s_mul_i32 s68, s5, {CVS}
        s_add_u32 s68, s68, {L_CONV}
        v_and_b32 v{T}, 31, v1
        v_lshlrev_b32 v{V_F2}, 2, v{T}
        v_sub_u32 v{T+3}, v{V_F2}, v{T+2}
        v_add3_u32 v{VA}, v{T+3}, 16, s68
        v_add_u32 v{VA+1}, 1024, v{VA}
        v_add_u32 v{VA+2}, 2048, v{VA}
        v_add_u32 v{VA+3}, 3072, v{VA}
        v_lshrrev_b32 v{T+2}, 1, v{T}
        v_lshl_add_u32 v{T+2}, v{T+2}, 1, v{T+1}
        v_sub_u32 v{T+2}, 31, v{T+2}
        v_lshlrev_b32 v{T+2}, 5, v{T+2}
        v_and_b32 v{T+3}, 1, v{T}
        v_lshl_add_u32 v{T+2}, v{T+3}, 4, v{T+2}
        v_add_u32 v{V_B}, s68, v{T+2}
        v_mul_u32_u24 v{T+2}, 2080, v{T+1}
        v_lshl_add_u32 v{T+2}, v{T}, 4, v{T+2}
        v_add_u32 v{V_ZW}, s68, v{T+2}
        v_lshrrev_b32 v{T+2}, 2, v{T}
        v_lshlrev_b32 v{T+2}, 7, v{T+2}
        v_lshl_add_u32 v{T+2}, v{T+1}, 6, v{T+2}
        v_and_b32 v{T+3}, 3, v{T}
        v_lshl_add_u32 v{V_ZS}, v{T+3}, 4, v{T+2}
        v_subrev_u32 v{V_HD}, 64, v{AK1}
        v_cmp_lt_u32 s[8:9], 19, v1
        v_cndmask_b32 v{T}, 0, 1, s[8:9]
        v_mul_u32_u24 v{T+1}, 20, v{T}
        v_sub_u32 v{T+1}, v1, v{T+1}
        s_lshl_b32 s8, s76, 5
        s_lshl_b32 s9, s77, 3
        s_add_u32 s8, s8, s9
        s_add_u32 s8, s8, 1
        v_sub_u32 v{T+2}, s8, v{T}
        v_mul_u32_u24 v{T+2}, 1280, v{T+2}
        v_add_u32 v{T+2}, s64, v{T+2}
        v_lshl_add_u32 v{T+3}, v{T+1}, 3, s65
        v_lshl_add_u32 v{AE+1}, v{T+2}, 1, v{T+3}
        v_add_u32 v{AE}, v{T+2}, v{T+3}
        v_lshlrev_b32 v{AE+2}, 1, v{T+3}
        v_lshlrev_b32 v{T+3}, 11, v{T+3}
        v_lshl_add_u32 v{AE+3}, v{T}, 4, v{T+3}
        """)
    def stage(ptr, halo, base):
        if E("NOSTG"): return
        srd(S_D, ptr, ACT)
        a(f"s_add_u32 s8, s64, s65\ns_sub_u32 s8, s8, {halo*1280}")
        for i in range(11):
            if i < 5:
                a(f"v_add_u32 v4, s8, v{VW2 + i}\ns_mov_b32 m0, {base + 1024*i}\nbuffer_load_dwordx4 v4, {SR_(S_D)}, 0 offen lds")
            else:
                if i % 5 == 0: a(f"s_add_u32 s8, s8, {32*1280}")
                a(f"s_mov_b32 m0, {base + 1024*i}\nbuffer_load_dwordx4 v{VW2 + i % 5}, {SR_(S_D)}, s8 offen lds")
    def sync_init():
        a(f"""
        v_mov_b32 v4, 0
        v_mov_b32 v5, 0
        v_mov_b32 v6, 0
        v_mov_b32 v7, 8
        ds_write_b64 v{VS}, v[4:5]
        ds_write_b32 v{VS}, v4 offset:8
        ds_write_b32 v{VS}, v7 offset:16
        """)
    def only(w, fn):
        l = a.newlabel(); br_wave("lg", w, l); fn(); a.label(l)
    def publish_kv():
        l_v2, l_stat = a.newlabel(), a.newlabel()
        a(f"v_mov_b32 v8, 0\ns_cmp_ge_u32 s4, 4\ns_cbranch_scc1 {l_v2}")
        for i in range(4): a(f"v_dot2c_f32_bf16 v8, v{PA+i}, v{PA+i}")
        a(f"""
        v_mov_b32 v9, v8
        v_permlane32_swap_b32 v8, v9
        v_add_f32 v8, v8, v9
        v_dot2c_f32_bf16 v8, v{PB}, v{PB}
        v_dot2c_f32_bf16 v8, v{PB+1}, v{PB+1}
        s_nop 2
        s_branch {l_stat}
        """)
        a.label(l_v2)
        for b in range(B0, B0 + 8, 2): a(f"v_max3_f32 v8, v8, |v{b}|, |v{b+1}|")
        a("""
        v_mov_b32 v9, v8
        v_permlane16_swap_b32 v8, v9
        v_max_f32 v8, v8, v9
        v_mov_b32 v9, v8
        v_permlane32_swap_b32 v8, v9
        v_max_f32 v8, v8, v9
        s_nop 1
        """)
        a.label(l_stat)
        for sh in (1, 2, 4, 8):
            a(f"v_max_f32_dpp v8, v8, v8 row_shr:{sh} row_mask:0xf bank_mask:0xf")
        a("v_readlane_b32 s69, v8, 15")
        a(f"""
        s_lshl_b32 s8, s3, 3
        s_add_u32 s8, s8, s4
        s_lshl_b32 s8, s8, 3
        s_getreg_b32 s9, hwreg(HW_REG_XCC_ID, 0, 4)
        s_andn2_b32 s69, s69, 15
        s_or_b32 s69, s69, s9
        v_mov_b32 v4, s69
        v_mov_b32 v5, s{TAG}
        v_mov_b32 v6, 0
        s_waitcnt vmcnt(0)
        s_mov_b64 exec, 1
        buffer_store_dwordx2 v[4:5], v6, {W}, s8 offen offset:{WS_F1} sc1
        s_mov_b64 exec, -1
        """)

    def gemm_addr(cg):
        a(f"""
        v_mov_b32 v{VS}, {L_STAT}
        s_and_b32 s6, s77, 1
        v_lshrrev_b32 v4, 1, v2
        v_xor_b32 v4, v4, v3
        v_lshlrev_b32 v5, 7, v2
        v_lshl_add_u32 v39, v4, 4, v5
        s_lshl_b32 s7, s76, 1
        s_add_u32 s7, s7, s6
        s_lshl_b32 s8, s7, 11
        s_lshl_b32 s9, s6, 6
        v_xor_b32 v4, s9, v39
        v_add_u32 v{VXR}, s8, v4
        v_xor_b32 v{VXR+1}, 0x800, v{VXR}
        v_bfe_u32 v4, v1, 2, 2
        v_lshl_add_u32 v4, v3, 3, v4
        v_and_b32 v5, 1, v3
        v_lshl_add_u32 v6, v5, 2, v4
        v_xor_b32 v7, 4, v6
        v_and_b32 v5, 3, v1
        v_lshlrev_b32 v5, 3, v5
        s_movk_i32 s9, 160
        v_mad_u32_u24 v6, v6, s9, v5
        v_mad_u32_u24 v7, v7, s9, v5
        s_mul_i32 s8, s6, 5120
        s_add_u32 s8, s8, {L_W + 96*cg}
        v_add_u32 v{VTR}, s8, v6
        v_add_u32 v{VTR+1}, s8, v7
        s_mul_i32 s8, s76, 51200
        v_add_u32 v{VT}, s8, v6
        v_add_u32 v{VT+1}, s8, v7
        s_mul_i32 s8, s7, {16*QSTR}
        s_add_u32 s8, s8, {L_Q + 96*cg}
        v_mul_u32_u24 v4, {QSTR}, v2
        v_lshl_add_u32 v4, v3, 3, v4
        v_add_u32 v{VQW}, s8, v4
        s_mul_i32 s8, s5, 3072
        s_add_u32 s8, s8, {L_EX}
        v_add_u32 v{VEX}, s8, v{AK1}
        s_xor_b32 s8, s5, 2
        s_mul_i32 s8, s8, 3072
        s_add_u32 s8, s8, {L_EX}
        v_add_u32 v{VEX+1}, s8, v{AK1}
        """)
    def got_args():
        a(f"s_waitcnt lgkmcnt(0)\ns_load_dword s{TAG}, s[{P_WS}:{P_WS+1}], {WS_E}")
        if STAMP: a("s_mov_b32 s93, s92")
    def got_tag():
        a(f"s_waitcnt lgkmcnt(0)\ns_mul_i32 s{TAG}, s{TAG}, 0x9E3779B1\ns_add_u32 s{TAG}, s{TAG}, 0x7F4A7C15")
    def x_issue(g):
        a(f"s_add_u32 s8, s10, s12\ns_add_u32 s9, s8, {8*1280}")
        for hs in range(2):
            for par in range(2):
                a(f"s_add_u32 m0, s11, {(2*g+hs)*8192 + 1024*par - 128*hs}")
                a(f"buffer_load_dwordx4 v{VD+par}, {SR_(S_A)}, s{8+par} offen offset:{128*hs} lds")
        if g < 4: gwrap(12, 256)
    def wkv_issue(g):
        a(f"s_mov_b32 m0, {L_WKV + 5120*g}")
        for i in range(4):
            a(f"buffer_load_dwordx4 v{AK1}, {SR_(S_C)}, s13 offen offset:{1024*i} lds")
        a(f"s_mov_b32 m0, {L_WKV + 5120*g + 4096}\ns_add_u32 s8, s13, 4096")
        a(f"buffer_load_dwordx4 v{AK1}, {SR_(S_C)}, s8 offen lds")
        if g < 4: gwrap(13, 5120)
    def w_issue(g):
        a(f"s_add_u32 s8, s10, s12")
        for n in range(5):
            a(f"s_add_u32 m0, s11, {(g % 4)*GSLOT + 1024*n}")
            a(f"buffer_load_dwordx4 v{VD+n}, {SR_(S_B)}, s8 offen lds")
        if g < 4: gwrap(12, 128 * 1280)
    def q_stage(nblk, gs, xb, wb, mid=None):
        steps = [(g, hs) for g in gs for hs in range(2)]
        per = 2 + 2 * nblk
        for n, (g, hs) in enumerate(steps):
            b = GF + 20 * n
            for pl in range(2): a(f"ds_read_b128 {R(b+4*pl)}, v{VXR+pl} offset:{(2*g + hs)*8192 - xb}")
            for nb in range(nblk):
                off = (g % 4) * GSLOT + hs * 10240 + nb * 32 - wb
                for z in range(2): a(f"ds_read_b64_tr_b16 {R(b+8+4*nb+2*z,2)}, v{VTR+z} offset:{off}")
        if mid: mid()
        for n in range(len(steps)):
            a(f"s_waitcnt lgkmcnt({min(15, per * (len(steps) - 1 - n))})")
            b = GF + 20 * n
            for nb in range(nblk):
                for pl in range(2):
                    d = R(ACC + 12 * pl + 4 * nb)
                    a(f"v_mfma_f32_16x16x32_bf16 {d}, {R(b+8+4*nb)}, {R(b+4*pl)}, {'0' if (gs[0] == 0 and n == 0) else d}")
    def ld1():
        a(f"buffer_load_dwordx4 v[8:11], v45, {W}, 0 offen offset:{WS_F1} sc1")
        a(f"buffer_load_dwordx4 v[12:15], v45, {W}, 0 offen offset:{WS_F1+16} sc1")
    def q_path(cg):
        nblk = 3 if cg == 0 else 2
        stamp(2)
        a("s_barrier")
        stamp(3)
        q_stage(nblk, [0], 0, 0, (lambda: (only(7, lambda: w_issue(2)), w_issue(3))) if cg else None)
        a(f"s_waitcnt vmcnt({10 if cg else 0})")
        a("s_barrier")
        q_stage(nblk, [1], 0, 0, (lambda: w_issue(4)) if cg else None)
        shift2(VTR, 2 * GSLOT)
        if cg: a("s_waitcnt vmcnt(5)")
        a("s_barrier")
        stamp(4)
        q_stage(nblk, [2, 3], 0, 2 * GSLOT, None if cg else (lambda: only(PW, ld1)))
        shift2(VTR, -2 * GSLOT); shift2(VXR, 65536)
        if cg: a("s_waitcnt vmcnt(0)")
        else: only(PW, lambda: poll(ld1, [9, 11, 13, 15], 1, skipfirst=True)); only(2, sync_init)
        a("s_barrier")
        stamp(5)
        q_stage(nblk, [4], 65536, 0, (lambda: kv_prologue(KBH, 0)) if cg else None)
        for nb in range(nblk): a(f"ds_write_b128 v{VEX}, {R(ACC+12+4*nb)} offset:{1024*nb}")
        if not cg and not E("NOSVC") and not E("LATEK"): only(3, lambda: stage(P_AK, 4, L_SK))
        a(f"s_mov_b32 s8, 0xffff0000\ns_mov_b32 s9, {f2u(QSCALE)}")
        a("s_waitcnt lgkmcnt(0)\ns_barrier")
        for nb in range(nblk): a(f"ds_read_b128 {R(ACC+12+4*nb)}, v{VEX+1} offset:{1024*nb}")
        if cg and not E("LATEP"): kv_prologue(KBH, 1)
        for nb in range(nblk):
            b = ACC + 4 * nb
            a(f"s_waitcnt lgkmcnt({min(nblk - 1, nblk - 1 - nb + nb)})" if nb == 0 else f"s_waitcnt lgkmcnt({nblk - 1})")
            for r in range(4): a(f"v_add_f32 v{b+r}, v{b+r}, v{b+12+r}")
            for r in range(4): a(f"v_mul_f32 v{b+r}, s9, v{b+r}")
            for p in range(2): a(f"v_cvt_pk_bf16_f32 v{88+2*nb+p}, v{b+2*p}, v{b+2*p+1}")
            a(f"ds_write_b64 v{VQW}, {R(88+2*nb,2)} offset:{32*nb}")
        a("s_waitcnt lgkmcnt(0)\ns_barrier")
        stamp(7)
    OSTR = 336; OKH = 64 * OSTR
    FRD, FST = [94, 95], [60, 55]
    def fin_addr():
        a(f"""
        v_mul_u32_u24 v54, {OSTR}, v2
        v_lshl_add_u32 v54, v3, 4, v54
        s_mul_i32 s8, s77, {16*OSTR}
        s_mul_i32 s9, s76, {OKH}
        s_add_u32 s8, s8, s9
        s_add_u32 s8, s8, {L_OUT}
        v_add_u32 v54, s8, v54
        """)
    def fin_addr2(n):
        for i in range(n):
            a(f"""
            v_add_u32 v84, {512*i}, v0
            v_mul_u32_u24 v85, 6554, v84
            v_lshrrev_b32 v85, 16, v85
            v_mul_u32_u24 v86, 10, v85
            v_sub_u32 v86, v84, v86
            v_mul_u32_u24 v{FRD[i]}, {OSTR}, v85
            v_lshl_add_u32 v{FRD[i]}, v86, 5, v{FRD[i]}
            v_add_u32 v{FRD[i]}, {L_OUT}, v{FRD[i]}
            v_mul_u32_u24 v{FST[i]}, 2560, v85
            v_lshl_add_u32 v{FST[i]}, v86, 4, v{FST[i]}
            """)
    def lds_add(off, val):
        a(f"v_mov_b32 v4, {val}\ns_mov_b64 exec, 1\nds_add_u32 v{VS}, v4 offset:{off}\ns_mov_b64 exec, -1")
    def lds_wait(off, val, op, sleep):
        poll(lambda: a(f"ds_read_b32 v4, v{VS} offset:{off}"), [4], sleep, "lgkmcnt", str(val), op)
    l_cg1, l_R, l_x, l_lo1 = a.newlabel(), a.newlabel(), a.newlabel(), a.newlabel()
    br_wave("ge", 4, l_cg1)
    a(f"""
    v_lshrrev_b32 v4, 3, v1
    v_mul_u32_u24 v4, 1280, v4
    v_and_b32 v5, 7, v1
    v_xor_b32 v5, v5, v3
    v_lshl_add_u32 v{VD}, v5, 4, v4
    v_xor_b32 v{VD+1}, 64, v{VD}
    s_add_u32 s8, s67, s5
    s_and_b32 s8, s8, 3
    s_mul_i32 s10, s8, {16*1280}
    s_add_u32 s10, s10, s64
    s_lshl_b32 s11, s8, 11
    s_lshl_b32 s12, s66, 8
    s_mul_i32 s13, s66, 5120
    v_lshlrev_b32 v45, 5, v1
    """)
    tail_addr(False); gemm_addr(0); fin_addr()
    br_wave("lg", 0, l_x)
    a(f"""
    v_add_u32 v{VKR}, s11, v39
    v_xor_b32 v{VKR+1}, 64, v{VKR}
    v_bfe_u32 v4, v1, 2, 2
    v_lshl_add_u32 v4, v3, 3, v4
    v_mul_u32_u24 v4, 40, v4
    v_add_u32 v{VK4}, {L_WKV}, v4
    v_and_b32 v5, 3, v1
    v_lshl_add_u32 v{VK5}, v5, 3, v{VK4}
    """)
    for n in range(15): a(f"v_mov_b32 v{(VW2 + n) if n < 5 else (VWO + n - 5)}, -1")
    got_args()
    a(f"""
    s_cmp_ge_u32 s4, 4
    s_cselect_b32 s{S_C}, s{P_WV}, s{P_WK}
    s_cselect_b32 s{S_C+1}, s{P_WV+1}, s{P_WK+1}
    s_mov_b32 s{S_C+2}, 25600
    s_mov_b32 s{S_C+3}, 0x20000
    """)
    srd(S_A, P_X, ACT)
    KORD = E("KORD", "wx")
    if KORD == "wx":
        for g in range(5): wkv_issue(g)
        for g in range(5): x_issue(g)
        wv = [40 - 5 * g for g in range(5)]; xv = [16 - 4 * g for g in range(5)]
    else:
        for g in range(5): x_issue(g)
        for g in range(5): wkv_issue(g)
        wv = [20 - 5 * g for g in range(5)]; xv = [0] * 5
    a("s_barrier")
    stamp(1)
    srd(S_WS, P_WS, WS_END)
    got_tag()
    WPF, XT_ = 96, 72
    for g in range(5):
        a(f"s_waitcnt vmcnt({wv[g]})")
        for s_ in range(4):
            ks = 4 * g + s_; b = WPF + 8 * ks
            a(f"ds_read_b64_tr_b16 {R(b,2)}, v{VK5} offset:{ks*1280}")
            a(f"ds_read_b64_tr_b16 {R(b+2,2)}, v{VK5} offset:{ks*1280+160}")
            a(f"ds_read_b64_tr_b16 {R(b+4,2)}, v{VK4} offset:{ks*1280+32}")
            a(f"ds_read_b64_tr_b16 {R(b+6,2)}, v{VK4} offset:{ks*1280+192}")
    a(f"""
    s_lshr_b32 s12, s67, 1
    s_lshl_b32 s14, s3, 1
    s_add_u32 s12, s12, s14
    s_mul_i32 s12, s12, {TILE}
    s_add_u32 s12, s12, {WS_KV}
    s_and_b32 s10, s67, 1
    """)
    def kvpart(isv):
        for g in range(5):
            if g == 4: shift2(VKR, 65536)
            a(f"s_waitcnt vmcnt({xv[g]})")
            for s_ in range(4): a(f"ds_read_b128 {R(XT_+4*s_)}, v{VKR+(s_&1)} offset:{((2*g + (s_>>1)) % 8) * 8192}")
            for s_ in range(4):
                a(f"s_waitcnt lgkmcnt({3-s_})")
                for blk in range(2):
                    d = R(B0 + 4 * blk); c = "0" if (g == 0 and s_ == 0) else d
                    w_, x_ = R(WPF + 8 * (4 * g + s_) + 4 * blk), R(XT_ + 4 * s_)
                    a(f"v_mfma_f32_16x16x32_bf16 {d}, {x_ if isv else w_}, {w_ if isv else x_}, {c}")
    def pack(b, dst, swap):
        a(f"""
        v_cvt_pk_bf16_f32 v{dst}, v{b}, v{b+1}
        v_cvt_pk_bf16_f32 v{dst+1}, v{b+2}, v{b+3}
        v_cvt_pk_bf16_f32 v{dst+2}, v{b}, v{b+1}
        v_cvt_pk_bf16_f32 v{dst+3}, v{b+2}, v{b+3}
        {swap} v{dst}, v{dst+2}
        {swap} v{dst+1}, v{dst+3}
        """)
    l_v, l_pub = a.newlabel(), a.newlabel()
    a(f"s_cmp_ge_u32 s4, 4\ns_cbranch_scc1 {l_v}")
    a(f"""
    s_lshl_b32 s10, s10, 4
    v_add_u32 v5, s10, v2
    v_lshrrev_b32 v6, 1, v3
    v_lshl_add_u32 v6, v6, 5, v5
    v_lshlrev_b32 v6, 4, v6
    v_lshlrev_b32 v5, 3, v5
    """)
    kvpart(False)
    pack(B0, PA, "v_permlane16_swap_b32")
    a(f"""
    v_cvt_pk_bf16_f32 v{PB}, v{B1}, v{B1+1}
    v_cvt_pk_bf16_f32 v{PB+1}, v{B1+2}, v{B1+3}
    s_mov_b32 exec_lo, 0xffff
    s_mov_b32 exec_hi, 0xffff
    buffer_store_dwordx4 {R(PA)}, v6, {W}, s12 offen offset:{K1_OFF} sc1
    s_mov_b64 exec, 0xffff
    buffer_store_dwordx2 {R(PB,2)}, v5, {W}, s12 offen offset:{KR_OFF} sc1
    s_mov_b64 exec, -1
    s_branch {l_pub}
    """)
    a.label(l_v)
    a(f"""
    s_mul_i32 s10, s10, {V1_OFF - V0_OFF}
    s_add_u32 s12, s12, s10
    v_and_b32 v5, 1, v3
    v_mul_u32_u24 v5, 20, v5
    v_add_u32 v6, v5, v2
    v_lshlrev_b32 v6, 4, v6
    v_cmp_lt_u32 s[14:15], 3, v2
    v_mov_b32 v10, 0x3f803f80
    """)
    kvpart(True)
    pack(B0, PA, "v_permlane32_swap_b32")
    pack(B1, PB, "v_permlane32_swap_b32")
    a(f"s_mov_b32 exec_hi, 0")
    a(f"buffer_store_dwordx4 {R(PA)}, v6, {W}, s12 offen offset:{V0_OFF} sc1")
    for i in range(4): a(f"v_cndmask_b32 v{12+i}, v{PB+i}, v10, s[14:15]")
    a(f"""
    s_mov_b32 exec_lo, 0x00ff000f
    buffer_store_dwordx4 v[12:15], v6, {W}, s12 offen offset:{V0_OFF + 256} sc1
    s_mov_b64 exec, -1
    """)
    a.label(l_pub)
    stamp(6)
    publish_kv()
    lo_addr()
    a(f"s_branch {l_lo1}")
    a.label(l_x)
    lo_addr()
    for n in range(5): wpat(VW2 + n, 64 * n, False)
    def wo_pat():
        for n in range(5):
            a(f"""
            v_add_u32 v4, {64*n}, v1
            v_mul_u32_u24 v5, 6554, v4
            v_lshrrev_b32 v5, 16, v5
            v_mul_u32_u24 v6, 10, v5
            v_sub_u32 v6, v4, v6
            v_lshlrev_b32 v6, 4, v6
            v_lshrrev_b32 v7, 1, v5
            v_and_b32 v7, 4, v7
            v_xor_b32 v5, v5, v7
            v_lshrrev_b32 v7, 3, v5
            v_lshl_add_u32 v4, v7, 1, v5
            v_mul_u32_u24 v4, 1280, v4
            v_add_u32 v{VWO+n}, v4, v6
            v_lshrrev_b32 v7, 1, v5
            v_lshl_add_u32 v4, v7, 3, v5
            v_add_u32 v4, 8, v4
            v_mul_u32_u24 v4, 1280, v4
            v_add_u32 v{VWO+5+n}, v4, v6
            """)
    for n in range(4): a(f"v_mov_b32 v{VWO+n}, -1")
    only(3, wo_pat)
    got_args()
    srd(S_A, P_X, ACT); srd(S_WS, P_WS, WS_END); srd(S_C, P_WK, 25600)
    l = a.newlabel()
    a(f"""
    v_lshlrev_b32 v4, 7, v1
    s_sub_u32 s8, s5, 1
    s_lshl_b32 s8, s8, 13
    s_cmp_ge_u32 s2, 8
    s_cbranch_scc1 {l}
    buffer_load_dword v5, v4, {W}, s8 offen sc1
    """)
    a.label(l)
    got_tag()
    a("s_barrier")
    for g in range(5): x_issue(g)
    stamp(1)
    a("s_waitcnt vmcnt(16)")
    a.label(l_lo1)
    q_path(0)
    l_svcend = a.newlabel()
    if E("NOSVC"):
        lds_add(8, 1); a(f"s_branch {l_svcend}")
    only(3, lambda: (stage(P_AK, 4, L_SK) if E("LATEK") else None, a(f"s_waitcnt vmcnt({E('STG', '6')})"), stage(P_AV, 1, L_SV)))
    srd(S_D, P_SH, D * 8); srd(S_B, P_WO, D * D * 2)
    a(f"""
    s_setprio {E('PKVT', '2')}
    v_and_b32 v4, 7, v1
    v_lshlrev_b32 v4, 4, v4
    s_lshl_b32 s8, s5, 7
    s_lshl_b32 s9, s65, 2
    s_add_u32 s8, s8, s9
    buffer_load_dwordx4 {R(WRAW[0])}, v4, {SR_(S_D)}, s8 offen
    buffer_load_dwordx4 {R(WRAW[1])}, v4, {SR_(S_D)}, s9 offen offset:512
    s_mov_b32 s12, 0xffff0000
    """)
    def decide():
        a(f"v_mul_u32_u24 v4, {QSTR}, v1\nv_add_u32 v4, {L_Q}, v4")
        for i in range(10): a(f"ds_read_b128 {R(128+4*i)}, v4 offset:{16*i}")
        a(f"""
        s_getreg_b32 s9, hwreg(HW_REG_XCC_ID, 0, 4)
        v_xor_b32 v5, s9, v8
        v_xor_b32 v6, s9, v10
        v_or_b32 v5, v5, v6
        v_xor_b32 v6, s9, v12
        v_xor_b32 v7, s9, v14
        v_or3_b32 v5, v5, v6, v7
        v_and_b32 v5, 15, v5
        v_cmp_ne_u32 vcc, 0, v5
        s_lshl_b32 s8, s3, 1
        s_lshr_b64 s[10:11], vcc, s8
        v_max_f32 v8, v8, v10
        v_max3_f32 v8, v8, v12, v14
        s_mov_b32 s8, 0x55555555
        s_mov_b32 s9, 0x55555555
        v_cndmask_b32 v10, 0, v8, s[8:9]
        v_cndmask_b32 v11, v8, 0, s[8:9]
        """)
        for m in ("row_shr:1 row_mask:0xf", "row_shr:2 row_mask:0xf", "row_shr:4 row_mask:0xf", "row_shr:8 row_mask:0xf",
                  "row_bcast:15 row_mask:0xa", "row_bcast:31 row_mask:0xc"):
            a(f"v_max_f32_dpp v10, v10, v10 {m} bank_mask:0xf\nv_max_f32_dpp v11, v11, v11 {m} bank_mask:0xf")
        for j in range(4): a(f"v_mov_b32 v{12+j}, 0")
        a("v_readlane_b32 s14, v10, 63\nv_readlane_b32 s15, v11, 63\ns_waitcnt lgkmcnt(0)")
        for r in range(10):
            for j in range(4): a(f"v_dot2c_f32_bf16 v{12+j}, v{128+10*j+r}, v{128+10*j+r}")
        a(f"""
        v_max3_f32 v12, v12, v13, v14
        v_max_f32 v12, v12, v15
        v_mul_f32 v12, s14, v12
        v_cmp_nge_f32 vcc, {f2u(64.0*64.0)}, v12
        s_mov_b32 s8, 1
        s_cmp_lg_u64 vcc, 0
        s_cselect_b32 s8, 0x101, s8
        s_cmp_lt_u32 s15, {f2u(2.0**-28)}
        s_cselect_b32 s8, 0x101, s8
        s_cmp_gt_u32 s15, {f2u(2.0**50)}
        s_cselect_b32 s8, 0x101, s8
        s_and_b32 s10, s10, 3
        s_cselect_b32 s9, 0, {0 if E("NOFAST") else 0x200}
        s_or_b32 s8, s8, s9
        """)
        lds_add(8, "s8")
    only(PW, decide)
    l = a.newlabel()
    a(f"s_or_b32 s8, s2, s5\ns_cmp_lg_u32 s8, 0\ns_cbranch_scc1 {l}\ns_mov_b32 s8, {WS_E}")
    flag_store(8, 6)
    a.label(l)
    a("s_waitcnt vmcnt(0)")
    only(3, lambda: lds_add(0, 1))
    lds_wait(0, 1, "ne", 2)
    stamp(10)
    KRW, KU, VU, WU, KV, PK = 192, 128, 152, 170, 64, 84
    def kvt_compute(ps, pass_sgpr):
        if E("NOKVT"): return
        kr = KRW; vr = kr + 12; wr = WRAW[ps]
        for r in range(12): a(f"ds_read_b32 v{kr+r}, v{KT_S} offset:{L_SK + 160*r + 32*ps}")
        for r in range(9): a(f"ds_read_b32 v{vr+r}, v{KT_S} offset:{L_SV + 160*r + 32*ps}")
        for j in range(4):
            for c in range(2):
                src = wr + 2 * c + j // 2
                a(f"v_lshlrev_b32 v{WU+2*j+c}, 16, v{src}" if j % 2 == 0 else f"v_and_b32 v{WU+2*j+c}, s12, v{src}")
        a("s_waitcnt lgkmcnt(9)")
        for r in range(12): a(f"v_lshlrev_b32 v{KU+2*r}, 16, v{kr+r}\nv_and_b32 v{KU+2*r+1}, s12, v{kr+r}")
        for i in range(18): a(f"v_mul_f32 v{KV+i}, v{KU+i}, v{WU+6+(i&1)}")
        for j in (2, 1, 0):
            for i in range(18): a(f"v_fmac_f32 v{KV+i}, v{KU+i+2*(3-j)}, v{WU+2*j+(i&1)}")
        a("s_waitcnt lgkmcnt(0)")
        for r in range(9): a(f"v_lshlrev_b32 v{VU+2*r}, 16, v{vr+r}\nv_and_b32 v{VU+2*r+1}, s12, v{vr+r}")
        for i in range(18): a(f"v_mul_f32 v{KV+i}, v{KV+i}, v{VU+i}")
        for c in range(2):
            for cp in range(2):
                for d in range(4):
                    lo = 7 - cp - 2 * d; hi = lo - 1
                    a(f"v_cvt_pk_bf16_f32 v{PK+8*c+4*cp+d}, v{KV+2*(lo+1)+c}, v{KV+2*(hi+1)+c}")
                a(f"ds_write_b128 v{KT_W}, {R(PK+8*c+4*cp)} offset:{256*c + 16*cp}")
        for k in range(4): a(f"ds_read_b128 {R(PK+16+4*k)}, v{KT_R} offset:{1056*k}")
        a(f"""
        s_mul_i32 s8, s4, 80
        s_lshl_b32 s9, s{pass_sgpr}, 4
        s_add_u32 s8, s8, s9
        s_lshl_b32 s8, s8, 13
        s_sub_u32 s9, 31, s3
        s_lshl_b32 s9, s9, 7
        s_add_u32 s8, s8, s9
        s_add_u32 s8, s8, {WS_XT}
        """)
        for k in range(4):
            a(f"s_waitcnt lgkmcnt({3-k})")
            a(f"buffer_store_dwordx4 {R(PK+16+4*k)}, v{KT_G}, {W}, s8 offen sc1")
            if k < 3: a(f"s_add_u32 s8, s8, {4*8192}")
    def f2_flag(pass_sgpr):
        a(f"""
        s_mul_i32 s8, s4, 5
        s_add_u32 s8, s8, s{pass_sgpr}
        s_lshl_b32 s8, s8, 5
        s_add_u32 s8, s8, s3
        s_lshl_b32 s8, s8, 2
        s_add_u32 s8, s8, {WS_F2}
        """)
        flag_store(8, 6)
    kvt_compute(0, 5)
    l_conv, l_aepi, l_cdone = a.newlabel(), a.newlabel(), a.newlabel()
    br_wave("lg", 3, l_conv)
    a("s_mov_b32 s10, 4")
    kvt_compute(1, 10)
    a("s_waitcnt vmcnt(0)")
    f2_flag(10); f2_flag(5)
    a("s_setprio 0")
    stamp(8)
    def wo_loop(p0):
        a(f"s_add_u32 s8, s65, {p0*160*1280}\ns_mov_b32 s9, {p0*25600}")
        l = a.newlabel()
        a.label(l)
        for m in range(5):
            a(f"s_add_u32 s10, s8, {(40*1280*m) if m < 4 else 0}")
            for n in range(5):
                a(f"s_add_u32 m0, s9, {5120*m + 1024*n}")
                a(f"buffer_load_dwordx4 v{VWO + n + (5 if m == 4 else 0)}, {SR_(S_B)}, s10 offen lds")
            a(f"s_waitcnt vmcnt({E('WOV', '5')})")
        a(f"""
        s_add_u32 s8, s8, {160*1280}
        s_add_u32 s9, s9, 25600
        s_cmp_lt_u32 s9, {(p0+2)*25600}
        s_cbranch_scc1 {l}
        """)
    if not E("NOWO"):
        wo_loop(2)
        lds_wait(4, 3, "ne", 8)
        wo_loop(0)
    a("s_waitcnt vmcnt(0)")
    lds_add(0, 1)
    a(f"s_branch {l_aepi}")
    a.label(l_conv)
    lds_add(4, 1)
    a(f"""
    s_lshl_b32 s12, s5, 8
    s_add_u32 s12, s12, s2              ; channel
    s_min_u32 s13, s12, 639
    s_lshl_b32 s8, s13, 12
    s_add_u32 s{S_A}, s{P_SK}, s8
    s_addc_u32 s{S_A+1}, s{P_SK+1}, 0
    s_mov_b32 s{S_A+2}, 4096
    s_lshl_b32 s8, s13, 13
    s_add_u32 s8, s8, {WS_XT}
    s_add_u32 s{S_B}, s{P_WS}, s8
    s_addc_u32 s{S_B+1}, s{P_WS+1}, 0
    s_mov_b32 s{S_B+2}, 4096
    s_add_u32 s{S_C}, s{S_B}, 4096
    s_addc_u32 s{S_C+1}, s{S_B+1}, 0
    s_mov_b32 s{S_C+2}, 4096
    s_load_dword s14, s[{S_A}:{S_A+1}], 0
    s_lshr_b32 s8, s13, 1
    s_lshl_b32 s8, s8, 2
    s_load_dword s15, s[{P_SD}:{P_SD+1}], s8
    s_mul_i32 s8, s13, 52429
    s_lshr_b32 s8, s8, 22
    s_mul_i32 s9, s8, 80
    s_sub_u32 s9, s13, s9
    s_lshr_b32 s9, s9, 4
    s_mul_i32 s8, s8, 5
    s_add_u32 s8, s8, s9
    s_lshl_b32 s13, s8, 7
    s_add_u32 s13, s13, {WS_F2}
    s_waitcnt vmcnt(0)
    """)
    f2_flag(5)
    a(f"s_waitcnt lgkmcnt(0)\ns_cmp_ge_u32 s12, 640\ns_cbranch_scc1 {l_cdone}")
    if E("NOCONV"): a(f"s_branch {l_cdone}")
    a(f"s_mov_b32 m0, s68\nbuffer_load_dwordx4 v{V_HD}, {SR_(S_A)}, 0 offen lds")
    a(f"s_add_u32 m0, s68, 1024\ns_movk_i32 s8, 960")
    for i in range(4): a(f"buffer_load_dwordx4 v{AK1}, {SR_(S_A)}, s8 offen offset:{1024*i} lds")
    for i in range(4): a(f"v_mov_b32 v{8+i}, 0")
    for t in range(4): a(f"v_mfma_f32_32x32x16_bf16 {R(O+16*t,16)}, {R(8)}, {R(8)}, 0")
    a(f"""
    s_bitcmp1_b32 s12, 0
    s_cselect_b32 s8, 0, 16
    s_lshl_b32 s15, s15, s8
    s_and_b32 s15, s15, 0xffff0000
    s_lshl_b32 s8, s14, 16
    v_mov_b32 v5, s8
    v_add_f32 v5, s15, v5
    v_cvt_pk_bf16_f32 v5, v5, v5
    v_mov_b32 v6, s68
    s_waitcnt vmcnt(0)
    ds_write_b16 v6, v5 offset:64
    """)
    lds_wait(16, int(E("PF2", "7")), "lt", 8)
    poll(lambda: a(f"buffer_load_dword v4, v{V_F2}, {W}, s13 offen sc1"), [4], 16)
    stamp(8)
    a("s_movk_i32 s8, 4096")
    for cl_ in range(2):
        a(f"s_add_u32 m0, s68, {5120 + 5120*cl_}")
        for i in range(4): a(f"buffer_load_dwordx4 v{AK1}, {SR_(S_C if cl_ else S_B)}, 0 offen offset:{1024*i} sc1 lds")
        a(f"s_add_u32 m0, s68, {5120 + 5120*cl_ + 4096}")
        a(f"buffer_load_dwordx4 v{AK1}, {SR_(S_C if cl_ else S_B)}, s8 offen sc1 lds")
    a(f"s_waitcnt vmcnt(0)\ns_setprio {E('PCONV', '0')}")
    F = SR
    def c_reads(sp):
        j, e = sp >> 1, sp & 1; b = F + 32 * (sp & 1)
        for u in range(4):
            o = (4 + 32 * e + 128 * j) // 4
            a(f"ds_read2_b32 {R(b+4*u,2)}, v{VA+u} offset0:{o} offset1:{o+1}")
            a(f"ds_read2_b32 {R(b+4*u+2,2)}, v{VA+u} offset0:{o+2} offset1:{o+3}")
            a(f"ds_read_b128 {R(b+16+4*u)}, v{V_B} offset:{5120 + 5120*e + 3072 - 1024*u + 128*j}")
    c_reads(0)
    for sp in range(16):
        if sp < 15 and not (E("CNORD") and sp > 0): c_reads(sp + 1)
        a(f"s_waitcnt lgkmcnt({12 if sp < 15 else 0})")
        b = F + 32 * (sp & 1)
        for u in range(4):
            for nb in range(u, 4):
                d = R(O + 16 * nb, 16)
                if E("CNOM"): a("s_sleep 1")
                elif E("CZERO"): a(f"v_mfma_f32_32x32x16_bf16 {d}, {R(8)}, {R(8)}, {d}")
                else: a(f"v_mfma_f32_32x32x16_bf16 {d}, {R(b+4*u)}, {R(b+16+4*(nb-u))}, {d}")
    a("s_setprio 2")
    a(f"ds_write_b128 v{V_ZW}, {R(8)}\nds_write_b128 v{V_ZW}, {R(8)} offset:4160")
    for nb in range(4):
        for q in range(2): a(f"ds_write_b128 v{V_ZW}, {R(O+16*nb+8+4*q)} offset:{4160*q + 512*nb + 32}")
    for nb in range(4):
        for q in range(2): a(f"ds_read_b128 {R(F+8*nb+4*q)}, v{V_ZW} offset:{4160*q + 512*nb}")
    a(f"s_lshl_b32 s8, s12, 12\ns_add_u32 s8, s8, {WS_Z}")
    for nb in range(4):
        a(f"s_waitcnt lgkmcnt({6-2*nb})")
        for r in range(8): a(f"v_add_f32 v{O+16*nb+r}, v{O+16*nb+r}, v{F+8*nb+r}")
        for k in range(4): a(f"v_cvt_pk_bf16_f32 v{F+32+4*nb+k}, v{O+16*nb+2*k}, v{O+16*nb+2*k+1}")
        a(f"buffer_store_dwordx4 {R(F+32+4*nb)}, v{V_ZS}, {W}, s8 offen offset:{1024*nb} sc1")
    a(f"s_lshl_b32 s8, s12, 2\ns_add_u32 s8, s8, {WS_F3}\ns_waitcnt vmcnt(0)")
    flag_store(8, 6)
    a.label(l_cdone)
    lds_add(8, 1)
    a.label(l_aepi)
    stamp(9)
    a("s_setprio 2")
    XF, AF, AC = 8, 96, 64
    def o_reads(ks):
        b = AF + 20 * (ks % 8)
        for nb in range(5):
            for z in range(2): a(f"ds_read_b64_tr_b16 {R(b+4*nb+2*z,2)}, v{VT+z} offset:{ks*5120 + nb*32}")
    QRW, ZR, U = 8, 24, 64
    X40 = "s_mov_b32 exec_lo, -1\ns_mov_b32 exec_hi, 0xff"
    srd(S_A, P_AQ, ACT)
    a(X40)
    for e in range(8):
        a(f"s_movk_i32 s8, {(16*(e>>2) + 2*(e&3))*1280}")
        a(f"buffer_load_dwordx2 {R(QRW+2*e,2)}, v{AE}, {SR_(S_A)}, s8 offen")
    a(f"""
    s_mov_b64 exec, -1
    buffer_load_dwordx4 {R(64)}, v{PV+2}, {W}, s72 offen sc1
    buffer_load_dwordx4 {R(64)}, v{PV+2}, {W}, s72 offen offset:1024 sc1
    buffer_load_dwordx2 {R(64,2)}, v{PV+3}, {W}, s73 offen sc1
    buffer_load_dwordx2 {R(64,2)}, v{PV+3}, {W}, s73 offen offset:256 sc1
    v_mov_b32 v4, 0
    buffer_load_dword v64, v4, {W}, s74 offen sc1
    """)
    lds_wait(0, 2, "ne", 16)
    for ks in range(8): o_reads(ks)
    srd(S_C, P_OUT, 2 * ACT)
    def unp(dst, src, hi): a(f"v_and_b32 v{dst}, s14, v{src}" if hi else f"v_lshlrev_b32 v{dst}, 16, v{src}")
    def z_fetch(once):
        a(f"""
        s_lshl_b32 s11, s3, 7
        s_lshl_b32 s8, s5, 5
        s_add_u32 s11, s11, s8
        s_add_u32 s11, s11, {WS_Z}
        s_mov_b32 s14, {WS_F3}
        {X40}
        """)
        l = a.newlabel()
        poll(lambda: a(f"buffer_load_dwordx4 {R(40)}, v{AE+2}, {W}, s14 offen sc1"), [40, 41, 42, 43], 4, fail=l if once else None)
        stamp(11)
        for i in range(4):
            a(f"buffer_load_dwordx4 {R(ZR+4*i)}, v{AE+3}, {W}, s11 offen sc1")
            if i < 3: a("s_add_u32 s11, s11, 4096")
        a("s_mov_b32 s70, 1\ns_mov_b32 s14, 0xffff0000\ns_waitcnt vmcnt(0)")
        for e in range(8):
            for i in range(4):
                unp(U + i, QRW + 2 * e + i // 2, i % 2); unp(U + 4 + i, ZR + 4 * i + e // 2, e % 2)
            for i in range(4): a(f"v_mul_f32 v{U+i}, v{U+i}, v{U+4+i}")
            for i in (0, 2): a(f"v_cvt_pk_bf16_f32 v{QRW+2*e+i//2}, v{U+i}, v{U+i+1}")
            a(f"s_mov_b32 s8, {(16*(e>>2) + 2*(e&3))*2560}")
            a(f"buffer_store_dwordx2 {R(QRW+2*e,2)}, v{AE+1}, {SR_(S_C)}, s8 offen{OSFX}")
        a.label(l)
        a("s_mov_b64 exec, -1")
    if not E("NOAEPI"):
        a("s_mov_b32 s70, 0")
        lds_wait(16, 1, "lt", 8)
        a(f"s_setprio {E('PAE', '2')}")
        l_try, l_giveup = a.newlabel(), a.newlabel()
        a.label(l_try)
        a(f"s_sleep {E('ZS', '16')}")
        z_fetch(True)
        a(f"""
        s_cmp_eq_u32 s70, 1
        s_cbranch_scc1 {l_giveup}
        ds_read_b32 v4, v{VS} offset:16
        s_waitcnt lgkmcnt(0)
        v_readfirstlane_b32 s8, v4
        s_cmp_lg_u32 s8, 0
        s_cbranch_scc1 {l_try}
        """)
        a.label(l_giveup)
    a.label(l_svcend)
    fin_addr2(2)
    a("s_waitcnt vmcnt(0) lgkmcnt(0)")
    stamp(12)
    a("s_barrier")
    a(f"ds_read_b32 v5, v{VS} offset:8")
    OWN = O
    for j in range(2):
        for r in range(3): a(f"ds_read_b128 {R(OWN+12*j+4*r)}, v{PV+j} offset:{1024*r}")
    a(f"s_branch {l_R}")
    a.label(l_cg1)
    for n in range(5): wpat(VD + n, 64 * n, True)
    a(f"""
    s_sub_u32 s8, s5, 4
    s_mul_i32 s11, s8, 5120
    s_add_u32 s11, s11, {L_W}
    s_mul_i32 s10, s8, {32*1280}
    s_add_u32 s10, s10, s65
    s_mul_i32 s12, s66, {128*1280}
    """)
    tail_addr(True); hi_addr(); gemm_addr(1); fin_addr(); a('v_mov_b32 v55, -1\nv_mov_b32 v60, -1'); a(f"v_mov_b32 v{AE+1}, -1\nv_mov_b32 v{AE+2}, -1\nv_mov_b32 v{AE+3}, -1")
    got_args()
    srd(S_B, P_WQ, D * D * 2); srd(S_WS, P_WS, WS_END)
    got_tag()
    a(f"s_setprio {E('PHI', '0')}\ns_barrier")
    w_issue(0)
    stamp(1)
    a(f"s_waitcnt vmcnt({E('W1', '2')})"); w_issue(1); a("s_waitcnt vmcnt(5)")
    l = a.newlabel(); br_wave("eq", 7, l); w_issue(2); a.label(l)
    q_path(1)
    for i in range(4): a(f"ds_read2_b64 {R(QM+4*i)}, v{QA+i} offset0:0 offset1:1")
    a(f"ds_read_b64 {R(QR,2)}, v{QA+4} offset:32\nds_read_b64 {R(QR+2,2)}, v{QA+5} offset:32")
    a(f"s_setprio 1\ns_movk_i32 s13, 8")
    for t in range(4): a(f"v_mfma_f32_32x32x16_bf16 {R(O+16*t,16)}, {R(KBH[-1]+10)}, {R(KBH[-1]+10)}, 0")
    l_fb, l_after = a.newlabel(), a.newlabel()
    def qk(t, kb, usec):
        return f"v_mfma_f32_32x32x16_bf16 {R(SR+16*t,16)}, {R(kb)}, {R(QM+4*t)}, {R(C+16*t,16) if usec else '0'}"
    def qr(p, kb):
        d = R(SR + 32 * p, 32)
        if E("QR8"): return "\n".join(f"v_mfma_f32_32x32x8_bf16 {R(SR+32*p+16*i,16)}, {R(kb+4,2)}, {R(QR+2*p,2)}, {R(SR+32*p+16*i,16)}" for i in range(2))
        if E("NOQR"): return "s_nop 0\ns_nop 0"
        return f"v_mfma_f32_32x32x4_2b_bf16 {d}, {R(kb+4,2)}, {R(QR+2*p,2)}, {d}"
    def pv(t, hf, vb):
        d = R(O + 16 * t, 16)
        if E("PVSWAP"): return f"v_mfma_f32_32x32x16_bf16 {d}, {R(SR+16*t+8*hf)}, {R(vb+6+4*hf)}, {d}"
        return f"v_mfma_f32_32x32x16_bf16 {d}, {R(vb+6+4*hf)}, {R(SR+16*t+8*hf)}, {d}"
    MP = [int(x) for x in E("MP", "16,8,12,20,26,35,4").split(",")]
    DEFER = MP[6] < 40
    LP = [int(x) for x in E("LP", "12,36,60,84").split(",")]
    def phase(p, kq_, vcur, vprev, extra, usec):
        ta, tb = 2 * p, 2 * p + 1
        na, nb_ = 2 * (1 - p), 2 * (1 - p) + 1
        base, pbase = SR + 32 * p, SR + 32 * (1 - p)
        def cv(b, j):
            bb = b + 8 * (j // 4); k = j % 4
            return f"v_cvt_pk_bf16_f32 v{bb+k}, v{bb+2*k}, v{bb+2*k+1}"
        valu = []
        for grp in range(8):
            for i in range(4): valu.append(f"v_exp_f32 v{base+4*grp+i}, v{base+4*grp+i}")
            for j in (2 * grp - 2, 2 * grp - 1): valu.append(cv(base, j) if j >= 0 else cv(pbase, 16 + j))
        ins = dict(zip(MP, [[qk(na, kq_, usec)], [pv(nb_, 1, vprev)], [qk(nb_, kq_, usec)], [pv(ta, 0, vcur)],
               [qr(1 - p, kq_)], [pv(ta, 1, vcur)], [pv(nb_, 0, vprev) if DEFER else pv(tb, 0, vcur)]]))
        for k, v in extra.items():
            if k == "wait": ins[MP[3]] = v + ins[MP[3]]
            else: ins[k] = ins.get(k, []) + v
        for i, x in enumerate(valu):
            for y in ins.get(i, []): a(y)
            a(x)
        return [cv(base, 14), cv(base, 15)]
    def main_loop(kb, usec):
        nb = len(kb)
        a(f"s_waitcnt vmcnt({4 if E('LATEP') else 4*(nb-1)}) lgkmcnt(0)")
        stamp(8); rstamp(14)
        a(qk(0, kb[0], usec)); a(qk(1, kb[0], usec))
        for i in range(8): a(f"v_mov_b32 v{SR+56+i}, 0")
        for i in range(4): a(f"v_mov_b32 v{SR+48+i}, 0\nv_mov_b32 v{kb[-1]+6+i}, 0")
        a(qr(0, kb[0]))
        if usec or not E("LATEP"): a("s_nop 15\ns_nop 3")
        else: kv_prologue(kb, 1); a("s_nop 9")
        l_loop = a.newlabel()
        a(".p2align 6")
        a.label(l_loop)
        n0 = len(a.lines)
        for par in range(nb):
            cur, nxt, prv = kb[par], kb[(par + 1) % nb], kb[par - 1]
            lds_ = [f"buffer_load_dwordx4 {R(prv+6)}, v{AV}, {W}, s11 offen offset:{V0_OFF}{KVSC}",
                    f"buffer_load_dwordx4 {R(prv+10)}, v{AV}, {W}, s11 offen offset:{V1_OFF}{KVSC}",
                    f"buffer_load_dwordx4 {R(cur)}, v{AK1}, {W}, s11 offen offset:{TILE + K1_OFF}{KVSC}",
                    f"buffer_load_dwordx2 {R(cur+4,2)}, v{AKR}, {W}, s11 offen offset:{TILE + KR_OFF}{KVSC}"]
            ex = [{"wait": [f"s_waitcnt vmcnt({4*(nb-2) + sum(1 for p_ in LP if p_ < MP[3])})"]}, {}]
            for p_, l_ in zip(LP, lds_): ex[p_ // 48].setdefault(p_ % 48, []).append(l_)
            pm = max(LP) + 3
            ex[pm // 48].setdefault(pm % 48, []).append(f"s_add_u32 s11, s11, {TILE}")
            if par == nb - 1:
                ex[1].setdefault(22, []).append("s_sub_u32 s13, s13, 1")
                if not usec: ex[1].setdefault(24, []).extend(["v_mov_b32 v4, s13", f"ds_write_b32 v{VS}, v4 offset:16", f"ds_read_b32 v5, v{VS} offset:8"])
                ex[1].setdefault(45, []).append("s_cmp_lg_u32 s13, 0")
            phase(0, cur, cur, prv, ex[0], usec)
            tail = phase(1, nxt, cur, cur, ex[1], usec)
        if not E("NOALIGN"):
            par_ = 0; last4 = None
            for i in range(n0, len(a.lines)):
                t = a.lines[i]
                small = t.startswith(("v_exp_f32 ", "v_mov_b32 ", "s_waitcnt", "s_sub_u32", "s_cmp_"))
                if small:
                    par_ ^= 1
                    if t.startswith("v_"): last4 = i
                elif par_:
                    assert last4 is not None and all(a.lines[j].startswith(("v_exp_f32 ", "v_mov_b32 ", "s_waitcnt", "s_sub_u32", "s_cmp_")) for j in range(last4, i)), a.lines[last4:i+1]
                    a.lines[last4] = a.lines[last4].replace(" ", "_e64 ", 1); par_ = 0
        a(f"s_cbranch_scc1 {l_loop}")
        if DEFER: a(pv(3, 0, kb[-1]))
        for x in tail: a(x)
        a(pv(3, 1, kb[-1]))
    main_loop(KBH, False)
    l_w, l_ok = a.newlabel(), a.newlabel()
    a(f"s_mov_b32 s96, {SPIN}")
    a.label(l_w)
    a(f"""
    s_waitcnt lgkmcnt(0)
    v_readfirstlane_b32 s8, v5
    s_and_b32 s9, s8, 0xff
    s_cmp_eq_u32 s9, 4
    s_cbranch_scc1 {l_ok}
    s_sleep 2
    ds_read_b32 v5, v{VS} offset:8
    s_sub_u32 s96, s96, 1
    s_cmp_lg_u32 s96, 0
    s_cbranch_scc1 {l_w}
    """)
    a.label(l_ok)
    a(f"s_bitcmp1_b32 s8, 8\ns_cbranch_scc1 {l_fb}")
    a.label(l_after)
    stamp(9); rstamp(15)
    for i in (1, 2, 3):
        for r in range(3): a(f"ds_write_b128 v{PV}, {R(O+16*i+4*r)} offset:{3072*(i-1) + 1024*r}")
    a("s_waitcnt lgkmcnt(0)")
    stamp(12)
    a("s_barrier")
    for r in range(3): a(f"ds_read_b128 {R(OWN+12+4*r)}, v{PV+1} offset:{1024*r}")
    a.label(l_R)
    a("s_waitcnt lgkmcnt(0)\nv_readfirstlane_b32 s71, v5")
    for r in (10, 8, 9, 0, 1, 2, 3, 4, 5, 6, 7): a(f"v_add_f32 v{OWN+r}, v{OWN+r}, v{OWN+12+r}")
    a(f"v_rcp_f32 v{OWN+10}, v{OWN+10}")
    for i in (8, 9, 0, 1, 2, 3, 4, 5, 6, 7): a(f"v_mul_f32 v{OWN+i}, v{OWN+i}, v{OWN+10}")
    PO = 88
    a(f"v_cvt_pk_bf16_f32 v{PO+4}, v{OWN+8}, v{OWN+9}\nv_cvt_pk_bf16_f32 v{PO+5}, v{OWN+8}, v{OWN+9}")
    for i in range(4): a(f"v_cvt_pk_bf16_f32 v{PO+i}, v{OWN+2*i}, v{OWN+2*i+1}")
    a(f"""
    v_permlane32_swap_b32 v{PO+4}, v{PO+5}
    s_waitcnt vmcnt(0)
    s_bitcmp1_b32 s71, 9
    s_cbranch_scc1 L_fast1
    buffer_store_dwordx4 {R(PO)}, v{PV+2}, {W}, s72 offen sc1
    s_mov_b32 exec_hi, 0
    buffer_store_dwordx2 {R(PO+4,2)}, v{PV+3}, {W}, s73 offen sc1
    s_branch L_fast2
    L_fast1:
    buffer_store_dwordx4 {R(PO)}, v{PV+2}, {W}, s72 offen{E('FSFX', ' nt')}
    s_mov_b32 exec_hi, 0
    buffer_store_dwordx2 {R(PO+4,2)}, v{PV+3}, {W}, s73 offen{E('FSFX', ' nt')}
    L_fast2:
    s_mov_b32 exec_hi, -1
    """)
    tstamp(1)
    srd(S_C, P_OUT, 2 * ACT)
    a(f"""
    s_lshl_b32 s12, s3, 1
    s_lshr_b32 s8, s77, 1
    s_add_u32 s12, s12, s8
    s_lshl_b32 s12, s12, 1
    s_add_u32 s12, s12, s76
    s_lshl_b32 s12, s12, 6
    s_add_u32 s12, s12, {WS_F4}
    v_lshl_add_u32 v4, v2, 2, s12
    s_lshl_b32 s8, s3, 8
    s_lshl_b32 s9, s4, 4
    s_add_u32 s8, s8, s9
    s_add_u32 s8, s8, {WS_F4}
    v_and_b32 v5, 3, v1
    v_lshl_add_u32 v5, v5, 2, s8
    v_bfe_u32 v6, v1, 2, 1
    v_lshl_add_u32 v5, v6, 7, v5
    s_mov_b32 s8, 0xffff0000
    s_mov_b32 s9, 0
    v_cndmask_b32 v4, v4, v5, s[8:9]
    v_lshlrev_b32 v5, 8, v3
    v_lshl_add_u32 v5, v2, 3, v5
    s_lshl_b32 s13, s3, 2
    s_add_u32 s13, s13, s77
    s_mul_i32 s13, s13, {OPB}
    s_add_u32 s13, s13, {WS_O}
    s_lshl_b32 s8, s76, 11
    s_add_u32 s15, s13, s8
    s_add_u32 s15, s15, 16384
    s_lshl_b32 s8, s76, 13
    s_add_u32 s13, s13, s8
    s_add_u32 s10, s13, 4096
    v_mov_b32 v6, s{TAG}
    v_mov_b32 v7, 0
    """)
    l = a.newlabel()
    br_wave("lt", 4, l)
    for ks in range(2): o_reads(ks)
    a.label(l)
    tstamp(2)
    a(f"""
    s_waitcnt vmcnt(0)
    s_mov_b64 exec, 1
    s_bitcmp1_b32 s71, 9
    s_cbranch_scc1 L_fast3
    buffer_store_dword v6, v7, {W}, s74 offen sc1
    s_branch L_fast4
    L_fast3:
    buffer_store_dword v6, v7, {W}, s74 offen
    L_fast4:
    s_mov_b64 exec, -1
    """)
    tstamp(3)
    if E("XBAR"): a("s_barrier")
    l, l2 = a.newlabel(), a.newlabel()
    br_wave("lt", 4, l)
    for ks in range(2, 6): o_reads(ks)
    a(f"s_branch {l2}")
    a.label(l)
    if not E("NOAEPI") and not E("NOSVC"):
        l3 = a.newlabel()
        a(f"s_cmp_eq_u32 s70, 1\ns_cbranch_scc1 {l3}")
        z_fetch(False)
        a.label(l3)
    a.label(l2)
    a(f"s_lshl_b32 s14, s64, 1\ns_add_u32 s14, s14, s65\ns_add_u32 s14, s14, 1280")
    tstamp(4)
    poll(lambda: a(f"buffer_load_dword v6, v4, {W}, 0 offen sc1"), [6], 1)
    tstamp(5)
    nld = []
    for ks in range(10):
        pr_, m = ks // 5, ks % 5
        if m < 4:
            a(f"buffer_load_dwordx4 {R(XF+4*ks)}, v{AK1}, {W}, s{10 if pr_ else 13} offen offset:{1024*m} sc1"); nld.append(1)
        else:
            for z in range(2): a(f"buffer_load_dwordx2 {R(XF+4*ks+2*z,2)}, v5, {W}, s15 offen offset:{1024*pr_ + 128*z} sc1")
            nld.append(2)
    l = a.newlabel()
    br_wave("lt", 4, l)
    for ks in range(6, 8): o_reads(ks)
    fin_addr2(1)
    a.label(l)
    tstamp(6)
    for ks in range(10):
        a(f"s_waitcnt vmcnt({sum(nld[ks+1:])})" + {0: " lgkmcnt(15)", 6: " lgkmcnt(15)", 8: " lgkmcnt(10)", 9: " lgkmcnt(0)"}.get(ks, ""))
        b = AF + 20 * (ks % 8)
        for nb in range(5):
            d = R(AC + 4 * nb)
            a(f"v_mfma_f32_16x16x32_bf16 {d}, {R(b+4*nb)}, {R(XF+4*ks)}, {'0' if ks == 0 else d}")
        if ks < 2: o_reads(8 + ks)
    tstamp(7)
    for nb in range(5): a(f"ds_write_b128 v54, {R(AC+4*nb)} offset:{64*nb}")
    a("s_waitcnt lgkmcnt(0)\ns_barrier")
    def fin_rd(i):
        b = 96 + 16 * i
        a(f"ds_read_b128 {R(b)}, v{FRD[i]}\nds_read_b128 {R(b+4)}, v{FRD[i]} offset:16")
        a(f"ds_read_b128 {R(b+8)}, v{FRD[i]} offset:{OKH}\nds_read_b128 {R(b+12)}, v{FRD[i]} offset:{OKH+16}")
    def fin_st(i):
        b = 96 + 16 * i
        for r in range(8): a(f"v_add_f32 v{b+r}, v{b+r}, v{b+8+r}")
        for r in range(4): a(f"v_cvt_pk_bf16_f32 v{b+8+r}, v{b+2*r}, v{b+2*r+1}")
        a(f"buffer_store_dwordx4 {R(b+8)}, v{FST[i]}, {SR_(S_C)}, s14 offen{OSFX}")
    l = a.newlabel()
    fin_rd(0)
    br_wave("ge", 2, l)
    fin_rd(1); a("s_waitcnt lgkmcnt(0)"); fin_st(1)
    a.label(l)
    a("s_waitcnt lgkmcnt(0)"); fin_st(0)
    a.label("L_fin")
    if STAMP:
        a(f"""
        s_memtime s[98:99]
        s_waitcnt lgkmcnt(0)
        s_mov_b32 s96, s98
        s_memrealtime s[98:99]
        s_waitcnt lgkmcnt(0)
        s_mov_b32 s97, s98
        s_add_u32 s72, s{P_WS}, {WS_STAMP}
        s_addc_u32 s73, s{P_WS+1}, 0
        s_mov_b32 s74, 0x40000
        s_mov_b32 s75, 0x20000
        s_lshl_b32 s76, s2, 3
        s_add_u32 s76, s76, s5
        s_lshl_b32 s76, s76, 7
        v_mov_b32 v2, 0
        """)
        for i in range(18): a(f"v_mov_b32 v3, s{80+i}\nbuffer_store_dword v3, v2, s[72:75], s76 offen offset:{4*i}")
    a.label("L_exit")
    a("s_endpgm")
    a.label(l_fb)
    FB = [28, 240]
    FB = [28, 114]
    a("s_waitcnt vmcnt(0)\ns_nop 15\ns_nop 3")
    raise_fb = True
    TB, M = 28, 36
    for j in range(4): a(f"v_mov_b32 v{M+j}, 0xff800000")
    a(f"s_mov_b32 s11, {WS_KV}\ns_mov_b32 s14, 64\ns_mov_b32 s13, 16")
    l_f = a.newlabel()
    a.label(l_f)
    loadK(TB, 0)
    a("s_waitcnt vmcnt(0)")
    for t in range(4): a(qk(t, TB, False))
    a(qr(0, TB)); a(qr(1, TB))
    for t in range(4):
        for i in range(8): a(f"v_max3_f32 v{M+t}, v{M+t}, v{SR+16*t+2*i}, v{SR+16*t+2*i+1}")
    a(f"s_add_u32 s11, s11, {TILE}\ns_sub_u32 s14, s14, 1\ns_cmp_lg_u32 s14, 0\ns_cbranch_scc1 {l_f}")
    for t in range(4):
        a(f"v_mov_b32 v{M+4}, v{M+t}\nv_permlane32_swap_b32 v{M+t}, v{M+4}\nv_max_f32 v{M+4}, v{M+4}, v{M+t}")
        for i in range(16): a(f"v_sub_f32 v{C+16*t+i}, 0, v{M+4}")
    a(f"v_mov_b32 v6, v{VT}\nv_mov_b32 v7, v{VT+1}")
    for i in range(4): a(f"v_mov_b32 v{52+i}, 0")
    for t in range(4): a(f"v_mfma_f32_32x32x16_bf16 {R(O+16*t,16)}, {R(52)}, {R(52)}, 0")
    kv_prologue([28, 42])
    main_loop([28, 42], True)
    a(f"s_waitcnt vmcnt(0)\nv_mov_b32 v{VT}, v6\nv_mov_b32 v{VT+1}, v7"); fin_addr(); a(f"s_nop 7\ns_nop 7\ns_branch {l_after}")
    return a.finalize(verbose=bool(E("VERB")))

def build():
    hdr = open(f"cdna_kernels/{NAME}.s.ref").read().split("; @launch")[0]
    k = NAME + "_kernel"
    body = build_kernel()
    return hdr + f"""; @launch grid=(256,1,1) block=(512,1,1) lds=163840
.amdgcn_target "amdgcn-amd-amdhsa--gfx950"
.text
.globl {k}
.p2align 8
.type {k},@function
{k}:
{body}.section .rodata,"a"
.p2align 6
.amdhsa_kernel {k}
  .amdhsa_next_free_vgpr 256
  .amdhsa_next_free_sgpr 100
  .amdhsa_accum_offset 256
  .amdhsa_group_segment_fixed_size 0
  .amdhsa_kernarg_size 112
  .amdhsa_user_sgpr_count 2
  .amdhsa_user_sgpr_kernarg_segment_ptr 1
  .amdhsa_system_sgpr_workgroup_id_x 1
.end_amdhsa_kernel
"""

if __name__ == "__main__":
    path = sys.argv[1] if len(sys.argv) > 1 else "fused7.s"
    open(path, "w").write(build())
    print("wrote", path)
```

```python
import sys, math, struct, os
sys.path.insert(0, "gen")
from asmlib import Asm

NAME = "concat_heads__ssm_conv_h3__grouped_kv_mqa__prompt"
S, D, H, DH = 2048, 640, 32, 20
ACT = S * D * 2
WS_E, WS_F1, WS_F2, WS_F3, WS_F4 = 0, 1024, 4096, 12288, 16384
WS_KV = 32768
TILE = 2816
KR_OFF, K1_OFF, V0_OFF, V1_OFF = 0, 256, 1280, 2048
WS_O = 0x40000
OPB = 20480
WS_Z = WS_O + ACT
WS_XT = WS_Z + ACT
WS_END = WS_XT + 2 * ACT
WS_STAMP = 0x2000000
QSCALE = (DH ** -0.5) * math.log2(math.e)
E = os.environ.get
STAMP = E("STAMP", "0") == "1"
TAILST = E("TAILST")
SPIN = 1 << 17
OSFX = " " + E("OSFX", "nt")
KVSC = " sc1"
KVL = " sc1" if E("KVSC1") else ""

def f2u(x): return struct.unpack("<I", struct.pack("<f", x))[0]
P_AQ, P_AK, P_AV, P_SH, P_SK, P_SD, P_X, P_WQ, P_WK, P_WV, P_WO, P_OUT, P_DBG, P_WS = [16 + 2 * i for i in range(14)]
S_WS, S_A, S_B, S_C, S_D = 44, 48, 52, 56, 60
TAG = 78
def R(b, n=4): return f"v[{b}:{b+n-1}]"
def SR_(b): return f"s[{b}:{b+3}]"
W = SR_(S_WS)

L_W = 81920; GSLOT = 20480
L_WKV = 163840 - 25600
L_Q = 102400; QSTR = 176
L_STAT = L_Q + 64 * QSTR
L_RED = 113920
L_CONV = 113920; CVS = 15360
L_OUT = 102400
L_SK, L_SV, L_KT = 0, 16384, 27648
WO_LOW = 45

a = Asm()
def srd(r, ptr, nbytes, off=0):
    if off:
        a(f"s_add_u32 s{r}, s{ptr}, {off}\ns_addc_u32 s{r+1}, s{ptr+1}, 0")
    else:
        a(f"s_mov_b32 s{r}, s{ptr}\ns_mov_b32 s{r+1}, s{ptr+1}")
    a(f"s_mov_b32 s{r+2}, {nbytes}\ns_mov_b32 s{r+3}, 0x20000")
def _st(i, op="s_memtime"): a(f"{op} s[98:99]\ns_waitcnt lgkmcnt(0)\ns_mov_b32 s{80+i}, s98")
def stamp(i):
    if STAMP and not (TAILST and 1 <= i <= 7): _st(i)
def tstamp(i):
    if STAMP and TAILST: _st(i)
def rstamp(i):
    if STAMP: _st(i, "s_memrealtime")
def br_wave(op, n, lab): a(f"s_cmp_{op}_u32 s5, {n}\ns_cbranch_scc1 {lab}")
def poll(load_fn, tagregs, sleep=2, cnt="vmcnt", val=None, op="ne", skipfirst=False, fail=None):
    val = val or f"s{TAG}"
    l, d = a.newlabel(), a.newlabel()
    a(f"s_mov_b32 s96, {SPIN}")
    if skipfirst:
        l0 = a.newlabel(); a(f"s_branch {l0}")
    a.label(l)
    load_fn()
    if skipfirst: a.label(l0)
    a(f"s_waitcnt {cnt}(0)")
    for i, t in enumerate(tagregs):
        if i == 0: a(f"v_cmp_{op}_u32 s[8:9], {val}, v{t}")
        else: a(f"v_cmp_ne_u32 vcc, {val}, v{t}\ns_or_b64 s[8:9], s[8:9], vcc")
    if fail:
        a(f"s_cmp_eq_u64 s[8:9], 0\ns_cbranch_scc0 {fail}"); return
    a(f"""
    s_cmp_eq_u64 s[8:9], 0
    s_cbranch_scc1 {d}
    s_sleep {sleep}
    s_sub_u32 s96, s96, 1
    s_cmp_lg_u32 s96, 0
    s_cbranch_scc1 {l}
    """)
    a.label(d)
def flag_store(soff_sgpr, vt):
    a(f"v_mov_b32 v{vt}, s{TAG}\nv_mov_b32 v{vt+1}, 0")
    a(f"s_mov_b64 exec, 1")
    a(f"buffer_store_dword v{vt}, v{vt+1}, {W}, s{soff_sgpr} offen sc1")
    a(f"s_mov_b64 exec, -1")
def wpat(dst, qbase, x4):
    a(f"""
    v_add_u32 v4, {qbase}, v1
    v_mul_u32_u24 v5, 6554, v4
    v_lshrrev_b32 v5, 16, v5
    v_mul_u32_u24 v6, 10, v5
    v_sub_u32 v6, v4, v6
    """)
    if x4: a("v_lshrrev_b32 v7, 1, v5\nv_and_b32 v7, 4, v7\nv_xor_b32 v5, v5, v7")
    a(f"v_mul_u32_u24 v5, 1280, v5\nv_lshl_add_u32 v{dst}, v6, 4, v5")

def build_kernel():
    if STAMP: a("s_memtime s[80:81]\ns_memrealtime s[92:93]")
    a(f"""
    s_cmp_ge_u32 s2, 256
    s_cbranch_scc1 L_exit
    s_load_dwordx16 s[16:31], s[0:1], 0
    s_load_dwordx8 s[32:39], s[0:1], 64
    s_load_dwordx4 s[40:43], s[0:1], 96
    v_lshrrev_b32 v1, 6, v0
    s_and_b32 s7, s2, 7
    s_lshl_b32 s3, s7, 2
    s_lshr_b32 s4, s2, 3
    v_readfirstlane_b32 s5, v1
    s_and_b32 s6, s4, 3
    s_add_u32 s3, s3, s6          ; s3 = pb64
    s_lshr_b32 s4, s4, 2          ; s4 = hg
    v_and_b32 v1, 63, v0          ; lane
    v_and_b32 v2, 15, v1          ; p
    v_lshrrev_b32 v3, 4, v1       ; kg
    s_mul_i32 s64, s3, {64*1280}
    s_mul_i32 s65, s4, 160
    s_add_u32 s66, s6, s7
    s_mul_i32 s8, s66, 52
    s_lshr_b32 s8, s8, 8
    s_mul_i32 s8, s8, 5
    s_sub_u32 s66, s66, s8
    s_and_b32 s67, s4, 3          ; pbk
    """)
    VD, VXR, VTR, VQW, VEX = 28, 34, 36, 38, 46
    VKR, VK4, VK5 = 40, 42, 43
    ACC, GF = 64, 96
    QM, QR = 8, 24
    O, SR, C = 64, 128, 192
    KBH = [192, 206, 220, 234]
    AK1, AKR, AV = 62, 63, 61
    PV, QA, VS, VT, AE = 56, 176, 44, 52, 48
    B0, B1, PA, PB = 16, 20, 64, 68
    KT_W, KT_R, KT_G, KT_S, VW2 = 240, 241, 242, 243, 244
    VA, V_B, V_ZW, V_ZS, V_HD, V_F2 = 228, 232, 233, 234, 235, 236
    VWO = 224
    WRAW = [216, 220]
    L_EX = 32768
    PW = int(E('PW', '3'))
    def gwrap(sreg, step):
        a(f"s_add_u32 s{sreg}, s{sreg}, {step}\ns_cmp_ge_u32 s{sreg}, {5*step}\ns_cselect_b32 s{sreg}, 0, s{sreg}")
    def shift2(r, d): a(f"v_add_u32 v{r}, {d & 0xffffffff}, v{r}\nv_add_u32 v{r+1}, {d & 0xffffffff}, v{r+1}")
    def loadK(buf, off):
        a(f"buffer_load_dwordx4 {R(buf)}, v{AK1}, {W}, s11 offen offset:{off + K1_OFF}{KVSC}")
        a(f"buffer_load_dwordx2 {R(buf+4,2)}, v{AKR}, {W}, s11 offen offset:{off + KR_OFF}{KVSC}")
    def loadV(buf, off):
        a(f"buffer_load_dwordx4 {R(buf+6)}, v{AV}, {W}, s11 offen offset:{off + V0_OFF}{KVSC}")
        a(f"buffer_load_dwordx4 {R(buf+10)}, v{AV}, {W}, s11 offen offset:{off + V1_OFF}{KVSC}")
    def kv_prologue(kb, part=None):
        nb = len(kb)
        if part != 1:
            a("s_mov_b32 s11, s79")
            loadK(kb[0], 0)
        for j in range(nb - 1):
            if (part == 0 and j > 0) or (part == 1 and j == 0): continue
            loadV(kb[j], 0); loadK(kb[j + 1], TILE); a(f"s_add_u32 s11, s11, {TILE}")
    def tail_addr(hi):
        T = 192
        a(f"""
        s_and_b32 s76, s5, 1
        s_lshr_b32 s77, s5, 1
        v_lshlrev_b32 v{AK1}, 4, v1
        v_bfe_u32 v{T}, v1, 4, 1
        v_mul_u32_u24 v{T}, {OPB}, v{T}
        v_lshl_add_u32 v{PV+3}, v2, 3, v{T}
        v_lshl_add_u32 v{T}, v2, 4, v{T}
        v_lshrrev_b32 v{T+1}, 5, v1
        v_lshl_add_u32 v{PV+2}, v{T+1}, 8, v{T}
        s_lshl_b32 s8, s3, 2
        s_lshl_b32 s9, s76, 1
        s_add_u32 s8, s8, s9
        s_mul_i32 s8, s8, {OPB}
        s_add_u32 s8, s8, {WS_O}
        s_lshl_b32 s9, s4, 2
        s_add_u32 s9, s9, s77
        s_lshl_b32 s72, s9, 9
        s_add_u32 s72, s72, s8
        s_lshl_b32 s73, s9, 7
        s_add_u32 s73, s73, s8
        s_add_u32 s73, s73, 16384
        s_lshl_b32 s74, s3, 1
        s_add_u32 s74, s74, s76
        s_lshl_b32 s74, s74, 5
        s_add_u32 s74, s74, s9
        s_lshl_b32 s74, s74, 2
        s_add_u32 s74, s74, {WS_F4}
        """)
        for j, i in enumerate((0, 1) if hi else (2, 3)):
            a(f"""
            s_xor_b32 s8, s5, {2*i}
            s_and_b32 s8, s8, 3
            s_mul_i32 s8, s8, 9216
            s_add_u32 s8, s8, {L_RED + 3072*max(i-1, 0)}
            v_add_u32 v{PV+j}, s8, v{AK1}
            """)
    def hi_addr():
        T = 192
        a(f"""
        v_and_b32 v{T}, 31, v1
        v_lshlrev_b32 v{AKR}, 3, v{T}
        v_lshrrev_b32 v{T+2}, 3, v{T}
        v_and_b32 v{T+3}, 3, v{T}
        v_lshl_add_u32 v{T+2}, v{T+2}, 2, v{T+3}
        v_bfe_u32 v{T+3}, v{T}, 2, 1
        v_mad_u32_u24 v{T+3}, v{T+3}, 10, v{T+2}
        v_mad_u32_u24 v{T+3}, v{T+1}, 20, v{T+3}
        v_cmp_gt_u32 s[8:9], 10, v{T+2}
        v_cmp_lt_u32 vcc, 10, v{T+2}
        v_mov_b32 v{T+4}, 40
        v_cndmask_b32 v{T+3}, v{T+4}, v{T+3}, s[8:9]
        v_lshlrev_b32 v{AV}, 4, v{T+3}
        v_mov_b32 v{T+4}, 0x40000000
        v_cndmask_b32 v{AV}, v{AV}, v{T+4}, vcc
        s_and_b32 s8, s77, 1
        s_mul_i32 s79, s8, {32*TILE}
        s_add_u32 s79, s79, {WS_KV}
        s_mul_i32 s8, s76, {32*QSTR}
        s_add_u32 s8, s8, {L_Q}
        v_mul_u32_u24 v{T+2}, {QSTR}, v{T}
        v_add_u32 v{T+2}, s8, v{T+2}
        v_lshl_add_u32 v{T+3}, v{T+1}, 4, v{T+2}
        v_xor_b32 v{T+4}, s77, v{T+1}
        v_xor_b32 v{T+5}, 2, v{T+4}
        v_mad_u32_u24 v{QA+4}, v{T+4}, 40, v{T+2}
        v_mad_u32_u24 v{QA+5}, v{T+5}, 40, v{T+2}
        """)
        for i in range(4):
            a(f"s_xor_b32 s8, s77, {i}\ns_mul_i32 s8, s8, 40\nv_add_u32 v{QA+i}, s8, v{T+3}")
        for i in range(4): a(f"v_mov_b32 v{KBH[-1]+10+i}, 0")
    def lo_addr():
        T = 192
        a(f"""
        s_mul_i32 s68, s5, 4224
        s_add_u32 s68, s68, {L_KT}
        v_and_b32 v4, 7, v1
        v_mul_u32_u24 v{T}, 528, v4
        v_lshrrev_b32 v5, 3, v1
        v_sub_u32 v{T+1}, 7, v5
        v_bfe_u32 v{T+2}, v{T+1}, 1, 1
        v_lshl_add_u32 v{T}, v{T+2}, 7, v{T}
        v_lshrrev_b32 v{T+2}, 2, v{T+1}
        v_lshl_add_u32 v{T}, v{T+2}, 6, v{T}
        v_and_b32 v{T+2}, 1, v{T+1}
        v_lshl_add_u32 v{T}, v{T+2}, 5, v{T}
        v_add_u32 v{KT_W}, s68, v{T}
        v_lshrrev_b32 v{T+1}, 5, v1
        v_lshlrev_b32 v{T+2}, 4, v{T+1}
        v_add3_u32 v{KT_R}, v{AK1}, v{T+2}, s68
        v_lshlrev_b32 v{T+3}, 12, v5
        v_lshl_add_u32 v{KT_G}, v4, 4, v{T+3}
        v_mul_u32_u24 v{T+3}, 1280, v5
        v_lshl_add_u32 v{T+3}, v4, 2, v{T+3}
        s_lshl_b32 s8, s5, 5
        v_add_u32 v{KT_S}, s8, v{T+3}
        ; convolution
        s_mul_i32 s68, s5, {CVS}
        s_add_u32 s68, s68, {L_CONV}
        v_and_b32 v{T}, 31, v1
        v_lshlrev_b32 v{V_F2}, 2, v{T}
        v_sub_u32 v{T+3}, v{V_F2}, v{T+2}
        v_add3_u32 v{VA}, v{T+3}, 16, s68
        v_add_u32 v{VA+1}, 1024, v{VA}
        v_add_u32 v{VA+2}, 2048, v{VA}
        v_add_u32 v{VA+3}, 3072, v{VA}
        v_lshrrev_b32 v{T+2}, 1, v{T}
        v_lshl_add_u32 v{T+2}, v{T+2}, 1, v{T+1}
        v_sub_u32 v{T+2}, 31, v{T+2}
        v_lshlrev_b32 v{T+2}, 5, v{T+2}
        v_and_b32 v{T+3}, 1, v{T}
        v_lshl_add_u32 v{T+2}, v{T+3}, 4, v{T+2}
        v_add_u32 v{V_B}, s68, v{T+2}
        v_mul_u32_u24 v{T+2}, 2080, v{T+1}
        v_lshl_add_u32 v{T+2}, v{T}, 4, v{T+2}
        v_add_u32 v{V_ZW}, s68, v{T+2}
        v_lshrrev_b32 v{T+2}, 2, v{T}
        v_lshlrev_b32 v{T+2}, 7, v{T+2}
        v_lshl_add_u32 v{T+2}, v{T+1}, 6, v{T+2}
        v_and_b32 v{T+3}, 3, v{T}
        v_lshl_add_u32 v{V_ZS}, v{T+3}, 4, v{T+2}
        v_subrev_u32 v{V_HD}, 64, v{AK1}
        v_cmp_lt_u32 s[8:9], 19, v1
        v_cndmask_b32 v{T}, 0, 1, s[8:9]
        v_mul_u32_u24 v{T+1}, 20, v{T}
        v_sub_u32 v{T+1}, v1, v{T+1}
        s_lshl_b32 s8, s76, 5
        s_lshl_b32 s9, s77, 3
        s_add_u32 s8, s8, s9
        s_add_u32 s8, s8, 1
        v_sub_u32 v{T+2}, s8, v{T}
        v_mul_u32_u24 v{T+2}, 1280, v{T+2}
        v_add_u32 v{T+2}, s64, v{T+2}
        v_lshl_add_u32 v{T+3}, v{T+1}, 3, s65
        v_lshl_add_u32 v{AE+1}, v{T+2}, 1, v{T+3}
        v_add_u32 v{AE}, v{T+2}, v{T+3}
        v_lshlrev_b32 v{AE+2}, 1, v{T+3}
        v_lshlrev_b32 v{T+3}, 11, v{T+3}
        v_lshl_add_u32 v{AE+3}, v{T}, 4, v{T+3}
        """)
    def stage(ptr, halo, base):
        if E("NOSTG"): return
        srd(S_D, ptr, ACT)
        a(f"s_add_u32 s8, s64, s65\ns_sub_u32 s8, s8, {halo*1280}")
        for i in range(11):
            if i < 5:
                a(f"v_add_u32 v4, s8, v{VW2 + i}\ns_mov_b32 m0, {base + 1024*i}\nbuffer_load_dwordx4 v4, {SR_(S_D)}, 0 offen lds")
            else:
                if i % 5 == 0: a(f"s_add_u32 s8, s8, {32*1280}")
                a(f"s_mov_b32 m0, {base + 1024*i}\nbuffer_load_dwordx4 v{VW2 + i % 5}, {SR_(S_D)}, s8 offen lds")
    def sync_init():
        a(f"""
        v_mov_b32 v4, 0
        v_mov_b32 v5, 0
        v_mov_b32 v6, 0
        v_mov_b32 v7, 8
        ds_write_b64 v{VS}, v[4:5]
        ds_write_b32 v{VS}, v4 offset:8
        ds_write_b32 v{VS}, v7 offset:16
        """)
    def only(w, fn):
        l = a.newlabel(); br_wave("lg", w, l); fn(); a.label(l)
    def publish_kv():
        l_v2, l_stat = a.newlabel(), a.newlabel()
        a(f"v_mov_b32 v8, 0\ns_cmp_ge_u32 s4, 4\ns_cbranch_scc1 {l_v2}")
        for i in range(4): a(f"v_dot2c_f32_bf16 v8, v{PA+i}, v{PA+i}")
        a(f"""
        v_mov_b32 v9, v8
        v_permlane32_swap_b32 v8, v9
        v_add_f32 v8, v8, v9
        v_dot2c_f32_bf16 v8, v{PB}, v{PB}
        v_dot2c_f32_bf16 v8, v{PB+1}, v{PB+1}
        s_nop 2
        s_branch {l_stat}
        """)
        a.label(l_v2)
        for b in range(B0, B0 + 8, 2): a(f"v_max3_f32 v8, v8, |v{b}|, |v{b+1}|")
        a("""
        v_mov_b32 v9, v8
        v_permlane16_swap_b32 v8, v9
        v_max_f32 v8, v8, v9
        v_mov_b32 v9, v8
        v_permlane32_swap_b32 v8, v9
        v_max_f32 v8, v8, v9
        s_nop 1
        """)
        a.label(l_stat)
        for sh in (1, 2, 4, 8):
            a(f"v_max_f32_dpp v8, v8, v8 row_shr:{sh} row_mask:0xf bank_mask:0xf")
        a("v_readlane_b32 s69, v8, 15")
        a(f"""
        s_lshl_b32 s8, s3, 3
        s_add_u32 s8, s8, s4
        s_lshl_b32 s8, s8, 3
        s_getreg_b32 s9, hwreg(HW_REG_XCC_ID, 0, 4)
        s_andn2_b32 s69, s69, 15
        s_or_b32 s69, s69, s9
        v_mov_b32 v4, s69
        v_mov_b32 v5, s{TAG}
        v_mov_b32 v6, 0
        s_waitcnt vmcnt(0)
        s_mov_b64 exec, 1
        buffer_store_dwordx2 v[4:5], v6, {W}, s8 offen offset:{WS_F1} sc1
        s_mov_b64 exec, -1
        """)

    def gemm_addr(cg):
        a(f"""
        v_mov_b32 v{VS}, {L_STAT}
        s_and_b32 s6, s77, 1
        v_lshrrev_b32 v4, 1, v2
        v_xor_b32 v4, v4, v3
        v_lshlrev_b32 v5, 7, v2
        v_lshl_add_u32 v39, v4, 4, v5
        s_lshl_b32 s7, s76, 1
        s_add_u32 s7, s7, s6
        s_lshl_b32 s8, s7, 11
        s_lshl_b32 s9, s6, 6
        v_xor_b32 v4, s9, v39
        v_add_u32 v{VXR}, s8, v4
        v_xor_b32 v{VXR+1}, 0x800, v{VXR}
        v_bfe_u32 v4, v1, 2, 2
        v_lshl_add_u32 v4, v3, 3, v4
        v_and_b32 v5, 1, v3
        v_lshl_add_u32 v6, v5, 2, v4
        v_xor_b32 v7, 4, v6
        v_and_b32 v5, 3, v1
        v_lshlrev_b32 v5, 3, v5
        s_movk_i32 s9, 160
        v_mad_u32_u24 v6, v6, s9, v5
        v_mad_u32_u24 v7, v7, s9, v5
        s_mul_i32 s8, s6, 5120
        s_add_u32 s8, s8, {L_W + 96*cg}
        v_add_u32 v{VTR}, s8, v6
        v_add_u32 v{VTR+1}, s8, v7
        s_mul_i32 s8, s76, 51200
        v_add_u32 v{VT}, s8, v6
        v_add_u32 v{VT+1}, s8, v7
        s_mul_i32 s8, s7, {16*QSTR}
        s_add_u32 s8, s8, {L_Q + 96*cg}
        v_mul_u32_u24 v4, {QSTR}, v2
        v_lshl_add_u32 v4, v3, 3, v4
        v_add_u32 v{VQW}, s8, v4
        s_mul_i32 s8, s5, 3072
        s_add_u32 s8, s8, {L_EX}
        v_add_u32 v{VEX}, s8, v{AK1}
        s_xor_b32 s8, s5, 2
        s_mul_i32 s8, s8, 3072
        s_add_u32 s8, s8, {L_EX}
        v_add_u32 v{VEX+1}, s8, v{AK1}
        """)
    def got_args():
        a(f"s_waitcnt lgkmcnt(0)\ns_load_dword s{TAG}, s[{P_WS}:{P_WS+1}], {WS_E}")
        if STAMP: a("s_mov_b32 s93, s92")
    def got_tag():
        a(f"s_waitcnt lgkmcnt(0)\ns_mul_i32 s{TAG}, s{TAG}, 0x9E3779B1\ns_add_u32 s{TAG}, s{TAG}, 0x7F4A7C15")
    def x_issue(g):
        a(f"s_add_u32 s8, s10, s12\ns_add_u32 s9, s8, {8*1280}")
        for hs in range(2):
            for par in range(2):
                a(f"s_add_u32 m0, s11, {(2*g+hs)*8192 + 1024*par - 128*hs}")
                a(f"buffer_load_dwordx4 v{VD+par}, {SR_(S_A)}, s{8+par} offen offset:{128*hs} lds")
        if g < 4: gwrap(12, 256)
    def wkv_issue(g):
        a(f"s_mov_b32 m0, {L_WKV + 5120*g}")
        for i in range(4):
            a(f"buffer_load_dwordx4 v{AK1}, {SR_(S_C)}, s13 offen offset:{1024*i} lds")
        a(f"s_mov_b32 m0, {L_WKV + 5120*g + 4096}\ns_add_u32 s8, s13, 4096")
        a(f"buffer_load_dwordx4 v{AK1}, {SR_(S_C)}, s8 offen lds")
        if g < 4: gwrap(13, 5120)
    def w_issue(g):
        a(f"s_add_u32 s8, s10, s12")
        for n in range(5):
            a(f"s_add_u32 m0, s11, {(g % 4)*GSLOT + 1024*n}")
            a(f"buffer_load_dwordx4 v{VD+n}, {SR_(S_B)}, s8 offen lds")
        if g < 4: gwrap(12, 128 * 1280)
    def q_stage(nblk, gs, xb, wb, mid=None):
        steps = [(g, hs) for g in gs for hs in range(2)]
        per = 2 + 2 * nblk
        for n, (g, hs) in enumerate(steps):
            b = GF + 20 * n
            for pl in range(2): a(f"ds_read_b128 {R(b+4*pl)}, v{VXR+pl} offset:{(2*g + hs)*8192 - xb}")
            for nb in range(nblk):
                off = (g % 4) * GSLOT + hs * 10240 + nb * 32 - wb
                for z in range(2): a(f"ds_read_b64_tr_b16 {R(b+8+4*nb+2*z,2)}, v{VTR+z} offset:{off}")
        if mid: mid()
        for n in range(len(steps)):
            a(f"s_waitcnt lgkmcnt({min(15, per * (len(steps) - 1 - n))})")
            b = GF + 20 * n
            for nb in range(nblk):
                for pl in range(2):
                    d = R(ACC + 12 * pl + 4 * nb)
                    a(f"v_mfma_f32_16x16x32_bf16 {d}, {R(b+8+4*nb)}, {R(b+4*pl)}, {'0' if (gs[0] == 0 and n == 0) else d}")
    def ld1():
        a(f"buffer_load_dwordx4 v[8:11], v45, {W}, 0 offen offset:{WS_F1} sc1")
        a(f"buffer_load_dwordx4 v[12:15], v45, {W}, 0 offen offset:{WS_F1+16} sc1")
    def q_path(cg):
        nblk = 3 if cg == 0 else 2
        stamp(2)
        a("s_barrier")
        stamp(3)
        q_stage(nblk, [0], 0, 0, (lambda: (only(7, lambda: w_issue(2)), w_issue(3))) if cg else None)
        a(f"s_waitcnt vmcnt({10 if cg else 0})")
        a("s_barrier")
        q_stage(nblk, [1], 0, 0, (lambda: w_issue(4)) if cg else None)
        shift2(VTR, 2 * GSLOT)
        if cg: a("s_waitcnt vmcnt(5)")
        a("s_barrier")
        stamp(4)
        q_stage(nblk, [2, 3], 0, 2 * GSLOT, None if cg else (lambda: only(PW, ld1)))
        shift2(VTR, -2 * GSLOT); shift2(VXR, 65536)
        if cg: a("s_waitcnt vmcnt(0)")
        else: only(PW, lambda: poll(ld1, [9, 11, 13, 15], 1, skipfirst=True)); only(2, sync_init)
        a("s_barrier")
        stamp(5)
        if not cg and E("INV"): only(2, lambda: a("buffer_inv sc1"))
        q_stage(nblk, [4], 65536, 0, (lambda: kv_prologue(KBH, 0)) if cg else None)
        for nb in range(nblk): a(f"ds_write_b128 v{VEX}, {R(ACC+12+4*nb)} offset:{1024*nb}")
        if not cg and not E("NOSVC") and not E("LATEK"): only(3, lambda: stage(P_AK, 4, L_SK))
        a(f"s_mov_b32 s8, 0xffff0000\ns_mov_b32 s9, {f2u(QSCALE)}")
        a("s_waitcnt lgkmcnt(0)\ns_barrier")
        for nb in range(nblk): a(f"ds_read_b128 {R(ACC+12+4*nb)}, v{VEX+1} offset:{1024*nb}")
        if cg and not E("LATEP"): kv_prologue(KBH, 1)
        for nb in range(nblk):
            b = ACC + 4 * nb
            a(f"s_waitcnt lgkmcnt({min(nblk - 1, nblk - 1 - nb + nb)})" if nb == 0 else f"s_waitcnt lgkmcnt({nblk - 1})")
            for r in range(4): a(f"v_add_f32 v{b+r}, v{b+r}, v{b+12+r}")
            for r in range(4): a(f"v_mul_f32 v{b+r}, s9, v{b+r}")
            for p in range(2): a(f"v_cvt_pk_bf16_f32 v{88+2*nb+p}, v{b+2*p}, v{b+2*p+1}")
            a(f"ds_write_b64 v{VQW}, {R(88+2*nb,2)} offset:{32*nb}")
        if not cg and E("INV"): only(2, lambda: a("s_waitcnt vmcnt(0)"))
        a("s_waitcnt lgkmcnt(0)\ns_barrier")
        stamp(7)
    OSTR = 336; OKH = 64 * OSTR
    FRD, FST = [94, 95], [60, 55]
    def fin_addr():
        a(f"""
        v_mul_u32_u24 v54, {OSTR}, v2
        v_lshl_add_u32 v54, v3, 4, v54
        s_mul_i32 s8, s77, {16*OSTR}
        s_mul_i32 s9, s76, {OKH}
        s_add_u32 s8, s8, s9
        s_add_u32 s8, s8, {L_OUT}
        v_add_u32 v54, s8, v54
        """)
    def fin_addr2(n):
        for i in range(n):
            a(f"""
            v_add_u32 v84, {512*i}, v0
            v_mul_u32_u24 v85, 6554, v84
            v_lshrrev_b32 v85, 16, v85
            v_mul_u32_u24 v86, 10, v85
            v_sub_u32 v86, v84, v86
            v_mul_u32_u24 v{FRD[i]}, {OSTR}, v85
            v_lshl_add_u32 v{FRD[i]}, v86, 5, v{FRD[i]}
            v_add_u32 v{FRD[i]}, {L_OUT}, v{FRD[i]}
            v_mul_u32_u24 v{FST[i]}, 2560, v85
            v_lshl_add_u32 v{FST[i]}, v86, 4, v{FST[i]}
            """)
    def lds_add(off, val):
        a(f"v_mov_b32 v4, {val}\ns_mov_b64 exec, 1\nds_add_u32 v{VS}, v4 offset:{off}\ns_mov_b64 exec, -1")
    def lds_wait(off, val, op, sleep):
        poll(lambda: a(f"ds_read_b32 v4, v{VS} offset:{off}"), [4], sleep, "lgkmcnt", str(val), op)
    l_cg1, l_R, l_x, l_lo1 = a.newlabel(), a.newlabel(), a.newlabel(), a.newlabel()
    br_wave("ge", 4, l_cg1)
    a(f"""
    v_lshrrev_b32 v4, 3, v1
    v_mul_u32_u24 v4, 1280, v4
    v_and_b32 v5, 7, v1
    v_xor_b32 v5, v5, v3
    v_lshl_add_u32 v{VD}, v5, 4, v4
    v_xor_b32 v{VD+1}, 64, v{VD}
    s_add_u32 s8, s67, s5
    s_and_b32 s8, s8, 3
    s_mul_i32 s10, s8, {16*1280}
    s_add_u32 s10, s10, s64
    s_lshl_b32 s11, s8, 11
    s_lshl_b32 s12, s66, 8
    s_mul_i32 s13, s66, 5120
    v_lshlrev_b32 v45, 5, v1
    """)
    tail_addr(False); gemm_addr(0); fin_addr()
    br_wave("lg", 0, l_x)
    a(f"""
    v_add_u32 v{VKR}, s11, v39
    v_xor_b32 v{VKR+1}, 64, v{VKR}
    v_bfe_u32 v4, v1, 2, 2
    v_lshl_add_u32 v4, v3, 3, v4
    v_mul_u32_u24 v4, 40, v4
    v_add_u32 v{VK4}, {L_WKV}, v4
    v_and_b32 v5, 3, v1
    v_lshl_add_u32 v{VK5}, v5, 3, v{VK4}
    """)
    for n in range(15): a(f"v_mov_b32 v{(VW2 + n) if n < 5 else (VWO + n - 5)}, -1")
    got_args()
    a(f"""
    s_cmp_ge_u32 s4, 4
    s_cselect_b32 s{S_C}, s{P_WV}, s{P_WK}
    s_cselect_b32 s{S_C+1}, s{P_WV+1}, s{P_WK+1}
    s_mov_b32 s{S_C+2}, 25600
    s_mov_b32 s{S_C+3}, 0x20000
    """)
    srd(S_A, P_X, ACT)
    KORD = E("KORD", "wx")
    if KORD == "wx":
        for g in range(5): wkv_issue(g)
        for g in range(5): x_issue(g)
        wv = [40 - 5 * g for g in range(5)]; xv = [16 - 4 * g for g in range(5)]
    else:
        for g in range(5): x_issue(g)
        for g in range(5): wkv_issue(g)
        wv = [20 - 5 * g for g in range(5)]; xv = [0] * 5
    a("s_barrier")
    stamp(1)
    srd(S_WS, P_WS, WS_END)
    got_tag()
    WPF, XT_ = 96, 72
    for g in range(5):
        a(f"s_waitcnt vmcnt({wv[g]})")
        for s_ in range(4):
            ks = 4 * g + s_; b = WPF + 8 * ks
            a(f"ds_read_b64_tr_b16 {R(b,2)}, v{VK5} offset:{ks*1280}")
            a(f"ds_read_b64_tr_b16 {R(b+2,2)}, v{VK5} offset:{ks*1280+160}")
            a(f"ds_read_b64_tr_b16 {R(b+4,2)}, v{VK4} offset:{ks*1280+32}")
            a(f"ds_read_b64_tr_b16 {R(b+6,2)}, v{VK4} offset:{ks*1280+192}")
    a(f"""
    s_lshr_b32 s12, s67, 1
    s_lshl_b32 s14, s3, 1
    s_add_u32 s12, s12, s14
    s_mul_i32 s12, s12, {TILE}
    s_add_u32 s12, s12, {WS_KV}
    s_and_b32 s10, s67, 1
    """)
    def kvpart(isv):
        for g in range(5):
            if g == 4: shift2(VKR, 65536)
            a(f"s_waitcnt vmcnt({xv[g]})")
            for s_ in range(4): a(f"ds_read_b128 {R(XT_+4*s_)}, v{VKR+(s_&1)} offset:{((2*g + (s_>>1)) % 8) * 8192}")
            for s_ in range(4):
                a(f"s_waitcnt lgkmcnt({3-s_})")
                for blk in range(2):
                    d = R(B0 + 4 * blk); c = "0" if (g == 0 and s_ == 0) else d
                    w_, x_ = R(WPF + 8 * (4 * g + s_) + 4 * blk), R(XT_ + 4 * s_)
                    a(f"v_mfma_f32_16x16x32_bf16 {d}, {x_ if isv else w_}, {w_ if isv else x_}, {c}")
    def pack(b, dst, swap):
        a(f"""
        v_cvt_pk_bf16_f32 v{dst}, v{b}, v{b+1}
        v_cvt_pk_bf16_f32 v{dst+1}, v{b+2}, v{b+3}
        v_cvt_pk_bf16_f32 v{dst+2}, v{b}, v{b+1}
        v_cvt_pk_bf16_f32 v{dst+3}, v{b+2}, v{b+3}
        {swap} v{dst}, v{dst+2}
        {swap} v{dst+1}, v{dst+3}
        """)
    l_v, l_pub = a.newlabel(), a.newlabel()
    a(f"s_cmp_ge_u32 s4, 4\ns_cbranch_scc1 {l_v}")
    a(f"""
    s_lshl_b32 s10, s10, 4
    v_add_u32 v5, s10, v2
    v_lshrrev_b32 v6, 1, v3
    v_lshl_add_u32 v6, v6, 5, v5
    v_lshlrev_b32 v6, 4, v6
    v_lshlrev_b32 v5, 3, v5
    """)
    kvpart(False)
    pack(B0, PA, "v_permlane16_swap_b32")
    a(f"""
    v_cvt_pk_bf16_f32 v{PB}, v{B1}, v{B1+1}
    v_cvt_pk_bf16_f32 v{PB+1}, v{B1+2}, v{B1+3}
    s_mov_b32 exec_lo, 0xffff
    s_mov_b32 exec_hi, 0xffff
    buffer_store_dwordx4 {R(PA)}, v6, {W}, s12 offen offset:{K1_OFF} sc1
    s_mov_b64 exec, 0xffff
    buffer_store_dwordx2 {R(PB,2)}, v5, {W}, s12 offen offset:{KR_OFF} sc1
    s_mov_b64 exec, -1
    s_branch {l_pub}
    """)
    a.label(l_v)
    a(f"""
    s_mul_i32 s10, s10, {V1_OFF - V0_OFF}
    s_add_u32 s12, s12, s10
    v_and_b32 v5, 1, v3
    v_mul_u32_u24 v5, 20, v5
    v_add_u32 v6, v5, v2
    v_lshlrev_b32 v6, 4, v6
    v_cmp_lt_u32 s[14:15], 3, v2
    v_mov_b32 v10, 0x3f803f80
    """)
    kvpart(True)
    pack(B0, PA, "v_permlane32_swap_b32")
    pack(B1, PB, "v_permlane32_swap_b32")
    a(f"s_mov_b32 exec_hi, 0")
    a(f"buffer_store_dwordx4 {R(PA)}, v6, {W}, s12 offen offset:{V0_OFF} sc1")
    for i in range(4): a(f"v_cndmask_b32 v{12+i}, v{PB+i}, v10, s[14:15]")
    a(f"""
    s_mov_b32 exec_lo, 0x00ff000f
    buffer_store_dwordx4 v[12:15], v6, {W}, s12 offen offset:{V0_OFF + 256} sc1
    s_mov_b64 exec, -1
    """)
    a.label(l_pub)
    stamp(6)
    publish_kv()
    lo_addr()
    a(f"s_branch {l_lo1}")
    a.label(l_x)
    lo_addr()
    for n in range(5): wpat(VW2 + n, 64 * n, False)
    def wo_pat():
        for n in range(5):
            a(f"""
            v_add_u32 v4, {64*n}, v1
            v_mul_u32_u24 v5, 6554, v4
            v_lshrrev_b32 v5, 16, v5
            v_mul_u32_u24 v6, 10, v5
            v_sub_u32 v6, v4, v6
            v_lshlrev_b32 v6, 4, v6
            v_lshrrev_b32 v7, 1, v5
            v_and_b32 v7, 4, v7
            v_xor_b32 v5, v5, v7
            v_lshrrev_b32 v7, 3, v5
            v_lshl_add_u32 v4, v7, 1, v5
            v_mul_u32_u24 v4, 1280, v4
            v_add_u32 v{VWO+n}, v4, v6
            v_lshrrev_b32 v7, 1, v5
            v_lshl_add_u32 v4, v7, 3, v5
            v_add_u32 v4, 8, v4
            v_mul_u32_u24 v4, 1280, v4
            v_add_u32 v{VWO+5+n}, v4, v6
            """)
    for n in range(4): a(f"v_mov_b32 v{VWO+n}, -1")
    only(3, wo_pat)
    got_args()
    srd(S_A, P_X, ACT); srd(S_WS, P_WS, WS_END); srd(S_C, P_WK, 25600)
    l = a.newlabel()
    a(f"""
    v_lshlrev_b32 v4, 7, v1
    s_sub_u32 s8, s5, 1
    s_lshl_b32 s8, s8, 13
    s_cmp_ge_u32 s2, 8
    s_cbranch_scc1 {l}
    buffer_load_dword v5, v4, {W}, s8 offen sc1
    """)
    a.label(l)
    got_tag()
    a(f"s_setprio {E('PX', '0')}\ns_barrier")
    for g in range(5): x_issue(g)
    a("s_setprio 0")
    stamp(1)
    a("s_waitcnt vmcnt(16)")
    a.label(l_lo1)
    q_path(0)
    l_svcend = a.newlabel()
    if E("NOSVC"):
        lds_add(8, 1); a(f"s_branch {l_svcend}")
    only(3, lambda: (stage(P_AK, 4, L_SK) if E("LATEK") else None, a(f"s_waitcnt vmcnt({E('STG', '6')})"), stage(P_AV, 1, L_SV)))
    srd(S_D, P_SH, D * 8); srd(S_B, P_WO, D * D * 2)
    a(f"""
    s_setprio {E('PKVT', '2')}
    v_and_b32 v4, 7, v1
    v_lshlrev_b32 v4, 4, v4
    s_lshl_b32 s8, s5, 7
    s_lshl_b32 s9, s65, 2
    s_add_u32 s8, s8, s9
    buffer_load_dwordx4 {R(WRAW[0])}, v4, {SR_(S_D)}, s8 offen
    buffer_load_dwordx4 {R(WRAW[1])}, v4, {SR_(S_D)}, s9 offen offset:512
    s_mov_b32 s12, 0xffff0000
    """)
    def decide():
        a(f"v_mul_u32_u24 v4, {QSTR}, v1\nv_add_u32 v4, {L_Q}, v4")
        for i in range(10): a(f"ds_read_b128 {R(128+4*i)}, v4 offset:{16*i}")
        a(f"""
        s_getreg_b32 s9, hwreg(HW_REG_XCC_ID, 0, 4)
        v_xor_b32 v5, s9, v8
        v_xor_b32 v6, s9, v10
        v_or_b32 v5, v5, v6
        v_xor_b32 v6, s9, v12
        v_xor_b32 v7, s9, v14
        v_or3_b32 v5, v5, v6, v7
        v_and_b32 v5, 15, v5
        v_cmp_ne_u32 vcc, 0, v5
        s_lshl_b32 s8, s3, 1
        s_lshr_b64 s[10:11], vcc, s8
        v_max_f32 v8, v8, v10
        v_max3_f32 v8, v8, v12, v14
        s_mov_b32 s8, 0x55555555
        s_mov_b32 s9, 0x55555555
        v_cndmask_b32 v10, 0, v8, s[8:9]
        v_cndmask_b32 v11, v8, 0, s[8:9]
        """)
        for m in ("row_shr:1 row_mask:0xf", "row_shr:2 row_mask:0xf", "row_shr:4 row_mask:0xf", "row_shr:8 row_mask:0xf",
                  "row_bcast:15 row_mask:0xa", "row_bcast:31 row_mask:0xc"):
            a(f"v_max_f32_dpp v10, v10, v10 {m} bank_mask:0xf\nv_max_f32_dpp v11, v11, v11 {m} bank_mask:0xf")
        for j in range(4): a(f"v_mov_b32 v{12+j}, 0")
        a("v_readlane_b32 s14, v10, 63\nv_readlane_b32 s15, v11, 63\ns_waitcnt lgkmcnt(0)")
        for r in range(10):
            for j in range(4): a(f"v_dot2c_f32_bf16 v{12+j}, v{128+10*j+r}, v{128+10*j+r}")
        a(f"""
        v_max3_f32 v12, v12, v13, v14
        v_max_f32 v12, v12, v15
        v_mul_f32 v12, s14, v12
        v_cmp_nge_f32 vcc, {f2u(64.0*64.0)}, v12
        s_mov_b32 s8, 1
        s_cmp_lg_u64 vcc, 0
        s_cselect_b32 s8, 0x101, s8
        s_cmp_lt_u32 s15, {f2u(2.0**-28)}
        s_cselect_b32 s8, 0x101, s8
        s_cmp_gt_u32 s15, {f2u(2.0**50)}
        s_cselect_b32 s8, 0x101, s8
        s_and_b32 s10, s10, 3
        s_cselect_b32 s9, 0, {0 if E("NOFAST") else 0x200}
        s_or_b32 s8, s8, s9
        """)
        lds_add(8, "s8")
    only(PW, decide)
    l = a.newlabel()
    a(f"s_or_b32 s8, s2, s5\ns_cmp_lg_u32 s8, 0\ns_cbranch_scc1 {l}\ns_mov_b32 s8, {WS_E}")
    flag_store(8, 6)
    a.label(l)
    a("s_waitcnt vmcnt(0)")
    only(3, lambda: lds_add(0, 1))
    lds_wait(0, 1, "ne", 2)
    stamp(10)
    KRW, KU, VU, WU, KV, PK = 192, 128, 152, 170, 64, 84
    def kvt_compute(ps, pass_sgpr):
        if E("NOKVT"): return
        kr = KRW; vr = kr + 12; wr = WRAW[ps]
        for r in range(12): a(f"ds_read_b32 v{kr+r}, v{KT_S} offset:{L_SK + 160*r + 32*ps}")
        for r in range(9): a(f"ds_read_b32 v{vr+r}, v{KT_S} offset:{L_SV + 160*r + 32*ps}")
        for j in range(4):
            for c in range(2):
                src = wr + 2 * c + j // 2
                a(f"v_lshlrev_b32 v{WU+2*j+c}, 16, v{src}" if j % 2 == 0 else f"v_and_b32 v{WU+2*j+c}, s12, v{src}")
        a("s_waitcnt lgkmcnt(9)")
        for r in range(12): a(f"v_lshlrev_b32 v{KU+2*r}, 16, v{kr+r}\nv_and_b32 v{KU+2*r+1}, s12, v{kr+r}")
        for i in range(18): a(f"v_mul_f32 v{KV+i}, v{KU+i}, v{WU+6+(i&1)}")
        for j in (2, 1, 0):
            for i in range(18): a(f"v_fmac_f32 v{KV+i}, v{KU+i+2*(3-j)}, v{WU+2*j+(i&1)}")
        a("s_waitcnt lgkmcnt(0)")
        for r in range(9): a(f"v_lshlrev_b32 v{VU+2*r}, 16, v{vr+r}\nv_and_b32 v{VU+2*r+1}, s12, v{vr+r}")
        for i in range(18): a(f"v_mul_f32 v{KV+i}, v{KV+i}, v{VU+i}")
        for c in range(2):
            for cp in range(2):
                for d in range(4):
                    lo = 7 - cp - 2 * d; hi = lo - 1
                    a(f"v_cvt_pk_bf16_f32 v{PK+8*c+4*cp+d}, v{KV+2*(lo+1)+c}, v{KV+2*(hi+1)+c}")
                a(f"ds_write_b128 v{KT_W}, {R(PK+8*c+4*cp)} offset:{256*c + 16*cp}")
        for k in range(4): a(f"ds_read_b128 {R(PK+16+4*k)}, v{KT_R} offset:{1056*k}")
        a(f"""
        s_mul_i32 s8, s4, 80
        s_lshl_b32 s9, s{pass_sgpr}, 4
        s_add_u32 s8, s8, s9
        s_lshl_b32 s8, s8, 13
        s_sub_u32 s9, 31, s3
        s_lshl_b32 s9, s9, 7
        s_add_u32 s8, s8, s9
        s_add_u32 s8, s8, {WS_XT}
        """)
        for k in range(4):
            a(f"s_waitcnt lgkmcnt({3-k})")
            a(f"buffer_store_dwordx4 {R(PK+16+4*k)}, v{KT_G}, {W}, s8 offen sc1")
            if k < 3: a(f"s_add_u32 s8, s8, {4*8192}")
    def f2_flag(pass_sgpr):
        a(f"""
        s_mul_i32 s8, s4, 5
        s_add_u32 s8, s8, s{pass_sgpr}
        s_lshl_b32 s8, s8, 5
        s_add_u32 s8, s8, s3
        s_lshl_b32 s8, s8, 2
        s_add_u32 s8, s8, {WS_F2}
        """)
        flag_store(8, 6)
    kvt_compute(0, 5)
    l_conv, l_aepi, l_cdone = a.newlabel(), a.newlabel(), a.newlabel()
    br_wave("lg", 3, l_conv)
    a("s_mov_b32 s10, 4")
    kvt_compute(1, 10)
    a("s_waitcnt vmcnt(0)")
    f2_flag(10); f2_flag(5)
    a("s_setprio 0")
    stamp(8)
    def wo_loop(p0):
        a(f"s_add_u32 s8, s65, {p0*160*1280}\ns_mov_b32 s9, {p0*25600}")
        l = a.newlabel()
        a.label(l)
        for m in range(5):
            a(f"s_add_u32 s10, s8, {(40*1280*m) if m < 4 else 0}")
            for n in range(5):
                a(f"s_add_u32 m0, s9, {5120*m + 1024*n}")
                a(f"buffer_load_dwordx4 v{VWO + n + (5 if m == 4 else 0)}, {SR_(S_B)}, s10 offen lds")
            a(f"s_waitcnt vmcnt({E('WOV', '5')})")
        a(f"""
        s_add_u32 s8, s8, {160*1280}
        s_add_u32 s9, s9, 25600
        s_cmp_lt_u32 s9, {(p0+2)*25600}
        s_cbranch_scc1 {l}
        """)
    if not E("NOWO"):
        wo_loop(2)
        lds_wait(4, 3, "ne", 8)
        wo_loop(0)
    a("s_waitcnt vmcnt(0)")
    lds_add(0, 1)
    a(f"s_branch {l_aepi}")
    a.label(l_conv)
    lds_add(4, 1)
    a(f"""
    s_lshl_b32 s12, s5, 8
    s_add_u32 s12, s12, s2              ; channel
    s_min_u32 s13, s12, 639
    s_lshl_b32 s8, s13, 12
    s_add_u32 s{S_A}, s{P_SK}, s8
    s_addc_u32 s{S_A+1}, s{P_SK+1}, 0
    s_mov_b32 s{S_A+2}, 4096
    s_lshl_b32 s8, s13, 13
    s_add_u32 s8, s8, {WS_XT}
    s_add_u32 s{S_B}, s{P_WS}, s8
    s_addc_u32 s{S_B+1}, s{P_WS+1}, 0
    s_mov_b32 s{S_B+2}, 4096
    s_add_u32 s{S_C}, s{S_B}, 4096
    s_addc_u32 s{S_C+1}, s{S_B+1}, 0
    s_mov_b32 s{S_C+2}, 4096
    s_load_dword s14, s[{S_A}:{S_A+1}], 0
    s_lshr_b32 s8, s13, 1
    s_lshl_b32 s8, s8, 2
    s_load_dword s15, s[{P_SD}:{P_SD+1}], s8
    s_mul_i32 s8, s13, 52429
    s_lshr_b32 s8, s8, 22
    s_mul_i32 s9, s8, 80
    s_sub_u32 s9, s13, s9
    s_lshr_b32 s9, s9, 4
    s_mul_i32 s8, s8, 5
    s_add_u32 s8, s8, s9
    s_lshl_b32 s13, s8, 7
    s_add_u32 s13, s13, {WS_F2}
    s_waitcnt vmcnt(0)
    """)
    f2_flag(5)
    a(f"s_waitcnt lgkmcnt(0)\ns_cmp_ge_u32 s12, 640\ns_cbranch_scc1 {l_cdone}")
    if E("NOCONV"): a(f"s_branch {l_cdone}")
    a(f"s_mov_b32 m0, s68\nbuffer_load_dwordx4 v{V_HD}, {SR_(S_A)}, 0 offen lds")
    a(f"s_add_u32 m0, s68, 1024\ns_movk_i32 s8, 960")
    for i in range(4): a(f"buffer_load_dwordx4 v{AK1}, {SR_(S_A)}, s8 offen offset:{1024*i} lds")
    for i in range(4): a(f"v_mov_b32 v{8+i}, 0")
    for t in range(4): a(f"v_mfma_f32_32x32x16_bf16 {R(O+16*t,16)}, {R(8)}, {R(8)}, 0")
    a(f"""
    s_bitcmp1_b32 s12, 0
    s_cselect_b32 s8, 0, 16
    s_lshl_b32 s15, s15, s8
    s_and_b32 s15, s15, 0xffff0000
    s_lshl_b32 s8, s14, 16
    v_mov_b32 v5, s8
    v_add_f32 v5, s15, v5
    v_cvt_pk_bf16_f32 v5, v5, v5
    v_mov_b32 v6, s68
    s_waitcnt vmcnt(0)
    ds_write_b16 v6, v5 offset:64
    """)
    lds_wait(16, int(E("PF2", "7")), "lt", 8)
    poll(lambda: a(f"buffer_load_dword v4, v{V_F2}, {W}, s13 offen sc1"), [4], 16)
    stamp(8)
    a("s_movk_i32 s8, 4096")
    for cl_ in range(2):
        a(f"s_add_u32 m0, s68, {5120 + 5120*cl_}")
        for i in range(4): a(f"buffer_load_dwordx4 v{AK1}, {SR_(S_C if cl_ else S_B)}, 0 offen offset:{1024*i} sc1 lds")
        a(f"s_add_u32 m0, s68, {5120 + 5120*cl_ + 4096}")
        a(f"buffer_load_dwordx4 v{AK1}, {SR_(S_C if cl_ else S_B)}, s8 offen sc1 lds")
    a(f"s_waitcnt vmcnt(0)\ns_setprio {E('PCONV', '0')}")
    F = SR
    def c_reads(sp):
        j, e = sp >> 1, sp & 1; b = F + 32 * (sp & 1)
        for u in range(4):
            o = (4 + 32 * e + 128 * j) // 4
            a(f"ds_read2_b32 {R(b+4*u,2)}, v{VA+u} offset0:{o} offset1:{o+1}")
            a(f"ds_read2_b32 {R(b+4*u+2,2)}, v{VA+u} offset0:{o+2} offset1:{o+3}")
            a(f"ds_read_b128 {R(b+16+4*u)}, v{V_B} offset:{5120 + 5120*e + 3072 - 1024*u + 128*j}")
    c_reads(0)
    for sp in range(16):
        if sp < 15 and not (E("CNORD") and sp > 0): c_reads(sp + 1)
        a(f"s_waitcnt lgkmcnt({12 if sp < 15 else 0})")
        b = F + 32 * (sp & 1)
        for u in range(4):
            for nb in range(u, 4):
                d = R(O + 16 * nb, 16)
                if E("CNOM"): a("s_sleep 1")
                elif E("CZERO"): a(f"v_mfma_f32_32x32x16_bf16 {d}, {R(8)}, {R(8)}, {d}")
                else: a(f"v_mfma_f32_32x32x16_bf16 {d}, {R(b+4*u)}, {R(b+16+4*(nb-u))}, {d}")
    a("s_setprio 2")
    a(f"ds_write_b128 v{V_ZW}, {R(8)}\nds_write_b128 v{V_ZW}, {R(8)} offset:4160")
    for nb in range(4):
        for q in range(2): a(f"ds_write_b128 v{V_ZW}, {R(O+16*nb+8+4*q)} offset:{4160*q + 512*nb + 32}")
    for nb in range(4):
        for q in range(2): a(f"ds_read_b128 {R(F+8*nb+4*q)}, v{V_ZW} offset:{4160*q + 512*nb}")
    a(f"s_lshl_b32 s8, s12, 12\ns_add_u32 s8, s8, {WS_Z}")
    for nb in range(4):
        a(f"s_waitcnt lgkmcnt({6-2*nb})")
        for r in range(8): a(f"v_add_f32 v{O+16*nb+r}, v{O+16*nb+r}, v{F+8*nb+r}")
        for k in range(4): a(f"v_cvt_pk_bf16_f32 v{F+32+4*nb+k}, v{O+16*nb+2*k}, v{O+16*nb+2*k+1}")
        a(f"buffer_store_dwordx4 {R(F+32+4*nb)}, v{V_ZS}, {W}, s8 offen offset:{1024*nb} sc1")
    a(f"s_lshl_b32 s8, s12, 2\ns_add_u32 s8, s8, {WS_F3}\ns_waitcnt vmcnt(0)")
    flag_store(8, 6)
    a.label(l_cdone)
    lds_add(8, 1)
    a.label(l_aepi)
    stamp(9)
    a("s_setprio 2")
    XF, AF, AC = 8, 96, 64
    def o_reads(ks):
        b = AF + 20 * (ks % 8)
        for nb in range(5):
            for z in range(2): a(f"ds_read_b64_tr_b16 {R(b+4*nb+2*z,2)}, v{VT+z} offset:{ks*5120 + nb*32}")
    QRW, ZR, U = 8, 24, 64
    X40 = "s_mov_b32 exec_lo, -1\ns_mov_b32 exec_hi, 0xff"
    srd(S_A, P_AQ, ACT)
    a(X40)
    for e in range(8):
        a(f"s_movk_i32 s8, {(16*(e>>2) + 2*(e&3))*1280}")
        a(f"buffer_load_dwordx2 {R(QRW+2*e,2)}, v{AE}, {SR_(S_A)}, s8 offen")
    a(f"""
    s_mov_b64 exec, -1
    buffer_load_dwordx4 {R(64)}, v{PV+2}, {W}, s72 offen sc1
    buffer_load_dwordx4 {R(64)}, v{PV+2}, {W}, s72 offen offset:1024 sc1
    buffer_load_dwordx2 {R(64,2)}, v{PV+3}, {W}, s73 offen sc1
    buffer_load_dwordx2 {R(64,2)}, v{PV+3}, {W}, s73 offen offset:256 sc1
    v_mov_b32 v4, 0
    buffer_load_dword v64, v4, {W}, s74 offen sc1
    """)
    lds_wait(0, 2, "ne", 16)
    for ks in range(8): o_reads(ks)
    srd(S_C, P_OUT, 2 * ACT)
    def unp(dst, src, hi): a(f"v_and_b32 v{dst}, s14, v{src}" if hi else f"v_lshlrev_b32 v{dst}, 16, v{src}")
    def z_fetch(once):
        a(f"""
        s_lshl_b32 s11, s3, 7
        s_lshl_b32 s8, s5, 5
        s_add_u32 s11, s11, s8
        s_add_u32 s11, s11, {WS_Z}
        s_mov_b32 s14, {WS_F3}
        {X40}
        """)
        l = a.newlabel()
        poll(lambda: a(f"buffer_load_dwordx4 {R(40)}, v{AE+2}, {W}, s14 offen sc1"), [40, 41, 42, 43], 4, fail=l if once else None)
        stamp(11)
        for i in range(4):
            a(f"buffer_load_dwordx4 {R(ZR+4*i)}, v{AE+3}, {W}, s11 offen sc1")
            if i < 3: a("s_add_u32 s11, s11, 4096")
        a("s_mov_b32 s70, 1\ns_mov_b32 s14, 0xffff0000\ns_waitcnt vmcnt(0)")
        for e in range(8):
            for i in range(4):
                unp(U + i, QRW + 2 * e + i // 2, i % 2); unp(U + 4 + i, ZR + 4 * i + e // 2, e % 2)
            for i in range(4): a(f"v_mul_f32 v{U+i}, v{U+i}, v{U+4+i}")
            for i in (0, 2): a(f"v_cvt_pk_bf16_f32 v{QRW+2*e+i//2}, v{U+i}, v{U+i+1}")
            a(f"s_mov_b32 s8, {(16*(e>>2) + 2*(e&3))*2560}")
            a(f"buffer_store_dwordx2 {R(QRW+2*e,2)}, v{AE+1}, {SR_(S_C)}, s8 offen{OSFX}")
        a.label(l)
        a("s_mov_b64 exec, -1")
    if not E("NOAEPI"):
        a("s_mov_b32 s70, 0")
        lds_wait(16, 1, "lt", 8)
        a(f"s_setprio {E('PAE', '2')}")
        l_try, l_giveup = a.newlabel(), a.newlabel()
        a.label(l_try)
        a(f"s_sleep {E('ZS', '16')}")
        z_fetch(True)
        a(f"""
        s_cmp_eq_u32 s70, 1
        s_cbranch_scc1 {l_giveup}
        ds_read_b32 v4, v{VS} offset:16
        s_waitcnt lgkmcnt(0)
        v_readfirstlane_b32 s8, v4
        s_cmp_lg_u32 s8, 0
        s_cbranch_scc1 {l_try}
        """)
        a.label(l_giveup)
    a.label(l_svcend)
    fin_addr2(2)
    a("s_waitcnt vmcnt(0) lgkmcnt(0)")
    stamp(12)
    a("s_barrier")
    a(f"ds_read_b32 v5, v{VS} offset:8")
    OWN = O
    for j in range(2):
        for r in range(3): a(f"ds_read_b128 {R(OWN+12*j+4*r)}, v{PV+j} offset:{1024*r}")
    a(f"s_branch {l_R}")
    a.label(l_cg1)
    for n in range(5): wpat(VD + n, 64 * n, True)
    a(f"""
    s_sub_u32 s8, s5, 4
    s_mul_i32 s11, s8, 5120
    s_add_u32 s11, s11, {L_W}
    s_mul_i32 s10, s8, {32*1280}
    s_add_u32 s10, s10, s65
    s_mul_i32 s12, s66, {128*1280}
    """)
    tail_addr(True); hi_addr(); gemm_addr(1); fin_addr(); a('v_mov_b32 v55, -1\nv_mov_b32 v60, -1'); a(f"v_mov_b32 v{AE+1}, -1\nv_mov_b32 v{AE+2}, -1\nv_mov_b32 v{AE+3}, -1")
    got_args()
    srd(S_B, P_WQ, D * D * 2); srd(S_WS, P_WS, WS_END)
    got_tag()
    a(f"s_setprio {E('PHI', '0')}\ns_barrier")
    w_issue(0)
    stamp(1)
    a(f"s_waitcnt vmcnt({E('W1', '5')})"); w_issue(1); a("s_waitcnt vmcnt(5)")
    l = a.newlabel(); br_wave("eq", 7, l); w_issue(2); a.label(l)
    q_path(1)
    for i in range(4): a(f"ds_read2_b64 {R(QM+4*i)}, v{QA+i} offset0:0 offset1:1")
    a(f"ds_read_b64 {R(QR,2)}, v{QA+4} offset:32\nds_read_b64 {R(QR+2,2)}, v{QA+5} offset:32")
    a(f"s_setprio 1\ns_movk_i32 s13, 8")
    for t in range(4): a(f"v_mfma_f32_32x32x16_bf16 {R(O+16*t,16)}, {R(KBH[-1]+10)}, {R(KBH[-1]+10)}, 0")
    l_fb, l_after = a.newlabel(), a.newlabel()
    def qk(t, kb, usec):
        return f"v_mfma_f32_32x32x16_bf16 {R(SR+16*t,16)}, {R(kb)}, {R(QM+4*t)}, {R(C+16*t,16) if usec else '0'}"
    def qr(p, kb):
        d = R(SR + 32 * p, 32)
        if E("QR8"): return "\n".join(f"v_mfma_f32_32x32x8_bf16 {R(SR+32*p+16*i,16)}, {R(kb+4,2)}, {R(QR+2*p,2)}, {R(SR+32*p+16*i,16)}" for i in range(2))
        if E("NOQR"): return "s_nop 0\ns_nop 0"
        return f"v_mfma_f32_32x32x4_2b_bf16 {d}, {R(kb+4,2)}, {R(QR+2*p,2)}, {d}"
    def pv(t, hf, vb):
        d = R(O + 16 * t, 16)
        if E("PVSWAP"): return f"v_mfma_f32_32x32x16_bf16 {d}, {R(SR+16*t+8*hf)}, {R(vb+6+4*hf)}, {d}"
        return f"v_mfma_f32_32x32x16_bf16 {d}, {R(vb+6+4*hf)}, {R(SR+16*t+8*hf)}, {d}"
    MP = [int(x) for x in E("MP", "16,8,12,20,26,35,4").split(",")]
    DEFER = MP[6] < 40
    LP = [int(x) for x in E("LP", "12,36,60,84").split(",")]
    def phase(p, kq_, vcur, vprev, extra, usec):
        ta, tb = 2 * p, 2 * p + 1
        na, nb_ = 2 * (1 - p), 2 * (1 - p) + 1
        base, pbase = SR + 32 * p, SR + 32 * (1 - p)
        def cv(b, j):
            bb = b + 8 * (j // 4); k = j % 4
            return f"v_cvt_pk_bf16_f32 v{bb+k}, v{bb+2*k}, v{bb+2*k+1}"
        valu = []
        for grp in range(8):
            for i in range(4): valu.append(f"v_exp_f32 v{base+4*grp+i}, v{base+4*grp+i}")
            for j in (2 * grp - 2, 2 * grp - 1): valu.append(cv(base, j) if j >= 0 else cv(pbase, 16 + j))
        ins = dict(zip(MP, [[qk(na, kq_, usec)], [pv(nb_, 1, vprev)], [qk(nb_, kq_, usec)], [pv(ta, 0, vcur)],
               [qr(1 - p, kq_)], [pv(ta, 1, vcur)], [pv(nb_, 0, vprev) if DEFER else pv(tb, 0, vcur)]]))
        for k, v in extra.items():
            if k == "wait": ins[MP[3]] = v + ins[MP[3]]
            else: ins[k] = ins.get(k, []) + v
        for i, x in enumerate(valu):
            for y in ins.get(i, []): a(y)
            a(x)
        return [cv(base, 14), cv(base, 15)]
    def main_loop(kb, usec):
        nb = len(kb)
        a(f"s_waitcnt vmcnt({4 if E('LATEP') else 4*(nb-1)}) lgkmcnt(0)")
        stamp(8); rstamp(14)
        a(qk(0, kb[0], usec)); a(qk(1, kb[0], usec))
        for i in range(8): a(f"v_mov_b32 v{SR+56+i}, 0")
        for i in range(4): a(f"v_mov_b32 v{SR+48+i}, 0\nv_mov_b32 v{kb[-1]+6+i}, 0")
        a(qr(0, kb[0]))
        if usec or not E("LATEP"): a("s_nop 15\ns_nop 3")
        else: kv_prologue(kb, 1); a("s_nop 9")
        l_loop = a.newlabel()
        a(".p2align 6")
        a.label(l_loop)
        n0 = len(a.lines)
        for par in range(nb):
            cur, nxt, prv = kb[par], kb[(par + 1) % nb], kb[par - 1]
            lds_ = [f"buffer_load_dwordx4 {R(prv+6)}, v{AV}, {W}, s11 offen offset:{V0_OFF}{KVL}",
                    f"buffer_load_dwordx4 {R(prv+10)}, v{AV}, {W}, s11 offen offset:{V1_OFF}{KVL}",
                    f"buffer_load_dwordx4 {R(cur)}, v{AK1}, {W}, s11 offen offset:{TILE + K1_OFF}{KVL}",
                    f"buffer_load_dwordx2 {R(cur+4,2)}, v{AKR}, {W}, s11 offen offset:{TILE + KR_OFF}{KVL}"]
            ex = [{"wait": [f"s_waitcnt vmcnt({4*(nb-2) + sum(1 for p_ in LP if p_ < MP[3])})"]}, {}]
            for p_, l_ in zip(LP, lds_): ex[p_ // 48].setdefault(p_ % 48, []).append(l_)
            pm = max(LP) + 3
            ex[pm // 48].setdefault(pm % 48, []).append(f"s_add_u32 s11, s11, {TILE}")
            if par == nb - 1:
                ex[1].setdefault(22, []).append("s_sub_u32 s13, s13, 1")
                if not usec: ex[1].setdefault(24, []).extend(["v_mov_b32 v4, s13", f"ds_write_b32 v{VS}, v4 offset:16", f"ds_read_b32 v5, v{VS} offset:8"])
                ex[1].setdefault(45, []).append("s_cmp_lg_u32 s13, 0")
            phase(0, cur, cur, prv, ex[0], usec)
            tail = phase(1, nxt, cur, cur, ex[1], usec)
        if not E("NOALIGN"):
            par_ = 0; last4 = None
            for i in range(n0, len(a.lines)):
                t = a.lines[i]
                small = t.startswith(("v_exp_f32 ", "v_mov_b32 ", "s_waitcnt", "s_sub_u32", "s_cmp_"))
                if small:
                    par_ ^= 1
                    if t.startswith("v_"): last4 = i
                elif par_:
                    assert last4 is not None and all(a.lines[j].startswith(("v_exp_f32 ", "v_mov_b32 ", "s_waitcnt", "s_sub_u32", "s_cmp_")) for j in range(last4, i)), a.lines[last4:i+1]
                    a.lines[last4] = a.lines[last4].replace(" ", "_e64 ", 1); par_ = 0
        a(f"s_cbranch_scc1 {l_loop}")
        if DEFER: a(pv(3, 0, kb[-1]))
        for x in tail: a(x)
        a(pv(3, 1, kb[-1]))
    main_loop(KBH, False)
    l_w, l_ok = a.newlabel(), a.newlabel()
    a(f"s_mov_b32 s96, {SPIN}")
    a.label(l_w)
    a(f"""
    s_waitcnt lgkmcnt(0)
    v_readfirstlane_b32 s8, v5
    s_and_b32 s9, s8, 0xff
    s_cmp_eq_u32 s9, 4
    s_cbranch_scc1 {l_ok}
    s_sleep 2
    ds_read_b32 v5, v{VS} offset:8
    s_sub_u32 s96, s96, 1
    s_cmp_lg_u32 s96, 0
    s_cbranch_scc1 {l_w}
    """)
    a.label(l_ok)
    a(f"s_bitcmp1_b32 s8, 8\ns_cbranch_scc1 {l_fb}")
    a.label(l_after)
    stamp(9); rstamp(15)
    for i in (1, 2, 3):
        for r in range(3): a(f"ds_write_b128 v{PV}, {R(O+16*i+4*r)} offset:{3072*(i-1) + 1024*r}")
    a("s_waitcnt lgkmcnt(0)")
    stamp(12)
    a("s_barrier")
    for r in range(3): a(f"ds_read_b128 {R(OWN+12+4*r)}, v{PV+1} offset:{1024*r}")
    a.label(l_R)
    a("s_waitcnt lgkmcnt(0)\nv_readfirstlane_b32 s71, v5")
    for r in (10, 8, 9, 0, 1, 2, 3, 4, 5, 6, 7): a(f"v_add_f32 v{OWN+r}, v{OWN+r}, v{OWN+12+r}")
    a(f"v_rcp_f32 v{OWN+10}, v{OWN+10}")
    for i in (8, 9, 0, 1, 2, 3, 4, 5, 6, 7): a(f"v_mul_f32 v{OWN+i}, v{OWN+i}, v{OWN+10}")
    PO = 88
    a(f"v_cvt_pk_bf16_f32 v{PO+4}, v{OWN+8}, v{OWN+9}\nv_cvt_pk_bf16_f32 v{PO+5}, v{OWN+8}, v{OWN+9}")
    for i in range(4): a(f"v_cvt_pk_bf16_f32 v{PO+i}, v{OWN+2*i}, v{OWN+2*i+1}")
    a(f"""
    v_permlane32_swap_b32 v{PO+4}, v{PO+5}
    s_waitcnt vmcnt(0)
    s_bitcmp1_b32 s71, 9
    s_cbranch_scc1 L_fast1
    buffer_store_dwordx4 {R(PO)}, v{PV+2}, {W}, s72 offen sc1
    s_mov_b32 exec_hi, 0
    buffer_store_dwordx2 {R(PO+4,2)}, v{PV+3}, {W}, s73 offen sc1
    s_branch L_fast2
    L_fast1:
    buffer_store_dwordx4 {R(PO)}, v{PV+2}, {W}, s72 offen{E('FSFX', ' nt')}
    s_mov_b32 exec_hi, 0
    buffer_store_dwordx2 {R(PO+4,2)}, v{PV+3}, {W}, s73 offen{E('FSFX', ' nt')}
    L_fast2:
    s_mov_b32 exec_hi, -1
    """)
    tstamp(1)
    srd(S_C, P_OUT, 2 * ACT)
    a(f"""
    s_lshl_b32 s12, s3, 1
    s_lshr_b32 s8, s77, 1
    s_add_u32 s12, s12, s8
    s_lshl_b32 s12, s12, 1
    s_add_u32 s12, s12, s76
    s_lshl_b32 s12, s12, 6
    s_add_u32 s12, s12, {WS_F4}
    v_lshl_add_u32 v4, v2, 2, s12
    s_lshl_b32 s8, s3, 8
    s_lshl_b32 s9, s4, 4
    s_add_u32 s8, s8, s9
    s_add_u32 s8, s8, {WS_F4}
    v_and_b32 v5, 3, v1
    v_lshl_add_u32 v5, v5, 2, s8
    v_bfe_u32 v6, v1, 2, 1
    v_lshl_add_u32 v5, v6, 7, v5
    s_mov_b32 s8, 0xffff0000
    s_mov_b32 s9, 0
    v_cndmask_b32 v4, v4, v5, s[8:9]
    v_lshlrev_b32 v5, 8, v3
    v_lshl_add_u32 v5, v2, 3, v5
    s_lshl_b32 s13, s3, 2
    s_add_u32 s13, s13, s77
    s_mul_i32 s13, s13, {OPB}
    s_add_u32 s13, s13, {WS_O}
    s_lshl_b32 s8, s76, 11
    s_add_u32 s15, s13, s8
    s_add_u32 s15, s15, 16384
    s_lshl_b32 s8, s76, 13
    s_add_u32 s13, s13, s8
    s_add_u32 s10, s13, 4096
    v_mov_b32 v6, s{TAG}
    v_mov_b32 v7, 0
    """)
    l = a.newlabel()
    br_wave("lt", 4, l)
    for ks in range(2): o_reads(ks)
    a.label(l)
    tstamp(2)
    a(f"""
    s_waitcnt vmcnt(0)
    s_mov_b64 exec, 1
    s_bitcmp1_b32 s71, 9
    s_cbranch_scc1 L_fast3
    buffer_store_dword v6, v7, {W}, s74 offen sc1
    s_branch L_fast4
    L_fast3:
    buffer_store_dword v6, v7, {W}, s74 offen
    L_fast4:
    s_mov_b64 exec, -1
    """)
    tstamp(3)
    if E("XBAR"): a("s_barrier")
    l, l2 = a.newlabel(), a.newlabel()
    br_wave("lt", 4, l)
    for ks in range(2, 6): o_reads(ks)
    a(f"s_branch {l2}")
    a.label(l)
    if not E("NOAEPI") and not E("NOSVC"):
        l3 = a.newlabel()
        a(f"s_cmp_eq_u32 s70, 1\ns_cbranch_scc1 {l3}")
        z_fetch(False)
        a.label(l3)
    a.label(l2)
    a(f"s_lshl_b32 s14, s64, 1\ns_add_u32 s14, s14, s65\ns_add_u32 s14, s14, 1280")
    tstamp(4)
    poll(lambda: a(f"buffer_load_dword v6, v4, {W}, 0 offen sc1"), [6], 1)
    tstamp(5)
    nld = []
    for ks in range(10):
        pr_, m = ks // 5, ks % 5
        if m < 4:
            a(f"buffer_load_dwordx4 {R(XF+4*ks)}, v{AK1}, {W}, s{10 if pr_ else 13} offen offset:{1024*m} sc1"); nld.append(1)
        else:
            for z in range(2): a(f"buffer_load_dwordx2 {R(XF+4*ks+2*z,2)}, v5, {W}, s15 offen offset:{1024*pr_ + 128*z} sc1")
            nld.append(2)
    l = a.newlabel()
    br_wave("lt", 4, l)
    for ks in range(6, 8): o_reads(ks)
    fin_addr2(1)
    a.label(l)
    tstamp(6)
    for ks in range(10):
        a(f"s_waitcnt vmcnt({sum(nld[ks+1:])})" + {0: " lgkmcnt(15)", 6: " lgkmcnt(15)", 8: " lgkmcnt(10)", 9: " lgkmcnt(0)"}.get(ks, ""))
        b = AF + 20 * (ks % 8)
        for nb in range(5):
            d = R(AC + 4 * nb)
            a(f"v_mfma_f32_16x16x32_bf16 {d}, {R(b+4*nb)}, {R(XF+4*ks)}, {'0' if ks == 0 else d}")
        if ks < 2: o_reads(8 + ks)
    tstamp(7)
    for nb in range(5): a(f"ds_write_b128 v54, {R(AC+4*nb)} offset:{64*nb}")
    a("s_waitcnt lgkmcnt(0)\ns_barrier")
    def fin_rd(i):
        b = 96 + 16 * i
        a(f"ds_read_b128 {R(b)}, v{FRD[i]}\nds_read_b128 {R(b+4)}, v{FRD[i]} offset:16")
        a(f"ds_read_b128 {R(b+8)}, v{FRD[i]} offset:{OKH}\nds_read_b128 {R(b+12)}, v{FRD[i]} offset:{OKH+16}")
    def fin_st(i):
        b = 96 + 16 * i
        for r in range(8): a(f"v_add_f32 v{b+r}, v{b+r}, v{b+8+r}")
        for r in range(4): a(f"v_cvt_pk_bf16_f32 v{b+8+r}, v{b+2*r}, v{b+2*r+1}")
        a(f"buffer_store_dwordx4 {R(b+8)}, v{FST[i]}, {SR_(S_C)}, s14 offen{OSFX}")
    l = a.newlabel()
    fin_rd(0)
    br_wave("ge", 2, l)
    fin_rd(1); a("s_waitcnt lgkmcnt(0)"); fin_st(1)
    a.label(l)
    a("s_waitcnt lgkmcnt(0)"); fin_st(0)
    a.label("L_fin")
    if STAMP:
        a(f"""
        s_memtime s[98:99]
        s_waitcnt lgkmcnt(0)
        s_mov_b32 s96, s98
        s_memrealtime s[98:99]
        s_waitcnt lgkmcnt(0)
        s_mov_b32 s97, s98
        s_add_u32 s72, s{P_WS}, {WS_STAMP}
        s_addc_u32 s73, s{P_WS+1}, 0
        s_mov_b32 s74, 0x40000
        s_mov_b32 s75, 0x20000
        s_lshl_b32 s76, s2, 3
        s_add_u32 s76, s76, s5
        s_lshl_b32 s76, s76, 7
        v_mov_b32 v2, 0
        """)
        for i in range(18): a(f"v_mov_b32 v3, s{80+i}\nbuffer_store_dword v3, v2, s[72:75], s76 offen offset:{4*i}")
    a.label("L_exit")
    a("s_endpgm")
    a.label(l_fb)
    FB = [28, 240]
    FB = [28, 114]
    a("s_waitcnt vmcnt(0)\ns_nop 15\ns_nop 3")
    raise_fb = True
    TB, M = 28, 36
    for j in range(4): a(f"v_mov_b32 v{M+j}, 0xff800000")
    a(f"s_mov_b32 s11, {WS_KV}\ns_mov_b32 s14, 64\ns_mov_b32 s13, 16")
    l_f = a.newlabel()
    a.label(l_f)
    loadK(TB, 0)
    a("s_waitcnt vmcnt(0)")
    for t in range(4): a(qk(t, TB, False))
    a(qr(0, TB)); a(qr(1, TB))
    for t in range(4):
        for i in range(8): a(f"v_max3_f32 v{M+t}, v{M+t}, v{SR+16*t+2*i}, v{SR+16*t+2*i+1}")
    a(f"s_add_u32 s11, s11, {TILE}\ns_sub_u32 s14, s14, 1\ns_cmp_lg_u32 s14, 0\ns_cbranch_scc1 {l_f}")
    for t in range(4):
        a(f"v_mov_b32 v{M+4}, v{M+t}\nv_permlane32_swap_b32 v{M+t}, v{M+4}\nv_max_f32 v{M+4}, v{M+4}, v{M+t}")
        for i in range(16): a(f"v_sub_f32 v{C+16*t+i}, 0, v{M+4}")
    a(f"v_mov_b32 v6, v{VT}\nv_mov_b32 v7, v{VT+1}")
    for i in range(4): a(f"v_mov_b32 v{52+i}, 0")
    for t in range(4): a(f"v_mfma_f32_32x32x16_bf16 {R(O+16*t,16)}, {R(52)}, {R(52)}, 0")
    kv_prologue([28, 42])
    main_loop([28, 42], True)
    a(f"s_waitcnt vmcnt(0)\nv_mov_b32 v{VT}, v6\nv_mov_b32 v{VT+1}, v7"); fin_addr(); a(f"s_nop 7\ns_nop 7\ns_branch {l_after}")
    return a.finalize(verbose=bool(E("VERB")))

def build():
    hdr = open(f"cdna_kernels/{NAME}.s.ref").read().split("; @launch")[0]
    k = NAME + "_kernel"
    body = build_kernel()
    return hdr + f"""; @launch grid=(256,1,1) block=(512,1,1) lds=163840
.amdgcn_target "amdgcn-amd-amdhsa--gfx950"
.text
.globl {k}
.p2align 8
.type {k},@function
{k}:
{body}.section .rodata,"a"
.p2align 6
.amdhsa_kernel {k}
  .amdhsa_next_free_vgpr 256
  .amdhsa_next_free_sgpr 100
  .amdhsa_accum_offset 256
  .amdhsa_group_segment_fixed_size 0
  .amdhsa_kernarg_size 112
  .amdhsa_user_sgpr_count 2
  .amdhsa_user_sgpr_kernarg_segment_ptr 1
  .amdhsa_system_sgpr_workgroup_id_x 1
.end_amdhsa_kernel
"""

if __name__ == "__main__":
    path = sys.argv[1] if len(sys.argv) > 1 else "fused7.s"
    open(path, "w").write(build())
    print("wrote", path)
```

```python
import sys, math, struct, os
sys.path.insert(0, "gen")
from asmlib import Asm

NAME = "concat_heads__ssm_conv_h3__grouped_kv_mqa__prompt"
S, D, H, DH = 2048, 640, 32, 20
ACT = S * D * 2
WS_E, WS_F1, WS_F2, WS_F3, WS_F4 = 0, 1024, 4096, 12288, 16384
WS_KV = 32768
TILE = 2816
KR_OFF, K1_OFF, V0_OFF, V1_OFF = 0, 256, 1280, 2048
WS_O = 0x40000
OPB = 20480
WS_Z = WS_O + ACT
WS_XT = WS_Z + ACT
WS_END = WS_XT + 2 * ACT
WS_STAMP = 0x2000000
QSCALE = (DH ** -0.5) * math.log2(math.e)
E = os.environ.get
STAMP = E("STAMP", "0") == "1"
TAILST = E("TAILST")
SPIN = 1 << 17
OSFX = " " + E("OSFX", "nt")
KVSC = " sc1"
KVL = " sc1" if E("KVSC1") else ""

def f2u(x): return struct.unpack("<I", struct.pack("<f", x))[0]
P_AQ, P_AK, P_AV, P_SH, P_SK, P_SD, P_X, P_WQ, P_WK, P_WV, P_WO, P_OUT, P_DBG, P_WS = [16 + 2 * i for i in range(14)]
S_WS, S_A, S_B, S_C, S_D = 44, 48, 52, 56, 60
TAG = 78
def R(b, n=4): return f"v[{b}:{b+n-1}]"
def SR_(b): return f"s[{b}:{b+3}]"
W = SR_(S_WS)

L_W = 81920; GSLOT = 20480
L_WKV = 163840 - 25600
L_Q = 102400; QSTR = 176
L_STAT = L_Q + 64 * QSTR
L_RED = 113920
L_CONV = 113920; CVS = 15360
L_OUT = 102400
L_SK, L_SV, L_KT = 0, 16384, 27648
WO_LOW = 45

a = Asm()
def srd(r, ptr, nbytes, off=0):
    if off:
        a(f"s_add_u32 s{r}, s{ptr}, {off}\ns_addc_u32 s{r+1}, s{ptr+1}, 0")
    else:
        a(f"s_mov_b32 s{r}, s{ptr}\ns_mov_b32 s{r+1}, s{ptr+1}")
    a(f"s_mov_b32 s{r+2}, {nbytes}\ns_mov_b32 s{r+3}, 0x20000")
def _st(i, op="s_memtime"): a(f"{op} s[98:99]\ns_waitcnt lgkmcnt(0)\ns_mov_b32 s{80+i}, s98")
def stamp(i):
    if STAMP and not (TAILST and 1 <= i <= 7): _st(i)
def tstamp(i):
    if STAMP and TAILST: _st(i)
def rstamp(i):
    if STAMP: _st(i, "s_memrealtime")
def br_wave(op, n, lab): a(f"s_cmp_{op}_u32 s5, {n}\ns_cbranch_scc1 {lab}")
def poll(load_fn, tagregs, sleep=2, cnt="vmcnt", val=None, op="ne", skipfirst=False, fail=None):
    val = val or f"s{TAG}"
    l, d = a.newlabel(), a.newlabel()
    a(f"s_mov_b32 s96, {SPIN}")
    if skipfirst:
        l0 = a.newlabel(); a(f"s_branch {l0}")
    a.label(l)
    load_fn()
    if skipfirst: a.label(l0)
    a(f"s_waitcnt {cnt}(0)")
    for i, t in enumerate(tagregs):
        if i == 0: a(f"v_cmp_{op}_u32 s[8:9], {val}, v{t}")
        else: a(f"v_cmp_ne_u32 vcc, {val}, v{t}\ns_or_b64 s[8:9], s[8:9], vcc")
    if fail:
        a(f"s_cmp_eq_u64 s[8:9], 0\ns_cbranch_scc0 {fail}"); return
    a(f"""
    s_cmp_eq_u64 s[8:9], 0
    s_cbranch_scc1 {d}
    s_sleep {sleep}
    s_sub_u32 s96, s96, 1
    s_cmp_lg_u32 s96, 0
    s_cbranch_scc1 {l}
    """)
    a.label(d)
def flag_store(soff_sgpr, vt):
    a(f"v_mov_b32 v{vt}, s{TAG}\nv_mov_b32 v{vt+1}, 0")
    a(f"s_mov_b64 exec, 1")
    a(f"buffer_store_dword v{vt}, v{vt+1}, {W}, s{soff_sgpr} offen sc1")
    a(f"s_mov_b64 exec, -1")
def wpat(dst, qbase, x4):
    a(f"""
    v_add_u32 v4, {qbase}, v1
    v_mul_u32_u24 v5, 6554, v4
    v_lshrrev_b32 v5, 16, v5
    v_mul_u32_u24 v6, 10, v5
    v_sub_u32 v6, v4, v6
    """)
    if x4: a("v_lshrrev_b32 v7, 1, v5\nv_and_b32 v7, 4, v7\nv_xor_b32 v5, v5, v7")
    a(f"v_mul_u32_u24 v5, 1280, v5\nv_lshl_add_u32 v{dst}, v6, 4, v5")

def build_kernel():
    if STAMP: a("s_memtime s[80:81]\ns_memrealtime s[92:93]")
    a(f"""
    s_cmp_ge_u32 s2, 256
    s_cbranch_scc1 L_exit
    s_load_dwordx16 s[16:31], s[0:1], 0
    s_load_dwordx8 s[32:39], s[0:1], 64
    s_load_dwordx4 s[40:43], s[0:1], 96
    v_lshrrev_b32 v1, 6, v0
    s_and_b32 s7, s2, 7
    s_lshl_b32 s3, s7, 2
    s_lshr_b32 s4, s2, 3
    v_readfirstlane_b32 s5, v1
    s_and_b32 s6, s4, 3
    s_add_u32 s3, s3, s6          ; s3 = pb64
    s_lshr_b32 s4, s4, 2          ; s4 = hg
    v_and_b32 v1, 63, v0          ; lane
    v_and_b32 v2, 15, v1          ; p
    v_lshrrev_b32 v3, 4, v1       ; kg
    s_mul_i32 s64, s3, {64*1280}
    s_mul_i32 s65, s4, 160
    s_add_u32 s66, s6, s7
    s_mul_i32 s8, s66, 52
    s_lshr_b32 s8, s8, 8
    s_mul_i32 s8, s8, 5
    s_sub_u32 s66, s66, s8
    s_and_b32 s67, s4, 3          ; pbk
    """)
    VD, VXR, VTR, VQW, VEX = 28, 34, 36, 38, 46
    VKR, VK4, VK5 = 40, 42, 43
    ACC, GF = 64, 96
    QM, QR = 8, 24
    O, SR, C = 64, 128, 192
    KBH = [192, 206, 220, 234]
    AK1, AKR, AV = 62, 63, 61
    PV, QA, VS, VT, AE = 56, 176, 44, 52, 48
    B0, B1, PA, PB = 16, 20, 64, 68
    KT_W, KT_R, KT_G, KT_S, VW2 = 240, 241, 242, 243, 244
    VA, V_B, V_ZW, V_ZS, V_HD, V_F2 = 228, 232, 233, 234, 235, 236
    VWO = 224
    WRAW = [216, 220]
    L_EX = 32768
    PW = int(E('PW', '3'))
    def gwrap(sreg, step):
        a(f"s_add_u32 s{sreg}, s{sreg}, {step}\ns_cmp_ge_u32 s{sreg}, {5*step}\ns_cselect_b32 s{sreg}, 0, s{sreg}")
    def shift2(r, d): a(f"v_add_u32 v{r}, {d & 0xffffffff}, v{r}\nv_add_u32 v{r+1}, {d & 0xffffffff}, v{r+1}")
    def loadK(buf, off):
        a(f"buffer_load_dwordx4 {R(buf)}, v{AK1}, {W}, s11 offen offset:{off + K1_OFF}{KVSC}")
        a(f"buffer_load_dwordx2 {R(buf+4,2)}, v{AKR}, {W}, s11 offen offset:{off + KR_OFF}{KVSC}")
    def loadV(buf, off):
        a(f"buffer_load_dwordx4 {R(buf+6)}, v{AV}, {W}, s11 offen offset:{off + V0_OFF}{KVSC}")
        a(f"buffer_load_dwordx4 {R(buf+10)}, v{AV}, {W}, s11 offen offset:{off + V1_OFF}{KVSC}")
    def kv_prologue(kb, part=None):
        nb = len(kb)
        if part != 1:
            a("s_mov_b32 s11, s79")
            loadK(kb[0], 0)
        for j in range(nb - 1):
            if (part == 0 and j > 0) or (part == 1 and j == 0): continue
            loadV(kb[j], 0); loadK(kb[j + 1], TILE); a(f"s_add_u32 s11, s11, {TILE}")
    def tail_addr(hi):
        T = 192
        a(f"""
        s_and_b32 s76, s5, 1
        s_lshr_b32 s77, s5, 1
        v_lshlrev_b32 v{AK1}, 4, v1
        v_bfe_u32 v{T}, v1, 4, 1
        v_mul_u32_u24 v{T}, {OPB}, v{T}
        v_lshl_add_u32 v{PV+3}, v2, 3, v{T}
        v_lshl_add_u32 v{T}, v2, 4, v{T}
        v_lshrrev_b32 v{T+1}, 5, v1
        v_lshl_add_u32 v{PV+2}, v{T+1}, 8, v{T}
        s_lshl_b32 s8, s3, 2
        s_lshl_b32 s9, s76, 1
        s_add_u32 s8, s8, s9
        s_mul_i32 s8, s8, {OPB}
        s_add_u32 s8, s8, {WS_O}
        s_lshl_b32 s9, s4, 2
        s_add_u32 s9, s9, s77
        s_lshl_b32 s72, s9, 9
        s_add_u32 s72, s72, s8
        s_lshl_b32 s73, s9, 7
        s_add_u32 s73, s73, s8
        s_add_u32 s73, s73, 16384
        s_lshl_b32 s74, s3, 1
        s_add_u32 s74, s74, s76
        s_lshl_b32 s74, s74, 5
        s_add_u32 s74, s74, s9
        s_lshl_b32 s74, s74, 2
        s_add_u32 s74, s74, {WS_F4}
        """)
        for j, i in enumerate((0, 1) if hi else (2, 3)):
            a(f"""
            s_xor_b32 s8, s5, {2*i}
            s_and_b32 s8, s8, 3
            s_mul_i32 s8, s8, 9216
            s_add_u32 s8, s8, {L_RED + 3072*max(i-1, 0)}
            v_add_u32 v{PV+j}, s8, v{AK1}
            """)
    def hi_addr():
        T = 192
        a(f"""
        v_and_b32 v{T}, 31, v1
        v_lshlrev_b32 v{AKR}, 3, v{T}
        v_lshrrev_b32 v{T+2}, 3, v{T}
        v_and_b32 v{T+3}, 3, v{T}
        v_lshl_add_u32 v{T+2}, v{T+2}, 2, v{T+3}
        v_bfe_u32 v{T+3}, v{T}, 2, 1
        v_mad_u32_u24 v{T+3}, v{T+3}, 10, v{T+2}
        v_mad_u32_u24 v{T+3}, v{T+1}, 20, v{T+3}
        v_cmp_gt_u32 s[8:9], 10, v{T+2}
        v_cmp_lt_u32 vcc, 10, v{T+2}
        v_mov_b32 v{T+4}, 40
        v_cndmask_b32 v{T+3}, v{T+4}, v{T+3}, s[8:9]
        v_lshlrev_b32 v{AV}, 4, v{T+3}
        v_mov_b32 v{T+4}, 0x40000000
        v_cndmask_b32 v{AV}, v{AV}, v{T+4}, vcc
        s_and_b32 s8, s77, 1
        s_mul_i32 s79, s8, {32*TILE}
        s_add_u32 s79, s79, {WS_KV}
        s_mul_i32 s8, s76, {32*QSTR}
        s_add_u32 s8, s8, {L_Q}
        v_mul_u32_u24 v{T+2}, {QSTR}, v{T}
        v_add_u32 v{T+2}, s8, v{T+2}
        v_lshl_add_u32 v{T+3}, v{T+1}, 4, v{T+2}
        v_xor_b32 v{T+4}, s77, v{T+1}
        v_xor_b32 v{T+5}, 2, v{T+4}
        v_mad_u32_u24 v{QA+4}, v{T+4}, 40, v{T+2}
        v_mad_u32_u24 v{QA+5}, v{T+5}, 40, v{T+2}
        """)
        for i in range(4):
            a(f"s_xor_b32 s8, s77, {i}\ns_mul_i32 s8, s8, 40\nv_add_u32 v{QA+i}, s8, v{T+3}")
        for i in range(4): a(f"v_mov_b32 v{KBH[-1]+10+i}, 0")
    def lo_addr():
        T = 192
        a(f"""
        s_mul_i32 s68, s5, 4224
        s_add_u32 s68, s68, {L_KT}
        v_and_b32 v4, 7, v1
        v_mul_u32_u24 v{T}, 528, v4
        v_lshrrev_b32 v5, 3, v1
        v_sub_u32 v{T+1}, 7, v5
        v_bfe_u32 v{T+2}, v{T+1}, 1, 1
        v_lshl_add_u32 v{T}, v{T+2}, 7, v{T}
        v_lshrrev_b32 v{T+2}, 2, v{T+1}
        v_lshl_add_u32 v{T}, v{T+2}, 6, v{T}
        v_and_b32 v{T+2}, 1, v{T+1}
        v_lshl_add_u32 v{T}, v{T+2}, 5, v{T}
        v_add_u32 v{KT_W}, s68, v{T}
        v_lshrrev_b32 v{T+1}, 5, v1
        v_lshlrev_b32 v{T+2}, 4, v{T+1}
        v_add3_u32 v{KT_R}, v{AK1}, v{T+2}, s68
        v_lshlrev_b32 v{T+3}, 12, v5
        v_lshl_add_u32 v{KT_G}, v4, 4, v{T+3}
        v_mul_u32_u24 v{T+3}, 1280, v5
        v_lshl_add_u32 v{T+3}, v4, 2, v{T+3}
        s_lshl_b32 s8, s5, 5
        v_add_u32 v{KT_S}, s8, v{T+3}
        ; convolution
        s_mul_i32 s68, s5, {CVS}
        s_add_u32 s68, s68, {L_CONV}
        v_and_b32 v{T}, 31, v1
        v_lshlrev_b32 v{V_F2}, 2, v{T}
        v_sub_u32 v{T+3}, v{V_F2}, v{T+2}
        v_add3_u32 v{VA}, v{T+3}, 16, s68
        v_add_u32 v{VA+1}, 1024, v{VA}
        v_add_u32 v{VA+2}, 2048, v{VA}
        v_add_u32 v{VA+3}, 3072, v{VA}
        v_lshrrev_b32 v{T+2}, 1, v{T}
        v_lshl_add_u32 v{T+2}, v{T+2}, 1, v{T+1}
        v_sub_u32 v{T+2}, 31, v{T+2}
        v_lshlrev_b32 v{T+2}, 5, v{T+2}
        v_and_b32 v{T+3}, 1, v{T}
        v_lshl_add_u32 v{T+2}, v{T+3}, 4, v{T+2}
        v_add_u32 v{V_B}, s68, v{T+2}
        v_mul_u32_u24 v{T+2}, 2080, v{T+1}
        v_lshl_add_u32 v{T+2}, v{T}, 4, v{T+2}
        v_add_u32 v{V_ZW}, s68, v{T+2}
        v_lshrrev_b32 v{T+2}, 2, v{T}
        v_lshlrev_b32 v{T+2}, 7, v{T+2}
        v_lshl_add_u32 v{T+2}, v{T+1}, 6, v{T+2}
        v_and_b32 v{T+3}, 3, v{T}
        v_lshl_add_u32 v{V_ZS}, v{T+3}, 4, v{T+2}
        v_subrev_u32 v{V_HD}, 64, v{AK1}
        v_cmp_lt_u32 s[8:9], 19, v1
        v_cndmask_b32 v{T}, 0, 1, s[8:9]
        v_mul_u32_u24 v{T+1}, 20, v{T}
        v_sub_u32 v{T+1}, v1, v{T+1}
        s_lshl_b32 s8, s76, 5
        s_lshl_b32 s9, s77, 3
        s_add_u32 s8, s8, s9
        s_add_u32 s8, s8, 1
        v_sub_u32 v{T+2}, s8, v{T}
        v_mul_u32_u24 v{T+2}, 1280, v{T+2}
        v_add_u32 v{T+2}, s64, v{T+2}
        v_lshl_add_u32 v{T+3}, v{T+1}, 3, s65
        v_lshl_add_u32 v{AE+1}, v{T+2}, 1, v{T+3}
        v_add_u32 v{AE}, v{T+2}, v{T+3}
        v_lshlrev_b32 v{AE+2}, 1, v{T+3}
        v_lshlrev_b32 v{T+3}, 11, v{T+3}
        v_lshl_add_u32 v{AE+3}, v{T}, 4, v{T+3}
        """)
    def stage(ptr, halo, base):
        if E("NOSTG"): return
        srd(S_D, ptr, ACT)
        a(f"s_add_u32 s8, s64, s65\ns_sub_u32 s8, s8, {halo*1280}")
        for i in range(11):
            if i < 5:
                a(f"v_add_u32 v4, s8, v{VW2 + i}\ns_mov_b32 m0, {base + 1024*i}\nbuffer_load_dwordx4 v4, {SR_(S_D)}, 0 offen lds")
            else:
                if i % 5 == 0: a(f"s_add_u32 s8, s8, {32*1280}")
                a(f"s_mov_b32 m0, {base + 1024*i}\nbuffer_load_dwordx4 v{VW2 + i % 5}, {SR_(S_D)}, s8 offen lds")
    def sync_init():
        a(f"""
        v_mov_b32 v4, 0
        v_mov_b32 v5, 0
        v_mov_b32 v6, 0
        v_mov_b32 v7, 8
        ds_write_b64 v{VS}, v[4:5]
        ds_write_b32 v{VS}, v4 offset:8
        ds_write_b32 v{VS}, v7 offset:16
        """)
    def only(w, fn):
        l = a.newlabel(); br_wave("lg", w, l); fn(); a.label(l)
    def publish_kv():
        l_v2, l_stat = a.newlabel(), a.newlabel()
        a(f"v_mov_b32 v8, 0\ns_cmp_ge_u32 s4, 4\ns_cbranch_scc1 {l_v2}")
        for i in range(4): a(f"v_dot2c_f32_bf16 v8, v{PA+i}, v{PA+i}")
        a(f"""
        v_mov_b32 v9, v8
        v_permlane32_swap_b32 v8, v9
        v_add_f32 v8, v8, v9
        v_dot2c_f32_bf16 v8, v{PB}, v{PB}
        v_dot2c_f32_bf16 v8, v{PB+1}, v{PB+1}
        s_nop 2
        s_branch {l_stat}
        """)
        a.label(l_v2)
        for b in range(B0, B0 + 8, 2): a(f"v_max3_f32 v8, v8, |v{b}|, |v{b+1}|")
        a("""
        v_mov_b32 v9, v8
        v_permlane16_swap_b32 v8, v9
        v_max_f32 v8, v8, v9
        v_mov_b32 v9, v8
        v_permlane32_swap_b32 v8, v9
        v_max_f32 v8, v8, v9
        s_nop 1
        """)
        a.label(l_stat)
        for sh in (1, 2, 4, 8):
            a(f"v_max_f32_dpp v8, v8, v8 row_shr:{sh} row_mask:0xf bank_mask:0xf")
        a("v_readlane_b32 s69, v8, 15")
        a(f"""
        s_lshl_b32 s8, s3, 3
        s_add_u32 s8, s8, s4
        s_lshl_b32 s8, s8, 3
        s_getreg_b32 s9, hwreg(HW_REG_XCC_ID, 0, 4)
        s_andn2_b32 s69, s69, 15
        s_or_b32 s69, s69, s9
        v_mov_b32 v4, s69
        v_mov_b32 v5, s{TAG}
        v_mov_b32 v6, 0
        s_waitcnt vmcnt(0)
        s_mov_b64 exec, 1
        buffer_store_dwordx2 v[4:5], v6, {W}, s8 offen offset:{WS_F1} sc1
        s_mov_b64 exec, -1
        """)

    def gemm_addr(cg):
        a(f"""
        v_mov_b32 v{VS}, {L_STAT}
        s_and_b32 s6, s77, 1
        v_lshrrev_b32 v4, 1, v2
        v_xor_b32 v4, v4, v3
        v_lshlrev_b32 v5, 7, v2
        v_lshl_add_u32 v39, v4, 4, v5
        s_lshl_b32 s7, s76, 1
        s_add_u32 s7, s7, s6
        s_lshl_b32 s8, s7, 11
        s_lshl_b32 s9, s6, 6
        v_xor_b32 v4, s9, v39
        v_add_u32 v{VXR}, s8, v4
        v_xor_b32 v{VXR+1}, 0x800, v{VXR}
        v_bfe_u32 v4, v1, 2, 2
        v_lshl_add_u32 v4, v3, 3, v4
        v_and_b32 v5, 1, v3
        v_lshl_add_u32 v6, v5, 2, v4
        v_xor_b32 v7, 4, v6
        v_and_b32 v5, 3, v1
        v_lshlrev_b32 v5, 3, v5
        s_movk_i32 s9, 160
        v_mad_u32_u24 v6, v6, s9, v5
        v_mad_u32_u24 v7, v7, s9, v5
        s_mul_i32 s8, s6, 5120
        s_add_u32 s8, s8, {L_W + 96*cg}
        v_add_u32 v{VTR}, s8, v6
        v_add_u32 v{VTR+1}, s8, v7
        s_mul_i32 s8, s76, 51200
        v_add_u32 v{VT}, s8, v6
        v_add_u32 v{VT+1}, s8, v7
        s_mul_i32 s8, s7, {16*QSTR}
        s_add_u32 s8, s8, {L_Q + 96*cg}
        v_mul_u32_u24 v4, {QSTR}, v2
        v_lshl_add_u32 v4, v3, 3, v4
        v_add_u32 v{VQW}, s8, v4
        s_mul_i32 s8, s5, 3072
        s_add_u32 s8, s8, {L_EX}
        v_add_u32 v{VEX}, s8, v{AK1}
        s_xor_b32 s8, s5, 2
        s_mul_i32 s8, s8, 3072
        s_add_u32 s8, s8, {L_EX}
        v_add_u32 v{VEX+1}, s8, v{AK1}
        """)
    def got_args():
        a(f"s_waitcnt lgkmcnt(0)\ns_load_dword s{TAG}, s[{P_WS}:{P_WS+1}], {WS_E}")
        if STAMP: a("s_mov_b32 s93, s92")
    def got_tag():
        a(f"s_waitcnt lgkmcnt(0)\ns_mul_i32 s{TAG}, s{TAG}, 0x9E3779B1\ns_add_u32 s{TAG}, s{TAG}, 0x7F4A7C15")
    def x_issue(g):
        a(f"s_add_u32 s8, s10, s12\ns_add_u32 s9, s8, {8*1280}")
        for hs in range(2):
            for par in range(2):
                a(f"s_add_u32 m0, s11, {(2*g+hs)*8192 + 1024*par - 128*hs}")
                a(f"buffer_load_dwordx4 v{VD+par}, {SR_(S_A)}, s{8+par} offen offset:{128*hs} lds")
        if g < 4: gwrap(12, 256)
    def wkv_issue(g):
        a(f"s_mov_b32 m0, {L_WKV + 5120*g}")
        for i in range(4):
            a(f"buffer_load_dwordx4 v{AK1}, {SR_(S_C)}, s13 offen offset:{1024*i} lds")
        a(f"s_mov_b32 m0, {L_WKV + 5120*g + 4096}\ns_add_u32 s8, s13, 4096")
        a(f"buffer_load_dwordx4 v{AK1}, {SR_(S_C)}, s8 offen lds")
        if g < 4: gwrap(13, 5120)
    def w_issue(g):
        a(f"s_add_u32 s8, s10, s12")
        for n in range(5):
            a(f"s_add_u32 m0, s11, {(g % 4)*GSLOT + 1024*n}")
            a(f"buffer_load_dwordx4 v{VD+n}, {SR_(S_B)}, s8 offen lds")
        if g < 4: gwrap(12, 128 * 1280)
    def q_stage(nblk, gs, xb, wb, mid=None):
        steps = [(g, hs) for g in gs for hs in range(2)]
        per = 2 + 2 * nblk
        for n, (g, hs) in enumerate(steps):
            b = GF + 20 * n
            for pl in range(2): a(f"ds_read_b128 {R(b+4*pl)}, v{VXR+pl} offset:{(2*g + hs)*8192 - xb}")
            for nb in range(nblk):
                off = (g % 4) * GSLOT + hs * 10240 + nb * 32 - wb
                for z in range(2): a(f"ds_read_b64_tr_b16 {R(b+8+4*nb+2*z,2)}, v{VTR+z} offset:{off}")
        if mid: mid()
        for n in range(len(steps)):
            a(f"s_waitcnt lgkmcnt({min(15, per * (len(steps) - 1 - n))})")
            b = GF + 20 * n
            for nb in range(nblk):
                for pl in range(2):
                    d = R(ACC + 12 * pl + 4 * nb)
                    a(f"v_mfma_f32_16x16x32_bf16 {d}, {R(b+8+4*nb)}, {R(b+4*pl)}, {'0' if (gs[0] == 0 and n == 0) else d}")
    def ld1():
        a(f"buffer_load_dwordx4 v[8:11], v45, {W}, 0 offen offset:{WS_F1} sc1")
        a(f"buffer_load_dwordx4 v[12:15], v45, {W}, 0 offen offset:{WS_F1+16} sc1")
    def q_path(cg):
        nblk = 3 if cg == 0 else 2
        stamp(2)
        a("s_barrier")
        stamp(3)
        q_stage(nblk, [0], 0, 0, (lambda: (only(7, lambda: w_issue(2)), w_issue(3))) if cg else None)
        a(f"s_waitcnt vmcnt({10 if cg else 0})")
        a("s_barrier")
        q_stage(nblk, [1], 0, 0, (lambda: w_issue(4)) if cg else None)
        shift2(VTR, 2 * GSLOT)
        if cg: a("s_waitcnt vmcnt(5)")
        a("s_barrier")
        stamp(4)
        q_stage(nblk, [2, 3], 0, 2 * GSLOT, None if cg else (lambda: only(PW, ld1)))
        shift2(VTR, -2 * GSLOT); shift2(VXR, 65536)
        if cg: a("s_waitcnt vmcnt(0)")
        else: only(PW, lambda: poll(ld1, [9, 11, 13, 15], 1, skipfirst=True)); only(2, sync_init)
        a("s_barrier")
        stamp(5)
        if not cg and E("INV"): only(2, lambda: a("buffer_inv sc1"))
        q_stage(nblk, [4], 65536, 0, (lambda: kv_prologue(KBH, 0)) if cg else None)
        for nb in range(nblk): a(f"ds_write_b128 v{VEX}, {R(ACC+12+4*nb)} offset:{1024*nb}")
        if not cg and not E("NOSVC") and not E("LATEK"): only(3, lambda: stage(P_AK, 4, L_SK))
        a(f"s_mov_b32 s8, 0xffff0000\ns_mov_b32 s9, {f2u(QSCALE)}")
        a("s_waitcnt lgkmcnt(0)\ns_barrier")
        for nb in range(nblk): a(f"ds_read_b128 {R(ACC+12+4*nb)}, v{VEX+1} offset:{1024*nb}")
        if cg and not E("LATEP"): kv_prologue(KBH, 1)
        for nb in range(nblk):
            b = ACC + 4 * nb
            a(f"s_waitcnt lgkmcnt({min(nblk - 1, nblk - 1 - nb + nb)})" if nb == 0 else f"s_waitcnt lgkmcnt({nblk - 1})")
            for r in range(4): a(f"v_add_f32 v{b+r}, v{b+r}, v{b+12+r}")
            for r in range(4): a(f"v_mul_f32 v{b+r}, s9, v{b+r}")
            for p in range(2): a(f"v_cvt_pk_bf16_f32 v{88+2*nb+p}, v{b+2*p}, v{b+2*p+1}")
            a(f"ds_write_b64 v{VQW}, {R(88+2*nb,2)} offset:{32*nb}")
        if not cg and E("INV"): only(2, lambda: a("s_waitcnt vmcnt(0)"))
        a("s_waitcnt lgkmcnt(0)\ns_barrier")
        stamp(7)
    OSTR = 336; OKH = 64 * OSTR
    FRD, FST = [94, 95], [60, 55]
    def fin_addr():
        a(f"""
        v_mul_u32_u24 v54, {OSTR}, v2
        v_lshl_add_u32 v54, v3, 4, v54
        s_mul_i32 s8, s77, {16*OSTR}
        s_mul_i32 s9, s76, {OKH}
        s_add_u32 s8, s8, s9
        s_add_u32 s8, s8, {L_OUT}
        v_add_u32 v54, s8, v54
        """)
    def fin_addr2(n):
        for i in range(n):
            a(f"""
            v_add_u32 v84, {512*i}, v0
            v_mul_u32_u24 v85, 6554, v84
            v_lshrrev_b32 v85, 16, v85
            v_mul_u32_u24 v86, 10, v85
            v_sub_u32 v86, v84, v86
            v_mul_u32_u24 v{FRD[i]}, {OSTR}, v85
            v_lshl_add_u32 v{FRD[i]}, v86, 5, v{FRD[i]}
            v_add_u32 v{FRD[i]}, {L_OUT}, v{FRD[i]}
            v_mul_u32_u24 v{FST[i]}, 2560, v85
            v_lshl_add_u32 v{FST[i]}, v86, 4, v{FST[i]}
            """)
    def lds_add(off, val):
        a(f"v_mov_b32 v4, {val}\ns_mov_b64 exec, 1\nds_add_u32 v{VS}, v4 offset:{off}\ns_mov_b64 exec, -1")
    def lds_wait(off, val, op, sleep):
        poll(lambda: a(f"ds_read_b32 v4, v{VS} offset:{off}"), [4], sleep, "lgkmcnt", str(val), op)
    l_cg1, l_R, l_x, l_lo1 = a.newlabel(), a.newlabel(), a.newlabel(), a.newlabel()
    br_wave("ge", 4, l_cg1)
    a(f"""
    v_lshrrev_b32 v4, 3, v1
    v_mul_u32_u24 v4, 1280, v4
    v_and_b32 v5, 7, v1
    v_xor_b32 v5, v5, v3
    v_lshl_add_u32 v{VD}, v5, 4, v4
    v_xor_b32 v{VD+1}, 64, v{VD}
    s_add_u32 s8, s67, s5
    s_and_b32 s8, s8, 3
    s_mul_i32 s10, s8, {16*1280}
    s_add_u32 s10, s10, s64
    s_lshl_b32 s11, s8, 11
    s_lshl_b32 s12, s66, 8
    s_mul_i32 s13, s66, 5120
    v_lshlrev_b32 v45, 5, v1
    """)
    tail_addr(False); gemm_addr(0); fin_addr()
    br_wave("lg", 0, l_x)
    a(f"""
    v_add_u32 v{VKR}, s11, v39
    v_xor_b32 v{VKR+1}, 64, v{VKR}
    v_bfe_u32 v4, v1, 2, 2
    v_lshl_add_u32 v4, v3, 3, v4
    v_mul_u32_u24 v4, 40, v4
    v_add_u32 v{VK4}, {L_WKV}, v4
    v_and_b32 v5, 3, v1
    v_lshl_add_u32 v{VK5}, v5, 3, v{VK4}
    """)
    for n in range(15): a(f"v_mov_b32 v{(VW2 + n) if n < 5 else (VWO + n - 5)}, -1")
    got_args()
    a(f"""
    s_cmp_ge_u32 s4, 4
    s_cselect_b32 s{S_C}, s{P_WV}, s{P_WK}
    s_cselect_b32 s{S_C+1}, s{P_WV+1}, s{P_WK+1}
    s_mov_b32 s{S_C+2}, 25600
    s_mov_b32 s{S_C+3}, 0x20000
    """)
    srd(S_A, P_X, ACT)
    KORD = E("KORD", "wx")
    if KORD == "wx":
        for g in range(5): wkv_issue(g)
        for g in range(5):
            x_issue(g)
            if str(g) == E("B0"): a("s_barrier")
        wv = [40 - 5 * g for g in range(5)]; xv = [16 - 4 * g for g in range(5)]
    else:
        for g in range(5): x_issue(g)
        for g in range(5): wkv_issue(g)
        wv = [20 - 5 * g for g in range(5)]; xv = [0] * 5
    if not E("B0"): a("s_barrier")
    stamp(1)
    srd(S_WS, P_WS, WS_END)
    got_tag()
    WPF, XT_ = 96, 72
    for g in range(5):
        a(f"s_waitcnt vmcnt({wv[g]})")
        for s_ in range(4):
            ks = 4 * g + s_; b = WPF + 8 * ks
            a(f"ds_read_b64_tr_b16 {R(b,2)}, v{VK5} offset:{ks*1280}")
            a(f"ds_read_b64_tr_b16 {R(b+2,2)}, v{VK5} offset:{ks*1280+160}")
            a(f"ds_read_b64_tr_b16 {R(b+4,2)}, v{VK4} offset:{ks*1280+32}")
            a(f"ds_read_b64_tr_b16 {R(b+6,2)}, v{VK4} offset:{ks*1280+192}")
    a(f"""
    s_lshr_b32 s12, s67, 1
    s_lshl_b32 s14, s3, 1
    s_add_u32 s12, s12, s14
    s_mul_i32 s12, s12, {TILE}
    s_add_u32 s12, s12, {WS_KV}
    s_and_b32 s10, s67, 1
    """)
    def kvpart(isv):
        for g in range(5):
            if g == 4: shift2(VKR, 65536)
            a(f"s_waitcnt vmcnt({xv[g]})")
            for s_ in range(4): a(f"ds_read_b128 {R(XT_+4*s_)}, v{VKR+(s_&1)} offset:{((2*g + (s_>>1)) % 8) * 8192}")
            for s_ in range(4):
                a(f"s_waitcnt lgkmcnt({3-s_})")
                for blk in range(2):
                    d = R(B0 + 4 * blk); c = "0" if (g == 0 and s_ == 0) else d
                    w_, x_ = R(WPF + 8 * (4 * g + s_) + 4 * blk), R(XT_ + 4 * s_)
                    a(f"v_mfma_f32_16x16x32_bf16 {d}, {x_ if isv else w_}, {w_ if isv else x_}, {c}")
    def pack(b, dst, swap):
        a(f"""
        v_cvt_pk_bf16_f32 v{dst}, v{b}, v{b+1}
        v_cvt_pk_bf16_f32 v{dst+1}, v{b+2}, v{b+3}
        v_cvt_pk_bf16_f32 v{dst+2}, v{b}, v{b+1}
        v_cvt_pk_bf16_f32 v{dst+3}, v{b+2}, v{b+3}
        {swap} v{dst}, v{dst+2}
        {swap} v{dst+1}, v{dst+3}
        """)
    l_v, l_pub = a.newlabel(), a.newlabel()
    a(f"s_cmp_ge_u32 s4, 4\ns_cbranch_scc1 {l_v}")
    a(f"""
    s_lshl_b32 s10, s10, 4
    v_add_u32 v5, s10, v2
    v_lshrrev_b32 v6, 1, v3
    v_lshl_add_u32 v6, v6, 5, v5
    v_lshlrev_b32 v6, 4, v6
    v_lshlrev_b32 v5, 3, v5
    """)
    kvpart(False)
    pack(B0, PA, "v_permlane16_swap_b32")
    a(f"""
    v_cvt_pk_bf16_f32 v{PB}, v{B1}, v{B1+1}
    v_cvt_pk_bf16_f32 v{PB+1}, v{B1+2}, v{B1+3}
    s_mov_b32 exec_lo, 0xffff
    s_mov_b32 exec_hi, 0xffff
    buffer_store_dwordx4 {R(PA)}, v6, {W}, s12 offen offset:{K1_OFF} sc1
    s_mov_b64 exec, 0xffff
    buffer_store_dwordx2 {R(PB,2)}, v5, {W}, s12 offen offset:{KR_OFF} sc1
    s_mov_b64 exec, -1
    s_branch {l_pub}
    """)
    a.label(l_v)
    a(f"""
    s_mul_i32 s10, s10, {V1_OFF - V0_OFF}
    s_add_u32 s12, s12, s10
    v_and_b32 v5, 1, v3
    v_mul_u32_u24 v5, 20, v5
    v_add_u32 v6, v5, v2
    v_lshlrev_b32 v6, 4, v6
    v_cmp_lt_u32 s[14:15], 3, v2
    v_mov_b32 v10, 0x3f803f80
    """)
    kvpart(True)
    pack(B0, PA, "v_permlane32_swap_b32")
    pack(B1, PB, "v_permlane32_swap_b32")
    a(f"s_mov_b32 exec_hi, 0")
    a(f"buffer_store_dwordx4 {R(PA)}, v6, {W}, s12 offen offset:{V0_OFF} sc1")
    for i in range(4): a(f"v_cndmask_b32 v{12+i}, v{PB+i}, v10, s[14:15]")
    a(f"""
    s_mov_b32 exec_lo, 0x00ff000f
    buffer_store_dwordx4 v[12:15], v6, {W}, s12 offen offset:{V0_OFF + 256} sc1
    s_mov_b64 exec, -1
    """)
    a.label(l_pub)
    stamp(6)
    publish_kv()
    lo_addr()
    a(f"s_branch {l_lo1}")
    a.label(l_x)
    lo_addr()
    for n in range(5): wpat(VW2 + n, 64 * n, False)
    def wo_pat():
        for n in range(5):
            a(f"""
            v_add_u32 v4, {64*n}, v1
            v_mul_u32_u24 v5, 6554, v4
            v_lshrrev_b32 v5, 16, v5
            v_mul_u32_u24 v6, 10, v5
            v_sub_u32 v6, v4, v6
            v_lshlrev_b32 v6, 4, v6
            v_lshrrev_b32 v7, 1, v5
            v_and_b32 v7, 4, v7
            v_xor_b32 v5, v5, v7
            v_lshrrev_b32 v7, 3, v5
            v_lshl_add_u32 v4, v7, 1, v5
            v_mul_u32_u24 v4, 1280, v4
            v_add_u32 v{VWO+n}, v4, v6
            v_lshrrev_b32 v7, 1, v5
            v_lshl_add_u32 v4, v7, 3, v5
            v_add_u32 v4, 8, v4
            v_mul_u32_u24 v4, 1280, v4
            v_add_u32 v{VWO+5+n}, v4, v6
            """)
    for n in range(4): a(f"v_mov_b32 v{VWO+n}, -1")
    only(3, wo_pat)
    got_args()
    srd(S_A, P_X, ACT); srd(S_WS, P_WS, WS_END); srd(S_C, P_WK, 25600)
    l = a.newlabel()
    a(f"""
    v_lshlrev_b32 v4, 7, v1
    s_sub_u32 s8, s5, 1
    s_lshl_b32 s8, s8, 13
    s_cmp_ge_u32 s2, 8
    s_cbranch_scc1 {l}
    buffer_load_dword v5, v4, {W}, s8 offen sc1
    """)
    a.label(l)
    got_tag()
    a(f"s_setprio {E('PX', '0')}\ns_barrier")
    for g in range(5): x_issue(g)
    a("s_setprio 0")
    stamp(1)
    a("s_waitcnt vmcnt(16)")
    a.label(l_lo1)
    q_path(0)
    l_svcend = a.newlabel()
    if E("NOSVC"):
        lds_add(8, 1); a(f"s_branch {l_svcend}")
    only(3, lambda: (stage(P_AK, 4, L_SK) if E("LATEK") else None, a(f"s_waitcnt vmcnt({E('STG', '6')})"), stage(P_AV, 1, L_SV)))
    srd(S_D, P_SH, D * 8); srd(S_B, P_WO, D * D * 2)
    a(f"""
    s_setprio {E('PKVT', '2')}
    v_and_b32 v4, 7, v1
    v_lshlrev_b32 v4, 4, v4
    s_lshl_b32 s8, s5, 7
    s_lshl_b32 s9, s65, 2
    s_add_u32 s8, s8, s9
    buffer_load_dwordx4 {R(WRAW[0])}, v4, {SR_(S_D)}, s8 offen
    buffer_load_dwordx4 {R(WRAW[1])}, v4, {SR_(S_D)}, s9 offen offset:512
    s_mov_b32 s12, 0xffff0000
    """)
    def decide():
        a(f"v_mul_u32_u24 v4, {QSTR}, v1\nv_add_u32 v4, {L_Q}, v4")
        for i in range(10): a(f"ds_read_b128 {R(128+4*i)}, v4 offset:{16*i}")
        a(f"""
        s_getreg_b32 s9, hwreg(HW_REG_XCC_ID, 0, 4)
        v_xor_b32 v5, s9, v8
        v_xor_b32 v6, s9, v10
        v_or_b32 v5, v5, v6
        v_xor_b32 v6, s9, v12
        v_xor_b32 v7, s9, v14
        v_or3_b32 v5, v5, v6, v7
        v_and_b32 v5, 15, v5
        v_cmp_ne_u32 vcc, 0, v5
        s_lshl_b32 s8, s3, 1
        s_lshr_b64 s[10:11], vcc, s8
        v_max_f32 v8, v8, v10
        v_max3_f32 v8, v8, v12, v14
        s_mov_b32 s8, 0x55555555
        s_mov_b32 s9, 0x55555555
        v_cndmask_b32 v10, 0, v8, s[8:9]
        v_cndmask_b32 v11, v8, 0, s[8:9]
        """)
        for m in ("row_shr:1 row_mask:0xf", "row_shr:2 row_mask:0xf", "row_shr:4 row_mask:0xf", "row_shr:8 row_mask:0xf",
                  "row_bcast:15 row_mask:0xa", "row_bcast:31 row_mask:0xc"):
            a(f"v_max_f32_dpp v10, v10, v10 {m} bank_mask:0xf\nv_max_f32_dpp v11, v11, v11 {m} bank_mask:0xf")
        for j in range(4): a(f"v_mov_b32 v{12+j}, 0")
        a("v_readlane_b32 s14, v10, 63\nv_readlane_b32 s15, v11, 63\ns_waitcnt lgkmcnt(0)")
        for r in range(10):
            for j in range(4): a(f"v_dot2c_f32_bf16 v{12+j}, v{128+10*j+r}, v{128+10*j+r}")
        a(f"""
        v_max3_f32 v12, v12, v13, v14
        v_max_f32 v12, v12, v15
        v_mul_f32 v12, s14, v12
        v_cmp_nge_f32 vcc, {f2u(64.0*64.0)}, v12
        s_mov_b32 s8, 1
        s_cmp_lg_u64 vcc, 0
        s_cselect_b32 s8, 0x101, s8
        s_cmp_lt_u32 s15, {f2u(2.0**-28)}
        s_cselect_b32 s8, 0x101, s8
        s_cmp_gt_u32 s15, {f2u(2.0**50)}
        s_cselect_b32 s8, 0x101, s8
        s_and_b32 s10, s10, 3
        s_cselect_b32 s9, 0, {0 if E("NOFAST") else 0x200}
        s_or_b32 s8, s8, s9
        """)
        lds_add(8, "s8")
    only(PW, decide)
    l = a.newlabel()
    a(f"s_or_b32 s8, s2, s5\ns_cmp_lg_u32 s8, 0\ns_cbranch_scc1 {l}\ns_mov_b32 s8, {WS_E}")
    flag_store(8, 6)
    a.label(l)
    a("s_waitcnt vmcnt(0)")
    only(3, lambda: lds_add(0, 1))
    lds_wait(0, 1, "ne", 2)
    stamp(10)
    KRW, KU, VU, WU, KV, PK = 192, 128, 152, 170, 64, 84
    def kvt_compute(ps, pass_sgpr):
        if E("NOKVT"): return
        kr = KRW; vr = kr + 12; wr = WRAW[ps]
        for r in range(12): a(f"ds_read_b32 v{kr+r}, v{KT_S} offset:{L_SK + 160*r + 32*ps}")
        for r in range(9): a(f"ds_read_b32 v{vr+r}, v{KT_S} offset:{L_SV + 160*r + 32*ps}")
        for j in range(4):
            for c in range(2):
                src = wr + 2 * c + j // 2
                a(f"v_lshlrev_b32 v{WU+2*j+c}, 16, v{src}" if j % 2 == 0 else f"v_and_b32 v{WU+2*j+c}, s12, v{src}")
        a("s_waitcnt lgkmcnt(9)")
        for r in range(12): a(f"v_lshlrev_b32 v{KU+2*r}, 16, v{kr+r}\nv_and_b32 v{KU+2*r+1}, s12, v{kr+r}")
        for i in range(18): a(f"v_mul_f32 v{KV+i}, v{KU+i}, v{WU+6+(i&1)}")
        for j in (2, 1, 0):
            for i in range(18): a(f"v_fmac_f32 v{KV+i}, v{KU+i+2*(3-j)}, v{WU+2*j+(i&1)}")
        a("s_waitcnt lgkmcnt(0)")
        for r in range(9): a(f"v_lshlrev_b32 v{VU+2*r}, 16, v{vr+r}\nv_and_b32 v{VU+2*r+1}, s12, v{vr+r}")
        for i in range(18): a(f"v_mul_f32 v{KV+i}, v{KV+i}, v{VU+i}")
        for c in range(2):
            for cp in range(2):
                for d in range(4):
                    lo = 7 - cp - 2 * d; hi = lo - 1
                    a(f"v_cvt_pk_bf16_f32 v{PK+8*c+4*cp+d}, v{KV+2*(lo+1)+c}, v{KV+2*(hi+1)+c}")
                a(f"ds_write_b128 v{KT_W}, {R(PK+8*c+4*cp)} offset:{256*c + 16*cp}")
        for k in range(4): a(f"ds_read_b128 {R(PK+16+4*k)}, v{KT_R} offset:{1056*k}")
        a(f"""
        s_mul_i32 s8, s4, 80
        s_lshl_b32 s9, s{pass_sgpr}, 4
        s_add_u32 s8, s8, s9
        s_lshl_b32 s8, s8, 13
        s_sub_u32 s9, 31, s3
        s_lshl_b32 s9, s9, 7
        s_add_u32 s8, s8, s9
        s_add_u32 s8, s8, {WS_XT}
        """)
        for k in range(4):
            a(f"s_waitcnt lgkmcnt({3-k})")
            a(f"buffer_store_dwordx4 {R(PK+16+4*k)}, v{KT_G}, {W}, s8 offen sc1")
            if k < 3: a(f"s_add_u32 s8, s8, {4*8192}")
    def f2_flag(pass_sgpr):
        a(f"""
        s_mul_i32 s8, s4, 5
        s_add_u32 s8, s8, s{pass_sgpr}
        s_lshl_b32 s8, s8, 5
        s_add_u32 s8, s8, s3
        s_lshl_b32 s8, s8, 2
        s_add_u32 s8, s8, {WS_F2}
        """)
        flag_store(8, 6)
    kvt_compute(0, 5)
    l_conv, l_aepi, l_cdone = a.newlabel(), a.newlabel(), a.newlabel()
    br_wave("lg", 3, l_conv)
    a("s_mov_b32 s10, 4")
    kvt_compute(1, 10)
    a("s_waitcnt vmcnt(0)")
    f2_flag(10); f2_flag(5)
    a("s_setprio 0")
    stamp(8)
    def wo_loop(p0):
        a(f"s_add_u32 s8, s65, {p0*160*1280}\ns_mov_b32 s9, {p0*25600}")
        l = a.newlabel()
        a.label(l)
        for m in range(5):
            a(f"s_add_u32 s10, s8, {(40*1280*m) if m < 4 else 0}")
            for n in range(5):
                a(f"s_add_u32 m0, s9, {5120*m + 1024*n}")
                a(f"buffer_load_dwordx4 v{VWO + n + (5 if m == 4 else 0)}, {SR_(S_B)}, s10 offen lds")
            a(f"s_waitcnt vmcnt({E('WOV', '5')})")
        a(f"""
        s_add_u32 s8, s8, {160*1280}
        s_add_u32 s9, s9, 25600
        s_cmp_lt_u32 s9, {(p0+2)*25600}
        s_cbranch_scc1 {l}
        """)
    if not E("NOWO"):
        wo_loop(2)
        lds_wait(4, 3, "ne", 8)
        wo_loop(0)
    a("s_waitcnt vmcnt(0)")
    lds_add(0, 1)
    a(f"s_branch {l_aepi}")
    a.label(l_conv)
    lds_add(4, 1)
    a(f"""
    s_lshl_b32 s12, s5, 8
    s_add_u32 s12, s12, s2              ; channel
    s_min_u32 s13, s12, 639
    s_lshl_b32 s8, s13, 12
    s_add_u32 s{S_A}, s{P_SK}, s8
    s_addc_u32 s{S_A+1}, s{P_SK+1}, 0
    s_mov_b32 s{S_A+2}, 4096
    s_lshl_b32 s8, s13, 13
    s_add_u32 s8, s8, {WS_XT}
    s_add_u32 s{S_B}, s{P_WS}, s8
    s_addc_u32 s{S_B+1}, s{P_WS+1}, 0
    s_mov_b32 s{S_B+2}, 4096
    s_add_u32 s{S_C}, s{S_B}, 4096
    s_addc_u32 s{S_C+1}, s{S_B+1}, 0
    s_mov_b32 s{S_C+2}, 4096
    s_load_dword s14, s[{S_A}:{S_A+1}], 0
    s_lshr_b32 s8, s13, 1
    s_lshl_b32 s8, s8, 2
    s_load_dword s15, s[{P_SD}:{P_SD+1}], s8
    s_mul_i32 s8, s13, 52429
    s_lshr_b32 s8, s8, 22
    s_mul_i32 s9, s8, 80
    s_sub_u32 s9, s13, s9
    s_lshr_b32 s9, s9, 4
    s_mul_i32 s8, s8, 5
    s_add_u32 s8, s8, s9
    s_lshl_b32 s13, s8, 7
    s_add_u32 s13, s13, {WS_F2}
    s_waitcnt vmcnt(0)
    """)
    f2_flag(5)
    a(f"s_waitcnt lgkmcnt(0)\ns_cmp_ge_u32 s12, 640\ns_cbranch_scc1 {l_cdone}")
    if E("NOCONV"): a(f"s_branch {l_cdone}")
    a(f"s_mov_b32 m0, s68\nbuffer_load_dwordx4 v{V_HD}, {SR_(S_A)}, 0 offen lds")
    a(f"s_add_u32 m0, s68, 1024\ns_movk_i32 s8, 960")
    for i in range(4): a(f"buffer_load_dwordx4 v{AK1}, {SR_(S_A)}, s8 offen offset:{1024*i} lds")
    for i in range(4): a(f"v_mov_b32 v{8+i}, 0")
    for t in range(4): a(f"v_mfma_f32_32x32x16_bf16 {R(O+16*t,16)}, {R(8)}, {R(8)}, 0")
    a(f"""
    s_bitcmp1_b32 s12, 0
    s_cselect_b32 s8, 0, 16
    s_lshl_b32 s15, s15, s8
    s_and_b32 s15, s15, 0xffff0000
    s_lshl_b32 s8, s14, 16
    v_mov_b32 v5, s8
    v_add_f32 v5, s15, v5
    v_cvt_pk_bf16_f32 v5, v5, v5
    v_mov_b32 v6, s68
    s_waitcnt vmcnt(0)
    ds_write_b16 v6, v5 offset:64
    """)
    lds_wait(16, int(E("PF2", "7")), "lt", 8)
    poll(lambda: a(f"buffer_load_dword v4, v{V_F2}, {W}, s13 offen sc1"), [4], 16)
    stamp(8)
    a("s_movk_i32 s8, 4096")
    for cl_ in range(2):
        a(f"s_add_u32 m0, s68, {5120 + 5120*cl_}")
        for i in range(4): a(f"buffer_load_dwordx4 v{AK1}, {SR_(S_C if cl_ else S_B)}, 0 offen offset:{1024*i} sc1 lds")
        a(f"s_add_u32 m0, s68, {5120 + 5120*cl_ + 4096}")
        a(f"buffer_load_dwordx4 v{AK1}, {SR_(S_C if cl_ else S_B)}, s8 offen sc1 lds")
    a(f"s_waitcnt vmcnt(0)\ns_setprio {E('PCONV', '0')}")
    F = SR
    def c_reads(sp):
        j, e = sp >> 1, sp & 1; b = F + 32 * (sp & 1)
        for u in range(4):
            o = (4 + 32 * e + 128 * j) // 4
            a(f"ds_read2_b32 {R(b+4*u,2)}, v{VA+u} offset0:{o} offset1:{o+1}")
            a(f"ds_read2_b32 {R(b+4*u+2,2)}, v{VA+u} offset0:{o+2} offset1:{o+3}")
            a(f"ds_read_b128 {R(b+16+4*u)}, v{V_B} offset:{5120 + 5120*e + 3072 - 1024*u + 128*j}")
    c_reads(0)
    for sp in range(16):
        if sp < 15 and not (E("CNORD") and sp > 0): c_reads(sp + 1)
        a(f"s_waitcnt lgkmcnt({12 if sp < 15 else 0})")
        b = F + 32 * (sp & 1)
        for u in range(4):
            for nb in range(u, 4):
                d = R(O + 16 * nb, 16)
                if E("CNOM"): a("s_sleep 1")
                elif E("CZERO"): a(f"v_mfma_f32_32x32x16_bf16 {d}, {R(8)}, {R(8)}, {d}")
                else: a(f"v_mfma_f32_32x32x16_bf16 {d}, {R(b+4*u)}, {R(b+16+4*(nb-u))}, {d}")
    a("s_setprio 2")
    a(f"ds_write_b128 v{V_ZW}, {R(8)}\nds_write_b128 v{V_ZW}, {R(8)} offset:4160")
    for nb in range(4):
        for q in range(2): a(f"ds_write_b128 v{V_ZW}, {R(O+16*nb+8+4*q)} offset:{4160*q + 512*nb + 32}")
    for nb in range(4):
        for q in range(2): a(f"ds_read_b128 {R(F+8*nb+4*q)}, v{V_ZW} offset:{4160*q + 512*nb}")
    a(f"s_lshl_b32 s8, s12, 12\ns_add_u32 s8, s8, {WS_Z}")
    for nb in range(4):
        a(f"s_waitcnt lgkmcnt({6-2*nb})")
        for r in range(8): a(f"v_add_f32 v{O+16*nb+r}, v{O+16*nb+r}, v{F+8*nb+r}")
        for k in range(4): a(f"v_cvt_pk_bf16_f32 v{F+32+4*nb+k}, v{O+16*nb+2*k}, v{O+16*nb+2*k+1}")
        a(f"buffer_store_dwordx4 {R(F+32+4*nb)}, v{V_ZS}, {W}, s8 offen offset:{1024*nb} sc1")
    a(f"s_lshl_b32 s8, s12, 2\ns_add_u32 s8, s8, {WS_F3}\ns_waitcnt vmcnt(0)")
    flag_store(8, 6)
    a.label(l_cdone)
    lds_add(8, 1)
    a.label(l_aepi)
    stamp(9)
    a("s_setprio 2")
    XF, AF, AC = 8, 96, 64
    def o_reads(ks):
        b = AF + 20 * (ks % 8)
        for nb in range(5):
            for z in range(2): a(f"ds_read_b64_tr_b16 {R(b+4*nb+2*z,2)}, v{VT+z} offset:{ks*5120 + nb*32}")
    QRW, ZR, U = 8, 24, 64
    X40 = "s_mov_b32 exec_lo, -1\ns_mov_b32 exec_hi, 0xff"
    srd(S_A, P_AQ, ACT)
    a(X40)
    for e in range(8):
        a(f"s_movk_i32 s8, {(16*(e>>2) + 2*(e&3))*1280}")
        a(f"buffer_load_dwordx2 {R(QRW+2*e,2)}, v{AE}, {SR_(S_A)}, s8 offen")
    a(f"""
    s_mov_b64 exec, -1
    buffer_load_dwordx4 {R(64)}, v{PV+2}, {W}, s72 offen sc1
    buffer_load_dwordx4 {R(64)}, v{PV+2}, {W}, s72 offen offset:1024 sc1
    buffer_load_dwordx2 {R(64,2)}, v{PV+3}, {W}, s73 offen sc1
    buffer_load_dwordx2 {R(64,2)}, v{PV+3}, {W}, s73 offen offset:256 sc1
    v_mov_b32 v4, 0
    buffer_load_dword v64, v4, {W}, s74 offen sc1
    """)
    lds_wait(0, 2, "ne", 16)
    for ks in range(8): o_reads(ks)
    srd(S_C, P_OUT, 2 * ACT)
    def unp(dst, src, hi): a(f"v_and_b32 v{dst}, s14, v{src}" if hi else f"v_lshlrev_b32 v{dst}, 16, v{src}")
    def z_fetch(once):
        a(f"""
        s_lshl_b32 s11, s3, 7
        s_lshl_b32 s8, s5, 5
        s_add_u32 s11, s11, s8
        s_add_u32 s11, s11, {WS_Z}
        s_mov_b32 s14, {WS_F3}
        {X40}
        """)
        l = a.newlabel()
        poll(lambda: a(f"buffer_load_dwordx4 {R(40)}, v{AE+2}, {W}, s14 offen sc1"), [40, 41, 42, 43], 4, fail=l if once else None)
        stamp(11)
        for i in range(4):
            a(f"buffer_load_dwordx4 {R(ZR+4*i)}, v{AE+3}, {W}, s11 offen sc1")
            if i < 3: a("s_add_u32 s11, s11, 4096")
        a("s_mov_b32 s70, 1\ns_mov_b32 s14, 0xffff0000\ns_waitcnt vmcnt(0)")
        for e in range(8):
            for i in range(4):
                unp(U + i, QRW + 2 * e + i // 2, i % 2); unp(U + 4 + i, ZR + 4 * i + e // 2, e % 2)
            for i in range(4): a(f"v_mul_f32 v{U+i}, v{U+i}, v{U+4+i}")
            for i in (0, 2): a(f"v_cvt_pk_bf16_f32 v{QRW+2*e+i//2}, v{U+i}, v{U+i+1}")
            a(f"s_mov_b32 s8, {(16*(e>>2) + 2*(e&3))*2560}")
            a(f"buffer_store_dwordx2 {R(QRW+2*e,2)}, v{AE+1}, {SR_(S_C)}, s8 offen{OSFX}")
        a.label(l)
        a("s_mov_b64 exec, -1")
    if not E("NOAEPI"):
        a("s_mov_b32 s70, 0")
        lds_wait(16, 1, "lt", 8)
        a(f"s_setprio {E('PAE', '2')}")
        l_try, l_giveup = a.newlabel(), a.newlabel()
        a.label(l_try)
        a(f"s_sleep {E('ZS', '16')}")
        z_fetch(True)
        a(f"""
        s_cmp_eq_u32 s70, 1
        s_cbranch_scc1 {l_giveup}
        ds_read_b32 v4, v{VS} offset:16
        s_waitcnt lgkmcnt(0)
        v_readfirstlane_b32 s8, v4
        s_cmp_lg_u32 s8, 0
        s_cbranch_scc1 {l_try}
        """)
        a.label(l_giveup)
    a.label(l_svcend)
    fin_addr2(2)
    a("s_waitcnt vmcnt(0) lgkmcnt(0)")
    stamp(12)
    a("s_barrier")
    a(f"ds_read_b32 v5, v{VS} offset:8")
    OWN = O
    for j in range(2):
        for r in range(3): a(f"ds_read_b128 {R(OWN+12*j+4*r)}, v{PV+j} offset:{1024*r}")
    a(f"s_branch {l_R}")
    a.label(l_cg1)
    for n in range(5): wpat(VD + n, 64 * n, True)
    a(f"""
    s_sub_u32 s8, s5, 4
    s_mul_i32 s11, s8, 5120
    s_add_u32 s11, s11, {L_W}
    s_mul_i32 s10, s8, {32*1280}
    s_add_u32 s10, s10, s65
    s_mul_i32 s12, s66, {128*1280}
    """)
    tail_addr(True); hi_addr(); gemm_addr(1); fin_addr(); a('v_mov_b32 v55, -1\nv_mov_b32 v60, -1'); a(f"v_mov_b32 v{AE+1}, -1\nv_mov_b32 v{AE+2}, -1\nv_mov_b32 v{AE+3}, -1")
    got_args()
    if E("TLB"):
        M2 = 1 << 21
        pages = [(P_WQ, 0), (P_X, 0), (P_X, M2), (P_AK, 0), (P_AK, M2), (P_AV, 0), (P_AV, M2), (P_SH, 0),
                 (P_WS, M2), (P_WS, 2*M2), (P_WS, 3*M2), (P_WS, 4*M2), (P_WS, 5*M2), (P_SK, 0), (P_SK, M2), (P_SD, 0),
                 (P_WO, 0), (P_AQ, 0), (P_AQ, M2), (P_OUT, 0), (P_OUT, M2), (P_OUT, 2*M2)]
        for w in range(4):
            def t(w=w):
                for p_, o_ in pages[w::4]: a(f"s_mov_b32 s8, {o_}\ns_load_dword s13, s[{p_}:{p_+1}], s8")
            only(4 + w, t)
    srd(S_B, P_WQ, D * D * 2); srd(S_WS, P_WS, WS_END)
    if not E("TLB"): got_tag()
    a(f"s_setprio {E('PHI', '0')}\ns_barrier")
    w_issue(0)
    stamp(1)
    a(f"s_waitcnt vmcnt({E('W1', '5')})"); w_issue(1); a("s_waitcnt vmcnt(5)")
    l = a.newlabel(); br_wave("eq", 7, l); w_issue(2); a.label(l)
    if E("TLB"): got_tag()
    q_path(1)
    for i in range(4): a(f"ds_read2_b64 {R(QM+4*i)}, v{QA+i} offset0:0 offset1:1")
    a(f"ds_read_b64 {R(QR,2)}, v{QA+4} offset:32\nds_read_b64 {R(QR+2,2)}, v{QA+5} offset:32")
    a(f"s_setprio 1\ns_movk_i32 s13, 8")
    for t in range(4): a(f"v_mfma_f32_32x32x16_bf16 {R(O+16*t,16)}, {R(KBH[-1]+10)}, {R(KBH[-1]+10)}, 0")
    l_fb, l_after = a.newlabel(), a.newlabel()
    def qk(t, kb, usec):
        return f"v_mfma_f32_32x32x16_bf16 {R(SR+16*t,16)}, {R(kb)}, {R(QM+4*t)}, {R(C+16*t,16) if usec else '0'}"
    def qr(p, kb):
        d = R(SR + 32 * p, 32)
        if E("QR8"): return "\n".join(f"v_mfma_f32_32x32x8_bf16 {R(SR+32*p+16*i,16)}, {R(kb+4,2)}, {R(QR+2*p,2)}, {R(SR+32*p+16*i,16)}" for i in range(2))
        if E("NOQR"): return "s_nop 0\ns_nop 0"
        return f"v_mfma_f32_32x32x4_2b_bf16 {d}, {R(kb+4,2)}, {R(QR+2*p,2)}, {d}"
    def pv(t, hf, vb):
        d = R(O + 16 * t, 16)
        if E("PVSWAP"): return f"v_mfma_f32_32x32x16_bf16 {d}, {R(SR+16*t+8*hf)}, {R(vb+6+4*hf)}, {d}"
        return f"v_mfma_f32_32x32x16_bf16 {d}, {R(vb+6+4*hf)}, {R(SR+16*t+8*hf)}, {d}"
    MP = [int(x) for x in E("MP", "16,8,12,20,26,35,4").split(",")]
    DEFER = MP[6] < 40
    LP = [int(x) for x in E("LP", "12,36,60,84").split(",")]
    def phase(p, kq_, vcur, vprev, extra, usec):
        ta, tb = 2 * p, 2 * p + 1
        na, nb_ = 2 * (1 - p), 2 * (1 - p) + 1
        base, pbase = SR + 32 * p, SR + 32 * (1 - p)
        def cv(b, j):
            bb = b + 8 * (j // 4); k = j % 4
            return f"v_cvt_pk_bf16_f32 v{bb+k}, v{bb+2*k}, v{bb+2*k+1}"
        valu = []
        for grp in range(8):
            for i in range(4): valu.append(f"v_exp_f32 v{base+4*grp+i}, v{base+4*grp+i}")
            for j in (2 * grp - 2, 2 * grp - 1): valu.append(cv(base, j) if j >= 0 else cv(pbase, 16 + j))
        ins = dict(zip(MP, [[qk(na, kq_, usec)], [pv(nb_, 1, vprev)], [qk(nb_, kq_, usec)], [pv(ta, 0, vcur)],
               [qr(1 - p, kq_)], [pv(ta, 1, vcur)], [pv(nb_, 0, vprev) if DEFER else pv(tb, 0, vcur)]]))
        for k, v in extra.items():
            if k == "wait": ins[MP[3]] = v + ins[MP[3]]
            else: ins[k] = ins.get(k, []) + v
        for i, x in enumerate(valu):
            for y in ins.get(i, []): a(y)
            a(x)
        return [cv(base, 14), cv(base, 15)]
    def main_loop(kb, usec):
        nb = len(kb)
        a(f"s_waitcnt vmcnt({4 if E('LATEP') else 4*(nb-1)}) lgkmcnt(0)")
        stamp(8); rstamp(14)
        a(qk(0, kb[0], usec)); a(qk(1, kb[0], usec))
        for i in range(8): a(f"v_mov_b32 v{SR+56+i}, 0")
        for i in range(4): a(f"v_mov_b32 v{SR+48+i}, 0\nv_mov_b32 v{kb[-1]+6+i}, 0")
        a(qr(0, kb[0]))
        if usec or not E("LATEP"): a("s_nop 15\ns_nop 3")
        else: kv_prologue(kb, 1); a("s_nop 9")
        l_loop = a.newlabel()
        a(".p2align 6")
        a.label(l_loop)
        n0 = len(a.lines)
        for par in range(nb):
            cur, nxt, prv = kb[par], kb[(par + 1) % nb], kb[par - 1]
            lds_ = [f"buffer_load_dwordx4 {R(prv+6)}, v{AV}, {W}, s11 offen offset:{V0_OFF}{KVL}",
                    f"buffer_load_dwordx4 {R(prv+10)}, v{AV}, {W}, s11 offen offset:{V1_OFF}{KVL}",
                    f"buffer_load_dwordx4 {R(cur)}, v{AK1}, {W}, s11 offen offset:{TILE + K1_OFF}{KVL}",
                    f"buffer_load_dwordx2 {R(cur+4,2)}, v{AKR}, {W}, s11 offen offset:{TILE + KR_OFF}{KVL}"]
            ex = [{"wait": [f"s_waitcnt vmcnt({4*(nb-2) + sum(1 for p_ in LP if p_ < MP[3])})"]}, {}]
            for p_, l_ in zip(LP, lds_): ex[p_ // 48].setdefault(p_ % 48, []).append(l_)
            pm = max(LP) + 3
            ex[pm // 48].setdefault(pm % 48, []).append(f"s_add_u32 s11, s11, {TILE}")
            if par == nb - 1:
                ex[1].setdefault(22, []).append("s_sub_u32 s13, s13, 1")
                if not usec: ex[1].setdefault(24, []).extend(["v_mov_b32 v4, s13", f"ds_write_b32 v{VS}, v4 offset:16", f"ds_read_b32 v5, v{VS} offset:8"])
                ex[1].setdefault(45, []).append("s_cmp_lg_u32 s13, 0")
            phase(0, cur, cur, prv, ex[0], usec)
            tail = phase(1, nxt, cur, cur, ex[1], usec)
        if not E("NOALIGN"):
            par_ = 0; last4 = None
            for i in range(n0, len(a.lines)):
                t = a.lines[i]
                small = t.startswith(("v_exp_f32 ", "v_mov_b32 ", "s_waitcnt", "s_sub_u32", "s_cmp_"))
                if small:
                    par_ ^= 1
                    if t.startswith("v_"): last4 = i
                elif par_:
                    assert last4 is not None and all(a.lines[j].startswith(("v_exp_f32 ", "v_mov_b32 ", "s_waitcnt", "s_sub_u32", "s_cmp_")) for j in range(last4, i)), a.lines[last4:i+1]
                    a.lines[last4] = a.lines[last4].replace(" ", "_e64 ", 1); par_ = 0
        a(f"s_cbranch_scc1 {l_loop}")
        if DEFER: a(pv(3, 0, kb[-1]))
        for x in tail: a(x)
        a(pv(3, 1, kb[-1]))
    main_loop(KBH, False)
    l_w, l_ok = a.newlabel(), a.newlabel()
    a(f"s_mov_b32 s96, {SPIN}")
    a.label(l_w)
    a(f"""
    s_waitcnt lgkmcnt(0)
    v_readfirstlane_b32 s8, v5
    s_and_b32 s9, s8, 0xff
    s_cmp_eq_u32 s9, 4
    s_cbranch_scc1 {l_ok}
    s_sleep 2
    ds_read_b32 v5, v{VS} offset:8
    s_sub_u32 s96, s96, 1
    s_cmp_lg_u32 s96, 0
    s_cbranch_scc1 {l_w}
    """)
    a.label(l_ok)
    a(f"s_bitcmp1_b32 s8, 8\ns_cbranch_scc1 {l_fb}")
    a.label(l_after)
    stamp(9); rstamp(15)
    for i in (1, 2, 3):
        for r in range(3): a(f"ds_write_b128 v{PV}, {R(O+16*i+4*r)} offset:{3072*(i-1) + 1024*r}")
    a("s_waitcnt lgkmcnt(0)")
    stamp(12)
    a("s_barrier")
    for r in range(3): a(f"ds_read_b128 {R(OWN+12+4*r)}, v{PV+1} offset:{1024*r}")
    a.label(l_R)
    a("s_waitcnt lgkmcnt(0)\nv_readfirstlane_b32 s71, v5")
    for r in (10, 8, 9, 0, 1, 2, 3, 4, 5, 6, 7): a(f"v_add_f32 v{OWN+r}, v{OWN+r}, v{OWN+12+r}")
    a(f"v_rcp_f32 v{OWN+10}, v{OWN+10}")
    for i in (8, 9, 0, 1, 2, 3, 4, 5, 6, 7): a(f"v_mul_f32 v{OWN+i}, v{OWN+i}, v{OWN+10}")
    PO = 88
    a(f"v_cvt_pk_bf16_f32 v{PO+4}, v{OWN+8}, v{OWN+9}\nv_cvt_pk_bf16_f32 v{PO+5}, v{OWN+8}, v{OWN+9}")
    for i in range(4): a(f"v_cvt_pk_bf16_f32 v{PO+i}, v{OWN+2*i}, v{OWN+2*i+1}")
    a(f"""
    v_permlane32_swap_b32 v{PO+4}, v{PO+5}
    s_waitcnt vmcnt(0)
    s_bitcmp1_b32 s71, 9
    s_cbranch_scc1 L_fast1
    buffer_store_dwordx4 {R(PO)}, v{PV+2}, {W}, s72 offen sc1
    s_mov_b32 exec_hi, 0
    buffer_store_dwordx2 {R(PO+4,2)}, v{PV+3}, {W}, s73 offen sc1
    s_branch L_fast2
    L_fast1:
    buffer_store_dwordx4 {R(PO)}, v{PV+2}, {W}, s72 offen{E('FSFX', ' nt')}
    s_mov_b32 exec_hi, 0
    buffer_store_dwordx2 {R(PO+4,2)}, v{PV+3}, {W}, s73 offen{E('FSFX', ' nt')}
    L_fast2:
    s_mov_b32 exec_hi, -1
    """)
    tstamp(1)
    srd(S_C, P_OUT, 2 * ACT)
    a(f"""
    s_lshl_b32 s12, s3, 1
    s_lshr_b32 s8, s77, 1
    s_add_u32 s12, s12, s8
    s_lshl_b32 s12, s12, 1
    s_add_u32 s12, s12, s76
    s_lshl_b32 s12, s12, 6
    s_add_u32 s12, s12, {WS_F4}
    v_lshl_add_u32 v4, v2, 2, s12
    s_lshl_b32 s8, s3, 8
    s_lshl_b32 s9, s4, 4
    s_add_u32 s8, s8, s9
    s_add_u32 s8, s8, {WS_F4}
    v_and_b32 v5, 3, v1
    v_lshl_add_u32 v5, v5, 2, s8
    v_bfe_u32 v6, v1, 2, 1
    v_lshl_add_u32 v5, v6, 7, v5
    s_mov_b32 s8, 0xffff0000
    s_mov_b32 s9, 0
    v_cndmask_b32 v4, v4, v5, s[8:9]
    v_lshlrev_b32 v5, 8, v3
    v_lshl_add_u32 v5, v2, 3, v5
    s_lshl_b32 s13, s3, 2
    s_add_u32 s13, s13, s77
    s_mul_i32 s13, s13, {OPB}
    s_add_u32 s13, s13, {WS_O}
    s_lshl_b32 s8, s76, 11
    s_add_u32 s15, s13, s8
    s_add_u32 s15, s15, 16384
    s_lshl_b32 s8, s76, 13
    s_add_u32 s13, s13, s8
    s_add_u32 s10, s13, 4096
    v_mov_b32 v6, s{TAG}
    v_mov_b32 v7, 0
    """)
    l = a.newlabel()
    br_wave("lt", 4, l)
    for ks in range(2): o_reads(ks)
    a.label(l)
    tstamp(2)
    a(f"""
    s_waitcnt vmcnt(0)
    s_mov_b64 exec, 1
    s_bitcmp1_b32 s71, 9
    s_cbranch_scc1 L_fast3
    buffer_store_dword v6, v7, {W}, s74 offen sc1
    s_branch L_fast4
    L_fast3:
    buffer_store_dword v6, v7, {W}, s74 offen
    L_fast4:
    s_mov_b64 exec, -1
    """)
    tstamp(3)
    if E("XBAR"): a("s_barrier")
    l, l2 = a.newlabel(), a.newlabel()
    br_wave("lt", 4, l)
    for ks in range(2, 6): o_reads(ks)
    a(f"s_branch {l2}")
    a.label(l)
    if not E("NOAEPI") and not E("NOSVC"):
        l3 = a.newlabel()
        a(f"s_cmp_eq_u32 s70, 1\ns_cbranch_scc1 {l3}")
        z_fetch(False)
        a.label(l3)
    a.label(l2)
    a(f"s_lshl_b32 s14, s64, 1\ns_add_u32 s14, s14, s65\ns_add_u32 s14, s14, 1280")
    tstamp(4)
    poll(lambda: a(f"buffer_load_dword v6, v4, {W}, 0 offen sc1"), [6], 1)
    tstamp(5)
    nld = []
    for ks in range(10):
        pr_, m = ks // 5, ks % 5
        if m < 4:
            a(f"buffer_load_dwordx4 {R(XF+4*ks)}, v{AK1}, {W}, s{10 if pr_ else 13} offen offset:{1024*m} sc1"); nld.append(1)
        else:
            for z in range(2): a(f"buffer_load_dwordx2 {R(XF+4*ks+2*z,2)}, v5, {W}, s15 offen offset:{1024*pr_ + 128*z} sc1")
            nld.append(2)
    l = a.newlabel()
    br_wave("lt", 4, l)
    for ks in range(6, 8): o_reads(ks)
    fin_addr2(1)
    a.label(l)
    tstamp(6)
    for ks in range(10):
        a(f"s_waitcnt vmcnt({sum(nld[ks+1:])})" + {0: " lgkmcnt(15)", 6: " lgkmcnt(15)", 8: " lgkmcnt(10)", 9: " lgkmcnt(0)"}.get(ks, ""))
        b = AF + 20 * (ks % 8)
        for nb in range(5):
            d = R(AC + 4 * nb)
            a(f"v_mfma_f32_16x16x32_bf16 {d}, {R(b+4*nb)}, {R(XF+4*ks)}, {'0' if ks == 0 else d}")
        if ks < 2: o_reads(8 + ks)
    tstamp(7)
    for nb in range(5): a(f"ds_write_b128 v54, {R(AC+4*nb)} offset:{64*nb}")
    a("s_waitcnt lgkmcnt(0)\ns_barrier")
    def fin_rd(i):
        b = 96 + 16 * i
        a(f"ds_read_b128 {R(b)}, v{FRD[i]}\nds_read_b128 {R(b+4)}, v{FRD[i]} offset:16")
        a(f"ds_read_b128 {R(b+8)}, v{FRD[i]} offset:{OKH}\nds_read_b128 {R(b+12)}, v{FRD[i]} offset:{OKH+16}")
    def fin_st(i):
        b = 96 + 16 * i
        for r in range(8): a(f"v_add_f32 v{b+r}, v{b+r}, v{b+8+r}")
        for r in range(4): a(f"v_cvt_pk_bf16_f32 v{b+8+r}, v{b+2*r}, v{b+2*r+1}")
        a(f"buffer_store_dwordx4 {R(b+8)}, v{FST[i]}, {SR_(S_C)}, s14 offen{OSFX}")
    l = a.newlabel()
    fin_rd(0)
    br_wave("ge", 2, l)
    fin_rd(1); a("s_waitcnt lgkmcnt(0)"); fin_st(1)
    a.label(l)
    a("s_waitcnt lgkmcnt(0)"); fin_st(0)
    a.label("L_fin")
    if STAMP:
        a(f"""
        s_memtime s[98:99]
        s_waitcnt lgkmcnt(0)
        s_mov_b32 s96, s98
        s_memrealtime s[98:99]
        s_waitcnt lgkmcnt(0)
        s_mov_b32 s97, s98
        s_add_u32 s72, s{P_WS}, {WS_STAMP}
        s_addc_u32 s73, s{P_WS+1}, 0
        s_mov_b32 s74, 0x40000
        s_mov_b32 s75, 0x20000
        s_lshl_b32 s76, s2, 3
        s_add_u32 s76, s76, s5
        s_lshl_b32 s76, s76, 7
        v_mov_b32 v2, 0
        """)
        for i in range(18): a(f"v_mov_b32 v3, s{80+i}\nbuffer_store_dword v3, v2, s[72:75], s76 offen offset:{4*i}")
    a.label("L_exit")
    a("s_endpgm")
    a.label(l_fb)
    FB = [28, 240]
    FB = [28, 114]
    a("s_waitcnt vmcnt(0)\ns_nop 15\ns_nop 3")
    raise_fb = True
    TB, M = 28, 36
    for j in range(4): a(f"v_mov_b32 v{M+j}, 0xff800000")
    a(f"s_mov_b32 s11, {WS_KV}\ns_mov_b32 s14, 64\ns_mov_b32 s13, 16")
    l_f = a.newlabel()
    a.label(l_f)
    loadK(TB, 0)
    a("s_waitcnt vmcnt(0)")
    for t in range(4): a(qk(t, TB, False))
    a(qr(0, TB)); a(qr(1, TB))
    for t in range(4):
        for i in range(8): a(f"v_max3_f32 v{M+t}, v{M+t}, v{SR+16*t+2*i}, v{SR+16*t+2*i+1}")
    a(f"s_add_u32 s11, s11, {TILE}\ns_sub_u32 s14, s14, 1\ns_cmp_lg_u32 s14, 0\ns_cbranch_scc1 {l_f}")
    for t in range(4):
        a(f"v_mov_b32 v{M+4}, v{M+t}\nv_permlane32_swap_b32 v{M+t}, v{M+4}\nv_max_f32 v{M+4}, v{M+4}, v{M+t}")
        for i in range(16): a(f"v_sub_f32 v{C+16*t+i}, 0, v{M+4}")
    a(f"v_mov_b32 v6, v{VT}\nv_mov_b32 v7, v{VT+1}")
    for i in range(4): a(f"v_mov_b32 v{52+i}, 0")
    for t in range(4): a(f"v_mfma_f32_32x32x16_bf16 {R(O+16*t,16)}, {R(52)}, {R(52)}, 0")
    kv_prologue([28, 42])
    main_loop([28, 42], True)
    a(f"s_waitcnt vmcnt(0)\nv_mov_b32 v{VT}, v6\nv_mov_b32 v{VT+1}, v7"); fin_addr(); a(f"s_nop 7\ns_nop 7\ns_branch {l_after}")
    return a.finalize(verbose=bool(E("VERB")))

def build():
    hdr = open(f"cdna_kernels/{NAME}.s.ref").read().split("; @launch")[0]
    k = NAME + "_kernel"
    body = build_kernel()
    return hdr + f"""; @launch grid=(256,1,1) block=(512,1,1) lds=163840
.amdgcn_target "amdgcn-amd-amdhsa--gfx950"
.text
.globl {k}
.p2align 8
.type {k},@function
{k}:
{body}.section .rodata,"a"
.p2align 6
.amdhsa_kernel {k}
  .amdhsa_next_free_vgpr 256
  .amdhsa_next_free_sgpr 100
  .amdhsa_accum_offset 256
  .amdhsa_group_segment_fixed_size 0
  .amdhsa_kernarg_size 112
  .amdhsa_user_sgpr_count 2
  .amdhsa_user_sgpr_kernarg_segment_ptr 1
  .amdhsa_system_sgpr_workgroup_id_x 1
.end_amdhsa_kernel
"""

if __name__ == "__main__":
    path = sys.argv[1] if len(sys.argv) > 1 else "fused7.s"
    open(path, "w").write(build())
    print("wrote", path)
```

```python
import sys, math, struct, os
sys.path.insert(0, "gen")
from asmlib import Asm

NAME = "concat_heads__ssm_conv_h3__grouped_kv_mqa__prompt"
S, D, H, DH = 2048, 640, 32, 20
ACT = S * D * 2
WS_E, WS_F1, WS_F2, WS_F3, WS_F4 = 0, 1024, 4096, 12288, 16384
WS_KV = 32768
TILE = 2816
KR_OFF, K1_OFF, V0_OFF, V1_OFF = 0, 256, 1280, 2048
WS_O = 0x40000
OPB = 20480
WS_Z = WS_O + ACT
WS_XT = WS_Z + ACT
WS_END = WS_XT + 2 * ACT
WS_STAMP = 0x2000000
QSCALE = (DH ** -0.5) * math.log2(math.e)
E = os.environ.get
STAMP = E("STAMP", "0") == "1"
TAILST = E("TAILST")
SPIN = 1 << 17
OSFX = " " + E("OSFX", "nt")
KVSC = " sc1"
KVL = " sc1" if E("KVSC1") else ""

def f2u(x): return struct.unpack("<I", struct.pack("<f", x))[0]
P_AQ, P_AK, P_AV, P_SH, P_SK, P_SD, P_X, P_WQ, P_WK, P_WV, P_WO, P_OUT, P_DBG, P_WS = [16 + 2 * i for i in range(14)]
S_WS, S_A, S_B, S_C, S_D = 44, 48, 52, 56, 60
TAG = 78
def R(b, n=4): return f"v[{b}:{b+n-1}]"
def SR_(b): return f"s[{b}:{b+3}]"
W = SR_(S_WS)

L_W = 81920; GSLOT = 20480
L_WKV = 163840 - 25600
L_Q = 102400; QSTR = 176
L_STAT = L_Q + 64 * QSTR
L_RED = 113920
L_CONV = 113920; CVS = 15360
L_OUT = 102400
L_SK, L_SV, L_KT = 0, 16384, 27648
WO_LOW = 45

a = Asm()
def srd(r, ptr, nbytes, off=0):
    if off:
        a(f"s_add_u32 s{r}, s{ptr}, {off}\ns_addc_u32 s{r+1}, s{ptr+1}, 0")
    else:
        a(f"s_mov_b32 s{r}, s{ptr}\ns_mov_b32 s{r+1}, s{ptr+1}")
    a(f"s_mov_b32 s{r+2}, {nbytes}\ns_mov_b32 s{r+3}, 0x20000")
def _st(i, op="s_memtime"): a(f"{op} s[98:99]\ns_waitcnt lgkmcnt(0)\ns_mov_b32 s{80+i}, s98")
def stamp(i):
    if STAMP and not (TAILST and 1 <= i <= 7): _st(i)
def tstamp(i):
    if STAMP and TAILST: _st(i)
def rstamp(i):
    if STAMP: _st(i, "s_memrealtime")
def br_wave(op, n, lab): a(f"s_cmp_{op}_u32 s5, {n}\ns_cbranch_scc1 {lab}")
def poll(load_fn, tagregs, sleep=2, cnt="vmcnt", val=None, op="ne", skipfirst=False, fail=None):
    val = val or f"s{TAG}"
    l, d = a.newlabel(), a.newlabel()
    a(f"s_mov_b32 s96, {SPIN}")
    if skipfirst:
        l0 = a.newlabel(); a(f"s_branch {l0}")
    a.label(l)
    load_fn()
    if skipfirst: a.label(l0)
    a(f"s_waitcnt {cnt}(0)")
    for i, t in enumerate(tagregs):
        if i == 0: a(f"v_cmp_{op}_u32 s[8:9], {val}, v{t}")
        else: a(f"v_cmp_ne_u32 vcc, {val}, v{t}\ns_or_b64 s[8:9], s[8:9], vcc")
    if fail:
        a(f"s_cmp_eq_u64 s[8:9], 0\ns_cbranch_scc0 {fail}"); return
    a(f"""
    s_cmp_eq_u64 s[8:9], 0
    s_cbranch_scc1 {d}
    s_sleep {sleep}
    s_sub_u32 s96, s96, 1
    s_cmp_lg_u32 s96, 0
    s_cbranch_scc1 {l}
    """)
    a.label(d)
def flag_store(soff_sgpr, vt):
    a(f"v_mov_b32 v{vt}, s{TAG}\nv_mov_b32 v{vt+1}, 0")
    a(f"s_mov_b64 exec, 1")
    a(f"buffer_store_dword v{vt}, v{vt+1}, {W}, s{soff_sgpr} offen sc1")
    a(f"s_mov_b64 exec, -1")
def wpat(dst, qbase, x4):
    a(f"""
    v_add_u32 v4, {qbase}, v1
    v_mul_u32_u24 v5, 6554, v4
    v_lshrrev_b32 v5, 16, v5
    v_mul_u32_u24 v6, 10, v5
    v_sub_u32 v6, v4, v6
    """)
    if x4: a("v_lshrrev_b32 v7, 1, v5\nv_and_b32 v7, 4, v7\nv_xor_b32 v5, v5, v7")
    a(f"v_mul_u32_u24 v5, 1280, v5\nv_lshl_add_u32 v{dst}, v6, 4, v5")

def build_kernel():
    if STAMP: a("s_memtime s[80:81]\ns_memrealtime s[92:93]")
    if E("HOLD"): a("s_memrealtime s[92:93]")
    a(f"""
    s_cmp_ge_u32 s2, 256
    s_cbranch_scc1 L_exit
    s_load_dwordx16 s[16:31], s[0:1], 0
    s_load_dwordx8 s[32:39], s[0:1], 64
    s_load_dwordx4 s[40:43], s[0:1], 96
    v_lshrrev_b32 v1, 6, v0
    s_and_b32 s7, s2, 7
    s_lshl_b32 s3, s7, 2
    s_lshr_b32 s4, s2, 3
    v_readfirstlane_b32 s5, v1
    s_and_b32 s6, s4, 3
    s_add_u32 s3, s3, s6          ; s3 = pb64
    s_lshr_b32 s4, s4, 2          ; s4 = hg
    v_and_b32 v1, 63, v0          ; lane
    v_and_b32 v2, 15, v1          ; p
    v_lshrrev_b32 v3, 4, v1       ; kg
    s_mul_i32 s64, s3, {64*1280}
    s_mul_i32 s65, s4, 160
    s_add_u32 s66, s6, s7
    s_mul_i32 s8, s66, 52
    s_lshr_b32 s8, s8, 8
    s_mul_i32 s8, s8, 5
    s_sub_u32 s66, s66, s8
    s_and_b32 s67, s4, 3          ; pbk
    """)
    VD, VXR, VTR, VQW, VEX = 28, 34, 36, 38, 46
    VKR, VK4, VK5 = 40, 42, 43
    ACC, GF = 64, 96
    QM, QR = 8, 24
    O, SR, C = 64, 128, 192
    KBH = [192, 206, 220, 234]
    AK1, AKR, AV = 62, 63, 61
    PV, QA, VS, VT, AE = 56, 176, 44, 52, 48
    B0, B1, PA, PB = 16, 20, 64, 68
    KT_W, KT_R, KT_G, KT_S, VW2 = 240, 241, 242, 243, 244
    VA, V_B, V_ZW, V_ZS, V_HD, V_F2 = 228, 232, 233, 234, 235, 236
    VWO = 224
    WRAW = [216, 220]
    L_EX = 32768
    PW = int(E('PW', '3'))
    def gwrap(sreg, step):
        a(f"s_add_u32 s{sreg}, s{sreg}, {step}\ns_cmp_ge_u32 s{sreg}, {5*step}\ns_cselect_b32 s{sreg}, 0, s{sreg}")
    def shift2(r, d): a(f"v_add_u32 v{r}, {d & 0xffffffff}, v{r}\nv_add_u32 v{r+1}, {d & 0xffffffff}, v{r+1}")
    def loadK(buf, off):
        a(f"buffer_load_dwordx4 {R(buf)}, v{AK1}, {W}, s11 offen offset:{off + K1_OFF}{KVSC}")
        a(f"buffer_load_dwordx2 {R(buf+4,2)}, v{AKR}, {W}, s11 offen offset:{off + KR_OFF}{KVSC}")
    def loadV(buf, off):
        a(f"buffer_load_dwordx4 {R(buf+6)}, v{AV}, {W}, s11 offen offset:{off + V0_OFF}{KVSC}")
        a(f"buffer_load_dwordx4 {R(buf+10)}, v{AV}, {W}, s11 offen offset:{off + V1_OFF}{KVSC}")
    def kv_prologue(kb, part=None):
        nb = len(kb)
        if part != 1:
            a("s_mov_b32 s11, s79")
            loadK(kb[0], 0)
        for j in range(nb - 1):
            if (part == 0 and j > 0) or (part == 1 and j == 0): continue
            loadV(kb[j], 0); loadK(kb[j + 1], TILE); a(f"s_add_u32 s11, s11, {TILE}")
    def tail_addr(hi):
        T = 192
        a(f"""
        s_and_b32 s76, s5, 1
        s_lshr_b32 s77, s5, 1
        v_lshlrev_b32 v{AK1}, 4, v1
        v_bfe_u32 v{T}, v1, 4, 1
        v_mul_u32_u24 v{T}, {OPB}, v{T}
        v_lshl_add_u32 v{PV+3}, v2, 3, v{T}
        v_lshl_add_u32 v{T}, v2, 4, v{T}
        v_lshrrev_b32 v{T+1}, 5, v1
        v_lshl_add_u32 v{PV+2}, v{T+1}, 8, v{T}
        s_lshl_b32 s8, s3, 2
        s_lshl_b32 s9, s76, 1
        s_add_u32 s8, s8, s9
        s_mul_i32 s8, s8, {OPB}
        s_add_u32 s8, s8, {WS_O}
        s_lshl_b32 s9, s4, 2
        s_add_u32 s9, s9, s77
        s_lshl_b32 s72, s9, 9
        s_add_u32 s72, s72, s8
        s_lshl_b32 s73, s9, 7
        s_add_u32 s73, s73, s8
        s_add_u32 s73, s73, 16384
        s_lshl_b32 s74, s3, 1
        s_add_u32 s74, s74, s76
        s_lshl_b32 s74, s74, 5
        s_add_u32 s74, s74, s9
        s_lshl_b32 s74, s74, 2
        s_add_u32 s74, s74, {WS_F4}
        """)
        for j, i in enumerate((0, 1) if hi else (2, 3)):
            a(f"""
            s_xor_b32 s8, s5, {2*i}
            s_and_b32 s8, s8, 3
            s_mul_i32 s8, s8, 9216
            s_add_u32 s8, s8, {L_RED + 3072*max(i-1, 0)}
            v_add_u32 v{PV+j}, s8, v{AK1}
            """)
    def hi_addr():
        T = 192
        a(f"""
        v_and_b32 v{T}, 31, v1
        v_lshlrev_b32 v{AKR}, 3, v{T}
        v_lshrrev_b32 v{T+2}, 3, v{T}
        v_and_b32 v{T+3}, 3, v{T}
        v_lshl_add_u32 v{T+2}, v{T+2}, 2, v{T+3}
        v_bfe_u32 v{T+3}, v{T}, 2, 1
        v_mad_u32_u24 v{T+3}, v{T+3}, 10, v{T+2}
        v_mad_u32_u24 v{T+3}, v{T+1}, 20, v{T+3}
        v_cmp_gt_u32 s[8:9], 10, v{T+2}
        v_cmp_lt_u32 vcc, 10, v{T+2}
        v_mov_b32 v{T+4}, 40
        v_cndmask_b32 v{T+3}, v{T+4}, v{T+3}, s[8:9]
        v_lshlrev_b32 v{AV}, 4, v{T+3}
        v_mov_b32 v{T+4}, 0x40000000
        v_cndmask_b32 v{AV}, v{AV}, v{T+4}, vcc
        s_and_b32 s8, s77, 1
        s_mul_i32 s79, s8, {32*TILE}
        s_add_u32 s79, s79, {WS_KV}
        s_mul_i32 s8, s76, {32*QSTR}
        s_add_u32 s8, s8, {L_Q}
        v_mul_u32_u24 v{T+2}, {QSTR}, v{T}
        v_add_u32 v{T+2}, s8, v{T+2}
        v_lshl_add_u32 v{T+3}, v{T+1}, 4, v{T+2}
        v_xor_b32 v{T+4}, s77, v{T+1}
        v_xor_b32 v{T+5}, 2, v{T+4}
        v_mad_u32_u24 v{QA+4}, v{T+4}, 40, v{T+2}
        v_mad_u32_u24 v{QA+5}, v{T+5}, 40, v{T+2}
        """)
        for i in range(4):
            a(f"s_xor_b32 s8, s77, {i}\ns_mul_i32 s8, s8, 40\nv_add_u32 v{QA+i}, s8, v{T+3}")
        for i in range(4): a(f"v_mov_b32 v{KBH[-1]+10+i}, 0")
    def lo_addr():
        T = 192
        a(f"""
        s_mul_i32 s68, s5, 4224
        s_add_u32 s68, s68, {L_KT}
        v_and_b32 v4, 7, v1
        v_mul_u32_u24 v{T}, 528, v4
        v_lshrrev_b32 v5, 3, v1
        v_sub_u32 v{T+1}, 7, v5
        v_bfe_u32 v{T+2}, v{T+1}, 1, 1
        v_lshl_add_u32 v{T}, v{T+2}, 7, v{T}
        v_lshrrev_b32 v{T+2}, 2, v{T+1}
        v_lshl_add_u32 v{T}, v{T+2}, 6, v{T}
        v_and_b32 v{T+2}, 1, v{T+1}
        v_lshl_add_u32 v{T}, v{T+2}, 5, v{T}
        v_add_u32 v{KT_W}, s68, v{T}
        v_lshrrev_b32 v{T+1}, 5, v1
        v_lshlrev_b32 v{T+2}, 4, v{T+1}
        v_add3_u32 v{KT_R}, v{AK1}, v{T+2}, s68
        v_lshlrev_b32 v{T+3}, 12, v5
        v_lshl_add_u32 v{KT_G}, v4, 4, v{T+3}
        v_mul_u32_u24 v{T+3}, 1280, v5
        v_lshl_add_u32 v{T+3}, v4, 2, v{T+3}
        s_lshl_b32 s8, s5, 5
        v_add_u32 v{KT_S}, s8, v{T+3}
        ; convolution
        s_mul_i32 s68, s5, {CVS}
        s_add_u32 s68, s68, {L_CONV}
        v_and_b32 v{T}, 31, v1
        v_lshlrev_b32 v{V_F2}, 2, v{T}
        v_sub_u32 v{T+3}, v{V_F2}, v{T+2}
        v_add3_u32 v{VA}, v{T+3}, 16, s68
        v_add_u32 v{VA+1}, 1024, v{VA}
        v_add_u32 v{VA+2}, 2048, v{VA}
        v_add_u32 v{VA+3}, 3072, v{VA}
        v_lshrrev_b32 v{T+2}, 1, v{T}
        v_lshl_add_u32 v{T+2}, v{T+2}, 1, v{T+1}
        v_sub_u32 v{T+2}, 31, v{T+2}
        v_lshlrev_b32 v{T+2}, 5, v{T+2}
        v_and_b32 v{T+3}, 1, v{T}
        v_lshl_add_u32 v{T+2}, v{T+3}, 4, v{T+2}
        v_add_u32 v{V_B}, s68, v{T+2}
        v_mul_u32_u24 v{T+2}, 2080, v{T+1}
        v_lshl_add_u32 v{T+2}, v{T}, 4, v{T+2}
        v_add_u32 v{V_ZW}, s68, v{T+2}
        v_lshrrev_b32 v{T+2}, 2, v{T}
        v_lshlrev_b32 v{T+2}, 7, v{T+2}
        v_lshl_add_u32 v{T+2}, v{T+1}, 6, v{T+2}
        v_and_b32 v{T+3}, 3, v{T}
        v_lshl_add_u32 v{V_ZS}, v{T+3}, 4, v{T+2}
        v_subrev_u32 v{V_HD}, 64, v{AK1}
        v_cmp_lt_u32 s[8:9], 19, v1
        v_cndmask_b32 v{T}, 0, 1, s[8:9]
        v_mul_u32_u24 v{T+1}, 20, v{T}
        v_sub_u32 v{T+1}, v1, v{T+1}
        s_lshl_b32 s8, s76, 5
        s_lshl_b32 s9, s77, 3
        s_add_u32 s8, s8, s9
        s_add_u32 s8, s8, 1
        v_sub_u32 v{T+2}, s8, v{T}
        v_mul_u32_u24 v{T+2}, 1280, v{T+2}
        v_add_u32 v{T+2}, s64, v{T+2}
        v_lshl_add_u32 v{T+3}, v{T+1}, 3, s65
        v_lshl_add_u32 v{AE+1}, v{T+2}, 1, v{T+3}
        v_add_u32 v{AE}, v{T+2}, v{T+3}
        v_lshlrev_b32 v{AE+2}, 1, v{T+3}
        v_lshlrev_b32 v{T+3}, 11, v{T+3}
        v_lshl_add_u32 v{AE+3}, v{T}, 4, v{T+3}
        """)
    def stage(ptr, halo, base):
        if E("NOSTG"): return
        srd(S_D, ptr, ACT)
        a(f"s_add_u32 s8, s64, s65\ns_sub_u32 s8, s8, {halo*1280}")
        for i in range(11):
            if i < 5:
                a(f"v_add_u32 v4, s8, v{VW2 + i}\ns_mov_b32 m0, {base + 1024*i}\nbuffer_load_dwordx4 v4, {SR_(S_D)}, 0 offen lds")
            else:
                if i % 5 == 0: a(f"s_add_u32 s8, s8, {32*1280}")
                a(f"s_mov_b32 m0, {base + 1024*i}\nbuffer_load_dwordx4 v{VW2 + i % 5}, {SR_(S_D)}, s8 offen lds")
    def sync_init():
        a(f"""
        v_mov_b32 v4, 0
        v_mov_b32 v5, 0
        v_mov_b32 v6, 0
        v_mov_b32 v7, 8
        ds_write_b64 v{VS}, v[4:5]
        ds_write_b32 v{VS}, v4 offset:8
        ds_write_b32 v{VS}, v7 offset:16
        """)
    def only(w, fn):
        l = a.newlabel(); br_wave("lg", w, l); fn(); a.label(l)
    def publish_kv():
        l_v2, l_stat = a.newlabel(), a.newlabel()
        a(f"v_mov_b32 v8, 0\ns_cmp_ge_u32 s4, 4\ns_cbranch_scc1 {l_v2}")
        for i in range(4): a(f"v_dot2c_f32_bf16 v8, v{PA+i}, v{PA+i}")
        a(f"""
        v_mov_b32 v9, v8
        v_permlane32_swap_b32 v8, v9
        v_add_f32 v8, v8, v9
        v_dot2c_f32_bf16 v8, v{PB}, v{PB}
        v_dot2c_f32_bf16 v8, v{PB+1}, v{PB+1}
        s_nop 2
        s_branch {l_stat}
        """)
        a.label(l_v2)
        for b in range(B0, B0 + 8, 2): a(f"v_max3_f32 v8, v8, |v{b}|, |v{b+1}|")
        a("""
        v_mov_b32 v9, v8
        v_permlane16_swap_b32 v8, v9
        v_max_f32 v8, v8, v9
        v_mov_b32 v9, v8
        v_permlane32_swap_b32 v8, v9
        v_max_f32 v8, v8, v9
        s_nop 1
        """)
        a.label(l_stat)
        for sh in (1, 2, 4, 8):
            a(f"v_max_f32_dpp v8, v8, v8 row_shr:{sh} row_mask:0xf bank_mask:0xf")
        a("v_readlane_b32 s69, v8, 15")
        a(f"""
        s_lshl_b32 s8, s3, 3
        s_add_u32 s8, s8, s4
        s_lshl_b32 s8, s8, 3
        s_getreg_b32 s9, hwreg(HW_REG_XCC_ID, 0, 4)
        s_andn2_b32 s69, s69, 15
        s_or_b32 s69, s69, s9
        v_mov_b32 v4, s69
        v_mov_b32 v5, s{TAG}
        v_mov_b32 v6, 0
        s_waitcnt vmcnt(0)
        s_mov_b64 exec, 1
        buffer_store_dwordx2 v[4:5], v6, {W}, s8 offen offset:{WS_F1} sc1
        s_mov_b64 exec, -1
        """)

    def gemm_addr(cg):
        a(f"""
        v_mov_b32 v{VS}, {L_STAT}
        s_and_b32 s6, s77, 1
        v_lshrrev_b32 v4, 1, v2
        v_xor_b32 v4, v4, v3
        v_lshlrev_b32 v5, 7, v2
        v_lshl_add_u32 v39, v4, 4, v5
        s_lshl_b32 s7, s76, 1
        s_add_u32 s7, s7, s6
        s_lshl_b32 s8, s7, 11
        s_lshl_b32 s9, s6, 6
        v_xor_b32 v4, s9, v39
        v_add_u32 v{VXR}, s8, v4
        v_xor_b32 v{VXR+1}, 0x800, v{VXR}
        v_bfe_u32 v4, v1, 2, 2
        v_lshl_add_u32 v4, v3, 3, v4
        v_and_b32 v5, 1, v3
        v_lshl_add_u32 v6, v5, 2, v4
        v_xor_b32 v7, 4, v6
        v_and_b32 v5, 3, v1
        v_lshlrev_b32 v5, 3, v5
        s_movk_i32 s9, 160
        v_mad_u32_u24 v6, v6, s9, v5
        v_mad_u32_u24 v7, v7, s9, v5
        s_mul_i32 s8, s6, 5120
        s_add_u32 s8, s8, {L_W + 96*cg}
        v_add_u32 v{VTR}, s8, v6
        v_add_u32 v{VTR+1}, s8, v7
        s_mul_i32 s8, s76, 51200
        v_add_u32 v{VT}, s8, v6
        v_add_u32 v{VT+1}, s8, v7
        s_mul_i32 s8, s7, {16*QSTR}
        s_add_u32 s8, s8, {L_Q + 96*cg}
        v_mul_u32_u24 v4, {QSTR}, v2
        v_lshl_add_u32 v4, v3, 3, v4
        v_add_u32 v{VQW}, s8, v4
        s_mul_i32 s8, s5, 3072
        s_add_u32 s8, s8, {L_EX}
        v_add_u32 v{VEX}, s8, v{AK1}
        s_xor_b32 s8, s5, 2
        s_mul_i32 s8, s8, 3072
        s_add_u32 s8, s8, {L_EX}
        v_add_u32 v{VEX+1}, s8, v{AK1}
        """)
    def got_args():
        a(f"s_waitcnt lgkmcnt(0)\ns_load_dword s{TAG}, s[{P_WS}:{P_WS+1}], {WS_E}")
        if STAMP: a("s_mov_b32 s93, s92")
    def got_tag():
        a(f"s_waitcnt lgkmcnt(0)\ns_mul_i32 s{TAG}, s{TAG}, 0x9E3779B1\ns_add_u32 s{TAG}, s{TAG}, 0x7F4A7C15")
    def x_issue(g):
        a(f"s_add_u32 s8, s10, s12\ns_add_u32 s9, s8, {8*1280}")
        for hs in range(2):
            for par in range(2):
                a(f"s_add_u32 m0, s11, {(2*g+hs)*8192 + 1024*par - 128*hs}")
                a(f"buffer_load_dwordx4 v{VD+par}, {SR_(S_A)}, s{8+par} offen offset:{128*hs} lds")
        if g < 4: gwrap(12, 256)
    def wkv_issue(g):
        a(f"s_mov_b32 m0, {L_WKV + 5120*g}")
        for i in range(4):
            a(f"buffer_load_dwordx4 v{AK1}, {SR_(S_C)}, s13 offen offset:{1024*i} lds")
        a(f"s_mov_b32 m0, {L_WKV + 5120*g + 4096}\ns_add_u32 s8, s13, 4096")
        a(f"buffer_load_dwordx4 v{AK1}, {SR_(S_C)}, s8 offen lds")
        if g < 4: gwrap(13, 5120)
    def w_issue(g):
        a(f"s_add_u32 s8, s10, s12")
        for n in range(5):
            a(f"s_add_u32 m0, s11, {(g % 4)*GSLOT + 1024*n}")
            a(f"buffer_load_dwordx4 v{VD+n}, {SR_(S_B)}, s8 offen lds")
        if g < 4: gwrap(12, 128 * 1280)
    def q_stage(nblk, gs, xb, wb, mid=None):
        steps = [(g, hs) for g in gs for hs in range(2)]
        per = 2 + 2 * nblk
        for n, (g, hs) in enumerate(steps):
            b = GF + 20 * n
            for pl in range(2): a(f"ds_read_b128 {R(b+4*pl)}, v{VXR+pl} offset:{(2*g + hs)*8192 - xb}")
            for nb in range(nblk):
                off = (g % 4) * GSLOT + hs * 10240 + nb * 32 - wb
                for z in range(2): a(f"ds_read_b64_tr_b16 {R(b+8+4*nb+2*z,2)}, v{VTR+z} offset:{off}")
        if mid: mid()
        for n in range(len(steps)):
            a(f"s_waitcnt lgkmcnt({min(15, per * (len(steps) - 1 - n))})")
            b = GF + 20 * n
            for nb in range(nblk):
                for pl in range(2):
                    d = R(ACC + 12 * pl + 4 * nb)
                    a(f"v_mfma_f32_16x16x32_bf16 {d}, {R(b+8+4*nb)}, {R(b+4*pl)}, {'0' if (gs[0] == 0 and n == 0) else d}")
    def ld1():
        a(f"buffer_load_dwordx4 v[8:11], v45, {W}, 0 offen offset:{WS_F1} sc1")
        a(f"buffer_load_dwordx4 v[12:15], v45, {W}, 0 offen offset:{WS_F1+16} sc1")
    def q_path(cg):
        nblk = 3 if cg == 0 else 2
        stamp(2)
        a("s_barrier")
        stamp(3)
        q_stage(nblk, [0], 0, 0, (lambda: (only(7, lambda: w_issue(2)), w_issue(3))) if cg else None)
        a(f"s_waitcnt vmcnt({10 if cg else 0})")
        a("s_barrier")
        q_stage(nblk, [1], 0, 0, (lambda: w_issue(4)) if cg else None)
        shift2(VTR, 2 * GSLOT)
        if cg: a("s_waitcnt vmcnt(5)")
        a("s_barrier")
        stamp(4)
        q_stage(nblk, [2, 3], 0, 2 * GSLOT, None if cg else (lambda: only(PW, ld1)))
        shift2(VTR, -2 * GSLOT); shift2(VXR, 65536)
        if cg: a("s_waitcnt vmcnt(0)")
        else: only(PW, lambda: poll(ld1, [9, 11, 13, 15], 1, skipfirst=True)); only(2, sync_init)
        a("s_barrier")
        stamp(5)
        if not cg and E("INV"): only(2, lambda: a("buffer_inv sc1"))
        q_stage(nblk, [4], 65536, 0, (lambda: kv_prologue(KBH, 0)) if cg else None)
        for nb in range(nblk): a(f"ds_write_b128 v{VEX}, {R(ACC+12+4*nb)} offset:{1024*nb}")
        if not cg and not E("NOSVC") and not E("LATEK"): only(3, lambda: stage(P_AK, 4, L_SK))
        a(f"s_mov_b32 s8, 0xffff0000\ns_mov_b32 s9, {f2u(QSCALE)}")
        a("s_waitcnt lgkmcnt(0)\ns_barrier")
        for nb in range(nblk): a(f"ds_read_b128 {R(ACC+12+4*nb)}, v{VEX+1} offset:{1024*nb}")
        if cg and not E("LATEP"): kv_prologue(KBH, 1)
        for nb in range(nblk):
            b = ACC + 4 * nb
            a(f"s_waitcnt lgkmcnt({min(nblk - 1, nblk - 1 - nb + nb)})" if nb == 0 else f"s_waitcnt lgkmcnt({nblk - 1})")
            for r in range(4): a(f"v_add_f32 v{b+r}, v{b+r}, v{b+12+r}")
            for r in range(4): a(f"v_mul_f32 v{b+r}, s9, v{b+r}")
            for p in range(2): a(f"v_cvt_pk_bf16_f32 v{88+2*nb+p}, v{b+2*p}, v{b+2*p+1}")
            a(f"ds_write_b64 v{VQW}, {R(88+2*nb,2)} offset:{32*nb}")
        if not cg and E("INV"): only(2, lambda: a("s_waitcnt vmcnt(0)"))
        a("s_waitcnt lgkmcnt(0)\ns_barrier")
        stamp(7)
    OSTR = 336; OKH = 64 * OSTR
    FRD, FST = [94, 95], [60, 55]
    def fin_addr():
        a(f"""
        v_mul_u32_u24 v54, {OSTR}, v2
        v_lshl_add_u32 v54, v3, 4, v54
        s_mul_i32 s8, s77, {16*OSTR}
        s_mul_i32 s9, s76, {OKH}
        s_add_u32 s8, s8, s9
        s_add_u32 s8, s8, {L_OUT}
        v_add_u32 v54, s8, v54
        """)
    def fin_addr2(n):
        for i in range(n):
            a(f"""
            v_add_u32 v84, {512*i}, v0
            v_mul_u32_u24 v85, 6554, v84
            v_lshrrev_b32 v85, 16, v85
            v_mul_u32_u24 v86, 10, v85
            v_sub_u32 v86, v84, v86
            v_mul_u32_u24 v{FRD[i]}, {OSTR}, v85
            v_lshl_add_u32 v{FRD[i]}, v86, 5, v{FRD[i]}
            v_add_u32 v{FRD[i]}, {L_OUT}, v{FRD[i]}
            v_mul_u32_u24 v{FST[i]}, 2560, v85
            v_lshl_add_u32 v{FST[i]}, v86, 4, v{FST[i]}
            """)
    def lds_add(off, val):
        a(f"v_mov_b32 v4, {val}\ns_mov_b64 exec, 1\nds_add_u32 v{VS}, v4 offset:{off}\ns_mov_b64 exec, -1")
    def lds_wait(off, val, op, sleep):
        poll(lambda: a(f"ds_read_b32 v4, v{VS} offset:{off}"), [4], sleep, "lgkmcnt", str(val), op)
    l_cg1, l_R, l_x, l_lo1 = a.newlabel(), a.newlabel(), a.newlabel(), a.newlabel()
    br_wave("ge", 4, l_cg1)
    a(f"""
    v_lshrrev_b32 v4, 3, v1
    v_mul_u32_u24 v4, 1280, v4
    v_and_b32 v5, 7, v1
    v_xor_b32 v5, v5, v3
    v_lshl_add_u32 v{VD}, v5, 4, v4
    v_xor_b32 v{VD+1}, 64, v{VD}
    s_add_u32 s8, s67, s5
    s_and_b32 s8, s8, 3
    s_mul_i32 s10, s8, {16*1280}
    s_add_u32 s10, s10, s64
    s_lshl_b32 s11, s8, 11
    s_lshl_b32 s12, s66, 8
    s_mul_i32 s13, s66, 5120
    v_lshlrev_b32 v45, 5, v1
    """)
    tail_addr(False); gemm_addr(0); fin_addr()
    br_wave("lg", 0, l_x)
    a(f"""
    v_add_u32 v{VKR}, s11, v39
    v_xor_b32 v{VKR+1}, 64, v{VKR}
    v_bfe_u32 v4, v1, 2, 2
    v_lshl_add_u32 v4, v3, 3, v4
    v_mul_u32_u24 v4, 40, v4
    v_add_u32 v{VK4}, {L_WKV}, v4
    v_and_b32 v5, 3, v1
    v_lshl_add_u32 v{VK5}, v5, 3, v{VK4}
    """)
    for n in range(15): a(f"v_mov_b32 v{(VW2 + n) if n < 5 else (VWO + n - 5)}, -1")
    got_args()
    a(f"""
    s_cmp_ge_u32 s4, 4
    s_cselect_b32 s{S_C}, s{P_WV}, s{P_WK}
    s_cselect_b32 s{S_C+1}, s{P_WV+1}, s{P_WK+1}
    s_mov_b32 s{S_C+2}, 25600
    s_mov_b32 s{S_C+3}, 0x20000
    """)
    srd(S_A, P_X, ACT)
    KORD = E("KORD", "wx")
    if KORD == "wx":
        for g in range(5): wkv_issue(g)
        for g in range(5):
            x_issue(g)
            if str(g) == E("B0"): a("s_barrier")
        wv = [40 - 5 * g for g in range(5)]; xv = [16 - 4 * g for g in range(5)]
    else:
        for g in range(5): x_issue(g)
        for g in range(5): wkv_issue(g)
        wv = [20 - 5 * g for g in range(5)]; xv = [0] * 5
    if not E("B0"): a("s_barrier")
    stamp(1)
    srd(S_WS, P_WS, WS_END)
    got_tag()
    WPF, XT_ = 96, 72
    for g in range(5):
        a(f"s_waitcnt vmcnt({wv[g]})")
        for s_ in range(4):
            ks = 4 * g + s_; b = WPF + 8 * ks
            a(f"ds_read_b64_tr_b16 {R(b,2)}, v{VK5} offset:{ks*1280}")
            a(f"ds_read_b64_tr_b16 {R(b+2,2)}, v{VK5} offset:{ks*1280+160}")
            a(f"ds_read_b64_tr_b16 {R(b+4,2)}, v{VK4} offset:{ks*1280+32}")
            a(f"ds_read_b64_tr_b16 {R(b+6,2)}, v{VK4} offset:{ks*1280+192}")
    a(f"""
    s_lshr_b32 s12, s67, 1
    s_lshl_b32 s14, s3, 1
    s_add_u32 s12, s12, s14
    s_mul_i32 s12, s12, {TILE}
    s_add_u32 s12, s12, {WS_KV}
    s_and_b32 s10, s67, 1
    """)
    def kvpart(isv):
        for g in range(5):
            if g == 4: shift2(VKR, 65536)
            a(f"s_waitcnt vmcnt({xv[g]})")
            for s_ in range(4): a(f"ds_read_b128 {R(XT_+4*s_)}, v{VKR+(s_&1)} offset:{((2*g + (s_>>1)) % 8) * 8192}")
            for s_ in range(4):
                a(f"s_waitcnt lgkmcnt({3-s_})")
                for blk in range(2):
                    d = R(B0 + 4 * blk); c = "0" if (g == 0 and s_ == 0) else d
                    w_, x_ = R(WPF + 8 * (4 * g + s_) + 4 * blk), R(XT_ + 4 * s_)
                    a(f"v_mfma_f32_16x16x32_bf16 {d}, {x_ if isv else w_}, {w_ if isv else x_}, {c}")
    def pack(b, dst, swap):
        a(f"""
        v_cvt_pk_bf16_f32 v{dst}, v{b}, v{b+1}
        v_cvt_pk_bf16_f32 v{dst+1}, v{b+2}, v{b+3}
        v_cvt_pk_bf16_f32 v{dst+2}, v{b}, v{b+1}
        v_cvt_pk_bf16_f32 v{dst+3}, v{b+2}, v{b+3}
        {swap} v{dst}, v{dst+2}
        {swap} v{dst+1}, v{dst+3}
        """)
    l_v, l_pub = a.newlabel(), a.newlabel()
    a(f"s_cmp_ge_u32 s4, 4\ns_cbranch_scc1 {l_v}")
    a(f"""
    s_lshl_b32 s10, s10, 4
    v_add_u32 v5, s10, v2
    v_lshrrev_b32 v6, 1, v3
    v_lshl_add_u32 v6, v6, 5, v5
    v_lshlrev_b32 v6, 4, v6
    v_lshlrev_b32 v5, 3, v5
    """)
    kvpart(False)
    pack(B0, PA, "v_permlane16_swap_b32")
    a(f"""
    v_cvt_pk_bf16_f32 v{PB}, v{B1}, v{B1+1}
    v_cvt_pk_bf16_f32 v{PB+1}, v{B1+2}, v{B1+3}
    s_mov_b32 exec_lo, 0xffff
    s_mov_b32 exec_hi, 0xffff
    buffer_store_dwordx4 {R(PA)}, v6, {W}, s12 offen offset:{K1_OFF} sc1
    s_mov_b64 exec, 0xffff
    buffer_store_dwordx2 {R(PB,2)}, v5, {W}, s12 offen offset:{KR_OFF} sc1
    s_mov_b64 exec, -1
    s_branch {l_pub}
    """)
    a.label(l_v)
    a(f"""
    s_mul_i32 s10, s10, {V1_OFF - V0_OFF}
    s_add_u32 s12, s12, s10
    v_and_b32 v5, 1, v3
    v_mul_u32_u24 v5, 20, v5
    v_add_u32 v6, v5, v2
    v_lshlrev_b32 v6, 4, v6
    v_cmp_lt_u32 s[14:15], 3, v2
    v_mov_b32 v10, 0x3f803f80
    """)
    kvpart(True)
    pack(B0, PA, "v_permlane32_swap_b32")
    pack(B1, PB, "v_permlane32_swap_b32")
    a(f"s_mov_b32 exec_hi, 0")
    a(f"buffer_store_dwordx4 {R(PA)}, v6, {W}, s12 offen offset:{V0_OFF} sc1")
    for i in range(4): a(f"v_cndmask_b32 v{12+i}, v{PB+i}, v10, s[14:15]")
    a(f"""
    s_mov_b32 exec_lo, 0x00ff000f
    buffer_store_dwordx4 v[12:15], v6, {W}, s12 offen offset:{V0_OFF + 256} sc1
    s_mov_b64 exec, -1
    """)
    a.label(l_pub)
    stamp(6)
    publish_kv()
    lo_addr()
    a(f"s_branch {l_lo1}")
    a.label(l_x)
    lo_addr()
    for n in range(5): wpat(VW2 + n, 64 * n, False)
    def wo_pat():
        for n in range(5):
            a(f"""
            v_add_u32 v4, {64*n}, v1
            v_mul_u32_u24 v5, 6554, v4
            v_lshrrev_b32 v5, 16, v5
            v_mul_u32_u24 v6, 10, v5
            v_sub_u32 v6, v4, v6
            v_lshlrev_b32 v6, 4, v6
            v_lshrrev_b32 v7, 1, v5
            v_and_b32 v7, 4, v7
            v_xor_b32 v5, v5, v7
            v_lshrrev_b32 v7, 3, v5
            v_lshl_add_u32 v4, v7, 1, v5
            v_mul_u32_u24 v4, 1280, v4
            v_add_u32 v{VWO+n}, v4, v6
            v_lshrrev_b32 v7, 1, v5
            v_lshl_add_u32 v4, v7, 3, v5
            v_add_u32 v4, 8, v4
            v_mul_u32_u24 v4, 1280, v4
            v_add_u32 v{VWO+5+n}, v4, v6
            """)
    for n in range(4): a(f"v_mov_b32 v{VWO+n}, -1")
    only(3, wo_pat)
    got_args()
    srd(S_A, P_X, ACT); srd(S_WS, P_WS, WS_END); srd(S_C, P_WK, 25600)
    l = a.newlabel()
    a(f"""
    v_lshlrev_b32 v4, 7, v1
    s_sub_u32 s8, s5, 1
    s_lshl_b32 s8, s8, 13
    s_cmp_ge_u32 s2, 8
    s_cbranch_scc1 {l}
    buffer_load_dword v5, v4, {W}, s8 offen sc1
    """)
    a.label(l)
    got_tag()
    a(f"s_setprio {E('PX', '0')}\ns_barrier")
    for g in range(5): x_issue(g)
    a("s_setprio 0")
    stamp(1)
    a("s_waitcnt vmcnt(16)")
    a.label(l_lo1)
    q_path(0)
    l_svcend = a.newlabel()
    if E("NOSVC"):
        lds_add(8, 1); a(f"s_branch {l_svcend}")
    only(3, lambda: (stage(P_AK, 4, L_SK) if E("LATEK") else None, a(f"s_waitcnt vmcnt({E('STG', '6')})"), stage(P_AV, 1, L_SV)))
    srd(S_D, P_SH, D * 8); srd(S_B, P_WO, D * D * 2)
    a(f"""
    s_setprio {E('PKVT', '2')}
    v_and_b32 v4, 7, v1
    v_lshlrev_b32 v4, 4, v4
    s_lshl_b32 s8, s5, 7
    s_lshl_b32 s9, s65, 2
    s_add_u32 s8, s8, s9
    buffer_load_dwordx4 {R(WRAW[0])}, v4, {SR_(S_D)}, s8 offen
    buffer_load_dwordx4 {R(WRAW[1])}, v4, {SR_(S_D)}, s9 offen offset:512
    s_mov_b32 s12, 0xffff0000
    """)
    def decide():
        a(f"v_mul_u32_u24 v4, {QSTR}, v1\nv_add_u32 v4, {L_Q}, v4")
        for i in range(10): a(f"ds_read_b128 {R(128+4*i)}, v4 offset:{16*i}")
        a(f"""
        s_getreg_b32 s9, hwreg(HW_REG_XCC_ID, 0, 4)
        v_xor_b32 v5, s9, v8
        v_xor_b32 v6, s9, v10
        v_or_b32 v5, v5, v6
        v_xor_b32 v6, s9, v12
        v_xor_b32 v7, s9, v14
        v_or3_b32 v5, v5, v6, v7
        v_and_b32 v5, 15, v5
        v_cmp_ne_u32 vcc, 0, v5
        s_lshl_b32 s8, s3, 1
        s_lshr_b64 s[10:11], vcc, s8
        v_max_f32 v8, v8, v10
        v_max3_f32 v8, v8, v12, v14
        s_mov_b32 s8, 0x55555555
        s_mov_b32 s9, 0x55555555
        v_cndmask_b32 v10, 0, v8, s[8:9]
        v_cndmask_b32 v11, v8, 0, s[8:9]
        """)
        for m in ("row_shr:1 row_mask:0xf", "row_shr:2 row_mask:0xf", "row_shr:4 row_mask:0xf", "row_shr:8 row_mask:0xf",
                  "row_bcast:15 row_mask:0xa", "row_bcast:31 row_mask:0xc"):
            a(f"v_max_f32_dpp v10, v10, v10 {m} bank_mask:0xf\nv_max_f32_dpp v11, v11, v11 {m} bank_mask:0xf")
        for j in range(4): a(f"v_mov_b32 v{12+j}, 0")
        a("v_readlane_b32 s14, v10, 63\nv_readlane_b32 s15, v11, 63\ns_waitcnt lgkmcnt(0)")
        for r in range(10):
            for j in range(4): a(f"v_dot2c_f32_bf16 v{12+j}, v{128+10*j+r}, v{128+10*j+r}")
        a(f"""
        v_max3_f32 v12, v12, v13, v14
        v_max_f32 v12, v12, v15
        v_mul_f32 v12, s14, v12
        v_cmp_nge_f32 vcc, {f2u(64.0*64.0)}, v12
        s_mov_b32 s8, 1
        s_cmp_lg_u64 vcc, 0
        s_cselect_b32 s8, 0x101, s8
        s_cmp_lt_u32 s15, {f2u(2.0**-28)}
        s_cselect_b32 s8, 0x101, s8
        s_cmp_gt_u32 s15, {f2u(2.0**50)}
        s_cselect_b32 s8, 0x101, s8
        s_and_b32 s10, s10, 3
        s_cselect_b32 s9, 0, {0 if E("NOFAST") else 0x200}
        s_or_b32 s8, s8, s9
        """)
        lds_add(8, "s8")
    only(PW, decide)
    l = a.newlabel()
    a(f"s_or_b32 s8, s2, s5\ns_cmp_lg_u32 s8, 0\ns_cbranch_scc1 {l}\ns_mov_b32 s8, {WS_E}")
    flag_store(8, 6)
    a.label(l)
    a("s_waitcnt vmcnt(0)")
    only(3, lambda: lds_add(0, 1))
    lds_wait(0, 1, "ne", 2)
    stamp(10)
    KRW, KU, VU, WU, KV, PK = 192, 128, 152, 170, 64, 84
    def kvt_compute(ps, pass_sgpr):
        if E("NOKVT"): return
        kr = KRW; vr = kr + 12; wr = WRAW[ps]
        for r in range(12): a(f"ds_read_b32 v{kr+r}, v{KT_S} offset:{L_SK + 160*r + 32*ps}")
        for r in range(9): a(f"ds_read_b32 v{vr+r}, v{KT_S} offset:{L_SV + 160*r + 32*ps}")
        for j in range(4):
            for c in range(2):
                src = wr + 2 * c + j // 2
                a(f"v_lshlrev_b32 v{WU+2*j+c}, 16, v{src}" if j % 2 == 0 else f"v_and_b32 v{WU+2*j+c}, s12, v{src}")
        a("s_waitcnt lgkmcnt(9)")
        for r in range(12): a(f"v_lshlrev_b32 v{KU+2*r}, 16, v{kr+r}\nv_and_b32 v{KU+2*r+1}, s12, v{kr+r}")
        for i in range(18): a(f"v_mul_f32 v{KV+i}, v{KU+i}, v{WU+6+(i&1)}")
        for j in (2, 1, 0):
            for i in range(18): a(f"v_fmac_f32 v{KV+i}, v{KU+i+2*(3-j)}, v{WU+2*j+(i&1)}")
        a("s_waitcnt lgkmcnt(0)")
        for r in range(9): a(f"v_lshlrev_b32 v{VU+2*r}, 16, v{vr+r}\nv_and_b32 v{VU+2*r+1}, s12, v{vr+r}")
        for i in range(18): a(f"v_mul_f32 v{KV+i}, v{KV+i}, v{VU+i}")
        for c in range(2):
            for cp in range(2):
                for d in range(4):
                    lo = 7 - cp - 2 * d; hi = lo - 1
                    a(f"v_cvt_pk_bf16_f32 v{PK+8*c+4*cp+d}, v{KV+2*(lo+1)+c}, v{KV+2*(hi+1)+c}")
                a(f"ds_write_b128 v{KT_W}, {R(PK+8*c+4*cp)} offset:{256*c + 16*cp}")
        for k in range(4): a(f"ds_read_b128 {R(PK+16+4*k)}, v{KT_R} offset:{1056*k}")
        a(f"""
        s_mul_i32 s8, s4, 80
        s_lshl_b32 s9, s{pass_sgpr}, 4
        s_add_u32 s8, s8, s9
        s_lshl_b32 s8, s8, 13
        s_sub_u32 s9, 31, s3
        s_lshl_b32 s9, s9, 7
        s_add_u32 s8, s8, s9
        s_add_u32 s8, s8, {WS_XT}
        """)
        for k in range(4):
            a(f"s_waitcnt lgkmcnt({3-k})")
            a(f"buffer_store_dwordx4 {R(PK+16+4*k)}, v{KT_G}, {W}, s8 offen sc1")
            if k < 3: a(f"s_add_u32 s8, s8, {4*8192}")
    def f2_flag(pass_sgpr):
        a(f"""
        s_mul_i32 s8, s4, 5
        s_add_u32 s8, s8, s{pass_sgpr}
        s_lshl_b32 s8, s8, 5
        s_add_u32 s8, s8, s3
        s_lshl_b32 s8, s8, 2
        s_add_u32 s8, s8, {WS_F2}
        """)
        flag_store(8, 6)
    kvt_compute(0, 5)
    l_conv, l_aepi, l_cdone = a.newlabel(), a.newlabel(), a.newlabel()
    br_wave("lg", 3, l_conv)
    a("s_mov_b32 s10, 4")
    kvt_compute(1, 10)
    a("s_waitcnt vmcnt(0)")
    f2_flag(10); f2_flag(5)
    a("s_setprio 0")
    stamp(8)
    def wo_loop(p0):
        a(f"s_add_u32 s8, s65, {p0*160*1280}\ns_mov_b32 s9, {p0*25600}")
        l = a.newlabel()
        a.label(l)
        for m in range(5):
            a(f"s_add_u32 s10, s8, {(40*1280*m) if m < 4 else 0}")
            for n in range(5):
                a(f"s_add_u32 m0, s9, {5120*m + 1024*n}")
                a(f"buffer_load_dwordx4 v{VWO + n + (5 if m == 4 else 0)}, {SR_(S_B)}, s10 offen lds")
            a(f"s_waitcnt vmcnt({E('WOV', '5')})")
        a(f"""
        s_add_u32 s8, s8, {160*1280}
        s_add_u32 s9, s9, 25600
        s_cmp_lt_u32 s9, {(p0+2)*25600}
        s_cbranch_scc1 {l}
        """)
    if not E("NOWO"):
        wo_loop(2)
        lds_wait(4, 3, "ne", 8)
        wo_loop(0)
    a("s_waitcnt vmcnt(0)")
    lds_add(0, 1)
    a(f"s_branch {l_aepi}")
    a.label(l_conv)
    lds_add(4, 1)
    a(f"""
    s_lshl_b32 s12, s5, 8
    s_add_u32 s12, s12, s2              ; channel
    s_min_u32 s13, s12, 639
    s_lshl_b32 s8, s13, 12
    s_add_u32 s{S_A}, s{P_SK}, s8
    s_addc_u32 s{S_A+1}, s{P_SK+1}, 0
    s_mov_b32 s{S_A+2}, 4096
    s_lshl_b32 s8, s13, 13
    s_add_u32 s8, s8, {WS_XT}
    s_add_u32 s{S_B}, s{P_WS}, s8
    s_addc_u32 s{S_B+1}, s{P_WS+1}, 0
    s_mov_b32 s{S_B+2}, 4096
    s_add_u32 s{S_C}, s{S_B}, 4096
    s_addc_u32 s{S_C+1}, s{S_B+1}, 0
    s_mov_b32 s{S_C+2}, 4096
    s_load_dword s14, s[{S_A}:{S_A+1}], 0
    s_lshr_b32 s8, s13, 1
    s_lshl_b32 s8, s8, 2
    s_load_dword s15, s[{P_SD}:{P_SD+1}], s8
    s_mul_i32 s8, s13, 52429
    s_lshr_b32 s8, s8, 22
    s_mul_i32 s9, s8, 80
    s_sub_u32 s9, s13, s9
    s_lshr_b32 s9, s9, 4
    s_mul_i32 s8, s8, 5
    s_add_u32 s8, s8, s9
    s_lshl_b32 s13, s8, 7
    s_add_u32 s13, s13, {WS_F2}
    s_waitcnt vmcnt(0)
    """)
    f2_flag(5)
    a(f"s_waitcnt lgkmcnt(0)\ns_cmp_ge_u32 s12, 640\ns_cbranch_scc1 {l_cdone}")
    if E("NOCONV"): a(f"s_branch {l_cdone}")
    a(f"s_mov_b32 m0, s68\nbuffer_load_dwordx4 v{V_HD}, {SR_(S_A)}, 0 offen lds")
    a(f"s_add_u32 m0, s68, 1024\ns_movk_i32 s8, 960")
    for i in range(4): a(f"buffer_load_dwordx4 v{AK1}, {SR_(S_A)}, s8 offen offset:{1024*i} lds")
    for i in range(4): a(f"v_mov_b32 v{8+i}, 0")
    for t in range(4): a(f"v_mfma_f32_32x32x16_bf16 {R(O+16*t,16)}, {R(8)}, {R(8)}, 0")
    a(f"""
    s_bitcmp1_b32 s12, 0
    s_cselect_b32 s8, 0, 16
    s_lshl_b32 s15, s15, s8
    s_and_b32 s15, s15, 0xffff0000
    s_lshl_b32 s8, s14, 16
    v_mov_b32 v5, s8
    v_add_f32 v5, s15, v5
    v_cvt_pk_bf16_f32 v5, v5, v5
    v_mov_b32 v6, s68
    s_waitcnt vmcnt(0)
    ds_write_b16 v6, v5 offset:64
    """)
    lds_wait(16, int(E("PF2", "7")), "lt", 8)
    poll(lambda: a(f"buffer_load_dword v4, v{V_F2}, {W}, s13 offen sc1"), [4], 16)
    stamp(8)
    a("s_movk_i32 s8, 4096")
    for cl_ in range(2):
        a(f"s_add_u32 m0, s68, {5120 + 5120*cl_}")
        for i in range(4): a(f"buffer_load_dwordx4 v{AK1}, {SR_(S_C if cl_ else S_B)}, 0 offen offset:{1024*i} sc1 lds")
        a(f"s_add_u32 m0, s68, {5120 + 5120*cl_ + 4096}")
        a(f"buffer_load_dwordx4 v{AK1}, {SR_(S_C if cl_ else S_B)}, s8 offen sc1 lds")
    a(f"s_waitcnt vmcnt(0)\ns_setprio {E('PCONV', '0')}")
    F = SR
    def c_reads(sp):
        j, e = sp >> 1, sp & 1; b = F + 32 * (sp & 1)
        for u in range(4):
            o = (4 + 32 * e + 128 * j) // 4
            a(f"ds_read2_b32 {R(b+4*u,2)}, v{VA+u} offset0:{o} offset1:{o+1}")
            a(f"ds_read2_b32 {R(b+4*u+2,2)}, v{VA+u} offset0:{o+2} offset1:{o+3}")
            a(f"ds_read_b128 {R(b+16+4*u)}, v{V_B} offset:{5120 + 5120*e + 3072 - 1024*u + 128*j}")
    c_reads(0)
    for sp in range(16):
        if sp < 15 and not (E("CNORD") and sp > 0): c_reads(sp + 1)
        a(f"s_waitcnt lgkmcnt({12 if sp < 15 else 0})")
        b = F + 32 * (sp & 1)
        for u in range(4):
            for nb in range(u, 4):
                d = R(O + 16 * nb, 16)
                if E("CNOM"): a("s_sleep 1")
                elif E("CZERO"): a(f"v_mfma_f32_32x32x16_bf16 {d}, {R(8)}, {R(8)}, {d}")
                else: a(f"v_mfma_f32_32x32x16_bf16 {d}, {R(b+4*u)}, {R(b+16+4*(nb-u))}, {d}")
    a("s_setprio 2")
    a(f"ds_write_b128 v{V_ZW}, {R(8)}\nds_write_b128 v{V_ZW}, {R(8)} offset:4160")
    for nb in range(4):
        for q in range(2): a(f"ds_write_b128 v{V_ZW}, {R(O+16*nb+8+4*q)} offset:{4160*q + 512*nb + 32}")
    for nb in range(4):
        for q in range(2): a(f"ds_read_b128 {R(F+8*nb+4*q)}, v{V_ZW} offset:{4160*q + 512*nb}")
    a(f"s_lshl_b32 s8, s12, 12\ns_add_u32 s8, s8, {WS_Z}")
    for nb in range(4):
        a(f"s_waitcnt lgkmcnt({6-2*nb})")
        for r in range(8): a(f"v_add_f32 v{O+16*nb+r}, v{O+16*nb+r}, v{F+8*nb+r}")
        for k in range(4): a(f"v_cvt_pk_bf16_f32 v{F+32+4*nb+k}, v{O+16*nb+2*k}, v{O+16*nb+2*k+1}")
        a(f"buffer_store_dwordx4 {R(F+32+4*nb)}, v{V_ZS}, {W}, s8 offen offset:{1024*nb} sc1")
    a(f"s_lshl_b32 s8, s12, 2\ns_add_u32 s8, s8, {WS_F3}\ns_waitcnt vmcnt(0)")
    flag_store(8, 6)
    a.label(l_cdone)
    lds_add(8, 1)
    a.label(l_aepi)
    stamp(9)
    a("s_setprio 2")
    XF, AF, AC = 8, 96, 64
    def o_reads(ks):
        b = AF + 20 * (ks % 8)
        for nb in range(5):
            for z in range(2): a(f"ds_read_b64_tr_b16 {R(b+4*nb+2*z,2)}, v{VT+z} offset:{ks*5120 + nb*32}")
    QRW, ZR, U = 8, 24, 64
    X40 = "s_mov_b32 exec_lo, -1\ns_mov_b32 exec_hi, 0xff"
    srd(S_A, P_AQ, ACT)
    a(X40)
    for e in range(8):
        a(f"s_movk_i32 s8, {(16*(e>>2) + 2*(e&3))*1280}")
        a(f"buffer_load_dwordx2 {R(QRW+2*e,2)}, v{AE}, {SR_(S_A)}, s8 offen")
    a(f"""
    s_mov_b64 exec, -1
    buffer_load_dwordx4 {R(64)}, v{PV+2}, {W}, s72 offen sc1
    buffer_load_dwordx4 {R(64)}, v{PV+2}, {W}, s72 offen offset:1024 sc1
    buffer_load_dwordx2 {R(64,2)}, v{PV+3}, {W}, s73 offen sc1
    buffer_load_dwordx2 {R(64,2)}, v{PV+3}, {W}, s73 offen offset:256 sc1
    v_mov_b32 v4, 0
    buffer_load_dword v64, v4, {W}, s74 offen sc1
    """)
    lds_wait(0, 2, "ne", 16)
    for ks in range(8): o_reads(ks)
    srd(S_C, P_OUT, 2 * ACT)
    def unp(dst, src, hi): a(f"v_and_b32 v{dst}, s14, v{src}" if hi else f"v_lshlrev_b32 v{dst}, 16, v{src}")
    def z_fetch(once):
        a(f"""
        s_lshl_b32 s11, s3, 7
        s_lshl_b32 s8, s5, 5
        s_add_u32 s11, s11, s8
        s_add_u32 s11, s11, {WS_Z}
        s_mov_b32 s14, {WS_F3}
        {X40}
        """)
        l = a.newlabel()
        poll(lambda: a(f"buffer_load_dwordx4 {R(40)}, v{AE+2}, {W}, s14 offen sc1"), [40, 41, 42, 43], 4, fail=l if once else None)
        stamp(11)
        for i in range(4):
            a(f"buffer_load_dwordx4 {R(ZR+4*i)}, v{AE+3}, {W}, s11 offen sc1")
            if i < 3: a("s_add_u32 s11, s11, 4096")
        a("s_mov_b32 s70, 1\ns_mov_b32 s14, 0xffff0000\ns_waitcnt vmcnt(0)")
        for e in range(8):
            for i in range(4):
                unp(U + i, QRW + 2 * e + i // 2, i % 2); unp(U + 4 + i, ZR + 4 * i + e // 2, e % 2)
            for i in range(4): a(f"v_mul_f32 v{U+i}, v{U+i}, v{U+4+i}")
            for i in (0, 2): a(f"v_cvt_pk_bf16_f32 v{QRW+2*e+i//2}, v{U+i}, v{U+i+1}")
            a(f"s_mov_b32 s8, {(16*(e>>2) + 2*(e&3))*2560}")
            a(f"buffer_store_dwordx2 {R(QRW+2*e,2)}, v{AE+1}, {SR_(S_C)}, s8 offen{OSFX}")
        a.label(l)
        a("s_mov_b64 exec, -1")
    if not E("NOAEPI"):
        a("s_mov_b32 s70, 0")
        lds_wait(16, 1, "lt", 8)
        a(f"s_setprio {E('PAE', '2')}")
        l_try, l_giveup = a.newlabel(), a.newlabel()
        a.label(l_try)
        a(f"s_sleep {E('ZS', '16')}")
        z_fetch(True)
        a(f"""
        s_cmp_eq_u32 s70, 1
        s_cbranch_scc1 {l_giveup}
        ds_read_b32 v4, v{VS} offset:16
        s_waitcnt lgkmcnt(0)
        v_readfirstlane_b32 s8, v4
        s_cmp_lg_u32 s8, 0
        s_cbranch_scc1 {l_try}
        """)
        a.label(l_giveup)
    a.label(l_svcend)
    fin_addr2(2)
    a("s_waitcnt vmcnt(0) lgkmcnt(0)")
    stamp(12)
    a("s_barrier")
    a(f"ds_read_b32 v5, v{VS} offset:8")
    OWN = O
    for j in range(2):
        for r in range(3): a(f"ds_read_b128 {R(OWN+12*j+4*r)}, v{PV+j} offset:{1024*r}")
    a(f"s_branch {l_R}")
    a.label(l_cg1)
    for n in range(5): wpat(VD + n, 64 * n, True)
    a(f"""
    s_sub_u32 s8, s5, 4
    s_mul_i32 s11, s8, 5120
    s_add_u32 s11, s11, {L_W}
    s_mul_i32 s10, s8, {32*1280}
    s_add_u32 s10, s10, s65
    s_mul_i32 s12, s66, {128*1280}
    """)
    tail_addr(True); hi_addr(); gemm_addr(1); fin_addr(); a('v_mov_b32 v55, -1\nv_mov_b32 v60, -1'); a(f"v_mov_b32 v{AE+1}, -1\nv_mov_b32 v{AE+2}, -1\nv_mov_b32 v{AE+3}, -1")
    got_args()
    if E("TLB"):
        M2 = 1 << 21
        pages = [(P_WQ, 0), (P_X, 0), (P_X, M2), (P_AK, 0), (P_AK, M2), (P_AV, 0), (P_AV, M2), (P_SH, 0),
                 (P_WS, M2), (P_WS, 2*M2), (P_WS, 3*M2), (P_WS, 4*M2), (P_WS, 5*M2), (P_SK, 0), (P_SK, M2), (P_SD, 0),
                 (P_WO, 0), (P_AQ, 0), (P_AQ, M2), (P_OUT, 0), (P_OUT, M2), (P_OUT, 2*M2)]
        for w in range(4):
            def t(w=w):
                for p_, o_ in pages[w::4]: a(f"s_mov_b32 s8, {o_}\ns_load_dword s13, s[{p_}:{p_+1}], s8")
            only(4 + w, t)
    srd(S_B, P_WQ, D * D * 2); srd(S_WS, P_WS, WS_END)
    if not E("TLB"): got_tag()
    a(f"s_setprio {E('PHI', '0')}\ns_barrier")
    w_issue(0)
    stamp(1)
    a(f"s_waitcnt vmcnt({E('W1', '5')})"); w_issue(1); a("s_waitcnt vmcnt(5)")
    l = a.newlabel(); br_wave("eq", 7, l); w_issue(2); a.label(l)
    if E("TLB"): got_tag()
    q_path(1)
    for i in range(4): a(f"ds_read2_b64 {R(QM+4*i)}, v{QA+i} offset0:0 offset1:1")
    a(f"ds_read_b64 {R(QR,2)}, v{QA+4} offset:32\nds_read_b64 {R(QR+2,2)}, v{QA+5} offset:32")
    a(f"s_setprio 1\ns_movk_i32 s13, 8")
    for t in range(4): a(f"v_mfma_f32_32x32x16_bf16 {R(O+16*t,16)}, {R(KBH[-1]+10)}, {R(KBH[-1]+10)}, 0")
    l_fb, l_after = a.newlabel(), a.newlabel()
    def qk(t, kb, usec):
        return f"v_mfma_f32_32x32x16_bf16 {R(SR+16*t,16)}, {R(kb)}, {R(QM+4*t)}, {R(C+16*t,16) if usec else '0'}"
    def qr(p, kb):
        d = R(SR + 32 * p, 32)
        if E("QR8"): return "\n".join(f"v_mfma_f32_32x32x8_bf16 {R(SR+32*p+16*i,16)}, {R(kb+4,2)}, {R(QR+2*p,2)}, {R(SR+32*p+16*i,16)}" for i in range(2))
        if E("NOQR"): return "s_nop 0\ns_nop 0"
        return f"v_mfma_f32_32x32x4_2b_bf16 {d}, {R(kb+4,2)}, {R(QR+2*p,2)}, {d}"
    def pv(t, hf, vb):
        d = R(O + 16 * t, 16)
        if E("PVSWAP"): return f"v_mfma_f32_32x32x16_bf16 {d}, {R(SR+16*t+8*hf)}, {R(vb+6+4*hf)}, {d}"
        return f"v_mfma_f32_32x32x16_bf16 {d}, {R(vb+6+4*hf)}, {R(SR+16*t+8*hf)}, {d}"
    MP = [int(x) for x in E("MP", "16,8,12,20,26,35,4").split(",")]
    DEFER = MP[6] < 40
    LP = [int(x) for x in E("LP", "12,36,60,84").split(",")]
    def phase(p, kq_, vcur, vprev, extra, usec):
        ta, tb = 2 * p, 2 * p + 1
        na, nb_ = 2 * (1 - p), 2 * (1 - p) + 1
        base, pbase = SR + 32 * p, SR + 32 * (1 - p)
        def cv(b, j):
            bb = b + 8 * (j // 4); k = j % 4
            return f"v_cvt_pk_bf16_f32 v{bb+k}, v{bb+2*k}, v{bb+2*k+1}"
        valu = []
        for grp in range(8):
            for i in range(4): valu.append(f"v_exp_f32 v{base+4*grp+i}, v{base+4*grp+i}")
            for j in (2 * grp - 2, 2 * grp - 1): valu.append(cv(base, j) if j >= 0 else cv(pbase, 16 + j))
        ins = dict(zip(MP, [[qk(na, kq_, usec)], [pv(nb_, 1, vprev)], [qk(nb_, kq_, usec)], [pv(ta, 0, vcur)],
               [qr(1 - p, kq_)], [pv(ta, 1, vcur)], [pv(nb_, 0, vprev) if DEFER else pv(tb, 0, vcur)]]))
        for k, v in extra.items():
            if k == "wait": ins[MP[3]] = v + ins[MP[3]]
            else: ins[k] = ins.get(k, []) + v
        for i, x in enumerate(valu):
            for y in ins.get(i, []): a(y)
            a(x)
        return [cv(base, 14), cv(base, 15)]
    def main_loop(kb, usec):
        nb = len(kb)
        a(f"s_waitcnt vmcnt({4 if E('LATEP') else 4*(nb-1)}) lgkmcnt(0)")
        stamp(8); rstamp(14)
        a(qk(0, kb[0], usec)); a(qk(1, kb[0], usec))
        for i in range(8): a(f"v_mov_b32 v{SR+56+i}, 0")
        for i in range(4): a(f"v_mov_b32 v{SR+48+i}, 0\nv_mov_b32 v{kb[-1]+6+i}, 0")
        a(qr(0, kb[0]))
        if usec or not E("LATEP"): a("s_nop 15\ns_nop 3")
        else: kv_prologue(kb, 1); a("s_nop 9")
        l_loop = a.newlabel()
        a(".p2align 6")
        a.label(l_loop)
        n0 = len(a.lines)
        for par in range(nb):
            cur, nxt, prv = kb[par], kb[(par + 1) % nb], kb[par - 1]
            lds_ = [f"buffer_load_dwordx4 {R(prv+6)}, v{AV}, {W}, s11 offen offset:{V0_OFF}{KVL}",
                    f"buffer_load_dwordx4 {R(prv+10)}, v{AV}, {W}, s11 offen offset:{V1_OFF}{KVL}",
                    f"buffer_load_dwordx4 {R(cur)}, v{AK1}, {W}, s11 offen offset:{TILE + K1_OFF}{KVL}",
                    f"buffer_load_dwordx2 {R(cur+4,2)}, v{AKR}, {W}, s11 offen offset:{TILE + KR_OFF}{KVL}"]
            ex = [{"wait": [f"s_waitcnt vmcnt({4*(nb-2) + sum(1 for p_ in LP if p_ < MP[3])})"]}, {}]
            for p_, l_ in zip(LP, lds_): ex[p_ // 48].setdefault(p_ % 48, []).append(l_)
            pm = max(LP) + 3
            ex[pm // 48].setdefault(pm % 48, []).append(f"s_add_u32 s11, s11, {TILE}")
            if par == nb - 1:
                ex[1].setdefault(22, []).append("s_sub_u32 s13, s13, 1")
                if not usec: ex[1].setdefault(24, []).extend(["v_mov_b32 v4, s13", f"ds_write_b32 v{VS}, v4 offset:16", f"ds_read_b32 v5, v{VS} offset:8"])
                ex[1].setdefault(45, []).append("s_cmp_lg_u32 s13, 0")
            phase(0, cur, cur, prv, ex[0], usec)
            tail = phase(1, nxt, cur, cur, ex[1], usec)
        if not E("NOALIGN"):
            par_ = 0; last4 = None
            for i in range(n0, len(a.lines)):
                t = a.lines[i]
                small = t.startswith(("v_exp_f32 ", "v_mov_b32 ", "s_waitcnt", "s_sub_u32", "s_cmp_"))
                if small:
                    par_ ^= 1
                    if t.startswith("v_"): last4 = i
                elif par_:
                    assert last4 is not None and all(a.lines[j].startswith(("v_exp_f32 ", "v_mov_b32 ", "s_waitcnt", "s_sub_u32", "s_cmp_")) for j in range(last4, i)), a.lines[last4:i+1]
                    a.lines[last4] = a.lines[last4].replace(" ", "_e64 ", 1); par_ = 0
        a(f"s_cbranch_scc1 {l_loop}")
        if DEFER: a(pv(3, 0, kb[-1]))
        for x in tail: a(x)
        a(pv(3, 1, kb[-1]))
    main_loop(KBH, False)
    l_w, l_ok = a.newlabel(), a.newlabel()
    a(f"s_mov_b32 s96, {SPIN}")
    a.label(l_w)
    a(f"""
    s_waitcnt lgkmcnt(0)
    v_readfirstlane_b32 s8, v5
    s_and_b32 s9, s8, 0xff
    s_cmp_eq_u32 s9, 4
    s_cbranch_scc1 {l_ok}
    s_sleep 2
    ds_read_b32 v5, v{VS} offset:8
    s_sub_u32 s96, s96, 1
    s_cmp_lg_u32 s96, 0
    s_cbranch_scc1 {l_w}
    """)
    a.label(l_ok)
    a(f"s_bitcmp1_b32 s8, 8\ns_cbranch_scc1 {l_fb}")
    a.label(l_after)
    stamp(9); rstamp(15)
    for i in (1, 2, 3):
        for r in range(3): a(f"ds_write_b128 v{PV}, {R(O+16*i+4*r)} offset:{3072*(i-1) + 1024*r}")
    a("s_waitcnt lgkmcnt(0)")
    stamp(12)
    a("s_barrier")
    for r in range(3): a(f"ds_read_b128 {R(OWN+12+4*r)}, v{PV+1} offset:{1024*r}")
    a.label(l_R)
    a("s_waitcnt lgkmcnt(0)\nv_readfirstlane_b32 s71, v5")
    for r in (10, 8, 9, 0, 1, 2, 3, 4, 5, 6, 7): a(f"v_add_f32 v{OWN+r}, v{OWN+r}, v{OWN+12+r}")
    a(f"v_rcp_f32 v{OWN+10}, v{OWN+10}")
    for i in (8, 9, 0, 1, 2, 3, 4, 5, 6, 7): a(f"v_mul_f32 v{OWN+i}, v{OWN+i}, v{OWN+10}")
    PO = 88
    a(f"v_cvt_pk_bf16_f32 v{PO+4}, v{OWN+8}, v{OWN+9}\nv_cvt_pk_bf16_f32 v{PO+5}, v{OWN+8}, v{OWN+9}")
    for i in range(4): a(f"v_cvt_pk_bf16_f32 v{PO+i}, v{OWN+2*i}, v{OWN+2*i+1}")
    a(f"""
    v_permlane32_swap_b32 v{PO+4}, v{PO+5}
    s_waitcnt vmcnt(0)
    s_bitcmp1_b32 s71, 9
    s_cbranch_scc1 L_fast1
    buffer_store_dwordx4 {R(PO)}, v{PV+2}, {W}, s72 offen sc1
    s_mov_b32 exec_hi, 0
    buffer_store_dwordx2 {R(PO+4,2)}, v{PV+3}, {W}, s73 offen sc1
    s_branch L_fast2
    L_fast1:
    buffer_store_dwordx4 {R(PO)}, v{PV+2}, {W}, s72 offen{E('FSFX', ' nt')}
    s_mov_b32 exec_hi, 0
    buffer_store_dwordx2 {R(PO+4,2)}, v{PV+3}, {W}, s73 offen{E('FSFX', ' nt')}
    L_fast2:
    s_mov_b32 exec_hi, -1
    """)
    tstamp(1)
    srd(S_C, P_OUT, 2 * ACT)
    a(f"""
    s_lshl_b32 s12, s3, 1
    s_lshr_b32 s8, s77, 1
    s_add_u32 s12, s12, s8
    s_lshl_b32 s12, s12, 1
    s_add_u32 s12, s12, s76
    s_lshl_b32 s12, s12, 6
    s_add_u32 s12, s12, {WS_F4}
    v_lshl_add_u32 v4, v2, 2, s12
    s_lshl_b32 s8, s3, 8
    s_lshl_b32 s9, s4, 4
    s_add_u32 s8, s8, s9
    s_add_u32 s8, s8, {WS_F4}
    v_and_b32 v5, 3, v1
    v_lshl_add_u32 v5, v5, 2, s8
    v_bfe_u32 v6, v1, 2, 1
    v_lshl_add_u32 v5, v6, 7, v5
    s_mov_b32 s8, 0xffff0000
    s_mov_b32 s9, 0
    v_cndmask_b32 v4, v4, v5, s[8:9]
    v_lshlrev_b32 v5, 8, v3
    v_lshl_add_u32 v5, v2, 3, v5
    s_lshl_b32 s13, s3, 2
    s_add_u32 s13, s13, s77
    s_mul_i32 s13, s13, {OPB}
    s_add_u32 s13, s13, {WS_O}
    s_lshl_b32 s8, s76, 11
    s_add_u32 s15, s13, s8
    s_add_u32 s15, s15, 16384
    s_lshl_b32 s8, s76, 13
    s_add_u32 s13, s13, s8
    s_add_u32 s10, s13, 4096
    v_mov_b32 v6, s{TAG}
    v_mov_b32 v7, 0
    """)
    l = a.newlabel()
    br_wave("lt", 4, l)
    for ks in range(2): o_reads(ks)
    a.label(l)
    tstamp(2)
    a(f"""
    s_waitcnt vmcnt(0)
    s_mov_b64 exec, 1
    s_bitcmp1_b32 s71, 9
    s_cbranch_scc1 L_fast3
    buffer_store_dword v6, v7, {W}, s74 offen sc1
    s_branch L_fast4
    L_fast3:
    buffer_store_dword v6, v7, {W}, s74 offen
    L_fast4:
    s_mov_b64 exec, -1
    """)
    tstamp(3)
    if E("XBAR"): a("s_barrier")
    l, l2 = a.newlabel(), a.newlabel()
    br_wave("lt", 4, l)
    for ks in range(2, 6): o_reads(ks)
    a(f"s_branch {l2}")
    a.label(l)
    if not E("NOAEPI") and not E("NOSVC"):
        l3 = a.newlabel()
        a(f"s_cmp_eq_u32 s70, 1\ns_cbranch_scc1 {l3}")
        z_fetch(False)
        a.label(l3)
    a.label(l2)
    a(f"s_lshl_b32 s14, s64, 1\ns_add_u32 s14, s14, s65\ns_add_u32 s14, s14, 1280")
    tstamp(4)
    poll(lambda: a(f"buffer_load_dword v6, v4, {W}, 0 offen sc1"), [6], 1)
    tstamp(5)
    nld = []
    for ks in range(10):
        pr_, m = ks // 5, ks % 5
        if m < 4:
            a(f"buffer_load_dwordx4 {R(XF+4*ks)}, v{AK1}, {W}, s{10 if pr_ else 13} offen offset:{1024*m} sc1"); nld.append(1)
        else:
            for z in range(2): a(f"buffer_load_dwordx2 {R(XF+4*ks+2*z,2)}, v5, {W}, s15 offen offset:{1024*pr_ + 128*z} sc1")
            nld.append(2)
    l = a.newlabel()
    br_wave("lt", 4, l)
    for ks in range(6, 8): o_reads(ks)
    fin_addr2(1)
    a.label(l)
    tstamp(6)
    for ks in range(10):
        a(f"s_waitcnt vmcnt({sum(nld[ks+1:])})" + {0: " lgkmcnt(15)", 6: " lgkmcnt(15)", 8: " lgkmcnt(10)", 9: " lgkmcnt(0)"}.get(ks, ""))
        b = AF + 20 * (ks % 8)
        for nb in range(5):
            d = R(AC + 4 * nb)
            a(f"v_mfma_f32_16x16x32_bf16 {d}, {R(b+4*nb)}, {R(XF+4*ks)}, {'0' if ks == 0 else d}")
        if ks < 2: o_reads(8 + ks)
    tstamp(7)
    for nb in range(5): a(f"ds_write_b128 v54, {R(AC+4*nb)} offset:{64*nb}")
    a("s_waitcnt lgkmcnt(0)\ns_barrier")
    def fin_rd(i):
        b = 96 + 16 * i
        a(f"ds_read_b128 {R(b)}, v{FRD[i]}\nds_read_b128 {R(b+4)}, v{FRD[i]} offset:16")
        a(f"ds_read_b128 {R(b+8)}, v{FRD[i]} offset:{OKH}\nds_read_b128 {R(b+12)}, v{FRD[i]} offset:{OKH+16}")
    def fin_st(i):
        b = 96 + 16 * i
        for r in range(8): a(f"v_add_f32 v{b+r}, v{b+r}, v{b+8+r}")
        for r in range(4): a(f"v_cvt_pk_bf16_f32 v{b+8+r}, v{b+2*r}, v{b+2*r+1}")
        a(f"buffer_store_dwordx4 {R(b+8)}, v{FST[i]}, {SR_(S_C)}, s14 offen{OSFX}")
    l = a.newlabel()
    fin_rd(0)
    br_wave("ge", 2, l)
    fin_rd(1); a("s_waitcnt lgkmcnt(0)"); fin_st(1)
    a.label(l)
    a("s_waitcnt lgkmcnt(0)"); fin_st(0)
    a.label("L_fin")
    if E("HOLD"):
        a(f"""
        L_hold:
        s_sleep 1
        s_memrealtime s[94:95]
        s_waitcnt lgkmcnt(0)
        s_sub_u32 s8, s94, s92
        s_cmp_lt_u32 s8, {E('HOLD')}
        s_cbranch_scc1 L_hold
        """)
    if STAMP:
        a(f"""
        s_memtime s[98:99]
        s_waitcnt lgkmcnt(0)
        s_mov_b32 s96, s98
        s_memrealtime s[98:99]
        s_waitcnt lgkmcnt(0)
        s_mov_b32 s97, s98
        s_add_u32 s72, s{P_WS}, {WS_STAMP}
        s_addc_u32 s73, s{P_WS+1}, 0
        s_mov_b32 s74, 0x40000
        s_mov_b32 s75, 0x20000
        s_lshl_b32 s76, s2, 3
        s_add_u32 s76, s76, s5
        s_lshl_b32 s76, s76, 7
        v_mov_b32 v2, 0
        """)
        for i in range(18): a(f"v_mov_b32 v3, s{80+i}\nbuffer_store_dword v3, v2, s[72:75], s76 offen offset:{4*i}")
    a.label("L_exit")
    a("s_endpgm")
    a.label(l_fb)
    FB = [28, 240]
    FB = [28, 114]
    a("s_waitcnt vmcnt(0)\ns_nop 15\ns_nop 3")
    raise_fb = True
    TB, M = 28, 36
    for j in range(4): a(f"v_mov_b32 v{M+j}, 0xff800000")
    a(f"s_mov_b32 s11, {WS_KV}\ns_mov_b32 s14, 64\ns_mov_b32 s13, 16")
    l_f = a.newlabel()
    a.label(l_f)
    loadK(TB, 0)
    a("s_waitcnt vmcnt(0)")
    for t in range(4): a(qk(t, TB, False))
    a(qr(0, TB)); a(qr(1, TB))
    for t in range(4):
        for i in range(8): a(f"v_max3_f32 v{M+t}, v{M+t}, v{SR+16*t+2*i}, v{SR+16*t+2*i+1}")
    a(f"s_add_u32 s11, s11, {TILE}\ns_sub_u32 s14, s14, 1\ns_cmp_lg_u32 s14, 0\ns_cbranch_scc1 {l_f}")
    for t in range(4):
        a(f"v_mov_b32 v{M+4}, v{M+t}\nv_permlane32_swap_b32 v{M+t}, v{M+4}\nv_max_f32 v{M+4}, v{M+4}, v{M+t}")
        for i in range(16): a(f"v_sub_f32 v{C+16*t+i}, 0, v{M+4}")
    a(f"v_mov_b32 v6, v{VT}\nv_mov_b32 v7, v{VT+1}")
    for i in range(4): a(f"v_mov_b32 v{52+i}, 0")
    for t in range(4): a(f"v_mfma_f32_32x32x16_bf16 {R(O+16*t,16)}, {R(52)}, {R(52)}, 0")
    kv_prologue([28, 42])
    main_loop([28, 42], True)
    a(f"s_waitcnt vmcnt(0)\nv_mov_b32 v{VT}, v6\nv_mov_b32 v{VT+1}, v7"); fin_addr(); a(f"s_nop 7\ns_nop 7\ns_branch {l_after}")
    return a.finalize(verbose=bool(E("VERB")))

def build():
    hdr = open(f"cdna_kernels/{NAME}.s.ref").read().split("; @launch")[0]
    k = NAME + "_kernel"
    body = build_kernel()
    return hdr + f"""; @launch grid=(256,1,1) block=(512,1,1) lds=163840
.amdgcn_target "amdgcn-amd-amdhsa--gfx950"
.text
.globl {k}
.p2align 8
.type {k},@function
{k}:
{body}.section .rodata,"a"
.p2align 6
.amdhsa_kernel {k}
  .amdhsa_next_free_vgpr 256
  .amdhsa_next_free_sgpr 100
  .amdhsa_accum_offset 256
  .amdhsa_group_segment_fixed_size 0
  .amdhsa_kernarg_size 112
  .amdhsa_user_sgpr_count 2
  .amdhsa_user_sgpr_kernarg_segment_ptr 1
  .amdhsa_system_sgpr_workgroup_id_x 1
.end_amdhsa_kernel
"""

if __name__ == "__main__":
    path = sys.argv[1] if len(sys.argv) > 1 else "fused7.s"
    open(path, "w").write(build())
    print("wrote", path)
```

```python
import sys, math, struct, os
sys.path.insert(0, "gen")
from asmlib import Asm

NAME = "concat_heads__ssm_conv_h3__grouped_kv_mqa__prompt"
S, D, H, DH = 2048, 640, 32, 20
ACT = S * D * 2
WS_E, WS_F1, WS_F2, WS_F3, WS_F4 = 0, 1024, 4096, 12288, 16384
WS_KV = 32768
TILE = 2816
KR_OFF, K1_OFF, V0_OFF, V1_OFF = 0, 256, 1280, 2048
WS_O = 0x40000
OPB = 20480
WS_Z = WS_O + ACT
WS_XT = WS_Z + ACT
WS_END = WS_XT + 2 * ACT
WS_STAMP = 0x2000000
QSCALE = (DH ** -0.5) * math.log2(math.e)
E = os.environ.get
STAMP = E("STAMP", "0") == "1"
TAILST = E("TAILST")
SPIN = 1 << 17
OSFX = " " + E("OSFX", "nt")
KVSC = " sc1"
KVL = " sc1" if E("KVSC1") else ""

def f2u(x): return struct.unpack("<I", struct.pack("<f", x))[0]
P_AQ, P_AK, P_AV, P_SH, P_SK, P_SD, P_X, P_WQ, P_WK, P_WV, P_WO, P_OUT, P_DBG, P_WS = [16 + 2 * i for i in range(14)]
S_WS, S_A, S_B, S_C, S_D = 44, 48, 52, 56, 60
TAG = 78
def R(b, n=4): return f"v[{b}:{b+n-1}]"
def SR_(b): return f"s[{b}:{b+3}]"
W = SR_(S_WS)

L_W = 81920; GSLOT = 20480
L_WKV = 163840 - 25600
L_Q = 102400; QSTR = 176
L_STAT = L_Q + 64 * QSTR
L_RED = 113920
L_CONV = 113920; CVS = 15360
L_OUT = 102400
L_SK, L_SV, L_KT = 0, 16384, 27648
WO_LOW = 45

a = Asm()
def srd(r, ptr, nbytes, off=0):
    if off:
        a(f"s_add_u32 s{r}, s{ptr}, {off}\ns_addc_u32 s{r+1}, s{ptr+1}, 0")
    else:
        a(f"s_mov_b32 s{r}, s{ptr}\ns_mov_b32 s{r+1}, s{ptr+1}")
    a(f"s_mov_b32 s{r+2}, {nbytes}\ns_mov_b32 s{r+3}, 0x20000")
def _st(i, op="s_memtime"): a(f"{op} s[98:99]\ns_waitcnt lgkmcnt(0)\ns_mov_b32 s{80+i}, s98")
def stamp(i):
    if STAMP and not (TAILST and 1 <= i <= 7): _st(i)
def tstamp(i):
    if STAMP and TAILST: _st(i)
def rstamp(i):
    if STAMP: _st(i, "s_memrealtime")
def br_wave(op, n, lab): a(f"s_cmp_{op}_u32 s5, {n}\ns_cbranch_scc1 {lab}")
def poll(load_fn, tagregs, sleep=2, cnt="vmcnt", val=None, op="ne", skipfirst=False, fail=None):
    val = val or f"s{TAG}"
    l, d = a.newlabel(), a.newlabel()
    a(f"s_mov_b32 s96, {SPIN}")
    if skipfirst:
        l0 = a.newlabel(); a(f"s_branch {l0}")
    a.label(l)
    load_fn()
    if skipfirst: a.label(l0)
    a(f"s_waitcnt {cnt}(0)")
    for i, t in enumerate(tagregs):
        if i == 0: a(f"v_cmp_{op}_u32 s[8:9], {val}, v{t}")
        else: a(f"v_cmp_ne_u32 vcc, {val}, v{t}\ns_or_b64 s[8:9], s[8:9], vcc")
    if fail:
        a(f"s_cmp_eq_u64 s[8:9], 0\ns_cbranch_scc0 {fail}"); return
    a(f"""
    s_cmp_eq_u64 s[8:9], 0
    s_cbranch_scc1 {d}
    s_sleep {sleep}
    s_sub_u32 s96, s96, 1
    s_cmp_lg_u32 s96, 0
    s_cbranch_scc1 {l}
    """)
    a.label(d)
def flag_store(soff_sgpr, vt):
    a(f"v_mov_b32 v{vt}, s{TAG}\nv_mov_b32 v{vt+1}, 0")
    a(f"s_mov_b64 exec, 1")
    a(f"buffer_store_dword v{vt}, v{vt+1}, {W}, s{soff_sgpr} offen sc1")
    a(f"s_mov_b64 exec, -1")
def wpat(dst, qbase, x4):
    a(f"""
    v_add_u32 v4, {qbase}, v1
    v_mul_u32_u24 v5, 6554, v4
    v_lshrrev_b32 v5, 16, v5
    v_mul_u32_u24 v6, 10, v5
    v_sub_u32 v6, v4, v6
    """)
    if x4: a("v_lshrrev_b32 v7, 1, v5\nv_and_b32 v7, 4, v7\nv_xor_b32 v5, v5, v7")
    a(f"v_mul_u32_u24 v5, 1280, v5\nv_lshl_add_u32 v{dst}, v6, 4, v5")

def build_kernel():
    if STAMP: a("s_memtime s[80:81]\ns_memrealtime s[92:93]")
    a(f"""
    s_cmp_ge_u32 s2, 256
    s_cbranch_scc1 L_exit
    s_load_dwordx16 s[16:31], s[0:1], 0
    s_load_dwordx8 s[32:39], s[0:1], 64
    s_load_dwordx4 s[40:43], s[0:1], 96
    v_lshrrev_b32 v1, 6, v0
    s_and_b32 s7, s2, 7
    s_lshl_b32 s3, s7, 2
    s_lshr_b32 s4, s2, 3
    v_readfirstlane_b32 s5, v1
    s_and_b32 s6, s4, 3
    s_add_u32 s3, s3, s6          ; s3 = pb64
    s_lshr_b32 s4, s4, 2          ; s4 = hg
    v_and_b32 v1, 63, v0          ; lane
    v_and_b32 v2, 15, v1          ; p
    v_lshrrev_b32 v3, 4, v1       ; kg
    s_mul_i32 s64, s3, {64*1280}
    s_mul_i32 s65, s4, 160
    s_add_u32 s66, s6, s7
    s_mul_i32 s8, s66, 52
    s_lshr_b32 s8, s8, 8
    s_mul_i32 s8, s8, 5
    s_sub_u32 s66, s66, s8
    s_and_b32 s67, s4, 3          ; pbk
    """)
    VD, VXR, VTR, VQW, VEX = 28, 34, 36, 38, 46
    VKR, VK4, VK5 = 40, 42, 43
    ACC, GF = 64, 96
    QM, QR = 8, 24
    O, SR, C = 64, 128, 192
    KBH = [192, 206, 220, 234]
    AK1, AKR, AV = 62, 63, 61
    PV, QA, VS, VT, AE = 56, 176, 44, 52, 48
    B0, B1, PA, PB = 16, 20, 64, 68
    KT_W, KT_R, KT_G, KT_S, VW2 = 240, 241, 242, 243, 244
    VA, V_B, V_ZW, V_ZS, V_HD, V_F2 = 228, 232, 233, 234, 235, 236
    VWO = 224
    WRAW = [216, 220]
    L_EX = 32768
    PW = int(E('PW', '3'))
    def gwrap(sreg, step):
        a(f"s_add_u32 s{sreg}, s{sreg}, {step}\ns_cmp_ge_u32 s{sreg}, {5*step}\ns_cselect_b32 s{sreg}, 0, s{sreg}")
    def shift2(r, d): a(f"v_add_u32 v{r}, {d & 0xffffffff}, v{r}\nv_add_u32 v{r+1}, {d & 0xffffffff}, v{r+1}")
    def loadK(buf, off):
        a(f"buffer_load_dwordx4 {R(buf)}, v{AK1}, {W}, s11 offen offset:{off + K1_OFF}{KVSC}")
        a(f"buffer_load_dwordx2 {R(buf+4,2)}, v{AKR}, {W}, s11 offen offset:{off + KR_OFF}{KVSC}")
    def loadV(buf, off):
        a(f"buffer_load_dwordx4 {R(buf+6)}, v{AV}, {W}, s11 offen offset:{off + V0_OFF}{KVSC}")
        a(f"buffer_load_dwordx4 {R(buf+10)}, v{AV}, {W}, s11 offen offset:{off + V1_OFF}{KVSC}")
    def kv_prologue(kb, part=None):
        nb = len(kb)
        if part != 1:
            a("s_mov_b32 s11, s79")
            loadK(kb[0], 0)
        for j in range(nb - 1):
            if (part == 0 and j > 0) or (part == 1 and j == 0): continue
            loadV(kb[j], 0); loadK(kb[j + 1], TILE); a(f"s_add_u32 s11, s11, {TILE}")
    def tail_addr(hi):
        T = 192
        a(f"""
        s_and_b32 s76, s5, 1
        s_lshr_b32 s77, s5, 1
        v_lshlrev_b32 v{AK1}, 4, v1
        v_bfe_u32 v{T}, v1, 4, 1
        v_mul_u32_u24 v{T}, {OPB}, v{T}
        v_lshl_add_u32 v{PV+3}, v2, 3, v{T}
        v_lshl_add_u32 v{T}, v2, 4, v{T}
        v_lshrrev_b32 v{T+1}, 5, v1
        v_lshl_add_u32 v{PV+2}, v{T+1}, 8, v{T}
        s_lshl_b32 s8, s3, 2
        s_lshl_b32 s9, s76, 1
        s_add_u32 s8, s8, s9
        s_mul_i32 s8, s8, {OPB}
        s_add_u32 s8, s8, {WS_O}
        s_lshl_b32 s9, s4, 2
        s_add_u32 s9, s9, s77
        s_lshl_b32 s72, s9, 9
        s_add_u32 s72, s72, s8
        s_lshl_b32 s73, s9, 7
        s_add_u32 s73, s73, s8
        s_add_u32 s73, s73, 16384
        s_lshl_b32 s74, s3, 1
        s_add_u32 s74, s74, s76
        s_lshl_b32 s74, s74, 5
        s_add_u32 s74, s74, s9
        s_lshl_b32 s74, s74, 2
        s_add_u32 s74, s74, {WS_F4}
        """)
        for j, i in enumerate((0, 1) if hi else (2, 3)):
            a(f"""
            s_xor_b32 s8, s5, {2*i}
            s_and_b32 s8, s8, 3
            s_mul_i32 s8, s8, 9216
            s_add_u32 s8, s8, {L_RED + 3072*max(i-1, 0)}
            v_add_u32 v{PV+j}, s8, v{AK1}
            """)
    def hi_addr():
        T = 192
        a(f"""
        v_and_b32 v{T}, 31, v1
        v_lshlrev_b32 v{AKR}, 3, v{T}
        v_lshrrev_b32 v{T+2}, 3, v{T}
        v_and_b32 v{T+3}, 3, v{T}
        v_lshl_add_u32 v{T+2}, v{T+2}, 2, v{T+3}
        v_bfe_u32 v{T+3}, v{T}, 2, 1
        v_mad_u32_u24 v{T+3}, v{T+3}, 10, v{T+2}
        v_mad_u32_u24 v{T+3}, v{T+1}, 20, v{T+3}
        v_cmp_gt_u32 s[8:9], 10, v{T+2}
        v_cmp_lt_u32 vcc, 10, v{T+2}
        v_mov_b32 v{T+4}, 40
        v_cndmask_b32 v{T+3}, v{T+4}, v{T+3}, s[8:9]
        v_lshlrev_b32 v{AV}, 4, v{T+3}
        v_mov_b32 v{T+4}, 0x40000000
        v_cndmask_b32 v{AV}, v{AV}, v{T+4}, vcc
        s_and_b32 s8, s77, 1
        s_mul_i32 s79, s8, {32*TILE}
        s_add_u32 s79, s79, {WS_KV}
        s_mul_i32 s8, s76, {32*QSTR}
        s_add_u32 s8, s8, {L_Q}
        v_mul_u32_u24 v{T+2}, {QSTR}, v{T}
        v_add_u32 v{T+2}, s8, v{T+2}
        v_lshl_add_u32 v{T+3}, v{T+1}, 4, v{T+2}
        v_xor_b32 v{T+4}, s77, v{T+1}
        v_xor_b32 v{T+5}, 2, v{T+4}
        v_mad_u32_u24 v{QA+4}, v{T+4}, 40, v{T+2}
        v_mad_u32_u24 v{QA+5}, v{T+5}, 40, v{T+2}
        """)
        for i in range(4):
            a(f"s_xor_b32 s8, s77, {i}\ns_mul_i32 s8, s8, 40\nv_add_u32 v{QA+i}, s8, v{T+3}")
        for i in range(4): a(f"v_mov_b32 v{KBH[-1]+10+i}, 0")
    def lo_addr():
        T = 192
        a(f"""
        s_mul_i32 s68, s5, 4224
        s_add_u32 s68, s68, {L_KT}
        v_and_b32 v4, 7, v1
        v_mul_u32_u24 v{T}, 528, v4
        v_lshrrev_b32 v5, 3, v1
        v_sub_u32 v{T+1}, 7, v5
        v_bfe_u32 v{T+2}, v{T+1}, 1, 1
        v_lshl_add_u32 v{T}, v{T+2}, 7, v{T}
        v_lshrrev_b32 v{T+2}, 2, v{T+1}
        v_lshl_add_u32 v{T}, v{T+2}, 6, v{T}
        v_and_b32 v{T+2}, 1, v{T+1}
        v_lshl_add_u32 v{T}, v{T+2}, 5, v{T}
        v_add_u32 v{KT_W}, s68, v{T}
        v_lshrrev_b32 v{T+1}, 5, v1
        v_lshlrev_b32 v{T+2}, 4, v{T+1}
        v_add3_u32 v{KT_R}, v{AK1}, v{T+2}, s68
        v_lshlrev_b32 v{T+3}, 12, v5
        v_lshl_add_u32 v{KT_G}, v4, 4, v{T+3}
        v_mul_u32_u24 v{T+3}, 1280, v5
        v_lshl_add_u32 v{T+3}, v4, 2, v{T+3}
        s_lshl_b32 s8, s5, 5
        v_add_u32 v{KT_S}, s8, v{T+3}
        ; convolution
        s_mul_i32 s68, s5, {CVS}
        s_add_u32 s68, s68, {L_CONV}
        v_and_b32 v{T}, 31, v1
        v_lshlrev_b32 v{V_F2}, 2, v{T}
        v_sub_u32 v{T+3}, v{V_F2}, v{T+2}
        v_add3_u32 v{VA}, v{T+3}, 16, s68
        v_add_u32 v{VA+1}, 1024, v{VA}
        v_add_u32 v{VA+2}, 2048, v{VA}
        v_add_u32 v{VA+3}, 3072, v{VA}
        v_lshrrev_b32 v{T+2}, 1, v{T}
        v_lshl_add_u32 v{T+2}, v{T+2}, 1, v{T+1}
        v_sub_u32 v{T+2}, 31, v{T+2}
        v_lshlrev_b32 v{T+2}, 5, v{T+2}
        v_and_b32 v{T+3}, 1, v{T}
        v_lshl_add_u32 v{T+2}, v{T+3}, 4, v{T+2}
        v_add_u32 v{V_B}, s68, v{T+2}
        v_mul_u32_u24 v{T+2}, 2080, v{T+1}
        v_lshl_add_u32 v{T+2}, v{T}, 4, v{T+2}
        v_add_u32 v{V_ZW}, s68, v{T+2}
        v_lshrrev_b32 v{T+2}, 2, v{T}
        v_lshlrev_b32 v{T+2}, 7, v{T+2}
        v_lshl_add_u32 v{T+2}, v{T+1}, 6, v{T+2}
        v_and_b32 v{T+3}, 3, v{T}
        v_lshl_add_u32 v{V_ZS}, v{T+3}, 4, v{T+2}
        v_subrev_u32 v{V_HD}, 64, v{AK1}
        v_cmp_lt_u32 s[8:9], 19, v1
        v_cndmask_b32 v{T}, 0, 1, s[8:9]
        v_mul_u32_u24 v{T+1}, 20, v{T}
        v_sub_u32 v{T+1}, v1, v{T+1}
        s_lshl_b32 s8, s76, 5
        s_lshl_b32 s9, s77, 3
        s_add_u32 s8, s8, s9
        s_add_u32 s8, s8, 1
        v_sub_u32 v{T+2}, s8, v{T}
        v_mul_u32_u24 v{T+2}, 1280, v{T+2}
        v_add_u32 v{T+2}, s64, v{T+2}
        v_lshl_add_u32 v{T+3}, v{T+1}, 3, s65
        v_lshl_add_u32 v{AE+1}, v{T+2}, 1, v{T+3}
        v_add_u32 v{AE}, v{T+2}, v{T+3}
        v_lshlrev_b32 v{AE+2}, 1, v{T+3}
        v_lshlrev_b32 v{T+3}, 11, v{T+3}
        v_lshl_add_u32 v{AE+3}, v{T}, 4, v{T+3}
        """)
    def stage(ptr, halo, base):
        if E("NOSTG"): return
        srd(S_D, ptr, ACT)
        a(f"s_add_u32 s8, s64, s65\ns_sub_u32 s8, s8, {halo*1280}")
        for i in range(11):
            if i < 5:
                a(f"v_add_u32 v4, s8, v{VW2 + i}\ns_mov_b32 m0, {base + 1024*i}\nbuffer_load_dwordx4 v4, {SR_(S_D)}, 0 offen lds")
            else:
                if i % 5 == 0: a(f"s_add_u32 s8, s8, {32*1280}")
                a(f"s_mov_b32 m0, {base + 1024*i}\nbuffer_load_dwordx4 v{VW2 + i % 5}, {SR_(S_D)}, s8 offen lds")
    def sync_init():
        a(f"""
        v_mov_b32 v4, 0
        v_mov_b32 v5, 0
        v_mov_b32 v6, 0
        v_mov_b32 v7, 8
        ds_write_b64 v{VS}, v[4:5]
        ds_write_b32 v{VS}, v4 offset:8
        ds_write_b32 v{VS}, v7 offset:16
        """)
    def only(w, fn):
        l = a.newlabel(); br_wave("lg", w, l); fn(); a.label(l)
    def publish_kv():
        l_v2, l_stat = a.newlabel(), a.newlabel()
        a(f"v_mov_b32 v8, 0\ns_cmp_ge_u32 s4, 4\ns_cbranch_scc1 {l_v2}")
        for i in range(4): a(f"v_dot2c_f32_bf16 v8, v{PA+i}, v{PA+i}")
        a(f"""
        v_mov_b32 v9, v8
        v_permlane32_swap_b32 v8, v9
        v_add_f32 v8, v8, v9
        v_dot2c_f32_bf16 v8, v{PB}, v{PB}
        v_dot2c_f32_bf16 v8, v{PB+1}, v{PB+1}
        s_nop 2
        s_branch {l_stat}
        """)
        a.label(l_v2)
        for b in range(B0, B0 + 8, 2): a(f"v_max3_f32 v8, v8, |v{b}|, |v{b+1}|")
        a("""
        v_mov_b32 v9, v8
        v_permlane16_swap_b32 v8, v9
        v_max_f32 v8, v8, v9
        v_mov_b32 v9, v8
        v_permlane32_swap_b32 v8, v9
        v_max_f32 v8, v8, v9
        s_nop 1
        """)
        a.label(l_stat)
        for sh in (1, 2, 4, 8):
            a(f"v_max_f32_dpp v8, v8, v8 row_shr:{sh} row_mask:0xf bank_mask:0xf")
        a("v_readlane_b32 s69, v8, 15")
        a(f"""
        s_lshl_b32 s8, s3, 3
        s_add_u32 s8, s8, s4
        s_lshl_b32 s8, s8, 3
        s_getreg_b32 s9, hwreg(HW_REG_XCC_ID, 0, 4)
        s_andn2_b32 s69, s69, 15
        s_or_b32 s69, s69, s9
        v_mov_b32 v4, s69
        v_mov_b32 v5, s{TAG}
        v_mov_b32 v6, 0
        s_waitcnt vmcnt(0)
        s_mov_b64 exec, 1
        buffer_store_dwordx2 v[4:5], v6, {W}, s8 offen offset:{WS_F1} sc1
        s_mov_b64 exec, -1
        """)

    def gemm_addr(cg):
        a(f"""
        v_mov_b32 v{VS}, {L_STAT}
        s_and_b32 s6, s77, 1
        v_lshrrev_b32 v4, 1, v2
        v_xor_b32 v4, v4, v3
        v_lshlrev_b32 v5, 7, v2
        v_lshl_add_u32 v39, v4, 4, v5
        s_lshl_b32 s7, s76, 1
        s_add_u32 s7, s7, s6
        s_lshl_b32 s8, s7, 11
        s_lshl_b32 s9, s6, 6
        v_xor_b32 v4, s9, v39
        v_add_u32 v{VXR}, s8, v4
        v_xor_b32 v{VXR+1}, 0x800, v{VXR}
        v_bfe_u32 v4, v1, 2, 2
        v_lshl_add_u32 v4, v3, 3, v4
        v_and_b32 v5, 1, v3
        v_lshl_add_u32 v6, v5, 2, v4
        v_xor_b32 v7, 4, v6
        v_and_b32 v5, 3, v1
        v_lshlrev_b32 v5, 3, v5
        s_movk_i32 s9, 160
        v_mad_u32_u24 v6, v6, s9, v5
        v_mad_u32_u24 v7, v7, s9, v5
        s_mul_i32 s8, s6, 5120
        s_add_u32 s8, s8, {L_W + 96*cg}
        v_add_u32 v{VTR}, s8, v6
        v_add_u32 v{VTR+1}, s8, v7
        s_mul_i32 s8, s76, 51200
        v_add_u32 v{VT}, s8, v6
        v_add_u32 v{VT+1}, s8, v7
        s_mul_i32 s8, s7, {16*QSTR}
        s_add_u32 s8, s8, {L_Q + 96*cg}
        v_mul_u32_u24 v4, {QSTR}, v2
        v_lshl_add_u32 v4, v3, 3, v4
        v_add_u32 v{VQW}, s8, v4
        s_mul_i32 s8, s5, 3072
        s_add_u32 s8, s8, {L_EX}
        v_add_u32 v{VEX}, s8, v{AK1}
        s_xor_b32 s8, s5, 2
        s_mul_i32 s8, s8, 3072
        s_add_u32 s8, s8, {L_EX}
        v_add_u32 v{VEX+1}, s8, v{AK1}
        """)
    def got_args():
        a(f"s_waitcnt lgkmcnt(0)\ns_load_dword s{TAG}, s[{P_WS}:{P_WS+1}], {WS_E}")
        if STAMP: a("s_mov_b32 s93, s92")
    def got_tag():
        a(f"s_waitcnt lgkmcnt(0)\ns_mul_i32 s{TAG}, s{TAG}, 0x9E3779B1\ns_add_u32 s{TAG}, s{TAG}, 0x7F4A7C15")
    def x_issue(g):
        a(f"s_add_u32 s8, s10, s12\ns_add_u32 s9, s8, {8*1280}")
        for hs in range(2):
            for par in range(2):
                a(f"s_add_u32 m0, s11, {(2*g+hs)*8192 + 1024*par - 128*hs}")
                a(f"buffer_load_dwordx4 v{VD+par}, {SR_(S_A)}, s{8+par} offen offset:{128*hs} lds")
        if g < 4: gwrap(12, 256)
    def wkv_issue(g):
        a(f"s_mov_b32 m0, {L_WKV + 5120*g}")
        for i in range(4):
            a(f"buffer_load_dwordx4 v{AK1}, {SR_(S_C)}, s13 offen offset:{1024*i} lds")
        a(f"s_mov_b32 m0, {L_WKV + 5120*g + 4096}\ns_add_u32 s8, s13, 4096")
        a(f"buffer_load_dwordx4 v{AK1}, {SR_(S_C)}, s8 offen lds")
        if g < 4: gwrap(13, 5120)
    def w_issue(g):
        a(f"s_add_u32 s8, s10, s12")
        for n in range(5):
            a(f"s_add_u32 m0, s11, {(g % 4)*GSLOT + 1024*n}")
            a(f"buffer_load_dwordx4 v{VD+n}, {SR_(S_B)}, s8 offen lds")
        if g < 4: gwrap(12, 128 * 1280)
    def q_stage(nblk, gs, xb, wb, mid=None):
        steps = [(g, hs) for g in gs for hs in range(2)]
        per = 2 + 2 * nblk
        for n, (g, hs) in enumerate(steps):
            b = GF + 20 * n
            for pl in range(2): a(f"ds_read_b128 {R(b+4*pl)}, v{VXR+pl} offset:{(2*g + hs)*8192 - xb}")
            for nb in range(nblk):
                off = (g % 4) * GSLOT + hs * 10240 + nb * 32 - wb
                for z in range(2): a(f"ds_read_b64_tr_b16 {R(b+8+4*nb+2*z,2)}, v{VTR+z} offset:{off}")
        if mid: mid()
        for n in range(len(steps)):
            a(f"s_waitcnt lgkmcnt({min(15, per * (len(steps) - 1 - n))})")
            b = GF + 20 * n
            for nb in range(nblk):
                for pl in range(2):
                    d = R(ACC + 12 * pl + 4 * nb)
                    a(f"v_mfma_f32_16x16x32_bf16 {d}, {R(b+8+4*nb)}, {R(b+4*pl)}, {'0' if (gs[0] == 0 and n == 0) else d}")
    def ld1():
        a(f"buffer_load_dwordx4 v[8:11], v45, {W}, 0 offen offset:{WS_F1} sc1")
        a(f"buffer_load_dwordx4 v[12:15], v45, {W}, 0 offen offset:{WS_F1+16} sc1")
    def q_path(cg):
        nblk = 3 if cg == 0 else 2
        stamp(2)
        a("s_barrier")
        stamp(3)
        q_stage(nblk, [0], 0, 0, (lambda: (only(7, lambda: w_issue(2)), w_issue(3))) if cg else None)
        a(f"s_waitcnt vmcnt({10 if cg else 0})")
        a("s_barrier")
        q_stage(nblk, [1], 0, 0, (lambda: w_issue(4)) if cg else None)
        shift2(VTR, 2 * GSLOT)
        if cg: a("s_waitcnt vmcnt(5)")
        a("s_barrier")
        stamp(4)
        q_stage(nblk, [2, 3], 0, 2 * GSLOT, None if cg else (lambda: only(PW, ld1)))
        shift2(VTR, -2 * GSLOT); shift2(VXR, 65536)
        if cg: a("s_waitcnt vmcnt(0)")
        else: only(PW, lambda: poll(ld1, [9, 11, 13, 15], 1, skipfirst=True)); only(2, sync_init)
        a("s_barrier")
        stamp(5)
        if not cg and E("INV"): only(2, lambda: a("buffer_inv sc1"))
        q_stage(nblk, [4], 65536, 0, (lambda: kv_prologue(KBH, 0)) if cg else None)
        for nb in range(nblk): a(f"ds_write_b128 v{VEX}, {R(ACC+12+4*nb)} offset:{1024*nb}")
        if not cg and not E("NOSVC") and not E("LATEK"): only(3, lambda: stage(P_AK, 4, L_SK))
        a(f"s_mov_b32 s8, 0xffff0000\ns_mov_b32 s9, {f2u(QSCALE)}")
        a("s_waitcnt lgkmcnt(0)\ns_barrier")
        for nb in range(nblk): a(f"ds_read_b128 {R(ACC+12+4*nb)}, v{VEX+1} offset:{1024*nb}")
        if cg and not E("LATEP"): kv_prologue(KBH, 1)
        for nb in range(nblk):
            b = ACC + 4 * nb
            a(f"s_waitcnt lgkmcnt({min(nblk - 1, nblk - 1 - nb + nb)})" if nb == 0 else f"s_waitcnt lgkmcnt({nblk - 1})")
            for r in range(4): a(f"v_add_f32 v{b+r}, v{b+r}, v{b+12+r}")
            for r in range(4): a(f"v_mul_f32 v{b+r}, s9, v{b+r}")
            for p in range(2): a(f"v_cvt_pk_bf16_f32 v{88+2*nb+p}, v{b+2*p}, v{b+2*p+1}")
            a(f"ds_write_b64 v{VQW}, {R(88+2*nb,2)} offset:{32*nb}")
        if not cg and E("INV"): only(2, lambda: a("s_waitcnt vmcnt(0)"))
        a("s_waitcnt lgkmcnt(0)\ns_barrier")
        stamp(7)
    OSTR = 336; OKH = 64 * OSTR
    FRD, FST = [94, 95], [60, 55]
    def fin_addr():
        a(f"""
        v_mul_u32_u24 v54, {OSTR}, v2
        v_lshl_add_u32 v54, v3, 4, v54
        s_mul_i32 s8, s77, {16*OSTR}
        s_mul_i32 s9, s76, {OKH}
        s_add_u32 s8, s8, s9
        s_add_u32 s8, s8, {L_OUT}
        v_add_u32 v54, s8, v54
        """)
    def fin_addr2(n):
        for i in range(n):
            a(f"""
            v_add_u32 v84, {512*i}, v0
            v_mul_u32_u24 v85, 6554, v84
            v_lshrrev_b32 v85, 16, v85
            v_mul_u32_u24 v86, 10, v85
            v_sub_u32 v86, v84, v86
            v_mul_u32_u24 v{FRD[i]}, {OSTR}, v85
            v_lshl_add_u32 v{FRD[i]}, v86, 5, v{FRD[i]}
            v_add_u32 v{FRD[i]}, {L_OUT}, v{FRD[i]}
            v_mul_u32_u24 v{FST[i]}, 2560, v85
            v_lshl_add_u32 v{FST[i]}, v86, 4, v{FST[i]}
            """)
    def lds_add(off, val):
        a(f"v_mov_b32 v4, {val}\ns_mov_b64 exec, 1\nds_add_u32 v{VS}, v4 offset:{off}\ns_mov_b64 exec, -1")
    def lds_wait(off, val, op, sleep):
        poll(lambda: a(f"ds_read_b32 v4, v{VS} offset:{off}"), [4], sleep, "lgkmcnt", str(val), op)
    l_cg1, l_R, l_x, l_lo1 = a.newlabel(), a.newlabel(), a.newlabel(), a.newlabel()
    br_wave("ge", 4, l_cg1)
    a(f"""
    v_lshrrev_b32 v4, 3, v1
    v_mul_u32_u24 v4, 1280, v4
    v_and_b32 v5, 7, v1
    v_xor_b32 v5, v5, v3
    v_lshl_add_u32 v{VD}, v5, 4, v4
    v_xor_b32 v{VD+1}, 64, v{VD}
    s_add_u32 s8, s67, s5
    s_and_b32 s8, s8, 3
    s_mul_i32 s10, s8, {16*1280}
    s_add_u32 s10, s10, s64
    s_lshl_b32 s11, s8, 11
    s_lshl_b32 s12, s66, 8
    s_mul_i32 s13, s66, 5120
    v_lshlrev_b32 v45, 5, v1
    """)
    tail_addr(False); gemm_addr(0); fin_addr()
    br_wave("lg", 0, l_x)
    a(f"""
    v_add_u32 v{VKR}, s11, v39
    v_xor_b32 v{VKR+1}, 64, v{VKR}
    v_bfe_u32 v4, v1, 2, 2
    v_lshl_add_u32 v4, v3, 3, v4
    v_mul_u32_u24 v4, 40, v4
    v_add_u32 v{VK4}, {L_WKV}, v4
    v_and_b32 v5, 3, v1
    v_lshl_add_u32 v{VK5}, v5, 3, v{VK4}
    """)
    for n in range(15): a(f"v_mov_b32 v{(VW2 + n) if n < 5 else (VWO + n - 5)}, -1")
    got_args()
    a(f"""
    s_cmp_ge_u32 s4, 4
    s_cselect_b32 s{S_C}, s{P_WV}, s{P_WK}
    s_cselect_b32 s{S_C+1}, s{P_WV+1}, s{P_WK+1}
    s_mov_b32 s{S_C+2}, 25600
    s_mov_b32 s{S_C+3}, 0x20000
    """)
    srd(S_A, P_X, ACT)
    KORD = E("KORD", "wx")
    if KORD == "wx":
        for g in range(5): wkv_issue(g)
        for g in range(5):
            x_issue(g)
            if str(g) == E("B0"): a("s_barrier")
        wv = [40 - 5 * g for g in range(5)]; xv = [16 - 4 * g for g in range(5)]
    else:
        for g in range(5): x_issue(g)
        for g in range(5): wkv_issue(g)
        wv = [20 - 5 * g for g in range(5)]; xv = [0] * 5
    if not E("B0"): a("s_barrier")
    stamp(1)
    srd(S_WS, P_WS, WS_END)
    got_tag()
    WPF, XT_ = 96, 72
    for g in range(5):
        a(f"s_waitcnt vmcnt({wv[g]})")
        for s_ in range(4):
            ks = 4 * g + s_; b = WPF + 8 * ks
            a(f"ds_read_b64_tr_b16 {R(b,2)}, v{VK5} offset:{ks*1280}")
            a(f"ds_read_b64_tr_b16 {R(b+2,2)}, v{VK5} offset:{ks*1280+160}")
            a(f"ds_read_b64_tr_b16 {R(b+4,2)}, v{VK4} offset:{ks*1280+32}")
            a(f"ds_read_b64_tr_b16 {R(b+6,2)}, v{VK4} offset:{ks*1280+192}")
    a(f"""
    s_lshr_b32 s12, s67, 1
    s_lshl_b32 s14, s3, 1
    s_add_u32 s12, s12, s14
    s_mul_i32 s12, s12, {TILE}
    s_add_u32 s12, s12, {WS_KV}
    s_and_b32 s10, s67, 1
    """)
    def kvpart(isv):
        for g in range(5):
            if g == 4: shift2(VKR, 65536)
            a(f"s_waitcnt vmcnt({xv[g]})")
            for s_ in range(4): a(f"ds_read_b128 {R(XT_+4*s_)}, v{VKR+(s_&1)} offset:{((2*g + (s_>>1)) % 8) * 8192}")
            for s_ in range(4):
                a(f"s_waitcnt lgkmcnt({3-s_})")
                for blk in range(2):
                    d = R(B0 + 4 * blk); c = "0" if (g == 0 and s_ == 0) else d
                    w_, x_ = R(WPF + 8 * (4 * g + s_) + 4 * blk), R(XT_ + 4 * s_)
                    a(f"v_mfma_f32_16x16x32_bf16 {d}, {x_ if isv else w_}, {w_ if isv else x_}, {c}")
    def pack(b, dst, swap):
        a(f"""
        v_cvt_pk_bf16_f32 v{dst}, v{b}, v{b+1}
        v_cvt_pk_bf16_f32 v{dst+1}, v{b+2}, v{b+3}
        v_cvt_pk_bf16_f32 v{dst+2}, v{b}, v{b+1}
        v_cvt_pk_bf16_f32 v{dst+3}, v{b+2}, v{b+3}
        {swap} v{dst}, v{dst+2}
        {swap} v{dst+1}, v{dst+3}
        """)
    l_v, l_pub = a.newlabel(), a.newlabel()
    a(f"s_cmp_ge_u32 s4, 4\ns_cbranch_scc1 {l_v}")
    a(f"""
    s_lshl_b32 s10, s10, 4
    v_add_u32 v5, s10, v2
    v_lshrrev_b32 v6, 1, v3
    v_lshl_add_u32 v6, v6, 5, v5
    v_lshlrev_b32 v6, 4, v6
    v_lshlrev_b32 v5, 3, v5
    """)
    kvpart(False)
    pack(B0, PA, "v_permlane16_swap_b32")
    a(f"""
    v_cvt_pk_bf16_f32 v{PB}, v{B1}, v{B1+1}
    v_cvt_pk_bf16_f32 v{PB+1}, v{B1+2}, v{B1+3}
    s_mov_b32 exec_lo, 0xffff
    s_mov_b32 exec_hi, 0xffff
    buffer_store_dwordx4 {R(PA)}, v6, {W}, s12 offen offset:{K1_OFF} sc1
    s_mov_b64 exec, 0xffff
    buffer_store_dwordx2 {R(PB,2)}, v5, {W}, s12 offen offset:{KR_OFF} sc1
    s_mov_b64 exec, -1
    s_branch {l_pub}
    """)
    a.label(l_v)
    a(f"""
    s_mul_i32 s10, s10, {V1_OFF - V0_OFF}
    s_add_u32 s12, s12, s10
    v_and_b32 v5, 1, v3
    v_mul_u32_u24 v5, 20, v5
    v_add_u32 v6, v5, v2
    v_lshlrev_b32 v6, 4, v6
    v_cmp_lt_u32 s[14:15], 3, v2
    v_mov_b32 v10, 0x3f803f80
    """)
    kvpart(True)
    pack(B0, PA, "v_permlane32_swap_b32")
    pack(B1, PB, "v_permlane32_swap_b32")
    a(f"s_mov_b32 exec_hi, 0")
    a(f"buffer_store_dwordx4 {R(PA)}, v6, {W}, s12 offen offset:{V0_OFF} sc1")
    for i in range(4): a(f"v_cndmask_b32 v{12+i}, v{PB+i}, v10, s[14:15]")
    a(f"""
    s_mov_b32 exec_lo, 0x00ff000f
    buffer_store_dwordx4 v[12:15], v6, {W}, s12 offen offset:{V0_OFF + 256} sc1
    s_mov_b64 exec, -1
    """)
    a.label(l_pub)
    stamp(6)
    publish_kv()
    lo_addr()
    a(f"s_branch {l_lo1}")
    a.label(l_x)
    lo_addr()
    for n in range(5): wpat(VW2 + n, 64 * n, False)
    def wo_pat():
        for n in range(5):
            a(f"""
            v_add_u32 v4, {64*n}, v1
            v_mul_u32_u24 v5, 6554, v4
            v_lshrrev_b32 v5, 16, v5
            v_mul_u32_u24 v6, 10, v5
            v_sub_u32 v6, v4, v6
            v_lshlrev_b32 v6, 4, v6
            v_lshrrev_b32 v7, 1, v5
            v_and_b32 v7, 4, v7
            v_xor_b32 v5, v5, v7
            v_lshrrev_b32 v7, 3, v5
            v_lshl_add_u32 v4, v7, 1, v5
            v_mul_u32_u24 v4, 1280, v4
            v_add_u32 v{VWO+n}, v4, v6
            v_lshrrev_b32 v7, 1, v5
            v_lshl_add_u32 v4, v7, 3, v5
            v_add_u32 v4, 8, v4
            v_mul_u32_u24 v4, 1280, v4
            v_add_u32 v{VWO+5+n}, v4, v6
            """)
    for n in range(4): a(f"v_mov_b32 v{VWO+n}, -1")
    only(3, wo_pat)
    got_args()
    srd(S_A, P_X, ACT); srd(S_WS, P_WS, WS_END); srd(S_C, P_WK, 25600)
    l = a.newlabel()
    a(f"""
    v_lshlrev_b32 v4, 7, v1
    s_sub_u32 s8, s5, 1
    s_lshl_b32 s8, s8, 13
    s_cmp_ge_u32 s2, 8
    s_cbranch_scc1 {l}
    buffer_load_dword v5, v4, {W}, s8 offen sc1
    """)
    a.label(l)
    got_tag()
    a(f"s_setprio {E('PX', '0')}\ns_barrier")
    for g in range(5): x_issue(g)
    a("s_setprio 0")
    stamp(1)
    a("s_waitcnt vmcnt(16)")
    a.label(l_lo1)
    q_path(0)
    l_svcend = a.newlabel()
    if E("NOSVC"):
        lds_add(8, 1); a(f"s_branch {l_svcend}")
    only(3, lambda: (stage(P_AK, 4, L_SK) if E("LATEK") else None, a(f"s_waitcnt vmcnt({E('STG', '6')})"), stage(P_AV, 1, L_SV)))
    srd(S_D, P_SH, D * 8); srd(S_B, P_WO, D * D * 2)
    a(f"""
    s_setprio {E('PKVT', '2')}
    v_and_b32 v4, 7, v1
    v_lshlrev_b32 v4, 4, v4
    s_lshl_b32 s8, s5, 7
    s_lshl_b32 s9, s65, 2
    s_add_u32 s8, s8, s9
    buffer_load_dwordx4 {R(WRAW[0])}, v4, {SR_(S_D)}, s8 offen
    buffer_load_dwordx4 {R(WRAW[1])}, v4, {SR_(S_D)}, s9 offen offset:512
    s_mov_b32 s12, 0xffff0000
    """)
    def decide():
        a(f"v_mul_u32_u24 v4, {QSTR}, v1\nv_add_u32 v4, {L_Q}, v4")
        for i in range(10): a(f"ds_read_b128 {R(128+4*i)}, v4 offset:{16*i}")
        a(f"""
        s_getreg_b32 s9, hwreg(HW_REG_XCC_ID, 0, 4)
        v_xor_b32 v5, s9, v8
        v_xor_b32 v6, s9, v10
        v_or_b32 v5, v5, v6
        v_xor_b32 v6, s9, v12
        v_xor_b32 v7, s9, v14
        v_or3_b32 v5, v5, v6, v7
        v_and_b32 v5, 15, v5
        v_cmp_ne_u32 vcc, 0, v5
        s_lshl_b32 s8, s3, 1
        s_lshr_b64 s[10:11], vcc, s8
        v_max_f32 v8, v8, v10
        v_max3_f32 v8, v8, v12, v14
        s_mov_b32 s8, 0x55555555
        s_mov_b32 s9, 0x55555555
        v_cndmask_b32 v10, 0, v8, s[8:9]
        v_cndmask_b32 v11, v8, 0, s[8:9]
        """)
        for m in ("row_shr:1 row_mask:0xf", "row_shr:2 row_mask:0xf", "row_shr:4 row_mask:0xf", "row_shr:8 row_mask:0xf",
                  "row_bcast:15 row_mask:0xa", "row_bcast:31 row_mask:0xc"):
            a(f"v_max_f32_dpp v10, v10, v10 {m} bank_mask:0xf\nv_max_f32_dpp v11, v11, v11 {m} bank_mask:0xf")
        for j in range(4): a(f"v_mov_b32 v{12+j}, 0")
        a("v_readlane_b32 s14, v10, 63\nv_readlane_b32 s15, v11, 63\ns_waitcnt lgkmcnt(0)")
        for r in range(10):
            for j in range(4): a(f"v_dot2c_f32_bf16 v{12+j}, v{128+10*j+r}, v{128+10*j+r}")
        a(f"""
        v_max3_f32 v12, v12, v13, v14
        v_max_f32 v12, v12, v15
        v_mul_f32 v12, s14, v12
        v_cmp_nge_f32 vcc, {f2u(64.0*64.0)}, v12
        s_mov_b32 s8, 1
        s_cmp_lg_u64 vcc, 0
        s_cselect_b32 s8, 0x101, s8
        s_cmp_lt_u32 s15, {f2u(2.0**-28)}
        s_cselect_b32 s8, 0x101, s8
        s_cmp_gt_u32 s15, {f2u(2.0**50)}
        s_cselect_b32 s8, 0x101, s8
        s_and_b32 s10, s10, 3
        s_cselect_b32 s9, 0, {0 if E("NOFAST") else 0x200}
        s_or_b32 s8, s8, s9
        """)
        lds_add(8, "s8")
    only(PW, decide)
    l = a.newlabel()
    a(f"s_or_b32 s8, s2, s5\ns_cmp_lg_u32 s8, 0\ns_cbranch_scc1 {l}\ns_mov_b32 s8, {WS_E}")
    flag_store(8, 6)
    a.label(l)
    a("s_waitcnt vmcnt(0)")
    only(3, lambda: lds_add(0, 1))
    lds_wait(0, 1, "ne", 2)
    stamp(10)
    KRW, KU, VU, WU, KV, PK = 192, 128, 152, 170, 64, 84
    def kvt_compute(ps, pass_sgpr):
        if E("NOKVT"): return
        kr = KRW; vr = kr + 12; wr = WRAW[ps]
        for r in range(12): a(f"ds_read_b32 v{kr+r}, v{KT_S} offset:{L_SK + 160*r + 32*ps}")
        for r in range(9): a(f"ds_read_b32 v{vr+r}, v{KT_S} offset:{L_SV + 160*r + 32*ps}")
        for j in range(4):
            for c in range(2):
                src = wr + 2 * c + j // 2
                a(f"v_lshlrev_b32 v{WU+2*j+c}, 16, v{src}" if j % 2 == 0 else f"v_and_b32 v{WU+2*j+c}, s12, v{src}")
        a("s_waitcnt lgkmcnt(9)")
        for r in range(12): a(f"v_lshlrev_b32 v{KU+2*r}, 16, v{kr+r}\nv_and_b32 v{KU+2*r+1}, s12, v{kr+r}")
        for i in range(18): a(f"v_mul_f32 v{KV+i}, v{KU+i}, v{WU+6+(i&1)}")
        for j in (2, 1, 0):
            for i in range(18): a(f"v_fmac_f32 v{KV+i}, v{KU+i+2*(3-j)}, v{WU+2*j+(i&1)}")
        a("s_waitcnt lgkmcnt(0)")
        for r in range(9): a(f"v_lshlrev_b32 v{VU+2*r}, 16, v{vr+r}\nv_and_b32 v{VU+2*r+1}, s12, v{vr+r}")
        for i in range(18): a(f"v_mul_f32 v{KV+i}, v{KV+i}, v{VU+i}")
        for c in range(2):
            for cp in range(2):
                for d in range(4):
                    lo = 7 - cp - 2 * d; hi = lo - 1
                    a(f"v_cvt_pk_bf16_f32 v{PK+8*c+4*cp+d}, v{KV+2*(lo+1)+c}, v{KV+2*(hi+1)+c}")
                a(f"ds_write_b128 v{KT_W}, {R(PK+8*c+4*cp)} offset:{256*c + 16*cp}")
        for k in range(4): a(f"ds_read_b128 {R(PK+16+4*k)}, v{KT_R} offset:{1056*k}")
        a(f"""
        s_mul_i32 s8, s4, 80
        s_lshl_b32 s9, s{pass_sgpr}, 4
        s_add_u32 s8, s8, s9
        s_lshl_b32 s8, s8, 13
        s_sub_u32 s9, 31, s3
        s_lshl_b32 s9, s9, 7
        s_add_u32 s8, s8, s9
        s_add_u32 s8, s8, {WS_XT}
        """)
        for k in range(4):
            a(f"s_waitcnt lgkmcnt({3-k})")
            a(f"buffer_store_dwordx4 {R(PK+16+4*k)}, v{KT_G}, {W}, s8 offen sc1")
            if k < 3: a(f"s_add_u32 s8, s8, {4*8192}")
    def f2_flag(pass_sgpr):
        a(f"""
        s_mul_i32 s8, s4, 5
        s_add_u32 s8, s8, s{pass_sgpr}
        s_lshl_b32 s8, s8, 5
        s_add_u32 s8, s8, s3
        s_lshl_b32 s8, s8, 2
        s_add_u32 s8, s8, {WS_F2}
        """)
        flag_store(8, 6)
    kvt_compute(0, 5)
    l_conv, l_aepi, l_cdone = a.newlabel(), a.newlabel(), a.newlabel()
    br_wave("lg", 3, l_conv)
    a("s_mov_b32 s10, 4")
    kvt_compute(1, 10)
    a("s_waitcnt vmcnt(0)")
    f2_flag(10); f2_flag(5)
    a("s_setprio 0")
    stamp(8)
    def wo_loop(p0):
        a(f"s_add_u32 s8, s65, {p0*160*1280}\ns_mov_b32 s9, {p0*25600}")
        l = a.newlabel()
        a.label(l)
        for m in range(5):
            a(f"s_add_u32 s10, s8, {(40*1280*m) if m < 4 else 0}")
            for n in range(5):
                a(f"s_add_u32 m0, s9, {5120*m + 1024*n}")
                a(f"buffer_load_dwordx4 v{VWO + n + (5 if m == 4 else 0)}, {SR_(S_B)}, s10 offen lds")
            a(f"s_waitcnt vmcnt({E('WOV', '5')})")
        a(f"""
        s_add_u32 s8, s8, {160*1280}
        s_add_u32 s9, s9, 25600
        s_cmp_lt_u32 s9, {(p0+2)*25600}
        s_cbranch_scc1 {l}
        """)
    if not E("NOWO"):
        wo_loop(2)
        lds_wait(4, 3, "ne", 8)
        wo_loop(0)
    a("s_waitcnt vmcnt(0)")
    lds_add(0, 1)
    a(f"s_branch {l_aepi}")
    a.label(l_conv)
    lds_add(4, 1)
    a(f"""
    s_lshl_b32 s12, s5, 8
    s_add_u32 s12, s12, s2              ; channel
    s_min_u32 s13, s12, 639
    s_lshl_b32 s8, s13, 12
    s_add_u32 s{S_A}, s{P_SK}, s8
    s_addc_u32 s{S_A+1}, s{P_SK+1}, 0
    s_mov_b32 s{S_A+2}, 4096
    s_lshl_b32 s8, s13, 13
    s_add_u32 s8, s8, {WS_XT}
    s_add_u32 s{S_B}, s{P_WS}, s8
    s_addc_u32 s{S_B+1}, s{P_WS+1}, 0
    s_mov_b32 s{S_B+2}, 4096
    s_add_u32 s{S_C}, s{S_B}, 4096
    s_addc_u32 s{S_C+1}, s{S_B+1}, 0
    s_mov_b32 s{S_C+2}, 4096
    s_load_dword s14, s[{S_A}:{S_A+1}], 0
    s_lshr_b32 s8, s13, 1
    s_lshl_b32 s8, s8, 2
    s_load_dword s15, s[{P_SD}:{P_SD+1}], s8
    s_mul_i32 s8, s13, 52429
    s_lshr_b32 s8, s8, 22
    s_mul_i32 s9, s8, 80
    s_sub_u32 s9, s13, s9
    s_lshr_b32 s9, s9, 4
    s_mul_i32 s8, s8, 5
    s_add_u32 s8, s8, s9
    s_lshl_b32 s13, s8, 7
    s_add_u32 s13, s13, {WS_F2}
    s_waitcnt vmcnt(0)
    """)
    f2_flag(5)
    a(f"s_waitcnt lgkmcnt(0)\ns_cmp_ge_u32 s12, 640\ns_cbranch_scc1 {l_cdone}")
    if E("NOCONV"): a(f"s_branch {l_cdone}")
    a(f"s_mov_b32 m0, s68\nbuffer_load_dwordx4 v{V_HD}, {SR_(S_A)}, 0 offen lds")
    a(f"s_add_u32 m0, s68, 1024\ns_movk_i32 s8, 960")
    for i in range(4): a(f"buffer_load_dwordx4 v{AK1}, {SR_(S_A)}, s8 offen offset:{1024*i} lds")
    for i in range(4): a(f"v_mov_b32 v{8+i}, 0")
    for t in range(4): a(f"v_mfma_f32_32x32x16_bf16 {R(O+16*t,16)}, {R(8)}, {R(8)}, 0")
    a(f"""
    s_bitcmp1_b32 s12, 0
    s_cselect_b32 s8, 0, 16
    s_lshl_b32 s15, s15, s8
    s_and_b32 s15, s15, 0xffff0000
    s_lshl_b32 s8, s14, 16
    v_mov_b32 v5, s8
    v_add_f32 v5, s15, v5
    v_cvt_pk_bf16_f32 v5, v5, v5
    v_mov_b32 v6, s68
    s_waitcnt vmcnt(0)
    ds_write_b16 v6, v5 offset:64
    """)
    lds_wait(16, int(E("PF2", "7")), "lt", 8)
    poll(lambda: a(f"buffer_load_dword v4, v{V_F2}, {W}, s13 offen sc1"), [4], 16)
    stamp(8)
    a("s_movk_i32 s8, 4096")
    for cl_ in range(2):
        a(f"s_add_u32 m0, s68, {5120 + 5120*cl_}")
        for i in range(4): a(f"buffer_load_dwordx4 v{AK1}, {SR_(S_C if cl_ else S_B)}, 0 offen offset:{1024*i} sc1 lds")
        a(f"s_add_u32 m0, s68, {5120 + 5120*cl_ + 4096}")
        a(f"buffer_load_dwordx4 v{AK1}, {SR_(S_C if cl_ else S_B)}, s8 offen sc1 lds")
    a(f"s_waitcnt vmcnt(0)\ns_setprio {E('PCONV', '0')}")
    F = SR
    def c_reads(sp):
        j, e = sp >> 1, sp & 1; b = F + 32 * (sp & 1)
        for u in range(4):
            o = (4 + 32 * e + 128 * j) // 4
            a(f"ds_read2_b32 {R(b+4*u,2)}, v{VA+u} offset0:{o} offset1:{o+1}")
            a(f"ds_read2_b32 {R(b+4*u+2,2)}, v{VA+u} offset0:{o+2} offset1:{o+3}")
            a(f"ds_read_b128 {R(b+16+4*u)}, v{V_B} offset:{5120 + 5120*e + 3072 - 1024*u + 128*j}")
    c_reads(0)
    for sp in range(16):
        if sp < 15 and not (E("CNORD") and sp > 0): c_reads(sp + 1)
        a(f"s_waitcnt lgkmcnt({12 if sp < 15 else 0})")
        b = F + 32 * (sp & 1)
        for u in range(4):
            for nb in range(u, 4):
                d = R(O + 16 * nb, 16)
                if E("CNOM"): a("s_sleep 1")
                elif E("CZERO"): a(f"v_mfma_f32_32x32x16_bf16 {d}, {R(8)}, {R(8)}, {d}")
                else: a(f"v_mfma_f32_32x32x16_bf16 {d}, {R(b+4*u)}, {R(b+16+4*(nb-u))}, {d}")
    a("s_setprio 2")
    a(f"ds_write_b128 v{V_ZW}, {R(8)}\nds_write_b128 v{V_ZW}, {R(8)} offset:4160")
    for nb in range(4):
        for q in range(2): a(f"ds_write_b128 v{V_ZW}, {R(O+16*nb+8+4*q)} offset:{4160*q + 512*nb + 32}")
    for nb in range(4):
        for q in range(2): a(f"ds_read_b128 {R(F+8*nb+4*q)}, v{V_ZW} offset:{4160*q + 512*nb}")
    a(f"s_lshl_b32 s8, s12, 12\ns_add_u32 s8, s8, {WS_Z}")
    for nb in range(4):
        a(f"s_waitcnt lgkmcnt({6-2*nb})")
        for r in range(8): a(f"v_add_f32 v{O+16*nb+r}, v{O+16*nb+r}, v{F+8*nb+r}")
        for k in range(4): a(f"v_cvt_pk_bf16_f32 v{F+32+4*nb+k}, v{O+16*nb+2*k}, v{O+16*nb+2*k+1}")
        a(f"buffer_store_dwordx4 {R(F+32+4*nb)}, v{V_ZS}, {W}, s8 offen offset:{1024*nb} sc1")
    a(f"s_lshl_b32 s8, s12, 2\ns_add_u32 s8, s8, {WS_F3}\ns_waitcnt vmcnt(0)")
    flag_store(8, 6)
    a.label(l_cdone)
    lds_add(8, 1)
    a.label(l_aepi)
    stamp(9)
    a("s_setprio 2")
    XF, AF, AC = 8, 96, 64
    def o_reads(ks):
        b = AF + 20 * (ks % 8)
        for nb in range(5):
            for z in range(2): a(f"ds_read_b64_tr_b16 {R(b+4*nb+2*z,2)}, v{VT+z} offset:{ks*5120 + nb*32}")
    QRW, ZR, U = 8, 24, 64
    X40 = "s_mov_b32 exec_lo, -1\ns_mov_b32 exec_hi, 0xff"
    srd(S_A, P_AQ, ACT)
    a(X40)
    for e in range(8):
        a(f"s_movk_i32 s8, {(16*(e>>2) + 2*(e&3))*1280}")
        a(f"buffer_load_dwordx2 {R(QRW+2*e,2)}, v{AE}, {SR_(S_A)}, s8 offen")
    a(f"""
    s_mov_b64 exec, -1
    buffer_load_dwordx4 {R(64)}, v{PV+2}, {W}, s72 offen sc1
    buffer_load_dwordx4 {R(64)}, v{PV+2}, {W}, s72 offen offset:1024 sc1
    buffer_load_dwordx2 {R(64,2)}, v{PV+3}, {W}, s73 offen sc1
    buffer_load_dwordx2 {R(64,2)}, v{PV+3}, {W}, s73 offen offset:256 sc1
    v_mov_b32 v4, 0
    buffer_load_dword v64, v4, {W}, s74 offen sc1
    """)
    lds_wait(0, 2, "ne", 16)
    for ks in range(8): o_reads(ks)
    srd(S_C, P_OUT, 2 * ACT)
    def unp(dst, src, hi): a(f"v_and_b32 v{dst}, s14, v{src}" if hi else f"v_lshlrev_b32 v{dst}, 16, v{src}")
    def z_fetch(once):
        a(f"""
        s_lshl_b32 s11, s3, 7
        s_lshl_b32 s8, s5, 5
        s_add_u32 s11, s11, s8
        s_add_u32 s11, s11, {WS_Z}
        s_mov_b32 s14, {WS_F3}
        {X40}
        """)
        l = a.newlabel()
        poll(lambda: a(f"buffer_load_dwordx4 {R(40)}, v{AE+2}, {W}, s14 offen sc1"), [40, 41, 42, 43], 4, fail=l if once else None)
        stamp(11)
        for i in range(4):
            a(f"buffer_load_dwordx4 {R(ZR+4*i)}, v{AE+3}, {W}, s11 offen sc1")
            if i < 3: a("s_add_u32 s11, s11, 4096")
        a("s_mov_b32 s70, 1\ns_mov_b32 s14, 0xffff0000\ns_waitcnt vmcnt(0)")
        for e in range(8):
            for i in range(4):
                unp(U + i, QRW + 2 * e + i // 2, i % 2); unp(U + 4 + i, ZR + 4 * i + e // 2, e % 2)
            for i in range(4): a(f"v_mul_f32 v{U+i}, v{U+i}, v{U+4+i}")
            for i in (0, 2): a(f"v_cvt_pk_bf16_f32 v{QRW+2*e+i//2}, v{U+i}, v{U+i+1}")
            a(f"s_mov_b32 s8, {(16*(e>>2) + 2*(e&3))*2560}")
            a(f"buffer_store_dwordx2 {R(QRW+2*e,2)}, v{AE+1}, {SR_(S_C)}, s8 offen{OSFX}")
        a.label(l)
        a("s_mov_b64 exec, -1")
    if not E("NOAEPI"):
        a("s_mov_b32 s70, 0")
        lds_wait(16, 1, "lt", 8)
        a(f"s_setprio {E('PAE', '2')}")
        l_try, l_giveup = a.newlabel(), a.newlabel()
        a.label(l_try)
        a(f"s_sleep {E('ZS', '16')}")
        z_fetch(True)
        a(f"""
        s_cmp_eq_u32 s70, 1
        s_cbranch_scc1 {l_giveup}
        ds_read_b32 v4, v{VS} offset:16
        s_waitcnt lgkmcnt(0)
        v_readfirstlane_b32 s8, v4
        s_cmp_lg_u32 s8, 0
        s_cbranch_scc1 {l_try}
        """)
        a.label(l_giveup)
    a.label(l_svcend)
    fin_addr2(2)
    a("s_waitcnt vmcnt(0) lgkmcnt(0)")
    stamp(12)
    a("s_barrier")
    a(f"ds_read_b32 v5, v{VS} offset:8")
    OWN = O
    for j in range(2):
        for r in range(3): a(f"ds_read_b128 {R(OWN+12*j+4*r)}, v{PV+j} offset:{1024*r}")
    a(f"s_branch {l_R}")
    a.label(l_cg1)
    for n in range(5): wpat(VD + n, 64 * n, True)
    a(f"""
    s_sub_u32 s8, s5, 4
    s_mul_i32 s11, s8, 5120
    s_add_u32 s11, s11, {L_W}
    s_mul_i32 s10, s8, {32*1280}
    s_add_u32 s10, s10, s65
    s_mul_i32 s12, s66, {128*1280}
    """)
    tail_addr(True); hi_addr(); gemm_addr(1); fin_addr(); a('v_mov_b32 v55, -1\nv_mov_b32 v60, -1'); a(f"v_mov_b32 v{AE+1}, -1\nv_mov_b32 v{AE+2}, -1\nv_mov_b32 v{AE+3}, -1")
    got_args()
    if E("TLB"):
        M2 = 1 << 21
        pages = [(P_WQ, 0), (P_X, 0), (P_X, M2), (P_AK, 0), (P_AK, M2), (P_AV, 0), (P_AV, M2), (P_SH, 0),
                 (P_WS, M2), (P_WS, 2*M2), (P_WS, 3*M2), (P_WS, 4*M2), (P_WS, 5*M2), (P_SK, 0), (P_SK, M2), (P_SD, 0),
                 (P_WO, 0), (P_AQ, 0), (P_AQ, M2), (P_OUT, 0), (P_OUT, M2), (P_OUT, 2*M2)]
        for w in range(4):
            def t(w=w):
                for p_, o_ in pages[w::4]: a(f"s_mov_b32 s8, {o_}\ns_load_dword s13, s[{p_}:{p_+1}], s8")
            only(4 + w, t)
    srd(S_B, P_WQ, D * D * 2); srd(S_WS, P_WS, WS_END)
    if not E("TLB"): got_tag()
    a(f"s_setprio {E('PHI', '0')}\ns_barrier")
    w_issue(0)
    stamp(1)
    a(f"s_waitcnt vmcnt({E('W1', '5')})"); w_issue(1); a("s_waitcnt vmcnt(5)")
    l = a.newlabel(); br_wave("eq", 7, l); w_issue(2); a.label(l)
    if E("TLB"): got_tag()
    q_path(1)
    for i in range(4): a(f"ds_read2_b64 {R(QM+4*i)}, v{QA+i} offset0:0 offset1:1")
    a(f"ds_read_b64 {R(QR,2)}, v{QA+4} offset:32\nds_read_b64 {R(QR+2,2)}, v{QA+5} offset:32")
    a(f"s_setprio 1\ns_movk_i32 s13, 8")
    for t in range(4): a(f"v_mfma_f32_32x32x16_bf16 {R(O+16*t,16)}, {R(KBH[-1]+10)}, {R(KBH[-1]+10)}, 0")
    l_fb, l_after = a.newlabel(), a.newlabel()
    def qk(t, kb, usec):
        return f"v_mfma_f32_32x32x16_bf16 {R(SR+16*t,16)}, {R(kb)}, {R(QM+4*t)}, {R(C+16*t,16) if usec else '0'}"
    def qr(p, kb):
        d = R(SR + 32 * p, 32)
        if E("QR8"): return "\n".join(f"v_mfma_f32_32x32x8_bf16 {R(SR+32*p+16*i,16)}, {R(kb+4,2)}, {R(QR+2*p,2)}, {R(SR+32*p+16*i,16)}" for i in range(2))
        if E("NOQR"): return "s_nop 0\ns_nop 0"
        return f"v_mfma_f32_32x32x4_2b_bf16 {d}, {R(kb+4,2)}, {R(QR+2*p,2)}, {d}"
    def pv(t, hf, vb):
        d = R(O + 16 * t, 16)
        if E("PVSWAP"): return f"v_mfma_f32_32x32x16_bf16 {d}, {R(SR+16*t+8*hf)}, {R(vb+6+4*hf)}, {d}"
        return f"v_mfma_f32_32x32x16_bf16 {d}, {R(vb+6+4*hf)}, {R(SR+16*t+8*hf)}, {d}"
    MP = [int(x) for x in E("MP", "16,8,12,20,26,36,4").split(",")]
    DEFER = MP[6] < 40
    LP = [MP[5]] * 4
    def phase(p, kq_, vcur, vprev, extra, usec):
        ta, tb = 2 * p, 2 * p + 1
        na, nb_ = 2 * (1 - p), 2 * (1 - p) + 1
        base, pbase = SR + 32 * p, SR + 32 * (1 - p)
        def cv(b, j):
            bb = b + 8 * (j // 4); k = j % 4
            return f"v_cvt_pk_bf16_f32 v{bb+k}, v{bb+2*k}, v{bb+2*k+1}"
        valu = []
        PAT = E("PAT", "eeeecc")
        for grp in range(8):
            ei = 0; cj = [2 * grp - 2, 2 * grp - 1]
            for ch in PAT:
                if ch == "e": valu.append(f"v_exp_f32 v{base+4*grp+ei}, v{base+4*grp+ei}"); ei += 1
                else:
                    j = cj.pop(0); valu.append(cv(base, j) if j >= 0 else cv(pbase, 16 + j))
        ins = dict(zip(MP, [[qk(na, kq_, usec)], [pv(nb_, 1, vprev)], [qk(nb_, kq_, usec)], [pv(ta, 0, vcur)],
               [qr(1 - p, kq_)], [pv(ta, 1, vcur)], [pv(nb_, 0, vprev) if DEFER else pv(tb, 0, vcur)]]))
        for k, v in extra.items():
            if k == "wait": ins[MP[3]] = v + ins[MP[3]]
            else: ins[k] = ins.get(k, []) + v
        for i, x in enumerate(valu):
            for y in ins.get(i, []): a(y)
            a(x)
        return [cv(base, 14), cv(base, 15)]
    def main_loop(kb, usec):
        nb = len(kb)
        a(f"s_waitcnt vmcnt({4 if E('LATEP') else 4*(nb-1)}) lgkmcnt(0)")
        stamp(8); rstamp(14)
        a(qk(0, kb[0], usec)); a(qk(1, kb[0], usec))
        for i in range(8): a(f"v_mov_b32 v{SR+56+i}, 0")
        for i in range(4): a(f"v_mov_b32 v{SR+48+i}, 0\nv_mov_b32 v{kb[-1]+6+i}, 0")
        a(qr(0, kb[0]))
        if usec or not E("LATEP"): a("s_nop 15\ns_nop 3")
        else: kv_prologue(kb, 1); a("s_nop 9")
        l_loop = a.newlabel()
        a(".p2align 6")
        a.label(l_loop)
        n0 = len(a.lines)
        for par in range(nb):
            cur, nxt, prv = kb[par], kb[(par + 1) % nb], kb[par - 1]
            lds_ = [f"buffer_load_dwordx4 {R(prv+6)}, v{AV}, {W}, s11 offen offset:{V0_OFF}{KVL}",
                    f"buffer_load_dwordx4 {R(prv+10)}, v{AV}, {W}, s11 offen offset:{V1_OFF}{KVL}",
                    f"buffer_load_dwordx4 {R(cur)}, v{AK1}, {W}, s11 offen offset:{TILE + K1_OFF}{KVL}",
                    f"buffer_load_dwordx2 {R(cur+4,2)}, v{AKR}, {W}, s11 offen offset:{TILE + KR_OFF}{KVL}"]
            ex = [{"wait": [f"s_waitcnt vmcnt({4*(nb-2) + sum(1 for p_ in LP if p_ < MP[3])})"]}, {}]
            for p_, l_ in zip(LP, lds_): ex[p_ // 48].setdefault(p_ % 48, []).append(l_)
            pm = max(LP)
            ex[pm // 48].setdefault(pm % 48, []).append(f"s_add_u32 s11, s11, {TILE}")
            if par == nb - 1:
                ex[0][pm % 48].append("s_sub_u32 s13, s13, 1")
                if not usec:
                    ex[1].setdefault(MP[5] - 3, []).append("v_mov_b32_e64 v4, s13")
                    ex[1].setdefault(MP[5], []).extend([f"ds_write_b32 v{VS}, v4 offset:16", f"ds_read_b32 v5, v{VS} offset:8"])
                ex[1].setdefault(MP[5], []).append("s_cmp_lg_u32 s13, 0")
            phase(0, cur, cur, prv, ex[0], usec)
            tail = phase(1, nxt, cur, cur, ex[1], usec)
        if not E("NOALIGN"):
            par_ = 0; last4 = None
            for i in range(n0, len(a.lines)):
                t = a.lines[i]
                small = t.startswith(("v_exp_f32 ", "v_mov_b32 ", "s_waitcnt", "s_sub_u32", "s_cmp_"))
                if small:
                    par_ ^= 1
                    if t.startswith("v_"): last4 = i
                elif par_ and last4 is not None and all(a.lines[j].startswith(("v_exp_f32 ", "v_mov_b32 ", "s_waitcnt", "s_sub_u32", "s_cmp_")) for j in range(last4, i)):
                    a.lines[last4] = a.lines[last4].replace(" ", "_e64 ", 1); par_ = 0
        a(f"s_cbranch_scc1 {l_loop}")
        if DEFER: a(pv(3, 0, kb[-1]))
        for x in tail: a(x)
        a(pv(3, 1, kb[-1]))
    main_loop(KBH, False)
    l_w, l_ok = a.newlabel(), a.newlabel()
    a(f"s_mov_b32 s96, {SPIN}")
    a.label(l_w)
    a(f"""
    s_waitcnt lgkmcnt(0)
    v_readfirstlane_b32 s8, v5
    s_and_b32 s9, s8, 0xff
    s_cmp_eq_u32 s9, 4
    s_cbranch_scc1 {l_ok}
    s_sleep 2
    ds_read_b32 v5, v{VS} offset:8
    s_sub_u32 s96, s96, 1
    s_cmp_lg_u32 s96, 0
    s_cbranch_scc1 {l_w}
    """)
    a.label(l_ok)
    a(f"s_bitcmp1_b32 s8, 8\ns_cbranch_scc1 {l_fb}")
    a.label(l_after)
    stamp(9); rstamp(15)
    for i in (1, 2, 3):
        for r in range(3): a(f"ds_write_b128 v{PV}, {R(O+16*i+4*r)} offset:{3072*(i-1) + 1024*r}")
    a("s_waitcnt lgkmcnt(0)")
    stamp(12)
    a("s_barrier")
    for r in range(3): a(f"ds_read_b128 {R(OWN+12+4*r)}, v{PV+1} offset:{1024*r}")
    a.label(l_R)
    a("s_waitcnt lgkmcnt(0)\nv_readfirstlane_b32 s71, v5")
    for r in (10, 8, 9, 0, 1, 2, 3, 4, 5, 6, 7): a(f"v_add_f32 v{OWN+r}, v{OWN+r}, v{OWN+12+r}")
    a(f"v_rcp_f32 v{OWN+10}, v{OWN+10}")
    for i in (8, 9, 0, 1, 2, 3, 4, 5, 6, 7): a(f"v_mul_f32 v{OWN+i}, v{OWN+i}, v{OWN+10}")
    PO = 88
    a(f"v_cvt_pk_bf16_f32 v{PO+4}, v{OWN+8}, v{OWN+9}\nv_cvt_pk_bf16_f32 v{PO+5}, v{OWN+8}, v{OWN+9}")
    for i in range(4): a(f"v_cvt_pk_bf16_f32 v{PO+i}, v{OWN+2*i}, v{OWN+2*i+1}")
    a(f"""
    v_permlane32_swap_b32 v{PO+4}, v{PO+5}
    s_waitcnt vmcnt(0)
    s_bitcmp1_b32 s71, 9
    s_cbranch_scc1 L_fast1
    buffer_store_dwordx4 {R(PO)}, v{PV+2}, {W}, s72 offen sc1
    s_mov_b32 exec_hi, 0
    buffer_store_dwordx2 {R(PO+4,2)}, v{PV+3}, {W}, s73 offen sc1
    s_branch L_fast2
    L_fast1:
    buffer_store_dwordx4 {R(PO)}, v{PV+2}, {W}, s72 offen{E('FSFX', ' nt')}
    s_mov_b32 exec_hi, 0
    buffer_store_dwordx2 {R(PO+4,2)}, v{PV+3}, {W}, s73 offen{E('FSFX', ' nt')}
    L_fast2:
    s_mov_b32 exec_hi, -1
    """)
    tstamp(1)
    srd(S_C, P_OUT, 2 * ACT)
    a(f"""
    s_lshl_b32 s12, s3, 1
    s_lshr_b32 s8, s77, 1
    s_add_u32 s12, s12, s8
    s_lshl_b32 s12, s12, 1
    s_add_u32 s12, s12, s76
    s_lshl_b32 s12, s12, 6
    s_add_u32 s12, s12, {WS_F4}
    v_lshl_add_u32 v4, v2, 2, s12
    s_lshl_b32 s8, s3, 8
    s_lshl_b32 s9, s4, 4
    s_add_u32 s8, s8, s9
    s_add_u32 s8, s8, {WS_F4}
    v_and_b32 v5, 3, v1
    v_lshl_add_u32 v5, v5, 2, s8
    v_bfe_u32 v6, v1, 2, 1
    v_lshl_add_u32 v5, v6, 7, v5
    s_mov_b32 s8, 0xffff0000
    s_mov_b32 s9, 0
    v_cndmask_b32 v4, v4, v5, s[8:9]
    v_lshlrev_b32 v5, 8, v3
    v_lshl_add_u32 v5, v2, 3, v5
    s_lshl_b32 s13, s3, 2
    s_add_u32 s13, s13, s77
    s_mul_i32 s13, s13, {OPB}
    s_add_u32 s13, s13, {WS_O}
    s_lshl_b32 s8, s76, 11
    s_add_u32 s15, s13, s8
    s_add_u32 s15, s15, 16384
    s_lshl_b32 s8, s76, 13
    s_add_u32 s13, s13, s8
    s_add_u32 s10, s13, 4096
    v_mov_b32 v6, s{TAG}
    v_mov_b32 v7, 0
    """)
    l = a.newlabel()
    br_wave("lt", 4, l)
    for ks in range(2): o_reads(ks)
    a.label(l)
    tstamp(2)
    a(f"""
    s_waitcnt vmcnt(0)
    s_mov_b64 exec, 1
    s_bitcmp1_b32 s71, 9
    s_cbranch_scc1 L_fast3
    buffer_store_dword v6, v7, {W}, s74 offen sc1
    s_branch L_fast4
    L_fast3:
    buffer_store_dword v6, v7, {W}, s74 offen
    L_fast4:
    s_mov_b64 exec, -1
    """)
    tstamp(3)
    if E("XBAR"): a("s_barrier")
    l, l2 = a.newlabel(), a.newlabel()
    br_wave("lt", 4, l)
    for ks in range(2, 6): o_reads(ks)
    a(f"s_branch {l2}")
    a.label(l)
    if not E("NOAEPI") and not E("NOSVC"):
        l3 = a.newlabel()
        a(f"s_cmp_eq_u32 s70, 1\ns_cbranch_scc1 {l3}")
        z_fetch(False)
        a.label(l3)
    a.label(l2)
    a(f"s_lshl_b32 s14, s64, 1\ns_add_u32 s14, s14, s65\ns_add_u32 s14, s14, 1280")
    tstamp(4)
    poll(lambda: a(f"buffer_load_dword v6, v4, {W}, 0 offen sc1"), [6], 1)
    tstamp(5)
    nld = []
    for ks in range(10):
        pr_, m = ks // 5, ks % 5
        if m < 4:
            a(f"buffer_load_dwordx4 {R(XF+4*ks)}, v{AK1}, {W}, s{10 if pr_ else 13} offen offset:{1024*m} sc1"); nld.append(1)
        else:
            for z in range(2): a(f"buffer_load_dwordx2 {R(XF+4*ks+2*z,2)}, v5, {W}, s15 offen offset:{1024*pr_ + 128*z} sc1")
            nld.append(2)
    l = a.newlabel()
    br_wave("lt", 4, l)
    for ks in range(6, 8): o_reads(ks)
    fin_addr2(1)
    a.label(l)
    tstamp(6)
    for ks in range(10):
        a(f"s_waitcnt vmcnt({sum(nld[ks+1:])})" + {0: " lgkmcnt(15)", 6: " lgkmcnt(15)", 8: " lgkmcnt(10)", 9: " lgkmcnt(0)"}.get(ks, ""))
        b = AF + 20 * (ks % 8)
        for nb in range(5):
            d = R(AC + 4 * nb)
            a(f"v_mfma_f32_16x16x32_bf16 {d}, {R(b+4*nb)}, {R(XF+4*ks)}, {'0' if ks == 0 else d}")
        if ks < 2: o_reads(8 + ks)
    tstamp(7)
    for nb in range(5): a(f"ds_write_b128 v54, {R(AC+4*nb)} offset:{64*nb}")
    a("s_waitcnt lgkmcnt(0)\ns_barrier")
    def fin_rd(i):
        b = 96 + 16 * i
        a(f"ds_read_b128 {R(b)}, v{FRD[i]}\nds_read_b128 {R(b+4)}, v{FRD[i]} offset:16")
        a(f"ds_read_b128 {R(b+8)}, v{FRD[i]} offset:{OKH}\nds_read_b128 {R(b+12)}, v{FRD[i]} offset:{OKH+16}")
    def fin_st(i):
        b = 96 + 16 * i
        for r in range(8): a(f"v_add_f32 v{b+r}, v{b+r}, v{b+8+r}")
        for r in range(4): a(f"v_cvt_pk_bf16_f32 v{b+8+r}, v{b+2*r}, v{b+2*r+1}")
        a(f"buffer_store_dwordx4 {R(b+8)}, v{FST[i]}, {SR_(S_C)}, s14 offen{OSFX}")
    l = a.newlabel()
    fin_rd(0)
    br_wave("ge", 2, l)
    fin_rd(1); a("s_waitcnt lgkmcnt(0)"); fin_st(1)
    a.label(l)
    a("s_waitcnt lgkmcnt(0)"); fin_st(0)
    a.label("L_fin")
    if STAMP:
        a(f"""
        s_memtime s[98:99]
        s_waitcnt lgkmcnt(0)
        s_mov_b32 s96, s98
        s_memrealtime s[98:99]
        s_waitcnt lgkmcnt(0)
        s_mov_b32 s97, s98
        s_add_u32 s72, s{P_WS}, {WS_STAMP}
        s_addc_u32 s73, s{P_WS+1}, 0
        s_mov_b32 s74, 0x40000
        s_mov_b32 s75, 0x20000
        s_lshl_b32 s76, s2, 3
        s_add_u32 s76, s76, s5
        s_lshl_b32 s76, s76, 7
        v_mov_b32 v2, 0
        """)
        for i in range(18): a(f"v_mov_b32 v3, s{80+i}\nbuffer_store_dword v3, v2, s[72:75], s76 offen offset:{4*i}")
    a.label("L_exit")
    a("s_endpgm")
    a.label(l_fb)
    FB = [28, 240]
    FB = [28, 114]
    a("s_waitcnt vmcnt(0)\ns_nop 15\ns_nop 3")
    raise_fb = True
    TB, M = 28, 36
    for j in range(4): a(f"v_mov_b32 v{M+j}, 0xff800000")
    a(f"s_mov_b32 s11, {WS_KV}\ns_mov_b32 s14, 64\ns_mov_b32 s13, 16")
    l_f = a.newlabel()
    a.label(l_f)
    loadK(TB, 0)
    a("s_waitcnt vmcnt(0)")
    for t in range(4): a(qk(t, TB, False))
    a(qr(0, TB)); a(qr(1, TB))
    for t in range(4):
        for i in range(8): a(f"v_max3_f32 v{M+t}, v{M+t}, v{SR+16*t+2*i}, v{SR+16*t+2*i+1}")
    a(f"s_add_u32 s11, s11, {TILE}\ns_sub_u32 s14, s14, 1\ns_cmp_lg_u32 s14, 0\ns_cbranch_scc1 {l_f}")
    for t in range(4):
        a(f"v_mov_b32 v{M+4}, v{M+t}\nv_permlane32_swap_b32 v{M+t}, v{M+4}\nv_max_f32 v{M+4}, v{M+4}, v{M+t}")
        for i in range(16): a(f"v_sub_f32 v{C+16*t+i}, 0, v{M+4}")
    a(f"v_mov_b32 v6, v{VT}\nv_mov_b32 v7, v{VT+1}")
    for i in range(4): a(f"v_mov_b32 v{52+i}, 0")
    for t in range(4): a(f"v_mfma_f32_32x32x16_bf16 {R(O+16*t,16)}, {R(52)}, {R(52)}, 0")
    kv_prologue([28, 42])
    main_loop([28, 42], True)
    a(f"s_waitcnt vmcnt(0)\nv_mov_b32 v{VT}, v6\nv_mov_b32 v{VT+1}, v7"); fin_addr(); a(f"s_nop 7\ns_nop 7\ns_branch {l_after}")
    return a.finalize(verbose=bool(E("VERB")))

def build():
    hdr = open(f"cdna_kernels/{NAME}.s.ref").read().split("; @launch")[0]
    k = NAME + "_kernel"
    body = build_kernel()
    return hdr + f"""; @launch grid=(256,1,1) block=(512,1,1) lds=163840
.amdgcn_target "amdgcn-amd-amdhsa--gfx950"
.text
.globl {k}
.p2align 8
.type {k},@function
{k}:
{body}.section .rodata,"a"
.p2align 6
.amdhsa_kernel {k}
  .amdhsa_next_free_vgpr 256
  .amdhsa_next_free_sgpr 100
  .amdhsa_accum_offset 256
  .amdhsa_group_segment_fixed_size 0
  .amdhsa_kernarg_size 112
  .amdhsa_user_sgpr_count 2
  .amdhsa_user_sgpr_kernarg_segment_ptr 1
  .amdhsa_system_sgpr_workgroup_id_x 1
.end_amdhsa_kernel
"""

if __name__ == "__main__":
    path = sys.argv[1] if len(sys.argv) > 1 else "fused7.s"
    open(path, "w").write(build())
    print("wrote", path)
```

```python
import sys, math, struct, os
sys.path.insert(0, "gen")
from asmlib import Asm

NAME = "concat_heads__ssm_conv_h3__grouped_kv_mqa__prompt"
S, D, H, DH = 2048, 640, 32, 20
ACT = S * D * 2
WS_E, WS_F1, WS_F2, WS_F3, WS_F4 = 0, 1024, 4096, 12288, 16384
WS_KV = 32768
TILE = 2816
KR_OFF, K1_OFF, V0_OFF, V1_OFF = 0, 256, 1280, 2048
WS_O = 0x40000
OPB = 20480
WS_Z = WS_O + ACT
WS_XT = WS_Z + ACT
WS_END = WS_XT + 2 * ACT
WS_STAMP = 0x2000000
QSCALE = (DH ** -0.5) * math.log2(math.e)
E = os.environ.get
STAMP = E("STAMP", "0") == "1"
TAILST = E("TAILST")
SPIN = 1 << 17
OSFX = " " + E("OSFX", "nt")
KVSC = " sc1"
KVL = " sc1" if E("KVSC1") else ""

def f2u(x): return struct.unpack("<I", struct.pack("<f", x))[0]
P_AQ, P_AK, P_AV, P_SH, P_SK, P_SD, P_X, P_WQ, P_WK, P_WV, P_WO, P_OUT, P_DBG, P_WS = [16 + 2 * i for i in range(14)]
S_WS, S_A, S_B, S_C, S_D = 44, 48, 52, 56, 60
TAG = 78
def R(b, n=4): return f"v[{b}:{b+n-1}]"
def SR_(b): return f"s[{b}:{b+3}]"
W = SR_(S_WS)

L_W = 81920; GSLOT = 20480
L_WKV = 163840 - 25600
L_Q = 102400; QSTR = 176
L_STAT = L_Q + 64 * QSTR
L_RED = 113920
L_CONV = 113920; CVS = 15360
L_OUT = 102400
L_SK, L_SV, L_KT = 0, 16384, 27648
WO_LOW = 45

a = Asm()
def srd(r, ptr, nbytes, off=0):
    if off:
        a(f"s_add_u32 s{r}, s{ptr}, {off}\ns_addc_u32 s{r+1}, s{ptr+1}, 0")
    else:
        a(f"s_mov_b32 s{r}, s{ptr}\ns_mov_b32 s{r+1}, s{ptr+1}")
    a(f"s_mov_b32 s{r+2}, {nbytes}\ns_mov_b32 s{r+3}, 0x20000")
def _st(i, op="s_memtime"): a(f"{op} s[98:99]\ns_waitcnt lgkmcnt(0)\ns_mov_b32 s{80+i}, s98")
def stamp(i):
    if STAMP and not (TAILST and 1 <= i <= 7): _st(i)
def tstamp(i):
    if STAMP and TAILST: _st(i)
def rstamp(i):
    if STAMP: _st(i, "s_memrealtime")
def br_wave(op, n, lab): a(f"s_cmp_{op}_u32 s5, {n}\ns_cbranch_scc1 {lab}")
def poll(load_fn, tagregs, sleep=2, cnt="vmcnt", val=None, op="ne", skipfirst=False, fail=None):
    val = val or f"s{TAG}"
    l, d = a.newlabel(), a.newlabel()
    a(f"s_mov_b32 s96, {SPIN}")
    if skipfirst:
        l0 = a.newlabel(); a(f"s_branch {l0}")
    a.label(l)
    load_fn()
    if skipfirst: a.label(l0)
    a(f"s_waitcnt {cnt}(0)")
    for i, t in enumerate(tagregs):
        if i == 0: a(f"v_cmp_{op}_u32 s[8:9], {val}, v{t}")
        else: a(f"v_cmp_ne_u32 vcc, {val}, v{t}\ns_or_b64 s[8:9], s[8:9], vcc")
    if fail:
        a(f"s_cmp_eq_u64 s[8:9], 0\ns_cbranch_scc0 {fail}"); return
    a(f"""
    s_cmp_eq_u64 s[8:9], 0
    s_cbranch_scc1 {d}
    s_sleep {sleep}
    s_sub_u32 s96, s96, 1
    s_cmp_lg_u32 s96, 0
    s_cbranch_scc1 {l}
    """)
    a.label(d)
def flag_store(soff_sgpr, vt):
    a(f"v_mov_b32 v{vt}, s{TAG}\nv_mov_b32 v{vt+1}, 0")
    a(f"s_mov_b64 exec, 1")
    a(f"buffer_store_dword v{vt}, v{vt+1}, {W}, s{soff_sgpr} offen sc1")
    a(f"s_mov_b64 exec, -1")
def wpat(dst, qbase, x4):
    a(f"""
    v_add_u32 v4, {qbase}, v1
    v_mul_u32_u24 v5, 6554, v4
    v_lshrrev_b32 v5, 16, v5
    v_mul_u32_u24 v6, 10, v5
    v_sub_u32 v6, v4, v6
    """)
    if x4: a("v_lshrrev_b32 v7, 1, v5\nv_and_b32 v7, 4, v7\nv_xor_b32 v5, v5, v7")
    a(f"v_mul_u32_u24 v5, 1280, v5\nv_lshl_add_u32 v{dst}, v6, 4, v5")

def build_kernel():
    if STAMP: a("s_memtime s[80:81]\ns_memrealtime s[92:93]")
    a(f"""
    s_cmp_ge_u32 s2, 256
    s_cbranch_scc1 L_exit
    s_load_dwordx16 s[16:31], s[0:1], 0
    s_load_dwordx8 s[32:39], s[0:1], 64
    s_load_dwordx4 s[40:43], s[0:1], 96
    v_lshrrev_b32 v1, 6, v0
    s_and_b32 s7, s2, 7
    s_lshl_b32 s3, s7, 2
    s_lshr_b32 s4, s2, 3
    v_readfirstlane_b32 s5, v1
    s_and_b32 s6, s4, 3
    s_add_u32 s3, s3, s6          ; s3 = pb64
    s_lshr_b32 s4, s4, 2          ; s4 = hg
    v_and_b32 v1, 63, v0          ; lane
    v_and_b32 v2, 15, v1          ; p
    v_lshrrev_b32 v3, 4, v1       ; kg
    s_mul_i32 s64, s3, {64*1280}
    s_mul_i32 s65, s4, 160
    s_add_u32 s66, s6, s7
    s_mul_i32 s8, s66, 52
    s_lshr_b32 s8, s8, 8
    s_mul_i32 s8, s8, 5
    s_sub_u32 s66, s66, s8
    s_and_b32 s67, s4, 3          ; pbk
    """)
    VD, VXR, VTR, VQW, VEX = 28, 34, 36, 38, 46
    VKR, VK4, VK5 = 40, 42, 43
    ACC, GF = 64, 96
    QM, QR = 8, 24
    O, SR, C = 64, 128, 192
    KBH = [192, 206, 220, 234]
    AK1, AKR, AV = 62, 63, 61
    PV, QA, VS, VT, AE = 56, 176, 44, 52, 48
    B0, B1, PA, PB = 16, 20, 64, 68
    KT_W, KT_R, KT_G, KT_S, VW2 = 240, 241, 242, 243, 244
    VA, V_B, V_ZW, V_ZS, V_HD, V_F2 = 228, 232, 233, 234, 235, 236
    VWO = 224
    WRAW = [216, 220]
    L_EX = 32768
    PW = int(E('PW', '3'))
    def gwrap(sreg, step):
        a(f"s_add_u32 s{sreg}, s{sreg}, {step}\ns_cmp_ge_u32 s{sreg}, {5*step}\ns_cselect_b32 s{sreg}, 0, s{sreg}")
    def shift2(r, d): a(f"v_add_u32 v{r}, {d & 0xffffffff}, v{r}\nv_add_u32 v{r+1}, {d & 0xffffffff}, v{r+1}")
    def loadK(buf, off):
        a(f"buffer_load_dwordx4 {R(buf)}, v{AK1}, {W}, s11 offen offset:{off + K1_OFF}{KVSC}")
        a(f"buffer_load_dwordx2 {R(buf+4,2)}, v{AKR}, {W}, s11 offen offset:{off + KR_OFF}{KVSC}")
    def loadV(buf, off):
        a(f"buffer_load_dwordx4 {R(buf+6)}, v{AV}, {W}, s11 offen offset:{off + V0_OFF}{KVSC}")
        a(f"buffer_load_dwordx4 {R(buf+10)}, v{AV}, {W}, s11 offen offset:{off + V1_OFF}{KVSC}")
    def kv_prologue(kb, part=None):
        nb = len(kb)
        if part != 1:
            a("s_mov_b32 s11, s79")
            loadK(kb[0], 0)
        for j in range(nb - 1):
            if (part == 0 and j > 0) or (part == 1 and j == 0): continue
            loadV(kb[j], 0); loadK(kb[j + 1], TILE); a(f"s_add_u32 s11, s11, {TILE}")
    def tail_addr(hi):
        T = 192
        a(f"""
        s_and_b32 s76, s5, 1
        s_lshr_b32 s77, s5, 1
        v_lshlrev_b32 v{AK1}, 4, v1
        v_bfe_u32 v{T}, v1, 4, 1
        v_mul_u32_u24 v{T}, {OPB}, v{T}
        v_lshl_add_u32 v{PV+3}, v2, 3, v{T}
        v_lshl_add_u32 v{T}, v2, 4, v{T}
        v_lshrrev_b32 v{T+1}, 5, v1
        v_lshl_add_u32 v{PV+2}, v{T+1}, 8, v{T}
        s_lshl_b32 s8, s3, 2
        s_lshl_b32 s9, s76, 1
        s_add_u32 s8, s8, s9
        s_mul_i32 s8, s8, {OPB}
        s_add_u32 s8, s8, {WS_O}
        s_lshl_b32 s9, s4, 2
        s_add_u32 s9, s9, s77
        s_lshl_b32 s72, s9, 9
        s_add_u32 s72, s72, s8
        s_lshl_b32 s73, s9, 7
        s_add_u32 s73, s73, s8
        s_add_u32 s73, s73, 16384
        s_lshl_b32 s74, s3, 1
        s_add_u32 s74, s74, s76
        s_lshl_b32 s74, s74, 5
        s_add_u32 s74, s74, s9
        s_lshl_b32 s74, s74, 2
        s_add_u32 s74, s74, {WS_F4}
        """)
        for j, i in enumerate((0, 1) if hi else (2, 3)):
            a(f"""
            s_xor_b32 s8, s5, {2*i}
            s_and_b32 s8, s8, 3
            s_mul_i32 s8, s8, 9216
            s_add_u32 s8, s8, {L_RED + 3072*max(i-1, 0)}
            v_add_u32 v{PV+j}, s8, v{AK1}
            """)
    def hi_addr():
        T = 192
        a(f"""
        v_and_b32 v{T}, 31, v1
        v_lshlrev_b32 v{AKR}, 3, v{T}
        v_lshrrev_b32 v{T+2}, 3, v{T}
        v_and_b32 v{T+3}, 3, v{T}
        v_lshl_add_u32 v{T+2}, v{T+2}, 2, v{T+3}
        v_bfe_u32 v{T+3}, v{T}, 2, 1
        v_mad_u32_u24 v{T+3}, v{T+3}, 10, v{T+2}
        v_mad_u32_u24 v{T+3}, v{T+1}, 20, v{T+3}
        v_cmp_gt_u32 s[8:9], 10, v{T+2}
        v_cmp_lt_u32 vcc, 10, v{T+2}
        v_mov_b32 v{T+4}, 40
        v_cndmask_b32 v{T+3}, v{T+4}, v{T+3}, s[8:9]
        v_lshlrev_b32 v{AV}, 4, v{T+3}
        v_mov_b32 v{T+4}, 0x40000000
        v_cndmask_b32 v{AV}, v{AV}, v{T+4}, vcc
        s_and_b32 s8, s77, 1
        s_mul_i32 s79, s8, {32*TILE}
        s_add_u32 s79, s79, {WS_KV}
        s_mul_i32 s8, s76, {32*QSTR}
        s_add_u32 s8, s8, {L_Q}
        v_mul_u32_u24 v{T+2}, {QSTR}, v{T}
        v_add_u32 v{T+2}, s8, v{T+2}
        v_lshl_add_u32 v{T+3}, v{T+1}, 4, v{T+2}
        v_xor_b32 v{T+4}, s77, v{T+1}
        v_xor_b32 v{T+5}, 2, v{T+4}
        v_mad_u32_u24 v{QA+4}, v{T+4}, 40, v{T+2}
        v_mad_u32_u24 v{QA+5}, v{T+5}, 40, v{T+2}
        """)
        for i in range(4):
            a(f"s_xor_b32 s8, s77, {i}\ns_mul_i32 s8, s8, 40\nv_add_u32 v{QA+i}, s8, v{T+3}")
        for i in range(4): a(f"v_mov_b32 v{KBH[-1]+10+i}, 0")
    def lo_addr():
        T = 192
        a(f"""
        s_mul_i32 s68, s5, 4224
        s_add_u32 s68, s68, {L_KT}
        v_and_b32 v4, 7, v1
        v_mul_u32_u24 v{T}, 528, v4
        v_lshrrev_b32 v5, 3, v1
        v_sub_u32 v{T+1}, 7, v5
        v_bfe_u32 v{T+2}, v{T+1}, 1, 1
        v_lshl_add_u32 v{T}, v{T+2}, 7, v{T}
        v_lshrrev_b32 v{T+2}, 2, v{T+1}
        v_lshl_add_u32 v{T}, v{T+2}, 6, v{T}
        v_and_b32 v{T+2}, 1, v{T+1}
        v_lshl_add_u32 v{T}, v{T+2}, 5, v{T}
        v_add_u32 v{KT_W}, s68, v{T}
        v_lshrrev_b32 v{T+1}, 5, v1
        v_lshlrev_b32 v{T+2}, 4, v{T+1}
        v_add3_u32 v{KT_R}, v{AK1}, v{T+2}, s68
        v_lshlrev_b32 v{T+3}, 12, v5
        v_lshl_add_u32 v{KT_G}, v4, 4, v{T+3}
        v_mul_u32_u24 v{T+3}, 1280, v5
        v_lshl_add_u32 v{T+3}, v4, 2, v{T+3}
        s_lshl_b32 s8, s5, 5
        v_add_u32 v{KT_S}, s8, v{T+3}
        ; convolution
        s_mul_i32 s68, s5, {CVS}
        s_add_u32 s68, s68, {L_CONV}
        v_and_b32 v{T}, 31, v1
        v_lshlrev_b32 v{V_F2}, 2, v{T}
        v_lshlrev_b32 v{T+2}, 2, v2
        v_lshlrev_b32 v{T+3}, 4, v3
        v_sub_u32 v{T+3}, v{T+2}, v{T+3}
        v_add3_u32 v{VA}, v{T+3}, 48, s68
        v_add_u32 v{VA+1}, 1024, v{VA}
        v_add_u32 v{VA+2}, 2048, v{VA}
        v_add_u32 v{VA+3}, 3072, v{VA}
        v_lshrrev_b32 v{T+2}, 1, v2
        v_sub_u32 v{T+2}, 7, v{T+2}
        v_lshlrev_b32 v{T+2}, 6, v{T+2}
        v_and_b32 v{T+3}, 1, v2
        v_lshl_add_u32 v{T+2}, v{T+3}, 4, v{T+2}
        v_sub_u32 v{T+3}, 3, v3
        v_and_b32 v{T+4}, 1, v{T+3}
        v_lshl_add_u32 v{T+2}, v{T+4}, 5, v{T+2}
        v_lshrrev_b32 v{T+3}, 1, v{T+3}
        v_mul_u32_u24 v{T+3}, 5120, v{T+3}
        v_add3_u32 v{V_B}, v{T+2}, v{T+3}, s68
        v_lshrrev_b32 v{T+2}, 2, v2
        v_lshlrev_b32 v{T+2}, 7, v{T+2}
        v_lshl_add_u32 v{T+2}, v{T+1}, 9, v{T+2}
        v_and_b32 v{T+3}, 1, v3
        v_lshl_add_u32 v{T+2}, v{T+3}, 6, v{T+2}
        v_and_b32 v{T+3}, 3, v2
        v_lshl_add_u32 v{V_ZS}, v{T+3}, 4, v{T+2}
        v_mov_b32 v{V_ZW}, -1
        v_subrev_u32 v{V_HD}, 64, v{AK1}
        v_cmp_lt_u32 s[8:9], 19, v1
        v_cndmask_b32 v{T}, 0, 1, s[8:9]
        v_mul_u32_u24 v{T+1}, 20, v{T}
        v_sub_u32 v{T+1}, v1, v{T+1}
        s_lshl_b32 s8, s76, 5
        s_lshl_b32 s9, s77, 3
        s_add_u32 s8, s8, s9
        s_add_u32 s8, s8, 1
        v_sub_u32 v{T+2}, s8, v{T}
        v_mul_u32_u24 v{T+2}, 1280, v{T+2}
        v_add_u32 v{T+2}, s64, v{T+2}
        v_lshl_add_u32 v{T+3}, v{T+1}, 3, s65
        v_lshl_add_u32 v{AE+1}, v{T+2}, 1, v{T+3}
        v_add_u32 v{AE}, v{T+2}, v{T+3}
        v_lshlrev_b32 v{AE+2}, 1, v{T+3}
        v_lshlrev_b32 v{T+3}, 11, v{T+3}
        v_lshl_add_u32 v{AE+3}, v{T}, 4, v{T+3}
        """)
    def stage(ptr, halo, base):
        if E("NOSTG"): return
        srd(S_D, ptr, ACT)
        a(f"s_add_u32 s8, s64, s65\ns_sub_u32 s8, s8, {halo*1280}")
        for i in range(11):
            if i < 5:
                a(f"v_add_u32 v4, s8, v{VW2 + i}\ns_mov_b32 m0, {base + 1024*i}\nbuffer_load_dwordx4 v4, {SR_(S_D)}, 0 offen lds")
            else:
                if i % 5 == 0: a(f"s_add_u32 s8, s8, {32*1280}")
                a(f"s_mov_b32 m0, {base + 1024*i}\nbuffer_load_dwordx4 v{VW2 + i % 5}, {SR_(S_D)}, s8 offen lds")
    def sync_init():
        a(f"""
        v_mov_b32 v4, 0
        v_mov_b32 v5, 0
        v_mov_b32 v6, 0
        v_mov_b32 v7, 8
        ds_write_b64 v{VS}, v[4:5]
        ds_write_b32 v{VS}, v4 offset:8
        ds_write_b32 v{VS}, v7 offset:16
        """)
    def only(w, fn):
        l = a.newlabel(); br_wave("lg", w, l); fn(); a.label(l)
    def publish_kv():
        l_v2, l_stat = a.newlabel(), a.newlabel()
        a(f"v_mov_b32 v8, 0\ns_cmp_ge_u32 s4, 4\ns_cbranch_scc1 {l_v2}")
        for i in range(4): a(f"v_dot2c_f32_bf16 v8, v{PA+i}, v{PA+i}")
        a(f"""
        v_mov_b32 v9, v8
        v_permlane32_swap_b32 v8, v9
        v_add_f32 v8, v8, v9
        v_dot2c_f32_bf16 v8, v{PB}, v{PB}
        v_dot2c_f32_bf16 v8, v{PB+1}, v{PB+1}
        s_nop 2
        s_branch {l_stat}
        """)
        a.label(l_v2)
        for b in range(B0, B0 + 8, 2): a(f"v_max3_f32 v8, v8, |v{b}|, |v{b+1}|")
        a("""
        v_mov_b32 v9, v8
        v_permlane16_swap_b32 v8, v9
        v_max_f32 v8, v8, v9
        v_mov_b32 v9, v8
        v_permlane32_swap_b32 v8, v9
        v_max_f32 v8, v8, v9
        s_nop 1
        """)
        a.label(l_stat)
        for sh in (1, 2, 4, 8):
            a(f"v_max_f32_dpp v8, v8, v8 row_shr:{sh} row_mask:0xf bank_mask:0xf")
        a("v_readlane_b32 s69, v8, 15")
        a(f"""
        s_lshl_b32 s8, s3, 3
        s_add_u32 s8, s8, s4
        s_lshl_b32 s8, s8, 3
        s_getreg_b32 s9, hwreg(HW_REG_XCC_ID, 0, 4)
        s_andn2_b32 s69, s69, 15
        s_or_b32 s69, s69, s9
        v_mov_b32 v4, s69
        v_mov_b32 v5, s{TAG}
        v_mov_b32 v6, 0
        s_waitcnt vmcnt(0)
        s_mov_b64 exec, 1
        buffer_store_dwordx2 v[4:5], v6, {W}, s8 offen offset:{WS_F1} sc1
        s_mov_b64 exec, -1
        """)

    def gemm_addr(cg):
        a(f"""
        v_mov_b32 v{VS}, {L_STAT}
        s_and_b32 s6, s77, 1
        v_lshrrev_b32 v4, 1, v2
        v_xor_b32 v4, v4, v3
        v_lshlrev_b32 v5, 7, v2
        v_lshl_add_u32 v39, v4, 4, v5
        s_lshl_b32 s7, s76, 1
        s_add_u32 s7, s7, s6
        s_lshl_b32 s8, s7, 11
        s_lshl_b32 s9, s6, 6
        v_xor_b32 v4, s9, v39
        v_add_u32 v{VXR}, s8, v4
        v_xor_b32 v{VXR+1}, 0x800, v{VXR}
        v_bfe_u32 v4, v1, 2, 2
        v_lshl_add_u32 v4, v3, 3, v4
        v_and_b32 v5, 1, v3
        v_lshl_add_u32 v6, v5, 2, v4
        v_xor_b32 v7, 4, v6
        v_and_b32 v5, 3, v1
        v_lshlrev_b32 v5, 3, v5
        s_movk_i32 s9, 160
        v_mad_u32_u24 v6, v6, s9, v5
        v_mad_u32_u24 v7, v7, s9, v5
        s_mul_i32 s8, s6, 5120
        s_add_u32 s8, s8, {L_W + 96*cg}
        v_add_u32 v{VTR}, s8, v6
        v_add_u32 v{VTR+1}, s8, v7
        s_mul_i32 s8, s76, 51200
        v_add_u32 v{VT}, s8, v6
        v_add_u32 v{VT+1}, s8, v7
        s_mul_i32 s8, s7, {16*QSTR}
        s_add_u32 s8, s8, {L_Q + 96*cg}
        v_mul_u32_u24 v4, {QSTR}, v2
        v_lshl_add_u32 v4, v3, 3, v4
        v_add_u32 v{VQW}, s8, v4
        s_mul_i32 s8, s5, 3072
        s_add_u32 s8, s8, {L_EX}
        v_add_u32 v{VEX}, s8, v{AK1}
        s_xor_b32 s8, s5, 2
        s_mul_i32 s8, s8, 3072
        s_add_u32 s8, s8, {L_EX}
        v_add_u32 v{VEX+1}, s8, v{AK1}
        """)
    def got_args():
        a(f"s_waitcnt lgkmcnt(0)\ns_load_dword s{TAG}, s[{P_WS}:{P_WS+1}], {WS_E}")
        if STAMP: a("s_mov_b32 s93, s92")
    def got_tag():
        a(f"s_waitcnt lgkmcnt(0)\ns_mul_i32 s{TAG}, s{TAG}, 0x9E3779B1\ns_add_u32 s{TAG}, s{TAG}, 0x7F4A7C15")
    def x_issue(g):
        a(f"s_add_u32 s8, s10, s12\ns_add_u32 s9, s8, {8*1280}")
        for hs in range(2):
            for par in range(2):
                a(f"s_add_u32 m0, s11, {(2*g+hs)*8192 + 1024*par - 128*hs}")
                a(f"buffer_load_dwordx4 v{VD+par}, {SR_(S_A)}, s{8+par} offen offset:{128*hs} lds")
        if g < 4: gwrap(12, 256)
    def wkv_issue(g):
        a(f"s_mov_b32 m0, {L_WKV + 5120*g}")
        for i in range(4):
            a(f"buffer_load_dwordx4 v{AK1}, {SR_(S_C)}, s13 offen offset:{1024*i} lds")
        a(f"s_mov_b32 m0, {L_WKV + 5120*g + 4096}\ns_add_u32 s8, s13, 4096")
        a(f"buffer_load_dwordx4 v{AK1}, {SR_(S_C)}, s8 offen lds")
        if g < 4: gwrap(13, 5120)
    def w_issue(g):
        a(f"s_add_u32 s8, s10, s12")
        for n in range(5):
            a(f"s_add_u32 m0, s11, {(g % 4)*GSLOT + 1024*n}")
            a(f"buffer_load_dwordx4 v{VD+n}, {SR_(S_B)}, s8 offen lds")
        if g < 4: gwrap(12, 128 * 1280)
    def q_stage(nblk, gs, xb, wb, mid=None):
        steps = [(g, hs) for g in gs for hs in range(2)]
        per = 2 + 2 * nblk
        for n, (g, hs) in enumerate(steps):
            b = GF + 20 * n
            for pl in range(2): a(f"ds_read_b128 {R(b+4*pl)}, v{VXR+pl} offset:{(2*g + hs)*8192 - xb}")
            for nb in range(nblk):
                off = (g % 4) * GSLOT + hs * 10240 + nb * 32 - wb
                for z in range(2): a(f"ds_read_b64_tr_b16 {R(b+8+4*nb+2*z,2)}, v{VTR+z} offset:{off}")
        if mid: mid()
        for n in range(len(steps)):
            a(f"s_waitcnt lgkmcnt({min(15, per * (len(steps) - 1 - n))})")
            b = GF + 20 * n
            for nb in range(nblk):
                for pl in range(2):
                    d = R(ACC + 12 * pl + 4 * nb)
                    a(f"v_mfma_f32_16x16x32_bf16 {d}, {R(b+8+4*nb)}, {R(b+4*pl)}, {'0' if (gs[0] == 0 and n == 0) else d}")
    def ld1():
        a(f"buffer_load_dwordx4 v[8:11], v45, {W}, 0 offen offset:{WS_F1} sc1")
        a(f"buffer_load_dwordx4 v[12:15], v45, {W}, 0 offen offset:{WS_F1+16} sc1")
    def q_path(cg):
        nblk = 3 if cg == 0 else 2
        stamp(2)
        a("s_barrier")
        stamp(3)
        q_stage(nblk, [0], 0, 0, (lambda: (only(7, lambda: w_issue(2)), w_issue(3))) if cg else None)
        a(f"s_waitcnt vmcnt({10 if cg else 0})")
        a("s_barrier")
        q_stage(nblk, [1], 0, 0, (lambda: w_issue(4)) if cg else None)
        shift2(VTR, 2 * GSLOT)
        if cg: a("s_waitcnt vmcnt(5)")
        a("s_barrier")
        stamp(4)
        q_stage(nblk, [2, 3], 0, 2 * GSLOT, None if cg else (lambda: only(PW, ld1)))
        shift2(VTR, -2 * GSLOT); shift2(VXR, 65536)
        if cg: a("s_waitcnt vmcnt(0)")
        else: only(PW, lambda: poll(ld1, [9, 11, 13, 15], 1, skipfirst=True)); only(2, sync_init)
        a("s_barrier")
        stamp(5)
        if not cg and E("INV"): only(2, lambda: a("buffer_inv sc1"))
        q_stage(nblk, [4], 65536, 0, (lambda: kv_prologue(KBH, 0)) if cg else None)
        for nb in range(nblk): a(f"ds_write_b128 v{VEX}, {R(ACC+12+4*nb)} offset:{1024*nb}")
        if not cg and not E("NOSVC") and not E("LATEK"): only(3, lambda: (stage(P_AK, 4, L_SK), stage(P_AV, 1, L_SV) if E("EARLYV") else None))
        a(f"s_mov_b32 s8, 0xffff0000\ns_mov_b32 s9, {f2u(QSCALE)}")
        a("s_waitcnt lgkmcnt(0)\ns_barrier")
        for nb in range(nblk): a(f"ds_read_b128 {R(ACC+12+4*nb)}, v{VEX+1} offset:{1024*nb}")
        if cg and not E("LATEP"): kv_prologue(KBH, 1)
        for nb in range(nblk):
            b = ACC + 4 * nb
            a(f"s_waitcnt lgkmcnt({min(nblk - 1, nblk - 1 - nb + nb)})" if nb == 0 else f"s_waitcnt lgkmcnt({nblk - 1})")
            for r in range(4): a(f"v_add_f32 v{b+r}, v{b+r}, v{b+12+r}")
            for r in range(4): a(f"v_mul_f32 v{b+r}, s9, v{b+r}")
            for p in range(2): a(f"v_cvt_pk_bf16_f32 v{88+2*nb+p}, v{b+2*p}, v{b+2*p+1}")
            a(f"ds_write_b64 v{VQW}, {R(88+2*nb,2)} offset:{32*nb}")
        if not cg and E("INV"): only(2, lambda: a("s_waitcnt vmcnt(0)"))
        a("s_waitcnt lgkmcnt(0)\ns_barrier")
        stamp(7)
    OSTR = 336; OKH = 64 * OSTR
    FRD, FST = [94, 95], [60, 55]
    def fin_addr():
        a(f"""
        v_mul_u32_u24 v54, {OSTR}, v2
        v_lshl_add_u32 v54, v3, 4, v54
        s_mul_i32 s8, s77, {16*OSTR}
        s_mul_i32 s9, s76, {OKH}
        s_add_u32 s8, s8, s9
        s_add_u32 s8, s8, {L_OUT}
        v_add_u32 v54, s8, v54
        """)
    def fin_addr2(n):
        for i in range(n):
            a(f"""
            v_add_u32 v84, {512*i}, v0
            v_mul_u32_u24 v85, 6554, v84
            v_lshrrev_b32 v85, 16, v85
            v_mul_u32_u24 v86, 10, v85
            v_sub_u32 v86, v84, v86
            v_mul_u32_u24 v{FRD[i]}, {OSTR}, v85
            v_lshl_add_u32 v{FRD[i]}, v86, 5, v{FRD[i]}
            v_add_u32 v{FRD[i]}, {L_OUT}, v{FRD[i]}
            v_mul_u32_u24 v{FST[i]}, 2560, v85
            v_lshl_add_u32 v{FST[i]}, v86, 4, v{FST[i]}
            """)
    def lds_add(off, val):
        a(f"v_mov_b32 v4, {val}\ns_mov_b64 exec, 1\nds_add_u32 v{VS}, v4 offset:{off}\ns_mov_b64 exec, -1")
    def lds_wait(off, val, op, sleep):
        poll(lambda: a(f"ds_read_b32 v4, v{VS} offset:{off}"), [4], sleep, "lgkmcnt", str(val), op)
    l_cg1, l_R, l_x, l_lo1 = a.newlabel(), a.newlabel(), a.newlabel(), a.newlabel()
    br_wave("ge", 4, l_cg1)
    a(f"""
    v_lshrrev_b32 v4, 3, v1
    v_mul_u32_u24 v4, 1280, v4
    v_and_b32 v5, 7, v1
    v_xor_b32 v5, v5, v3
    v_lshl_add_u32 v{VD}, v5, 4, v4
    v_xor_b32 v{VD+1}, 64, v{VD}
    s_add_u32 s8, s67, s5
    s_and_b32 s8, s8, 3
    s_mul_i32 s10, s8, {16*1280}
    s_add_u32 s10, s10, s64
    s_lshl_b32 s11, s8, 11
    s_lshl_b32 s12, s66, 8
    s_mul_i32 s13, s66, 5120
    v_lshlrev_b32 v45, 5, v1
    """)
    tail_addr(False); gemm_addr(0); fin_addr()
    br_wave("lg", 0, l_x)
    a(f"""
    v_add_u32 v{VKR}, s11, v39
    v_xor_b32 v{VKR+1}, 64, v{VKR}
    v_bfe_u32 v4, v1, 2, 2
    v_lshl_add_u32 v4, v3, 3, v4
    v_mul_u32_u24 v4, 40, v4
    v_add_u32 v{VK4}, {L_WKV}, v4
    v_and_b32 v5, 3, v1
    v_lshl_add_u32 v{VK5}, v5, 3, v{VK4}
    """)
    for n in range(15): a(f"v_mov_b32 v{(VW2 + n) if n < 5 else (VWO + n - 5)}, -1")
    got_args()
    a(f"""
    s_cmp_ge_u32 s4, 4
    s_cselect_b32 s{S_C}, s{P_WV}, s{P_WK}
    s_cselect_b32 s{S_C+1}, s{P_WV+1}, s{P_WK+1}
    s_mov_b32 s{S_C+2}, 25600
    s_mov_b32 s{S_C+3}, 0x20000
    """)
    srd(S_A, P_X, ACT)
    KORD = E("KORD", "wx")
    if KORD == "wx":
        for g in range(5): wkv_issue(g)
        for g in range(5):
            x_issue(g)
            if str(g) == E("B0"): a("s_barrier")
        wv = [40 - 5 * g for g in range(5)]; xv = [16 - 4 * g for g in range(5)]
    else:
        for g in range(5): x_issue(g)
        for g in range(5): wkv_issue(g)
        wv = [20 - 5 * g for g in range(5)]; xv = [0] * 5
    if not E("B0"): a("s_barrier")
    stamp(1)
    srd(S_WS, P_WS, WS_END)
    got_tag()
    WPF, XT_ = 96, 72
    for g in range(5):
        a(f"s_waitcnt vmcnt({wv[g]})")
        for s_ in range(4):
            ks = 4 * g + s_; b = WPF + 8 * ks
            a(f"ds_read_b64_tr_b16 {R(b,2)}, v{VK5} offset:{ks*1280}")
            a(f"ds_read_b64_tr_b16 {R(b+2,2)}, v{VK5} offset:{ks*1280+160}")
            a(f"ds_read_b64_tr_b16 {R(b+4,2)}, v{VK4} offset:{ks*1280+32}")
            a(f"ds_read_b64_tr_b16 {R(b+6,2)}, v{VK4} offset:{ks*1280+192}")
    a(f"""
    s_lshr_b32 s12, s67, 1
    s_lshl_b32 s14, s3, 1
    s_add_u32 s12, s12, s14
    s_mul_i32 s12, s12, {TILE}
    s_add_u32 s12, s12, {WS_KV}
    s_and_b32 s10, s67, 1
    """)
    def kvpart(isv):
        for g in range(5):
            if g == 4: shift2(VKR, 65536)
            a(f"s_waitcnt vmcnt({xv[g]})")
            for s_ in range(4): a(f"ds_read_b128 {R(XT_+4*s_)}, v{VKR+(s_&1)} offset:{((2*g + (s_>>1)) % 8) * 8192}")
            for s_ in range(4):
                a(f"s_waitcnt lgkmcnt({3-s_})")
                for blk in range(2):
                    d = R(B0 + 4 * blk); c = "0" if (g == 0 and s_ == 0) else d
                    w_, x_ = R(WPF + 8 * (4 * g + s_) + 4 * blk), R(XT_ + 4 * s_)
                    a(f"v_mfma_f32_16x16x32_bf16 {d}, {x_ if isv else w_}, {w_ if isv else x_}, {c}")
    def pack(b, dst, swap):
        a(f"""
        v_cvt_pk_bf16_f32 v{dst}, v{b}, v{b+1}
        v_cvt_pk_bf16_f32 v{dst+1}, v{b+2}, v{b+3}
        v_cvt_pk_bf16_f32 v{dst+2}, v{b}, v{b+1}
        v_cvt_pk_bf16_f32 v{dst+3}, v{b+2}, v{b+3}
        {swap} v{dst}, v{dst+2}
        {swap} v{dst+1}, v{dst+3}
        """)
    l_v, l_pub = a.newlabel(), a.newlabel()
    a(f"s_cmp_ge_u32 s4, 4\ns_cbranch_scc1 {l_v}")
    a(f"""
    s_lshl_b32 s10, s10, 4
    v_add_u32 v5, s10, v2
    v_lshrrev_b32 v6, 1, v3
    v_lshl_add_u32 v6, v6, 5, v5
    v_lshlrev_b32 v6, 4, v6
    v_lshlrev_b32 v5, 3, v5
    """)
    kvpart(False)
    pack(B0, PA, "v_permlane16_swap_b32")
    a(f"""
    v_cvt_pk_bf16_f32 v{PB}, v{B1}, v{B1+1}
    v_cvt_pk_bf16_f32 v{PB+1}, v{B1+2}, v{B1+3}
    s_mov_b32 exec_lo, 0xffff
    s_mov_b32 exec_hi, 0xffff
    buffer_store_dwordx4 {R(PA)}, v6, {W}, s12 offen offset:{K1_OFF} sc1
    s_mov_b64 exec, 0xffff
    buffer_store_dwordx2 {R(PB,2)}, v5, {W}, s12 offen offset:{KR_OFF} sc1
    s_mov_b64 exec, -1
    s_branch {l_pub}
    """)
    a.label(l_v)
    a(f"""
    s_mul_i32 s10, s10, {V1_OFF - V0_OFF}
    s_add_u32 s12, s12, s10
    v_and_b32 v5, 1, v3
    v_mul_u32_u24 v5, 20, v5
    v_add_u32 v6, v5, v2
    v_lshlrev_b32 v6, 4, v6
    v_cmp_lt_u32 s[14:15], 3, v2
    v_mov_b32 v10, 0x3f803f80
    """)
    kvpart(True)
    pack(B0, PA, "v_permlane32_swap_b32")
    pack(B1, PB, "v_permlane32_swap_b32")
    a(f"s_mov_b32 exec_hi, 0")
    a(f"buffer_store_dwordx4 {R(PA)}, v6, {W}, s12 offen offset:{V0_OFF} sc1")
    for i in range(4): a(f"v_cndmask_b32 v{12+i}, v{PB+i}, v10, s[14:15]")
    a(f"""
    s_mov_b32 exec_lo, 0x00ff000f
    buffer_store_dwordx4 v[12:15], v6, {W}, s12 offen offset:{V0_OFF + 256} sc1
    s_mov_b64 exec, -1
    """)
    a.label(l_pub)
    stamp(6)
    publish_kv()
    lo_addr()
    a(f"s_branch {l_lo1}")
    a.label(l_x)
    lo_addr()
    for n in range(5): wpat(VW2 + n, 64 * n, False)
    def wo_pat():
        for n in range(5):
            a(f"""
            v_add_u32 v4, {64*n}, v1
            v_mul_u32_u24 v5, 6554, v4
            v_lshrrev_b32 v5, 16, v5
            v_mul_u32_u24 v6, 10, v5
            v_sub_u32 v6, v4, v6
            v_lshlrev_b32 v6, 4, v6
            v_lshrrev_b32 v7, 1, v5
            v_and_b32 v7, 4, v7
            v_xor_b32 v5, v5, v7
            v_lshrrev_b32 v7, 3, v5
            v_lshl_add_u32 v4, v7, 1, v5
            v_mul_u32_u24 v4, 1280, v4
            v_add_u32 v{VWO+n}, v4, v6
            v_lshrrev_b32 v7, 1, v5
            v_lshl_add_u32 v4, v7, 3, v5
            v_add_u32 v4, 8, v4
            v_mul_u32_u24 v4, 1280, v4
            v_add_u32 v{VWO+5+n}, v4, v6
            """)
    for n in range(4): a(f"v_mov_b32 v{VWO+n}, -1")
    only(3, wo_pat)
    got_args()
    srd(S_A, P_X, ACT); srd(S_WS, P_WS, WS_END); srd(S_C, P_WK, 25600)
    l = a.newlabel()
    a(f"""
    v_lshlrev_b32 v4, 7, v1
    s_sub_u32 s8, s5, 1
    s_lshl_b32 s8, s8, 13
    s_cmp_ge_u32 s2, 8
    s_cbranch_scc1 {l}
    buffer_load_dword v5, v4, {W}, s8 offen sc1
    """)
    a.label(l)
    got_tag()
    a(f"s_setprio {E('PX', '0')}\ns_barrier")
    for g in range(5): x_issue(g)
    a("s_setprio 0")
    stamp(1)
    a("s_waitcnt vmcnt(16)")
    a.label(l_lo1)
    q_path(0)
    l_svcend = a.newlabel()
    if E("NOSVC"):
        lds_add(8, 1); a(f"s_branch {l_svcend}")
    only(3, lambda: (stage(P_AK, 4, L_SK) if E("LATEK") else None, a(f"s_waitcnt vmcnt({E('STG', '6')})"), None if E("EARLYV") else stage(P_AV, 1, L_SV)))
    srd(S_D, P_SH, D * 8); srd(S_B, P_WO, D * D * 2)
    a(f"""
    s_setprio {E('PKVT', '2')}
    v_and_b32 v4, 7, v1
    v_lshlrev_b32 v4, 4, v4
    s_lshl_b32 s8, s5, 7
    s_lshl_b32 s9, s65, 2
    s_add_u32 s8, s8, s9
    buffer_load_dwordx4 {R(WRAW[0])}, v4, {SR_(S_D)}, s8 offen
    buffer_load_dwordx4 {R(WRAW[1])}, v4, {SR_(S_D)}, s9 offen offset:512
    s_mov_b32 s12, 0xffff0000
    """)
    def decide():
        a(f"v_mul_u32_u24 v4, {QSTR}, v1\nv_add_u32 v4, {L_Q}, v4")
        for i in range(10): a(f"ds_read_b128 {R(128+4*i)}, v4 offset:{16*i}")
        a(f"""
        s_getreg_b32 s9, hwreg(HW_REG_XCC_ID, 0, 4)
        v_xor_b32 v5, s9, v8
        v_xor_b32 v6, s9, v10
        v_or_b32 v5, v5, v6
        v_xor_b32 v6, s9, v12
        v_xor_b32 v7, s9, v14
        v_or3_b32 v5, v5, v6, v7
        v_and_b32 v5, 15, v5
        v_cmp_ne_u32 vcc, 0, v5
        s_lshl_b32 s8, s3, 1
        s_lshr_b64 s[10:11], vcc, s8
        v_max_f32 v8, v8, v10
        v_max3_f32 v8, v8, v12, v14
        s_mov_b32 s8, 0x55555555
        s_mov_b32 s9, 0x55555555
        v_cndmask_b32 v10, 0, v8, s[8:9]
        v_cndmask_b32 v11, v8, 0, s[8:9]
        """)
        for m in ("row_shr:1 row_mask:0xf", "row_shr:2 row_mask:0xf", "row_shr:4 row_mask:0xf", "row_shr:8 row_mask:0xf",
                  "row_bcast:15 row_mask:0xa", "row_bcast:31 row_mask:0xc"):
            a(f"v_max_f32_dpp v10, v10, v10 {m} bank_mask:0xf\nv_max_f32_dpp v11, v11, v11 {m} bank_mask:0xf")
        for j in range(4): a(f"v_mov_b32 v{12+j}, 0")
        a("v_readlane_b32 s14, v10, 63\nv_readlane_b32 s15, v11, 63\ns_waitcnt lgkmcnt(0)")
        for r in range(10):
            for j in range(4): a(f"v_dot2c_f32_bf16 v{12+j}, v{128+10*j+r}, v{128+10*j+r}")
        a(f"""
        v_max3_f32 v12, v12, v13, v14
        v_max_f32 v12, v12, v15
        v_mul_f32 v12, s14, v12
        v_cmp_nge_f32 vcc, {f2u(64.0*64.0)}, v12
        s_mov_b32 s8, 1
        s_cmp_lg_u64 vcc, 0
        s_cselect_b32 s8, 0x101, s8
        s_cmp_lt_u32 s15, {f2u(2.0**-28)}
        s_cselect_b32 s8, 0x101, s8
        s_cmp_gt_u32 s15, {f2u(2.0**50)}
        s_cselect_b32 s8, 0x101, s8
        s_and_b32 s10, s10, 3
        s_cselect_b32 s9, 0, {0 if E("NOFAST") else 0x200}
        s_or_b32 s8, s8, s9
        """)
        lds_add(8, "s8")
    only(PW, decide)
    l = a.newlabel()
    a(f"s_or_b32 s8, s2, s5\ns_cmp_lg_u32 s8, 0\ns_cbranch_scc1 {l}\ns_mov_b32 s8, {WS_E}")
    flag_store(8, 6)
    a.label(l)
    a("s_waitcnt vmcnt(0)")
    only(3, lambda: lds_add(0, 1))
    lds_wait(0, 1, "ne", 2)
    stamp(10)
    KRW, KU, VU, WU, KV, PK = 192, 128, 152, 170, 64, 84
    def kvt_compute(ps, pass_sgpr):
        if E("NOKVT"): return
        kr = KRW; vr = kr + 12; wr = WRAW[ps]
        for r in range(12): a(f"ds_read_b32 v{kr+r}, v{KT_S} offset:{L_SK + 160*r + 32*ps}")
        for r in range(9): a(f"ds_read_b32 v{vr+r}, v{KT_S} offset:{L_SV + 160*r + 32*ps}")
        for j in range(4):
            for c in range(2):
                src = wr + 2 * c + j // 2
                a(f"v_lshlrev_b32 v{WU+2*j+c}, 16, v{src}" if j % 2 == 0 else f"v_and_b32 v{WU+2*j+c}, s12, v{src}")
        a("s_waitcnt lgkmcnt(9)")
        for r in range(12): a(f"v_lshlrev_b32 v{KU+2*r}, 16, v{kr+r}\nv_and_b32 v{KU+2*r+1}, s12, v{kr+r}")
        for i in range(18): a(f"v_mul_f32 v{KV+i}, v{KU+i}, v{WU+6+(i&1)}")
        for j in (2, 1, 0):
            for i in range(18): a(f"v_fmac_f32 v{KV+i}, v{KU+i+2*(3-j)}, v{WU+2*j+(i&1)}")
        a("s_waitcnt lgkmcnt(0)")
        for r in range(9): a(f"v_lshlrev_b32 v{VU+2*r}, 16, v{vr+r}\nv_and_b32 v{VU+2*r+1}, s12, v{vr+r}")
        for i in range(18): a(f"v_mul_f32 v{KV+i}, v{KV+i}, v{VU+i}")
        for c in range(2):
            for cp in range(2):
                for d in range(4):
                    lo = 7 - cp - 2 * d; hi = lo - 1
                    a(f"v_cvt_pk_bf16_f32 v{PK+8*c+4*cp+d}, v{KV+2*(lo+1)+c}, v{KV+2*(hi+1)+c}")
                a(f"ds_write_b128 v{KT_W}, {R(PK+8*c+4*cp)} offset:{256*c + 16*cp}")
        for k in range(4): a(f"ds_read_b128 {R(PK+16+4*k)}, v{KT_R} offset:{1056*k}")
        a(f"""
        s_mul_i32 s8, s4, 80
        s_lshl_b32 s9, s{pass_sgpr}, 4
        s_add_u32 s8, s8, s9
        s_lshl_b32 s8, s8, 13
        s_sub_u32 s9, 31, s3
        s_lshl_b32 s9, s9, 7
        s_add_u32 s8, s8, s9
        s_add_u32 s8, s8, {WS_XT}
        """)
        for k in range(4):
            a(f"s_waitcnt lgkmcnt({3-k})")
            a(f"buffer_store_dwordx4 {R(PK+16+4*k)}, v{KT_G}, {W}, s8 offen sc1")
            if k < 3: a(f"s_add_u32 s8, s8, {4*8192}")
    def f2_flag(pass_sgpr):
        a(f"""
        s_mul_i32 s8, s4, 5
        s_add_u32 s8, s8, s{pass_sgpr}
        s_lshl_b32 s8, s8, 5
        s_add_u32 s8, s8, s3
        s_lshl_b32 s8, s8, 2
        s_add_u32 s8, s8, {WS_F2}
        """)
        flag_store(8, 6)
    kvt_compute(0, 5)
    l_conv, l_aepi, l_cdone = a.newlabel(), a.newlabel(), a.newlabel()
    br_wave("lg", 3, l_conv)
    a("s_mov_b32 s10, 4")
    kvt_compute(1, 10)
    a("s_waitcnt vmcnt(0)")
    f2_flag(10); f2_flag(5)
    a("s_setprio 0")
    stamp(8)
    def wo_loop(p0):
        a(f"s_add_u32 s8, s65, {p0*160*1280}\ns_mov_b32 s9, {p0*25600}")
        l = a.newlabel()
        a.label(l)
        for m in range(5):
            a(f"s_add_u32 s10, s8, {(40*1280*m) if m < 4 else 0}")
            for n in range(5):
                a(f"s_add_u32 m0, s9, {5120*m + 1024*n}")
                a(f"buffer_load_dwordx4 v{VWO + n + (5 if m == 4 else 0)}, {SR_(S_B)}, s10 offen lds")
            a(f"s_waitcnt vmcnt({E('WOV', '5')})")
        a(f"""
        s_add_u32 s8, s8, {160*1280}
        s_add_u32 s9, s9, 25600
        s_cmp_lt_u32 s9, {(p0+2)*25600}
        s_cbranch_scc1 {l}
        """)
    if not E("NOWO"):
        wo_loop(2)
        lds_wait(4, 3, "ne", 8)
        wo_loop(0)
    a("s_waitcnt vmcnt(0)")
    lds_add(0, 1)
    a(f"s_branch {l_aepi}")
    a.label(l_conv)
    lds_add(4, 1)
    a(f"""
    s_lshl_b32 s12, s5, 8
    s_add_u32 s12, s12, s2              ; channel
    s_min_u32 s13, s12, 639
    s_lshl_b32 s8, s13, 12
    s_add_u32 s{S_A}, s{P_SK}, s8
    s_addc_u32 s{S_A+1}, s{P_SK+1}, 0
    s_mov_b32 s{S_A+2}, 4096
    s_lshl_b32 s8, s13, 13
    s_add_u32 s8, s8, {WS_XT}
    s_add_u32 s{S_B}, s{P_WS}, s8
    s_addc_u32 s{S_B+1}, s{P_WS+1}, 0
    s_mov_b32 s{S_B+2}, 4096
    s_add_u32 s{S_C}, s{S_B}, 4096
    s_addc_u32 s{S_C+1}, s{S_B+1}, 0
    s_mov_b32 s{S_C+2}, 4096
    s_load_dword s14, s[{S_A}:{S_A+1}], 0
    s_lshr_b32 s8, s13, 1
    s_lshl_b32 s8, s8, 2
    s_load_dword s15, s[{P_SD}:{P_SD+1}], s8
    s_mul_i32 s8, s13, 52429
    s_lshr_b32 s8, s8, 22
    s_mul_i32 s9, s8, 80
    s_sub_u32 s9, s13, s9
    s_lshr_b32 s9, s9, 4
    s_mul_i32 s8, s8, 5
    s_add_u32 s8, s8, s9
    s_lshl_b32 s13, s8, 7
    s_add_u32 s13, s13, {WS_F2}
    s_waitcnt vmcnt(0)
    """)
    f2_flag(5)
    a(f"s_waitcnt lgkmcnt(0)\ns_cmp_ge_u32 s12, 640\ns_cbranch_scc1 {l_cdone}")
    if E("NOCONV"): a(f"s_branch {l_cdone}")
    a(f"s_mov_b32 m0, s68\nbuffer_load_dwordx4 v{V_HD}, {SR_(S_A)}, 0 offen lds")
    a(f"s_add_u32 m0, s68, 1024\ns_movk_i32 s8, 960")
    for i in range(4): a(f"buffer_load_dwordx4 v{AK1}, {SR_(S_A)}, s8 offen offset:{1024*i} lds")
    a(f"""
    s_bitcmp1_b32 s12, 0
    s_cselect_b32 s8, 0, 16
    s_lshl_b32 s15, s15, s8
    s_and_b32 s15, s15, 0xffff0000
    s_lshl_b32 s8, s14, 16
    v_mov_b32 v5, s8
    v_add_f32 v5, s15, v5
    v_cvt_pk_bf16_f32 v5, v5, v5
    v_mov_b32 v6, s68
    s_waitcnt vmcnt(0)
    ds_write_b16 v6, v5 offset:64
    """)
    lds_wait(16, int(E("PF2", "7")), "lt", 8)
    poll(lambda: a(f"buffer_load_dword v4, v{V_F2}, {W}, s13 offen sc1"), [4], int(E("F2S", "16")))
    stamp(8)
    a("s_movk_i32 s8, 4096")
    for cl_ in range(2):
        a(f"s_add_u32 m0, s68, {5120 + 5120*cl_}")
        for i in range(4): a(f"buffer_load_dwordx4 v{AK1}, {SR_(S_C if cl_ else S_B)}, 0 offen offset:{1024*i} sc1 lds")
        a(f"s_add_u32 m0, s68, {5120 + 5120*cl_ + 4096}")
        a(f"buffer_load_dwordx4 v{AK1}, {SR_(S_C if cl_ else S_B)}, s8 offen sc1 lds")
    a(f"s_waitcnt vmcnt(0)\ns_setprio {E('PCONV', '0')}")
    CB = [96, 160]
    def c_reads(j):
        b = CB[j & 1]; r = []
        for u in range(8):
            o = (4 + 512 * (u & 1) + 64 * j) // 4
            r.append(f"ds_read_b128 {R(b+32+4*u)}, v{V_B} offset:{5120 + (56 - 8*u + j)*64}")
            r.append(f"ds_read2_b32 {R(b+4*u,2)}, v{VA+u//2} offset0:{o} offset1:{o+1}")
            r.append(f"ds_read2_b32 {R(b+4*u+2,2)}, v{VA+u//2} offset0:{o+2} offset1:{o+3}")
        return r
    THR = dict(zip(range(2, 8), [int(x) for x in E("THR", "3,3,3,3,2,2").split(",")]))
    for x in c_reads(0): a(x)
    for j in range(8):
        nxt = c_reads(j + 1) if j < 7 else []
        if j + 1 in THR: nxt.append(f"ds_read_b32 v4, v{VS} offset:16")
        a("s_waitcnt lgkmcnt(0)")
        if j in THR:
            l = a.newlabel()
            a(f"v_readfirstlane_b32 s8, v4\ns_cmp_gt_u32 s8, {THR[j]}\ns_cbranch_scc1 {l}\ns_setprio 2")
            a.label(l)
        b = CB[j & 1]; n = 0
        for u in range(8):
            for nb in range(u, 8):
                d = R(O + 4 * nb)
                a(f"v_mfma_f32_16x16x32_bf16 {d}, {R(b+4*u)}, {R(b+32+4*(nb-u))}, {'0' if (j == 0 and u == 0) else d}")
                n += 1
                if n % 4 == 0:
                    for x in nxt[:3]: a(x)
                    nxt = nxt[3:]
        assert not nxt
    a(f"s_setprio 2\ns_lshl_b32 s8, s12, 12\ns_add_u32 s8, s8, {WS_Z}")
    for pr_ in range(4):
        zb = 96 + 4 * pr_
        for k in range(4): a(f"v_cvt_pk_bf16_f32 v{zb+k}, v{O+8*pr_+2*k}, v{O+8*pr_+2*k+1}")
        a(f"v_permlane32_swap_b32 v{zb}, v{zb+2}\nv_permlane32_swap_b32 v{zb+1}, v{zb+3}")
        a(f"buffer_store_dwordx4 {R(zb)}, v{V_ZS}, {W}, s8 offen offset:{1024*pr_} sc1")
    a(f"s_lshl_b32 s8, s12, 2\ns_add_u32 s8, s8, {WS_F3}\ns_waitcnt vmcnt(0)")
    flag_store(8, 6)
    a.label(l_cdone)
    lds_add(8, 1)
    a.label(l_aepi)
    stamp(9)
    a("s_setprio 2")
    XF, AF, AC = 8, 96, 64
    def o_reads(ks):
        b = AF + 20 * (ks % 8)
        for nb in range(5):
            for z in range(2): a(f"ds_read_b64_tr_b16 {R(b+4*nb+2*z,2)}, v{VT+z} offset:{ks*5120 + nb*32}")
    QRW, ZR, U = 8, 24, 64
    X40 = "s_mov_b32 exec_lo, -1\ns_mov_b32 exec_hi, 0xff"
    srd(S_A, P_AQ, ACT)
    a(X40)
    for e in range(8):
        a(f"s_movk_i32 s8, {(16*(e>>2) + 2*(e&3))*1280}")
        a(f"buffer_load_dwordx2 {R(QRW+2*e,2)}, v{AE}, {SR_(S_A)}, s8 offen")
    a(f"""
    s_mov_b64 exec, -1
    buffer_load_dwordx4 {R(64)}, v{PV+2}, {W}, s72 offen sc1
    buffer_load_dwordx4 {R(64)}, v{PV+2}, {W}, s72 offen offset:1024 sc1
    buffer_load_dwordx2 {R(64,2)}, v{PV+3}, {W}, s73 offen sc1
    buffer_load_dwordx2 {R(64,2)}, v{PV+3}, {W}, s73 offen offset:256 sc1
    v_mov_b32 v4, 0
    buffer_load_dword v64, v4, {W}, s74 offen sc1
    """)
    lds_wait(0, 2, "ne", 16)
    for ks in range(8): o_reads(ks)
    srd(S_C, P_OUT, 2 * ACT)
    def unp(dst, src, hi): a(f"v_and_b32 v{dst}, s14, v{src}" if hi else f"v_lshlrev_b32 v{dst}, 16, v{src}")
    def z_fetch(once):
        a(f"""
        s_lshl_b32 s11, s3, 7
        s_lshl_b32 s8, s5, 5
        s_add_u32 s11, s11, s8
        s_add_u32 s11, s11, {WS_Z}
        s_mov_b32 s14, {WS_F3}
        {X40}
        """)
        l = a.newlabel()
        poll(lambda: a(f"buffer_load_dwordx4 {R(40)}, v{AE+2}, {W}, s14 offen sc1"), [40, 41, 42, 43], 4, fail=l if once else None)
        stamp(11)
        for i in range(4):
            a(f"buffer_load_dwordx4 {R(ZR+4*i)}, v{AE+3}, {W}, s11 offen sc1")
            if i < 3: a("s_add_u32 s11, s11, 4096")
        a("s_mov_b32 s70, 1\ns_mov_b32 s14, 0xffff0000\ns_waitcnt vmcnt(0)")
        for e in range(8):
            for i in range(4):
                unp(U + i, QRW + 2 * e + i // 2, i % 2); unp(U + 4 + i, ZR + 4 * i + e // 2, e % 2)
            for i in range(4): a(f"v_mul_f32 v{U+i}, v{U+i}, v{U+4+i}")
            for i in (0, 2): a(f"v_cvt_pk_bf16_f32 v{QRW+2*e+i//2}, v{U+i}, v{U+i+1}")
            a(f"s_mov_b32 s8, {(16*(e>>2) + 2*(e&3))*2560}")
            a(f"buffer_store_dwordx2 {R(QRW+2*e,2)}, v{AE+1}, {SR_(S_C)}, s8 offen{OSFX}")
        a.label(l)
        a("s_mov_b64 exec, -1")
    if not E("NOAEPI"):
        a("s_mov_b32 s70, 0")
        lds_wait(16, 1, "lt", 8)
        a(f"s_setprio {E('PAE', '2')}")
        l_try, l_giveup = a.newlabel(), a.newlabel()
        a.label(l_try)
        a(f"s_sleep {E('ZS', '16')}")
        z_fetch(True)
        a(f"""
        s_cmp_eq_u32 s70, 1
        s_cbranch_scc1 {l_giveup}
        ds_read_b32 v4, v{VS} offset:16
        s_waitcnt lgkmcnt(0)
        v_readfirstlane_b32 s8, v4
        s_cmp_lg_u32 s8, 0
        s_cbranch_scc1 {l_try}
        """)
        a.label(l_giveup)
    a.label(l_svcend)
    fin_addr2(2)
    a("s_waitcnt vmcnt(0) lgkmcnt(0)")
    stamp(12)
    a("s_barrier")
    a(f"ds_read_b32 v5, v{VS} offset:8")
    OWN = O
    for j in range(2):
        for r in range(3): a(f"ds_read_b128 {R(OWN+12*j+4*r)}, v{PV+j} offset:{1024*r}")
    a(f"s_branch {l_R}")
    a.label(l_cg1)
    for n in range(5): wpat(VD + n, 64 * n, True)
    a(f"""
    s_sub_u32 s8, s5, 4
    s_mul_i32 s11, s8, 5120
    s_add_u32 s11, s11, {L_W}
    s_mul_i32 s10, s8, {32*1280}
    s_add_u32 s10, s10, s65
    s_mul_i32 s12, s66, {128*1280}
    """)
    tail_addr(True); hi_addr(); gemm_addr(1); fin_addr(); a('v_mov_b32 v55, -1\nv_mov_b32 v60, -1'); a(f"v_mov_b32 v{AE+1}, -1\nv_mov_b32 v{AE+2}, -1\nv_mov_b32 v{AE+3}, -1")
    got_args()
    if E("TLB"):
        M2 = 1 << 21
        pages = [(P_WQ, 0), (P_X, 0), (P_X, M2), (P_AK, 0), (P_AK, M2), (P_AV, 0), (P_AV, M2), (P_SH, 0),
                 (P_WS, M2), (P_WS, 2*M2), (P_WS, 3*M2), (P_WS, 4*M2), (P_WS, 5*M2), (P_SK, 0), (P_SK, M2), (P_SD, 0),
                 (P_WO, 0), (P_AQ, 0), (P_AQ, M2), (P_OUT, 0), (P_OUT, M2), (P_OUT, 2*M2)]
        for w in range(4):
            def t(w=w):
                for p_, o_ in pages[w::4]: a(f"s_mov_b32 s8, {o_}\ns_load_dword s13, s[{p_}:{p_+1}], s8")
            only(4 + w, t)
    srd(S_B, P_WQ, D * D * 2); srd(S_WS, P_WS, WS_END)
    if not E("TLB"): got_tag()
    a(f"s_setprio {E('PHI', '0')}\ns_barrier")
    w_issue(0)
    stamp(1)
    a(f"s_waitcnt vmcnt({E('W1', '5')})"); w_issue(1); a("s_waitcnt vmcnt(5)")
    l = a.newlabel(); br_wave("eq", 7, l); w_issue(2); a.label(l)
    if E("TLB"): got_tag()
    q_path(1)
    for i in range(4): a(f"ds_read2_b64 {R(QM+4*i)}, v{QA+i} offset0:0 offset1:1")
    a(f"ds_read_b64 {R(QR,2)}, v{QA+4} offset:32\nds_read_b64 {R(QR+2,2)}, v{QA+5} offset:32")
    a(f"s_setprio 1\ns_movk_i32 s13, 8")
    for t in range(4): a(f"v_mfma_f32_32x32x16_bf16 {R(O+16*t,16)}, {R(KBH[-1]+10)}, {R(KBH[-1]+10)}, 0")
    l_fb, l_after = a.newlabel(), a.newlabel()
    def qk(t, kb, usec):
        return f"v_mfma_f32_32x32x16_bf16 {R(SR+16*t,16)}, {R(kb)}, {R(QM+4*t)}, {R(C+16*t,16) if usec else '0'}"
    def qr(p, kb):
        d = R(SR + 32 * p, 32)
        if E("QR8"): return "\n".join(f"v_mfma_f32_32x32x8_bf16 {R(SR+32*p+16*i,16)}, {R(kb+4,2)}, {R(QR+2*p,2)}, {R(SR+32*p+16*i,16)}" for i in range(2))
        if E("NOQR"): return "s_nop 0\ns_nop 0"
        return f"v_mfma_f32_32x32x4_2b_bf16 {d}, {R(kb+4,2)}, {R(QR+2*p,2)}, {d}"
    def pv(t, hf, vb):
        d = R(O + 16 * t, 16)
        if E("PVSWAP"): return f"v_mfma_f32_32x32x16_bf16 {d}, {R(SR+16*t+8*hf)}, {R(vb+6+4*hf)}, {d}"
        return f"v_mfma_f32_32x32x16_bf16 {d}, {R(vb+6+4*hf)}, {R(SR+16*t+8*hf)}, {d}"
    MP = [int(x) for x in E("MP", "16,8,12,20,26,36,4").split(",")]
    DEFER = MP[6] < 40
    LP = [MP[5]] * 4
    def phase(p, kq_, vcur, vprev, extra, usec):
        ta, tb = 2 * p, 2 * p + 1
        na, nb_ = 2 * (1 - p), 2 * (1 - p) + 1
        base, pbase = SR + 32 * p, SR + 32 * (1 - p)
        def cv(b, j):
            bb = b + 8 * (j // 4); k = j % 4
            return f"v_cvt_pk_bf16_f32 v{bb+k}, v{bb+2*k}, v{bb+2*k+1}"
        valu = []
        PAT = E("PAT", "eeeecc")
        for grp in range(8):
            ei = 0; cj = [2 * grp - 2, 2 * grp - 1]
            for ch in PAT:
                if ch == "e": valu.append(f"v_exp_f32 v{base+4*grp+ei}, v{base+4*grp+ei}"); ei += 1
                else:
                    j = cj.pop(0); valu.append(cv(base, j) if j >= 0 else cv(pbase, 16 + j))
        ins = dict(zip(MP, [[qk(na, kq_, usec)], [pv(nb_, 1, vprev)], [qk(nb_, kq_, usec)], [pv(ta, 0, vcur)],
               [qr(1 - p, kq_)], [pv(ta, 1, vcur)], [pv(nb_, 0, vprev) if DEFER else pv(tb, 0, vcur)]]))
        for k, v in extra.items():
            if k == "wait": ins[MP[3]] = v + ins[MP[3]]
            else: ins[k] = ins.get(k, []) + v
        for i, x in enumerate(valu):
            for y in ins.get(i, []): a(y)
            a(x)
        return [cv(base, 14), cv(base, 15)]
    def main_loop(kb, usec):
        nb = len(kb)
        a(f"s_waitcnt vmcnt({4 if E('LATEP') else 4*(nb-1)}) lgkmcnt(0)")
        stamp(8); rstamp(14)
        a(qk(0, kb[0], usec)); a(qk(1, kb[0], usec))
        for i in range(8): a(f"v_mov_b32 v{SR+56+i}, 0")
        for i in range(4): a(f"v_mov_b32 v{SR+48+i}, 0\nv_mov_b32 v{kb[-1]+6+i}, 0")
        a(qr(0, kb[0]))
        if usec or not E("LATEP"): a("s_nop 15\ns_nop 3")
        else: kv_prologue(kb, 1); a("s_nop 9")
        l_loop = a.newlabel()
        a(".p2align 6")
        a.label(l_loop)
        n0 = len(a.lines)
        for par in range(nb):
            cur, nxt, prv = kb[par], kb[(par + 1) % nb], kb[par - 1]
            lds_ = [f"buffer_load_dwordx4 {R(prv+6)}, v{AV}, {W}, s11 offen offset:{V0_OFF}{KVL}",
                    f"buffer_load_dwordx4 {R(prv+10)}, v{AV}, {W}, s11 offen offset:{V1_OFF}{KVL}",
                    f"buffer_load_dwordx4 {R(cur)}, v{AK1}, {W}, s11 offen offset:{TILE + K1_OFF}{KVL}",
                    f"buffer_load_dwordx2 {R(cur+4,2)}, v{AKR}, {W}, s11 offen offset:{TILE + KR_OFF}{KVL}"]
            ex = [{"wait": [f"s_waitcnt vmcnt({4*(nb-2) + sum(1 for p_ in LP if p_ < MP[3])})"]}, {}]
            for p_, l_ in zip(LP, lds_): ex[p_ // 48].setdefault(p_ % 48, []).append(l_)
            pm = max(LP)
            ex[pm // 48].setdefault(pm % 48, []).append(f"s_add_u32 s11, s11, {TILE}")
            if par == nb - 1:
                ex[0][pm % 48].append("s_sub_u32 s13, s13, 1")
                if not usec:
                    ex[1].setdefault(MP[5] - 3, []).append("v_mov_b32_e64 v4, s13")
                    ex[1].setdefault(MP[5], []).extend([f"ds_write_b32 v{VS}, v4 offset:16", f"ds_read_b32 v5, v{VS} offset:8"])
                ex[1].setdefault(MP[5], []).append("s_cmp_lg_u32 s13, 0")
            phase(0, cur, cur, prv, ex[0], usec)
            tail = phase(1, nxt, cur, cur, ex[1], usec)
        if not E("NOALIGN"):
            par_ = 0; last4 = None
            for i in range(n0, len(a.lines)):
                t = a.lines[i]
                small = t.startswith(("v_exp_f32 ", "v_mov_b32 ", "s_waitcnt", "s_sub_u32", "s_cmp_"))
                if small:
                    par_ ^= 1
                    if t.startswith("v_"): last4 = i
                elif par_ and last4 is not None and all(a.lines[j].startswith(("v_exp_f32 ", "v_mov_b32 ", "s_waitcnt", "s_sub_u32", "s_cmp_")) for j in range(last4, i)):
                    a.lines[last4] = a.lines[last4].replace(" ", "_e64 ", 1); par_ = 0
        a(f"s_cbranch_scc1 {l_loop}")
        if DEFER: a(pv(3, 0, kb[-1]))
        for x in tail: a(x)
        a(pv(3, 1, kb[-1]))
    main_loop(KBH, False)
    l_w, l_ok = a.newlabel(), a.newlabel()
    a(f"s_mov_b32 s96, {SPIN}")
    a.label(l_w)
    a(f"""
    s_waitcnt lgkmcnt(0)
    v_readfirstlane_b32 s8, v5
    s_and_b32 s9, s8, 0xff
    s_cmp_eq_u32 s9, 4
    s_cbranch_scc1 {l_ok}
    s_sleep 2
    ds_read_b32 v5, v{VS} offset:8
    s_sub_u32 s96, s96, 1
    s_cmp_lg_u32 s96, 0
    s_cbranch_scc1 {l_w}
    """)
    a.label(l_ok)
    a(f"s_bitcmp1_b32 s8, 8\ns_cbranch_scc1 {l_fb}")
    a.label(l_after)
    stamp(9); rstamp(15)
    for i in (1, 2, 3):
        for r in range(3): a(f"ds_write_b128 v{PV}, {R(O+16*i+4*r)} offset:{3072*(i-1) + 1024*r}")
    a("s_waitcnt lgkmcnt(0)")
    stamp(12)
    a("s_barrier")
    for r in range(3): a(f"ds_read_b128 {R(OWN+12+4*r)}, v{PV+1} offset:{1024*r}")
    a.label(l_R)
    a("s_waitcnt lgkmcnt(0)\nv_readfirstlane_b32 s71, v5")
    for r in (10, 8, 9, 0, 1, 2, 3, 4, 5, 6, 7): a(f"v_add_f32 v{OWN+r}, v{OWN+r}, v{OWN+12+r}")
    a(f"v_rcp_f32 v{OWN+10}, v{OWN+10}")
    for i in (8, 9, 0, 1, 2, 3, 4, 5, 6, 7): a(f"v_mul_f32 v{OWN+i}, v{OWN+i}, v{OWN+10}")
    PO = 88
    a(f"v_cvt_pk_bf16_f32 v{PO+4}, v{OWN+8}, v{OWN+9}\nv_cvt_pk_bf16_f32 v{PO+5}, v{OWN+8}, v{OWN+9}")
    for i in range(4): a(f"v_cvt_pk_bf16_f32 v{PO+i}, v{OWN+2*i}, v{OWN+2*i+1}")
    a(f"""
    v_permlane32_swap_b32 v{PO+4}, v{PO+5}
    s_waitcnt vmcnt(0)
    s_bitcmp1_b32 s71, 9
    s_cbranch_scc1 L_fast1
    buffer_store_dwordx4 {R(PO)}, v{PV+2}, {W}, s72 offen sc1
    s_mov_b32 exec_hi, 0
    buffer_store_dwordx2 {R(PO+4,2)}, v{PV+3}, {W}, s73 offen sc1
    s_branch L_fast2
    L_fast1:
    buffer_store_dwordx4 {R(PO)}, v{PV+2}, {W}, s72 offen{E('FSFX', ' nt')}
    s_mov_b32 exec_hi, 0
    buffer_store_dwordx2 {R(PO+4,2)}, v{PV+3}, {W}, s73 offen{E('FSFX', ' nt')}
    L_fast2:
    s_mov_b32 exec_hi, -1
    """)
    tstamp(1)
    srd(S_C, P_OUT, 2 * ACT)
    a(f"""
    s_lshl_b32 s12, s3, 1
    s_lshr_b32 s8, s77, 1
    s_add_u32 s12, s12, s8
    s_lshl_b32 s12, s12, 1
    s_add_u32 s12, s12, s76
    s_lshl_b32 s12, s12, 6
    s_add_u32 s12, s12, {WS_F4}
    v_lshl_add_u32 v4, v2, 2, s12
    s_lshl_b32 s8, s3, 8
    s_lshl_b32 s9, s4, 4
    s_add_u32 s8, s8, s9
    s_add_u32 s8, s8, {WS_F4}
    v_and_b32 v5, 3, v1
    v_lshl_add_u32 v5, v5, 2, s8
    v_bfe_u32 v6, v1, 2, 1
    v_lshl_add_u32 v5, v6, 7, v5
    s_mov_b32 s8, 0xffff0000
    s_mov_b32 s9, 0
    v_cndmask_b32 v4, v4, v5, s[8:9]
    v_lshlrev_b32 v5, 8, v3
    v_lshl_add_u32 v5, v2, 3, v5
    s_lshl_b32 s13, s3, 2
    s_add_u32 s13, s13, s77
    s_mul_i32 s13, s13, {OPB}
    s_add_u32 s13, s13, {WS_O}
    s_lshl_b32 s8, s76, 11
    s_add_u32 s15, s13, s8
    s_add_u32 s15, s15, 16384
    s_lshl_b32 s8, s76, 13
    s_add_u32 s13, s13, s8
    s_add_u32 s10, s13, 4096
    v_mov_b32 v6, s{TAG}
    v_mov_b32 v7, 0
    """)
    l = a.newlabel()
    br_wave("lt", 4, l)
    for ks in range(2): o_reads(ks)
    a.label(l)
    tstamp(2)
    a(f"""
    s_waitcnt vmcnt(0)
    s_mov_b64 exec, 1
    s_bitcmp1_b32 s71, 9
    s_cbranch_scc1 L_fast3
    buffer_store_dword v6, v7, {W}, s74 offen sc1
    s_branch L_fast4
    L_fast3:
    buffer_store_dword v6, v7, {W}, s74 offen
    L_fast4:
    s_mov_b64 exec, -1
    """)
    tstamp(3)
    if E("XBAR"): a("s_barrier")
    l, l2 = a.newlabel(), a.newlabel()
    br_wave("lt", 4, l)
    for ks in range(2, 6): o_reads(ks)
    a(f"s_branch {l2}")
    a.label(l)
    if not E("NOAEPI") and not E("NOSVC"):
        l3 = a.newlabel()
        a(f"s_cmp_eq_u32 s70, 1\ns_cbranch_scc1 {l3}")
        z_fetch(False)
        a.label(l3)
    a.label(l2)
    a(f"s_lshl_b32 s14, s64, 1\ns_add_u32 s14, s14, s65\ns_add_u32 s14, s14, 1280")
    tstamp(4)
    poll(lambda: a(f"buffer_load_dword v6, v4, {W}, 0 offen sc1"), [6], 1)
    tstamp(5)
    nld = []
    for ks in range(10):
        pr_, m = ks // 5, ks % 5
        if m < 4:
            a(f"buffer_load_dwordx4 {R(XF+4*ks)}, v{AK1}, {W}, s{10 if pr_ else 13} offen offset:{1024*m} sc1"); nld.append(1)
        else:
            for z in range(2): a(f"buffer_load_dwordx2 {R(XF+4*ks+2*z,2)}, v5, {W}, s15 offen offset:{1024*pr_ + 128*z} sc1")
            nld.append(2)
    l = a.newlabel()
    br_wave("lt", 4, l)
    for ks in range(6, 8): o_reads(ks)
    fin_addr2(1)
    a.label(l)
    tstamp(6)
    for ks in range(10):
        a(f"s_waitcnt vmcnt({sum(nld[ks+1:])})" + {0: " lgkmcnt(15)", 6: " lgkmcnt(15)", 8: " lgkmcnt(10)", 9: " lgkmcnt(0)"}.get(ks, ""))
        b = AF + 20 * (ks % 8)
        for nb in range(5):
            d = R(AC + 4 * nb)
            a(f"v_mfma_f32_16x16x32_bf16 {d}, {R(b+4*nb)}, {R(XF+4*ks)}, {'0' if ks == 0 else d}")
        if ks < 2: o_reads(8 + ks)
    tstamp(7)
    for nb in range(5): a(f"ds_write_b128 v54, {R(AC+4*nb)} offset:{64*nb}")
    a("s_waitcnt lgkmcnt(0)\ns_barrier")
    def fin_rd(i):
        b = 96 + 16 * i
        a(f"ds_read_b128 {R(b)}, v{FRD[i]}\nds_read_b128 {R(b+4)}, v{FRD[i]} offset:16")
        a(f"ds_read_b128 {R(b+8)}, v{FRD[i]} offset:{OKH}\nds_read_b128 {R(b+12)}, v{FRD[i]} offset:{OKH+16}")
    def fin_st(i):
        b = 96 + 16 * i
        for r in range(8): a(f"v_add_f32 v{b+r}, v{b+r}, v{b+8+r}")
        for r in range(4): a(f"v_cvt_pk_bf16_f32 v{b+8+r}, v{b+2*r}, v{b+2*r+1}")
        a(f"buffer_store_dwordx4 {R(b+8)}, v{FST[i]}, {SR_(S_C)}, s14 offen{OSFX}")
    l = a.newlabel()
    fin_rd(0)
    br_wave("ge", 2, l)
    fin_rd(1); a("s_waitcnt lgkmcnt(0)"); fin_st(1)
    a.label(l)
    a("s_waitcnt lgkmcnt(0)"); fin_st(0)
    a.label("L_fin")
    if STAMP:
        a(f"""
        s_memtime s[98:99]
        s_waitcnt lgkmcnt(0)
        s_mov_b32 s96, s98
        s_memrealtime s[98:99]
        s_waitcnt lgkmcnt(0)
        s_mov_b32 s97, s98
        s_add_u32 s72, s{P_WS}, {WS_STAMP}
        s_addc_u32 s73, s{P_WS+1}, 0
        s_mov_b32 s74, 0x40000
        s_mov_b32 s75, 0x20000
        s_lshl_b32 s76, s2, 3
        s_add_u32 s76, s76, s5
        s_lshl_b32 s76, s76, 7
        v_mov_b32 v2, 0
        """)
        for i in range(18): a(f"v_mov_b32 v3, s{80+i}\nbuffer_store_dword v3, v2, s[72:75], s76 offen offset:{4*i}")
    a.label("L_exit")
    a("s_endpgm")
    a.label(l_fb)
    FB = [28, 240]
    FB = [28, 114]
    a("s_waitcnt vmcnt(0)\ns_nop 15\ns_nop 3")
    raise_fb = True
    TB, M = 28, 36
    for j in range(4): a(f"v_mov_b32 v{M+j}, 0xff800000")
    a(f"s_mov_b32 s11, {WS_KV}\ns_mov_b32 s14, 64\ns_mov_b32 s13, 16")
    l_f = a.newlabel()
    a.label(l_f)
    loadK(TB, 0)
    a("s_waitcnt vmcnt(0)")
    for t in range(4): a(qk(t, TB, False))
    a(qr(0, TB)); a(qr(1, TB))
    for t in range(4):
        for i in range(8): a(f"v_max3_f32 v{M+t}, v{M+t}, v{SR+16*t+2*i}, v{SR+16*t+2*i+1}")
    a(f"s_add_u32 s11, s11, {TILE}\ns_sub_u32 s14, s14, 1\ns_cmp_lg_u32 s14, 0\ns_cbranch_scc1 {l_f}")
    for t in range(4):
        a(f"v_mov_b32 v{M+4}, v{M+t}\nv_permlane32_swap_b32 v{M+t}, v{M+4}\nv_max_f32 v{M+4}, v{M+4}, v{M+t}")
        for i in range(16): a(f"v_sub_f32 v{C+16*t+i}, 0, v{M+4}")
    a(f"v_mov_b32 v6, v{VT}\nv_mov_b32 v7, v{VT+1}")
    for i in range(4): a(f"v_mov_b32 v{52+i}, 0")
    for t in range(4): a(f"v_mfma_f32_32x32x16_bf16 {R(O+16*t,16)}, {R(52)}, {R(52)}, 0")
    kv_prologue([28, 42])
    main_loop([28, 42], True)
    a(f"s_waitcnt vmcnt(0)\nv_mov_b32 v{VT}, v6\nv_mov_b32 v{VT+1}, v7"); fin_addr(); a(f"s_nop 7\ns_nop 7\ns_branch {l_after}")
    return a.finalize(verbose=bool(E("VERB")))

def build():
    hdr = open(f"cdna_kernels/{NAME}.s.ref").read().split("; @launch")[0]
    k = NAME + "_kernel"
    body = build_kernel()
    return hdr + f"""; @launch grid=(256,1,1) block=(512,1,1) lds=163840
.amdgcn_target "amdgcn-amd-amdhsa--gfx950"
.text
.globl {k}
.p2align 8
.type {k},@function
{k}:
{body}.section .rodata,"a"
.p2align 6
.amdhsa_kernel {k}
  .amdhsa_next_free_vgpr 256
  .amdhsa_next_free_sgpr 100
  .amdhsa_accum_offset 256
  .amdhsa_group_segment_fixed_size 0
  .amdhsa_kernarg_size 112
  .amdhsa_user_sgpr_count 2
  .amdhsa_user_sgpr_kernarg_segment_ptr 1
  .amdhsa_system_sgpr_workgroup_id_x 1
.end_amdhsa_kernel
"""

if __name__ == "__main__":
    path = sys.argv[1] if len(sys.argv) > 1 else "fused9.s"
    open(path, "w").write(build())
    print("wrote", path)
```

```python
import sys, math, struct, os
sys.path.insert(0, "gen")
from asmlib import Asm

NAME = "concat_heads__ssm_conv_h3__grouped_kv_mqa__prompt"
S, D, H, DH = 2048, 640, 32, 20
ACT = S * D * 2
WS_E, WS_F1, WS_F2, WS_F3, WS_F4 = 0, 1024, 4096, 12288, 16384
WS_KV = 32768
TILE = 2816
KR_OFF, K1_OFF, V0_OFF, V1_OFF = 0, 256, 1280, 2048
WS_O = 0x40000
OPB = 20480
WS_Z = WS_O + ACT
WS_XT = WS_Z + ACT
WS_END = WS_XT + 2 * ACT
WS_STAMP = 0x2000000
QSCALE = (DH ** -0.5) * math.log2(math.e)
E = os.environ.get
STAMP = E("STAMP", "0") == "1"
TAILST = E("TAILST")
SPIN = 1 << 17
OSFX = " " + E("OSFX", "nt")
KVSC = " sc1"
KVL = " sc1" if E("KVSC1") else ""

def f2u(x): return struct.unpack("<I", struct.pack("<f", x))[0]
P_AQ, P_AK, P_AV, P_SH, P_SK, P_SD, P_X, P_WQ, P_WK, P_WV, P_WO, P_OUT, P_DBG, P_WS = [16 + 2 * i for i in range(14)]
S_WS, S_A, S_B, S_C, S_D = 44, 48, 52, 56, 60
TAG = 78
def R(b, n=4): return f"v[{b}:{b+n-1}]"
def SR_(b): return f"s[{b}:{b+3}]"
W = SR_(S_WS)

L_W = 81920; GSLOT = 20480
L_WKV = 163840 - 25600
L_Q = 102400; QSTR = 176
L_STAT = L_Q + 64 * QSTR
L_RED = 113920
L_CONV = 113920; CVS = 15360
L_OUT = 102400
L_SK, L_SV, L_KT = 0, 16384, 27648
WO_LOW = 45

a = Asm()
def srd(r, ptr, nbytes, off=0):
    if off:
        a(f"s_add_u32 s{r}, s{ptr}, {off}\ns_addc_u32 s{r+1}, s{ptr+1}, 0")
    else:
        a(f"s_mov_b32 s{r}, s{ptr}\ns_mov_b32 s{r+1}, s{ptr+1}")
    a(f"s_mov_b32 s{r+2}, {nbytes}\ns_mov_b32 s{r+3}, 0x20000")
def _st(i, op="s_memtime"): a(f"{op} s[98:99]\ns_waitcnt lgkmcnt(0)\ns_mov_b32 s{80+i}, s98")
def stamp(i):
    if STAMP and not (TAILST and 1 <= i <= 7): _st(i)
def tstamp(i):
    if STAMP and TAILST: _st(i)
def rstamp(i):
    if STAMP: _st(i, "s_memrealtime")
def br_wave(op, n, lab): a(f"s_cmp_{op}_u32 s5, {n}\ns_cbranch_scc1 {lab}")
def poll(load_fn, tagregs, sleep=2, cnt="vmcnt", val=None, op="ne", skipfirst=False, fail=None):
    val = val or f"s{TAG}"
    l, d = a.newlabel(), a.newlabel()
    a(f"s_mov_b32 s96, {SPIN}")
    if skipfirst:
        l0 = a.newlabel(); a(f"s_branch {l0}")
    a.label(l)
    load_fn()
    if skipfirst: a.label(l0)
    a(f"s_waitcnt {cnt}(0)")
    for i, t in enumerate(tagregs):
        if i == 0: a(f"v_cmp_{op}_u32 s[8:9], {val}, v{t}")
        else: a(f"v_cmp_ne_u32 vcc, {val}, v{t}\ns_or_b64 s[8:9], s[8:9], vcc")
    if fail:
        a(f"s_cmp_eq_u64 s[8:9], 0\ns_cbranch_scc0 {fail}"); return
    a(f"""
    s_cmp_eq_u64 s[8:9], 0
    s_cbranch_scc1 {d}
    s_sleep {sleep}
    s_sub_u32 s96, s96, 1
    s_cmp_lg_u32 s96, 0
    s_cbranch_scc1 {l}
    """)
    a.label(d)
def flag_store(soff_sgpr, vt):
    a(f"v_mov_b32 v{vt}, s{TAG}\nv_mov_b32 v{vt+1}, 0")
    a(f"s_mov_b64 exec, 1")
    a(f"buffer_store_dword v{vt}, v{vt+1}, {W}, s{soff_sgpr} offen sc1")
    a(f"s_mov_b64 exec, -1")
def wpat(dst, qbase, x4):
    a(f"""
    v_add_u32 v4, {qbase}, v1
    v_mul_u32_u24 v5, 6554, v4
    v_lshrrev_b32 v5, 16, v5
    v_mul_u32_u24 v6, 10, v5
    v_sub_u32 v6, v4, v6
    """)
    if x4: a("v_lshrrev_b32 v7, 1, v5\nv_and_b32 v7, 4, v7\nv_xor_b32 v5, v5, v7")
    a(f"v_mul_u32_u24 v5, 1280, v5\nv_lshl_add_u32 v{dst}, v6, 4, v5")

def build_kernel():
    if STAMP: a("s_memtime s[80:81]\ns_memrealtime s[92:93]")
    a(f"""
    s_cmp_ge_u32 s2, 256
    s_cbranch_scc1 L_exit
    s_load_dwordx16 s[16:31], s[0:1], 0
    s_load_dwordx8 s[32:39], s[0:1], 64
    s_load_dwordx4 s[40:43], s[0:1], 96
    v_lshrrev_b32 v1, 6, v0
    s_and_b32 s7, s2, 7
    s_lshl_b32 s3, s7, 2
    s_lshr_b32 s4, s2, 3
    v_readfirstlane_b32 s5, v1
    s_and_b32 s6, s4, 3
    s_add_u32 s3, s3, s6          ; s3 = pb64
    s_lshr_b32 s4, s4, 2          ; s4 = hg
    v_and_b32 v1, 63, v0          ; lane
    v_and_b32 v2, 15, v1          ; p
    v_lshrrev_b32 v3, 4, v1       ; kg
    s_mul_i32 s64, s3, {64*1280}
    s_mul_i32 s65, s4, 160
    s_add_u32 s66, s6, s7
    s_mul_i32 s8, s66, 52
    s_lshr_b32 s8, s8, 8
    s_mul_i32 s8, s8, 5
    s_sub_u32 s66, s66, s8
    s_and_b32 s67, s4, 3          ; pbk
    """)
    VD, VXR, VTR, VQW, VEX = 28, 34, 36, 38, 46
    VKR, VK4, VK5 = 40, 42, 43
    ACC, GF = 64, 96
    QM, QR = 8, 24
    O, SR, C = 64, 128, 192
    KBH = [192, 206, 220, 234]
    AK1, AKR, AV = 62, 63, 61
    PV, QA, VS, VT, AE = 56, 176, 44, 52, 48
    B0, B1, PA, PB = 16, 20, 64, 68
    KT_W, KT_R, KT_G, KT_S, VW2 = 240, 241, 242, 243, 244
    VA, V_B, V_ZW, V_ZS, V_HD, V_F2 = 228, 232, 233, 234, 235, 236
    VWO = 224
    WRAW = [216, 220]
    L_EX = 32768
    PW = int(E('PW', '3'))
    def gwrap(sreg, step):
        a(f"s_add_u32 s{sreg}, s{sreg}, {step}\ns_cmp_ge_u32 s{sreg}, {5*step}\ns_cselect_b32 s{sreg}, 0, s{sreg}")
    def shift2(r, d): a(f"v_add_u32 v{r}, {d & 0xffffffff}, v{r}\nv_add_u32 v{r+1}, {d & 0xffffffff}, v{r+1}")
    def loadK(buf, off):
        a(f"buffer_load_dwordx4 {R(buf)}, v{AK1}, {W}, s11 offen offset:{off + K1_OFF}{KVSC}")
        a(f"buffer_load_dwordx2 {R(buf+4,2)}, v{AKR}, {W}, s11 offen offset:{off + KR_OFF}{KVSC}")
    def loadV(buf, off):
        a(f"buffer_load_dwordx4 {R(buf+6)}, v{AV}, {W}, s11 offen offset:{off + V0_OFF}{KVSC}")
        a(f"buffer_load_dwordx4 {R(buf+10)}, v{AV}, {W}, s11 offen offset:{off + V1_OFF}{KVSC}")
    def kv_prologue(kb, part=None):
        nb = len(kb)
        if part != 1:
            a("s_mov_b32 s11, s79")
            loadK(kb[0], 0)
        for j in range(nb - 1):
            if (part == 0 and j > 0) or (part == 1 and j == 0): continue
            loadV(kb[j], 0); loadK(kb[j + 1], TILE); a(f"s_add_u32 s11, s11, {TILE}")
    def tail_addr(hi):
        T = 192
        a(f"""
        s_and_b32 s76, s5, 1
        s_lshr_b32 s77, s5, 1
        v_lshlrev_b32 v{AK1}, 4, v1
        v_bfe_u32 v{T}, v1, 4, 1
        v_mul_u32_u24 v{T}, {OPB}, v{T}
        v_lshl_add_u32 v{PV+3}, v2, 3, v{T}
        v_lshl_add_u32 v{T}, v2, 4, v{T}
        v_lshrrev_b32 v{T+1}, 5, v1
        v_lshl_add_u32 v{PV+2}, v{T+1}, 8, v{T}
        s_lshl_b32 s8, s3, 2
        s_lshl_b32 s9, s76, 1
        s_add_u32 s8, s8, s9
        s_mul_i32 s8, s8, {OPB}
        s_add_u32 s8, s8, {WS_O}
        s_lshl_b32 s9, s4, 2
        s_add_u32 s9, s9, s77
        s_lshl_b32 s72, s9, 9
        s_add_u32 s72, s72, s8
        s_lshl_b32 s73, s9, 7
        s_add_u32 s73, s73, s8
        s_add_u32 s73, s73, 16384
        s_lshl_b32 s74, s3, 1
        s_add_u32 s74, s74, s76
        s_lshl_b32 s74, s74, 5
        s_add_u32 s74, s74, s9
        s_lshl_b32 s74, s74, 2
        s_add_u32 s74, s74, {WS_F4}
        """)
        for j, i in enumerate((0, 1) if hi else (2, 3)):
            a(f"""
            s_xor_b32 s8, s5, {2*i}
            s_and_b32 s8, s8, 3
            s_mul_i32 s8, s8, 9216
            s_add_u32 s8, s8, {L_RED + 3072*max(i-1, 0)}
            v_add_u32 v{PV+j}, s8, v{AK1}
            """)
    def hi_addr():
        T = 192
        a(f"""
        v_and_b32 v{T}, 31, v1
        v_lshlrev_b32 v{AKR}, 3, v{T}
        v_lshrrev_b32 v{T+2}, 3, v{T}
        v_and_b32 v{T+3}, 3, v{T}
        v_lshl_add_u32 v{T+2}, v{T+2}, 2, v{T+3}
        v_bfe_u32 v{T+3}, v{T}, 2, 1
        v_mad_u32_u24 v{T+3}, v{T+3}, 10, v{T+2}
        v_mad_u32_u24 v{T+3}, v{T+1}, 20, v{T+3}
        v_cmp_gt_u32 s[8:9], 10, v{T+2}
        v_cmp_lt_u32 vcc, 10, v{T+2}
        v_mov_b32 v{T+4}, 40
        v_cndmask_b32 v{T+3}, v{T+4}, v{T+3}, s[8:9]
        v_lshlrev_b32 v{AV}, 4, v{T+3}
        v_mov_b32 v{T+4}, 0x40000000
        v_cndmask_b32 v{AV}, v{AV}, v{T+4}, vcc
        s_and_b32 s8, s77, 1
        s_mul_i32 s79, s8, {32*TILE}
        s_add_u32 s79, s79, {WS_KV}
        s_mul_i32 s8, s76, {32*QSTR}
        s_add_u32 s8, s8, {L_Q}
        v_mul_u32_u24 v{T+2}, {QSTR}, v{T}
        v_add_u32 v{T+2}, s8, v{T+2}
        v_lshl_add_u32 v{T+3}, v{T+1}, 4, v{T+2}
        v_xor_b32 v{T+4}, s77, v{T+1}
        v_xor_b32 v{T+5}, 2, v{T+4}
        v_mad_u32_u24 v{QA+4}, v{T+4}, 40, v{T+2}
        v_mad_u32_u24 v{QA+5}, v{T+5}, 40, v{T+2}
        """)
        for i in range(4):
            a(f"s_xor_b32 s8, s77, {i}\ns_mul_i32 s8, s8, 40\nv_add_u32 v{QA+i}, s8, v{T+3}")
        for i in range(4): a(f"v_mov_b32 v{KBH[-1]+10+i}, 0")
    def lo_addr():
        T = 192
        a(f"""
        s_mul_i32 s68, s5, 4224
        s_add_u32 s68, s68, {L_KT}
        v_and_b32 v4, 7, v1
        v_mul_u32_u24 v{T}, 528, v4
        v_lshrrev_b32 v5, 3, v1
        v_sub_u32 v{T+1}, 7, v5
        v_bfe_u32 v{T+2}, v{T+1}, 1, 1
        v_lshl_add_u32 v{T}, v{T+2}, 7, v{T}
        v_lshrrev_b32 v{T+2}, 2, v{T+1}
        v_lshl_add_u32 v{T}, v{T+2}, 6, v{T}
        v_and_b32 v{T+2}, 1, v{T+1}
        v_lshl_add_u32 v{T}, v{T+2}, 5, v{T}
        v_add_u32 v{KT_W}, s68, v{T}
        v_lshrrev_b32 v{T+1}, 5, v1
        v_lshlrev_b32 v{T+2}, 4, v{T+1}
        v_add3_u32 v{KT_R}, v{AK1}, v{T+2}, s68
        v_lshlrev_b32 v{T+3}, 12, v5
        v_lshl_add_u32 v{KT_G}, v4, 4, v{T+3}
        v_mul_u32_u24 v{T+3}, 1280, v5
        v_lshl_add_u32 v{T+3}, v4, 2, v{T+3}
        s_lshl_b32 s8, s5, 5
        v_add_u32 v{KT_S}, s8, v{T+3}
        ; convolution
        s_mul_i32 s68, s5, {CVS}
        s_add_u32 s68, s68, {L_CONV}
        v_and_b32 v{T}, 31, v1
        v_lshlrev_b32 v{V_F2}, 2, v{T}
        v_lshlrev_b32 v{T+2}, 2, v2
        v_lshlrev_b32 v{T+3}, 4, v3
        v_sub_u32 v{T+3}, v{T+2}, v{T+3}
        v_add3_u32 v{VA}, v{T+3}, 48, s68
        v_add_u32 v{VA+1}, 1024, v{VA}
        v_add_u32 v{VA+2}, 2048, v{VA}
        v_add_u32 v{VA+3}, 3072, v{VA}
        v_lshrrev_b32 v{T+2}, 1, v2
        v_sub_u32 v{T+2}, 7, v{T+2}
        v_lshlrev_b32 v{T+2}, 6, v{T+2}
        v_and_b32 v{T+3}, 1, v2
        v_lshl_add_u32 v{T+2}, v{T+3}, 4, v{T+2}
        v_sub_u32 v{T+3}, 3, v3
        v_and_b32 v{T+4}, 1, v{T+3}
        v_lshl_add_u32 v{T+2}, v{T+4}, 5, v{T+2}
        v_lshrrev_b32 v{T+3}, 1, v{T+3}
        v_mul_u32_u24 v{T+3}, 5120, v{T+3}
        v_add3_u32 v{V_B}, v{T+2}, v{T+3}, s68
        v_lshrrev_b32 v{T+2}, 2, v2
        v_lshlrev_b32 v{T+2}, 7, v{T+2}
        v_lshl_add_u32 v{T+2}, v{T+1}, 9, v{T+2}
        v_and_b32 v{T+3}, 1, v3
        v_lshl_add_u32 v{T+2}, v{T+3}, 6, v{T+2}
        v_and_b32 v{T+3}, 3, v2
        v_lshl_add_u32 v{V_ZS}, v{T+3}, 4, v{T+2}
        v_mov_b32 v{V_ZW}, -1
        v_subrev_u32 v{V_HD}, 64, v{AK1}
        v_cmp_lt_u32 s[8:9], 19, v1
        v_cndmask_b32 v{T}, 0, 1, s[8:9]
        v_mul_u32_u24 v{T+1}, 20, v{T}
        v_sub_u32 v{T+1}, v1, v{T+1}
        s_lshl_b32 s8, s76, 5
        s_lshl_b32 s9, s77, 3
        s_add_u32 s8, s8, s9
        s_add_u32 s8, s8, 1
        v_sub_u32 v{T+2}, s8, v{T}
        v_mul_u32_u24 v{T+2}, 1280, v{T+2}
        v_add_u32 v{T+2}, s64, v{T+2}
        v_lshl_add_u32 v{T+3}, v{T+1}, 3, s65
        v_lshl_add_u32 v{AE+1}, v{T+2}, 1, v{T+3}
        v_add_u32 v{AE}, v{T+2}, v{T+3}
        v_lshlrev_b32 v{AE+2}, 1, v{T+3}
        v_lshlrev_b32 v{T+3}, 11, v{T+3}
        v_lshl_add_u32 v{AE+3}, v{T}, 4, v{T+3}
        """)
    def stage(ptr, halo, base):
        if E("NOSTG"): return
        srd(S_D, ptr, ACT)
        a(f"s_add_u32 s8, s64, s65\ns_sub_u32 s8, s8, {halo*1280}")
        for i in range(11):
            if i < 5:
                a(f"v_add_u32 v4, s8, v{VW2 + i}\ns_mov_b32 m0, {base + 1024*i}\nbuffer_load_dwordx4 v4, {SR_(S_D)}, 0 offen lds")
            else:
                if i % 5 == 0: a(f"s_add_u32 s8, s8, {32*1280}")
                a(f"s_mov_b32 m0, {base + 1024*i}\nbuffer_load_dwordx4 v{VW2 + i % 5}, {SR_(S_D)}, s8 offen lds")
    def sync_init():
        a(f"""
        v_mov_b32 v4, 0
        v_mov_b32 v5, 0
        v_mov_b32 v6, 0
        v_mov_b32 v7, 8
        ds_write_b64 v{VS}, v[4:5]
        ds_write_b32 v{VS}, v4 offset:8
        ds_write_b32 v{VS}, v7 offset:16
        """)
    def only(w, fn):
        l = a.newlabel(); br_wave("lg", w, l); fn(); a.label(l)
    def publish_kv():
        l_v2, l_stat = a.newlabel(), a.newlabel()
        a(f"v_mov_b32 v8, 0\ns_cmp_ge_u32 s4, 4\ns_cbranch_scc1 {l_v2}")
        for i in range(4): a(f"v_dot2c_f32_bf16 v8, v{PA+i}, v{PA+i}")
        a(f"""
        v_mov_b32 v9, v8
        v_permlane32_swap_b32 v8, v9
        v_add_f32 v8, v8, v9
        v_dot2c_f32_bf16 v8, v{PB}, v{PB}
        v_dot2c_f32_bf16 v8, v{PB+1}, v{PB+1}
        s_nop 2
        s_branch {l_stat}
        """)
        a.label(l_v2)
        for b in range(B0, B0 + 8, 2): a(f"v_max3_f32 v8, v8, |v{b}|, |v{b+1}|")
        a("""
        v_mov_b32 v9, v8
        v_permlane16_swap_b32 v8, v9
        v_max_f32 v8, v8, v9
        v_mov_b32 v9, v8
        v_permlane32_swap_b32 v8, v9
        v_max_f32 v8, v8, v9
        s_nop 1
        """)
        a.label(l_stat)
        for sh in (1, 2, 4, 8):
            a(f"v_max_f32_dpp v8, v8, v8 row_shr:{sh} row_mask:0xf bank_mask:0xf")
        a("v_readlane_b32 s69, v8, 15")
        a(f"""
        s_lshl_b32 s8, s3, 3
        s_add_u32 s8, s8, s4
        s_lshl_b32 s8, s8, 3
        s_getreg_b32 s9, hwreg(HW_REG_XCC_ID, 0, 4)
        s_andn2_b32 s69, s69, 15
        s_or_b32 s69, s69, s9
        v_mov_b32 v4, s69
        v_mov_b32 v5, s{TAG}
        v_mov_b32 v6, 0
        s_waitcnt vmcnt(0)
        s_mov_b64 exec, 1
        buffer_store_dwordx2 v[4:5], v6, {W}, s8 offen offset:{WS_F1} sc1
        s_mov_b64 exec, -1
        """)

    def gemm_addr(cg):
        a(f"""
        v_mov_b32 v{VS}, {L_STAT}
        s_and_b32 s6, s77, 1
        v_lshrrev_b32 v4, 1, v2
        v_xor_b32 v4, v4, v3
        v_lshlrev_b32 v5, 7, v2
        v_lshl_add_u32 v39, v4, 4, v5
        s_lshl_b32 s7, s76, 1
        s_add_u32 s7, s7, s6
        s_lshl_b32 s8, s7, 11
        s_lshl_b32 s9, s6, 6
        v_xor_b32 v4, s9, v39
        v_add_u32 v{VXR}, s8, v4
        v_xor_b32 v{VXR+1}, 0x800, v{VXR}
        v_bfe_u32 v4, v1, 2, 2
        v_lshl_add_u32 v4, v3, 3, v4
        v_and_b32 v5, 1, v3
        v_lshl_add_u32 v6, v5, 2, v4
        v_xor_b32 v7, 4, v6
        v_and_b32 v5, 3, v1
        v_lshlrev_b32 v5, 3, v5
        s_movk_i32 s9, 160
        v_mad_u32_u24 v6, v6, s9, v5
        v_mad_u32_u24 v7, v7, s9, v5
        s_mul_i32 s8, s6, 5120
        s_add_u32 s8, s8, {L_W + 96*cg}
        v_add_u32 v{VTR}, s8, v6
        v_add_u32 v{VTR+1}, s8, v7
        s_mul_i32 s8, s76, 51200
        v_add_u32 v{VT}, s8, v6
        v_add_u32 v{VT+1}, s8, v7
        s_mul_i32 s8, s7, {16*QSTR}
        s_add_u32 s8, s8, {L_Q + 96*cg}
        v_mul_u32_u24 v4, {QSTR}, v2
        v_lshl_add_u32 v4, v3, 3, v4
        v_add_u32 v{VQW}, s8, v4
        s_mul_i32 s8, s5, 3072
        s_add_u32 s8, s8, {L_EX}
        v_add_u32 v{VEX}, s8, v{AK1}
        s_xor_b32 s8, s5, 2
        s_mul_i32 s8, s8, 3072
        s_add_u32 s8, s8, {L_EX}
        v_add_u32 v{VEX+1}, s8, v{AK1}
        """)
    def got_args():
        a(f"s_waitcnt lgkmcnt(0)\ns_load_dword s{TAG}, s[{P_WS}:{P_WS+1}], {WS_E}")
        if STAMP: a("s_mov_b32 s93, s92")
    def got_tag():
        a(f"s_waitcnt lgkmcnt(0)\ns_mul_i32 s{TAG}, s{TAG}, 0x9E3779B1\ns_add_u32 s{TAG}, s{TAG}, 0x7F4A7C15")
    def x_issue(g):
        a(f"s_add_u32 s8, s10, s12\ns_add_u32 s9, s8, {8*1280}")
        for hs in range(2):
            for par in range(2):
                a(f"s_add_u32 m0, s11, {(2*g+hs)*8192 + 1024*par - 128*hs}")
                a(f"buffer_load_dwordx4 v{VD+par}, {SR_(S_A)}, s{8+par} offen offset:{128*hs} lds")
        if g < 4: gwrap(12, 256)
    def wkv_issue(g):
        a(f"s_mov_b32 m0, {L_WKV + 5120*g}")
        for i in range(4):
            a(f"buffer_load_dwordx4 v{AK1}, {SR_(S_C)}, s13 offen offset:{1024*i} lds")
        a(f"s_mov_b32 m0, {L_WKV + 5120*g + 4096}\ns_add_u32 s8, s13, 4096")
        a(f"buffer_load_dwordx4 v{AK1}, {SR_(S_C)}, s8 offen lds")
        if g < 4: gwrap(13, 5120)
    def w_issue(g):
        a(f"s_add_u32 s8, s10, s12")
        for n in range(5):
            a(f"s_add_u32 m0, s11, {(g % 4)*GSLOT + 1024*n}")
            a(f"buffer_load_dwordx4 v{VD+n}, {SR_(S_B)}, s8 offen lds")
        if g < 4: gwrap(12, 128 * 1280)
    def q_stage(nblk, gs, xb, wb, mid=None):
        steps = [(g, hs) for g in gs for hs in range(2)]
        per = 2 + 2 * nblk
        for n, (g, hs) in enumerate(steps):
            b = GF + 20 * n
            for pl in range(2): a(f"ds_read_b128 {R(b+4*pl)}, v{VXR+pl} offset:{(2*g + hs)*8192 - xb}")
            for nb in range(nblk):
                off = (g % 4) * GSLOT + hs * 10240 + nb * 32 - wb
                for z in range(2): a(f"ds_read_b64_tr_b16 {R(b+8+4*nb+2*z,2)}, v{VTR+z} offset:{off}")
        if mid: mid()
        for n in range(len(steps)):
            a(f"s_waitcnt lgkmcnt({min(15, per * (len(steps) - 1 - n))})")
            b = GF + 20 * n
            for nb in range(nblk):
                for pl in range(2):
                    d = R(ACC + 12 * pl + 4 * nb)
                    a(f"v_mfma_f32_16x16x32_bf16 {d}, {R(b+8+4*nb)}, {R(b+4*pl)}, {'0' if (gs[0] == 0 and n == 0) else d}")
    def ld1():
        a(f"buffer_load_dwordx4 v[8:11], v45, {W}, 0 offen offset:{WS_F1} sc1")
        a(f"buffer_load_dwordx4 v[12:15], v45, {W}, 0 offen offset:{WS_F1+16} sc1")
    def q_path(cg):
        nblk = 3 if cg == 0 else 2
        stamp(2)
        a("s_barrier")
        stamp(3)
        q_stage(nblk, [0], 0, 0, (lambda: (only(7, lambda: w_issue(2)), w_issue(3))) if cg else None)
        a(f"s_waitcnt vmcnt({10 if cg else 0})")
        a("s_barrier")
        q_stage(nblk, [1], 0, 0, (lambda: w_issue(4)) if cg else None)
        shift2(VTR, 2 * GSLOT)
        if cg: a("s_waitcnt vmcnt(5)")
        a("s_barrier   ; b3")
        stamp(4)
        q_stage(nblk, [2, 3], 0, 2 * GSLOT, None if cg else (lambda: only(PW, ld1)))
        shift2(VTR, -2 * GSLOT); shift2(VXR, 65536)
        if cg: a("s_waitcnt vmcnt(0)")
        else: only(PW, lambda: poll(ld1, [9, 11, 13, 15], 1, skipfirst=True)); only(2, sync_init)
        a("s_barrier")
        stamp(5)
        if not cg and E("INV"): only(2, lambda: a("buffer_inv sc1"))
        q_stage(nblk, [4], 65536, 0, (lambda: kv_prologue(KBH, 0)) if cg else None)
        for nb in range(nblk): a(f"ds_write_b128 v{VEX}, {R(ACC+12+4*nb)} offset:{1024*nb}")
        if not cg and not E("NOSVC") and not E("LATEK"): only(3, lambda: (stage(P_AK, 4, L_SK), stage(P_AV, 1, L_SV) if E("EARLYV") else None))
        a(f"s_mov_b32 s8, 0xffff0000\ns_mov_b32 s9, {f2u(QSCALE)}")
        a("s_waitcnt lgkmcnt(0)\ns_barrier   ; bE")
        for nb in range(nblk): a(f"ds_read_b128 {R(ACC+12+4*nb)}, v{VEX+1} offset:{1024*nb}")
        if cg and not E("LATEP"): kv_prologue(KBH, 1)
        for nb in range(nblk):
            b = ACC + 4 * nb
            a(f"s_waitcnt lgkmcnt({min(nblk - 1, nblk - 1 - nb + nb)})" if nb == 0 else f"s_waitcnt lgkmcnt({nblk - 1})")
            for r in range(4): a(f"v_add_f32 v{b+r}, v{b+r}, v{b+12+r}")
            for r in range(4): a(f"v_mul_f32 v{b+r}, s9, v{b+r}")
            for p in range(2): a(f"v_cvt_pk_bf16_f32 v{88+2*nb+p}, v{b+2*p}, v{b+2*p+1}")
            a(f"ds_write_b64 v{VQW}, {R(88+2*nb,2)} offset:{32*nb}")
        if not cg and E("INV"): only(2, lambda: a("s_waitcnt vmcnt(0)"))
        a("s_waitcnt lgkmcnt(0)\ns_barrier   ; B_Q")
        stamp(7)
    OSTR = 336; OKH = 64 * OSTR
    FRD, FST = [94, 95], [60, 55]
    def fin_addr():
        a(f"""
        v_mul_u32_u24 v54, {OSTR}, v2
        v_lshl_add_u32 v54, v3, 4, v54
        s_mul_i32 s8, s77, {16*OSTR}
        s_mul_i32 s9, s76, {OKH}
        s_add_u32 s8, s8, s9
        s_add_u32 s8, s8, {L_OUT}
        v_add_u32 v54, s8, v54
        """)
    def fin_addr2(n):
        for i in range(n):
            a(f"""
            v_add_u32 v84, {512*i}, v0
            v_mul_u32_u24 v85, 6554, v84
            v_lshrrev_b32 v85, 16, v85
            v_mul_u32_u24 v86, 10, v85
            v_sub_u32 v86, v84, v86
            v_mul_u32_u24 v{FRD[i]}, {OSTR}, v85
            v_lshl_add_u32 v{FRD[i]}, v86, 5, v{FRD[i]}
            v_add_u32 v{FRD[i]}, {L_OUT}, v{FRD[i]}
            v_mul_u32_u24 v{FST[i]}, 2560, v85
            v_lshl_add_u32 v{FST[i]}, v86, 4, v{FST[i]}
            """)
    def lds_add(off, val):
        a(f"v_mov_b32 v4, {val}\ns_mov_b64 exec, 1\nds_add_u32 v{VS}, v4 offset:{off}\ns_mov_b64 exec, -1")
    def lds_wait(off, val, op, sleep):
        poll(lambda: a(f"ds_read_b32 v4, v{VS} offset:{off}"), [4], sleep, "lgkmcnt", str(val), op)
    l_cg1, l_R, l_x, l_lo1 = a.newlabel(), a.newlabel(), a.newlabel(), a.newlabel()
    br_wave("ge", 4, l_cg1)
    a(f"""
    v_lshrrev_b32 v4, 3, v1
    v_mul_u32_u24 v4, 1280, v4
    v_and_b32 v5, 7, v1
    v_xor_b32 v5, v5, v3
    v_lshl_add_u32 v{VD}, v5, 4, v4
    v_xor_b32 v{VD+1}, 64, v{VD}
    s_add_u32 s8, s67, s5
    s_and_b32 s8, s8, 3
    s_mul_i32 s10, s8, {16*1280}
    s_add_u32 s10, s10, s64
    s_lshl_b32 s11, s8, 11
    s_lshl_b32 s12, s66, 8
    s_mul_i32 s13, s66, 5120
    v_lshlrev_b32 v45, 5, v1
    """)
    tail_addr(False); gemm_addr(0); fin_addr()
    br_wave("lg", 0, l_x)
    a(f"""
    v_add_u32 v{VKR}, s11, v39
    v_xor_b32 v{VKR+1}, 64, v{VKR}
    v_bfe_u32 v4, v1, 2, 2
    v_lshl_add_u32 v4, v3, 3, v4
    v_mul_u32_u24 v4, 40, v4
    v_add_u32 v{VK4}, {L_WKV}, v4
    v_and_b32 v5, 3, v1
    v_lshl_add_u32 v{VK5}, v5, 3, v{VK4}
    """)
    for n in range(15): a(f"v_mov_b32 v{(VW2 + n) if n < 5 else (VWO + n - 5)}, -1")
    got_args()
    a(f"""
    s_cmp_ge_u32 s4, 4
    s_cselect_b32 s{S_C}, s{P_WV}, s{P_WK}
    s_cselect_b32 s{S_C+1}, s{P_WV+1}, s{P_WK+1}
    s_mov_b32 s{S_C+2}, 25600
    s_mov_b32 s{S_C+3}, 0x20000
    """)
    srd(S_A, P_X, ACT)
    KORD = E("KORD", "wx")
    if KORD == "wx":
        for g in range(5): wkv_issue(g)
        for g in range(5):
            x_issue(g)
            if str(g) == E("B0"): a("s_barrier")
        wv = [40 - 5 * g for g in range(5)]; xv = [16 - 4 * g for g in range(5)]
    else:
        for g in range(5): x_issue(g)
        for g in range(5): wkv_issue(g)
        wv = [20 - 5 * g for g in range(5)]; xv = [0] * 5
    if not E("B0"): a("s_barrier   ; b0")
    stamp(1)
    srd(S_WS, P_WS, WS_END)
    got_tag()
    WPF, XT_ = 96, 72
    for g in range(5):
        a(f"s_waitcnt vmcnt({wv[g]})")
        for s_ in range(4):
            ks = 4 * g + s_; b = WPF + 8 * ks
            a(f"ds_read_b64_tr_b16 {R(b,2)}, v{VK5} offset:{ks*1280}")
            a(f"ds_read_b64_tr_b16 {R(b+2,2)}, v{VK5} offset:{ks*1280+160}")
            a(f"ds_read_b64_tr_b16 {R(b+4,2)}, v{VK4} offset:{ks*1280+32}")
            a(f"ds_read_b64_tr_b16 {R(b+6,2)}, v{VK4} offset:{ks*1280+192}")
    a(f"""
    s_lshr_b32 s12, s67, 1
    s_lshl_b32 s14, s3, 1
    s_add_u32 s12, s12, s14
    s_mul_i32 s12, s12, {TILE}
    s_add_u32 s12, s12, {WS_KV}
    s_and_b32 s10, s67, 1
    """)
    def kvpart(isv):
        for g in range(5):
            if g == 4: shift2(VKR, 65536)
            a(f"s_waitcnt vmcnt({xv[g]})")
            for s_ in range(4): a(f"ds_read_b128 {R(XT_+4*s_)}, v{VKR+(s_&1)} offset:{((2*g + (s_>>1)) % 8) * 8192}")
            for s_ in range(4):
                a(f"s_waitcnt lgkmcnt({3-s_})")
                for blk in range(2):
                    d = R(B0 + 4 * blk); c = "0" if (g == 0 and s_ == 0) else d
                    w_, x_ = R(WPF + 8 * (4 * g + s_) + 4 * blk), R(XT_ + 4 * s_)
                    a(f"v_mfma_f32_16x16x32_bf16 {d}, {x_ if isv else w_}, {w_ if isv else x_}, {c}")
    def pack(b, dst, swap):
        a(f"""
        v_cvt_pk_bf16_f32 v{dst}, v{b}, v{b+1}
        v_cvt_pk_bf16_f32 v{dst+1}, v{b+2}, v{b+3}
        v_cvt_pk_bf16_f32 v{dst+2}, v{b}, v{b+1}
        v_cvt_pk_bf16_f32 v{dst+3}, v{b+2}, v{b+3}
        {swap} v{dst}, v{dst+2}
        {swap} v{dst+1}, v{dst+3}
        """)
    l_v, l_pub = a.newlabel(), a.newlabel()
    a(f"s_cmp_ge_u32 s4, 4\ns_cbranch_scc1 {l_v}")
    a(f"""
    s_lshl_b32 s10, s10, 4
    v_add_u32 v5, s10, v2
    v_lshrrev_b32 v6, 1, v3
    v_lshl_add_u32 v6, v6, 5, v5
    v_lshlrev_b32 v6, 4, v6
    v_lshlrev_b32 v5, 3, v5
    """)
    kvpart(False)
    pack(B0, PA, "v_permlane16_swap_b32")
    a(f"""
    v_cvt_pk_bf16_f32 v{PB}, v{B1}, v{B1+1}
    v_cvt_pk_bf16_f32 v{PB+1}, v{B1+2}, v{B1+3}
    s_mov_b32 exec_lo, 0xffff
    s_mov_b32 exec_hi, 0xffff
    buffer_store_dwordx4 {R(PA)}, v6, {W}, s12 offen offset:{K1_OFF} sc1
    s_mov_b64 exec, 0xffff
    buffer_store_dwordx2 {R(PB,2)}, v5, {W}, s12 offen offset:{KR_OFF} sc1
    s_mov_b64 exec, -1
    s_branch {l_pub}
    """)
    a.label(l_v)
    a(f"""
    s_mul_i32 s10, s10, {V1_OFF - V0_OFF}
    s_add_u32 s12, s12, s10
    v_and_b32 v5, 1, v3
    v_mul_u32_u24 v5, 20, v5
    v_add_u32 v6, v5, v2
    v_lshlrev_b32 v6, 4, v6
    v_cmp_lt_u32 s[14:15], 3, v2
    v_mov_b32 v10, 0x3f803f80
    """)
    kvpart(True)
    pack(B0, PA, "v_permlane32_swap_b32")
    pack(B1, PB, "v_permlane32_swap_b32")
    a(f"s_mov_b32 exec_hi, 0")
    a(f"buffer_store_dwordx4 {R(PA)}, v6, {W}, s12 offen offset:{V0_OFF} sc1")
    for i in range(4): a(f"v_cndmask_b32 v{12+i}, v{PB+i}, v10, s[14:15]")
    a(f"""
    s_mov_b32 exec_lo, 0x00ff000f
    buffer_store_dwordx4 v[12:15], v6, {W}, s12 offen offset:{V0_OFF + 256} sc1
    s_mov_b64 exec, -1
    """)
    a.label(l_pub)
    stamp(6)
    publish_kv()
    lo_addr()
    a(f"s_branch {l_lo1}")
    a("; ======== waves 1..3 ========")
    a.label(l_x)
    lo_addr()
    for n in range(5): wpat(VW2 + n, 64 * n, False)
    def wo_pat():
        for n in range(5):
            a(f"""
            v_add_u32 v4, {64*n}, v1
            v_mul_u32_u24 v5, 6554, v4
            v_lshrrev_b32 v5, 16, v5
            v_mul_u32_u24 v6, 10, v5
            v_sub_u32 v6, v4, v6
            v_lshlrev_b32 v6, 4, v6
            v_lshrrev_b32 v7, 1, v5
            v_and_b32 v7, 4, v7
            v_xor_b32 v5, v5, v7
            v_lshrrev_b32 v7, 3, v5
            v_lshl_add_u32 v4, v7, 1, v5
            v_mul_u32_u24 v4, 1280, v4
            v_add_u32 v{VWO+n}, v4, v6
            v_lshrrev_b32 v7, 1, v5
            v_lshl_add_u32 v4, v7, 3, v5
            v_add_u32 v4, 8, v4
            v_mul_u32_u24 v4, 1280, v4
            v_add_u32 v{VWO+5+n}, v4, v6
            """)
    for n in range(4): a(f"v_mov_b32 v{VWO+n}, -1")
    only(3, wo_pat)
    got_args()
    srd(S_A, P_X, ACT); srd(S_WS, P_WS, WS_END); srd(S_C, P_WK, 25600)
    l = a.newlabel()
    a(f"""
    v_lshlrev_b32 v4, 7, v1
    s_sub_u32 s8, s5, 1
    s_lshl_b32 s8, s8, 13
    s_cmp_ge_u32 s2, 8
    s_cbranch_scc1 {l}
    buffer_load_dword v5, v4, {W}, s8 offen sc1
    """)
    a.label(l)
    got_tag()
    a(f"s_setprio {E('PX', '0')}\ns_barrier   ; b0")
    for g in range(5): x_issue(g)
    a("s_setprio 0")
    stamp(1)
    a("s_waitcnt vmcnt(16)")
    a.label(l_lo1)
    q_path(0)
    l_svcend = a.newlabel()
    if E("NOSVC"):
        lds_add(8, 1); a(f"s_branch {l_svcend}")
    only(3, lambda: (stage(P_AK, 4, L_SK) if E("LATEK") else None, a(f"s_waitcnt vmcnt({E('STG', '6')})"), None if E("EARLYV") else stage(P_AV, 1, L_SV)))
    srd(S_D, P_SH, D * 8); srd(S_B, P_WO, D * D * 2)
    a(f"""
    s_setprio {E('PKVT', '2')}
    v_and_b32 v4, 7, v1
    v_lshlrev_b32 v4, 4, v4
    s_lshl_b32 s8, s5, 7
    s_lshl_b32 s9, s65, 2
    s_add_u32 s8, s8, s9
    buffer_load_dwordx4 {R(WRAW[0])}, v4, {SR_(S_D)}, s8 offen
    buffer_load_dwordx4 {R(WRAW[1])}, v4, {SR_(S_D)}, s9 offen offset:512
    s_mov_b32 s12, 0xffff0000
    """)
    def decide():
        a(f"v_mul_u32_u24 v4, {QSTR}, v1\nv_add_u32 v4, {L_Q}, v4")
        for i in range(10): a(f"ds_read_b128 {R(128+4*i)}, v4 offset:{16*i}")
        a(f"""
        s_getreg_b32 s9, hwreg(HW_REG_XCC_ID, 0, 4)
        v_xor_b32 v5, s9, v8
        v_xor_b32 v6, s9, v10
        v_or_b32 v5, v5, v6
        v_xor_b32 v6, s9, v12
        v_xor_b32 v7, s9, v14
        v_or3_b32 v5, v5, v6, v7
        v_and_b32 v5, 15, v5
        v_cmp_ne_u32 vcc, 0, v5
        s_lshl_b32 s8, s3, 1
        s_lshr_b64 s[10:11], vcc, s8
        v_max_f32 v8, v8, v10
        v_max3_f32 v8, v8, v12, v14
        s_mov_b32 s8, 0x55555555
        s_mov_b32 s9, 0x55555555
        v_cndmask_b32 v10, 0, v8, s[8:9]
        v_cndmask_b32 v11, v8, 0, s[8:9]
        """)
        for m in ("row_shr:1 row_mask:0xf", "row_shr:2 row_mask:0xf", "row_shr:4 row_mask:0xf", "row_shr:8 row_mask:0xf",
                  "row_bcast:15 row_mask:0xa", "row_bcast:31 row_mask:0xc"):
            a(f"v_max_f32_dpp v10, v10, v10 {m} bank_mask:0xf\nv_max_f32_dpp v11, v11, v11 {m} bank_mask:0xf")
        for j in range(4): a(f"v_mov_b32 v{12+j}, 0")
        a("v_readlane_b32 s14, v10, 63\nv_readlane_b32 s15, v11, 63\ns_waitcnt lgkmcnt(0)")
        for r in range(10):
            for j in range(4): a(f"v_dot2c_f32_bf16 v{12+j}, v{128+10*j+r}, v{128+10*j+r}")
        a(f"""
        v_max3_f32 v12, v12, v13, v14
        v_max_f32 v12, v12, v15
        v_mul_f32 v12, s14, v12
        v_cmp_nge_f32 vcc, {f2u(64.0*64.0)}, v12
        s_mov_b32 s8, 1
        s_cmp_lg_u64 vcc, 0
        s_cselect_b32 s8, 0x101, s8
        s_cmp_lt_u32 s15, {f2u(2.0**-28)}
        s_cselect_b32 s8, 0x101, s8
        s_cmp_gt_u32 s15, {f2u(2.0**50)}
        s_cselect_b32 s8, 0x101, s8
        s_and_b32 s10, s10, 3
        s_cselect_b32 s9, 0, {0 if E("NOFAST") else 0x200}
        s_or_b32 s8, s8, s9
        """)
        lds_add(8, "s8")
    only(PW, decide)
    l = a.newlabel()
    a(f"s_or_b32 s8, s2, s5\ns_cmp_lg_u32 s8, 0\ns_cbranch_scc1 {l}\ns_mov_b32 s8, {WS_E}")
    flag_store(8, 6)
    a.label(l)
    a("s_waitcnt vmcnt(0)")
    only(3, lambda: lds_add(0, 1))
    lds_wait(0, 1, "ne", 2)
    stamp(10)
    KRW, KU, VU, WU, KV, PK = 192, 128, 152, 170, 64, 84
    def kvt_compute(ps, pass_sgpr):
        if E("NOKVT"): return
        kr = KRW; vr = kr + 12; wr = WRAW[ps]
        for r in range(12): a(f"ds_read_b32 v{kr+r}, v{KT_S} offset:{L_SK + 160*r + 32*ps}")
        for r in range(9): a(f"ds_read_b32 v{vr+r}, v{KT_S} offset:{L_SV + 160*r + 32*ps}")
        for j in range(4):
            for c in range(2):
                src = wr + 2 * c + j // 2
                a(f"v_lshlrev_b32 v{WU+2*j+c}, 16, v{src}" if j % 2 == 0 else f"v_and_b32 v{WU+2*j+c}, s12, v{src}")
        a("s_waitcnt lgkmcnt(9)")
        for r in range(12): a(f"v_lshlrev_b32 v{KU+2*r}, 16, v{kr+r}\nv_and_b32 v{KU+2*r+1}, s12, v{kr+r}")
        for i in range(18): a(f"v_mul_f32 v{KV+i}, v{KU+i}, v{WU+6+(i&1)}")
        for j in (2, 1, 0):
            for i in range(18): a(f"v_fmac_f32 v{KV+i}, v{KU+i+2*(3-j)}, v{WU+2*j+(i&1)}")
        a("s_waitcnt lgkmcnt(0)")
        for r in range(9): a(f"v_lshlrev_b32 v{VU+2*r}, 16, v{vr+r}\nv_and_b32 v{VU+2*r+1}, s12, v{vr+r}")
        for i in range(18): a(f"v_mul_f32 v{KV+i}, v{KV+i}, v{VU+i}")
        for c in range(2):
            for cp in range(2):
                for d in range(4):
                    lo = 7 - cp - 2 * d; hi = lo - 1
                    a(f"v_cvt_pk_bf16_f32 v{PK+8*c+4*cp+d}, v{KV+2*(lo+1)+c}, v{KV+2*(hi+1)+c}")
                a(f"ds_write_b128 v{KT_W}, {R(PK+8*c+4*cp)} offset:{256*c + 16*cp}")
        for k in range(4): a(f"ds_read_b128 {R(PK+16+4*k)}, v{KT_R} offset:{1056*k}")
        a(f"""
        s_mul_i32 s8, s4, 80
        s_lshl_b32 s9, s{pass_sgpr}, 4
        s_add_u32 s8, s8, s9
        s_lshl_b32 s8, s8, 13
        s_sub_u32 s9, 31, s3
        s_lshl_b32 s9, s9, 7
        s_add_u32 s8, s8, s9
        s_add_u32 s8, s8, {WS_XT}
        """)
        for k in range(4):
            a(f"s_waitcnt lgkmcnt({3-k})")
            a(f"buffer_store_dwordx4 {R(PK+16+4*k)}, v{KT_G}, {W}, s8 offen sc1")
            if k < 3: a(f"s_add_u32 s8, s8, {4*8192}")
    def f2_flag(pass_sgpr):
        a(f"""
        s_mul_i32 s8, s4, 5
        s_add_u32 s8, s8, s{pass_sgpr}
        s_lshl_b32 s8, s8, 5
        s_add_u32 s8, s8, s3
        s_lshl_b32 s8, s8, 2
        s_add_u32 s8, s8, {WS_F2}
        """)
        flag_store(8, 6)
    kvt_compute(0, 5)
    l_conv, l_aepi, l_cdone = a.newlabel(), a.newlabel(), a.newlabel()
    br_wave("lg", 3, l_conv)
    a("s_mov_b32 s10, 4")
    kvt_compute(1, 10)
    a("s_waitcnt vmcnt(0)")
    f2_flag(10); f2_flag(5)
    a("s_setprio 0")
    stamp(8)
    def wo_loop(p0):
        a(f"s_add_u32 s8, s65, {p0*160*1280}\ns_mov_b32 s9, {p0*25600}")
        l = a.newlabel()
        a.label(l)
        for m in range(5):
            a(f"s_add_u32 s10, s8, {(40*1280*m) if m < 4 else 0}")
            for n in range(5):
                a(f"s_add_u32 m0, s9, {5120*m + 1024*n}")
                a(f"buffer_load_dwordx4 v{VWO + n + (5 if m == 4 else 0)}, {SR_(S_B)}, s10 offen lds")
            a(f"s_waitcnt vmcnt({E('WOV', '5')})")
        a(f"""
        s_add_u32 s8, s8, {160*1280}
        s_add_u32 s9, s9, 25600
        s_cmp_lt_u32 s9, {(p0+2)*25600}
        s_cbranch_scc1 {l}
        """)
    if not E("NOWO"):
        wo_loop(2)
        lds_wait(4, 3, "ne", 8)
        wo_loop(0)
    a("s_waitcnt vmcnt(0)")
    lds_add(0, 1)
    a(f"s_branch {l_aepi}")
    a.label(l_conv)
    lds_add(4, 1)
    a(f"""
    s_lshl_b32 s12, s5, 8
    s_add_u32 s12, s12, s2              ; channel
    s_min_u32 s13, s12, 639
    s_lshl_b32 s8, s13, 12
    s_add_u32 s{S_A}, s{P_SK}, s8
    s_addc_u32 s{S_A+1}, s{P_SK+1}, 0
    s_mov_b32 s{S_A+2}, 4096
    s_lshl_b32 s8, s13, 13
    s_add_u32 s8, s8, {WS_XT}
    s_add_u32 s{S_B}, s{P_WS}, s8
    s_addc_u32 s{S_B+1}, s{P_WS+1}, 0
    s_mov_b32 s{S_B+2}, 4096
    s_add_u32 s{S_C}, s{S_B}, 4096
    s_addc_u32 s{S_C+1}, s{S_B+1}, 0
    s_mov_b32 s{S_C+2}, 4096
    s_load_dword s14, s[{S_A}:{S_A+1}], 0
    s_lshr_b32 s8, s13, 1
    s_lshl_b32 s8, s8, 2
    s_load_dword s15, s[{P_SD}:{P_SD+1}], s8
    s_mul_i32 s8, s13, 52429
    s_lshr_b32 s8, s8, 22
    s_mul_i32 s9, s8, 80
    s_sub_u32 s9, s13, s9
    s_lshr_b32 s9, s9, 4
    s_mul_i32 s8, s8, 5
    s_add_u32 s8, s8, s9
    s_lshl_b32 s13, s8, 7
    s_add_u32 s13, s13, {WS_F2}
    s_waitcnt vmcnt(0)
    """)
    f2_flag(5)
    a(f"s_waitcnt lgkmcnt(0)\ns_cmp_ge_u32 s12, 640\ns_cbranch_scc1 {l_cdone}")
    if E("NOCONV"): a(f"s_branch {l_cdone}")
    a(f"s_mov_b32 m0, s68\nbuffer_load_dwordx4 v{V_HD}, {SR_(S_A)}, 0 offen lds")
    a(f"s_add_u32 m0, s68, 1024\ns_movk_i32 s8, 960")
    for i in range(4): a(f"buffer_load_dwordx4 v{AK1}, {SR_(S_A)}, s8 offen offset:{1024*i} lds")
    a(f"""
    s_bitcmp1_b32 s12, 0
    s_cselect_b32 s8, 0, 16
    s_lshl_b32 s15, s15, s8
    s_and_b32 s15, s15, 0xffff0000
    s_lshl_b32 s8, s14, 16
    v_mov_b32 v5, s8
    v_add_f32 v5, s15, v5
    v_cvt_pk_bf16_f32 v5, v5, v5
    v_mov_b32 v6, s68
    s_waitcnt vmcnt(0)
    ds_write_b16 v6, v5 offset:64
    """)
    lds_wait(16, int(E("PF2", "7")), "lt", 8)
    poll(lambda: a(f"buffer_load_dword v4, v{V_F2}, {W}, s13 offen sc1"), [4], int(E("F2S", "16")))
    stamp(8)
    a("s_movk_i32 s8, 4096")
    for cl_ in range(2):
        a(f"s_add_u32 m0, s68, {5120 + 5120*cl_}")
        for i in range(4): a(f"buffer_load_dwordx4 v{AK1}, {SR_(S_C if cl_ else S_B)}, 0 offen offset:{1024*i} sc1 lds")
        a(f"s_add_u32 m0, s68, {5120 + 5120*cl_ + 4096}")
        a(f"buffer_load_dwordx4 v{AK1}, {SR_(S_C if cl_ else S_B)}, s8 offen sc1 lds")
    a(f"s_waitcnt vmcnt(0)\ns_setprio {E('PCONV', '0')}")
    CB = [96, 160]
    def c_reads(j):
        b = CB[j & 1]; r = []
        for u in range(8):
            o = (4 + 512 * (u & 1) + 64 * j) // 4
            r.append(f"ds_read_b128 {R(b+32+4*u)}, v{V_B} offset:{5120 + (56 - 8*u + j)*64}")
            r.append(f"ds_read2_b32 {R(b+4*u,2)}, v{VA+u//2} offset0:{o} offset1:{o+1}")
            r.append(f"ds_read2_b32 {R(b+4*u+2,2)}, v{VA+u//2} offset0:{o+2} offset1:{o+3}")
        return r
    THR = dict(zip(range(2, 8), [int(x) for x in E("THR", "3,3,3,3,2,2").split(",")]))
    for x in c_reads(0): a(x)
    for j in range(8):
        nxt = c_reads(j + 1) if j < 7 else []
        if j + 1 in THR: nxt.append(f"ds_read_b32 v4, v{VS} offset:16")
        a("s_waitcnt lgkmcnt(0)")
        if j in THR:
            l = a.newlabel()
            a(f"v_readfirstlane_b32 s8, v4\ns_cmp_gt_u32 s8, {THR[j]}\ns_cbranch_scc1 {l}\ns_setprio 2")
            a.label(l)
        b = CB[j & 1]; n = 0
        for u in range(8):
            for nb in range(u, 8):
                d = R(O + 4 * nb)
                a(f"v_mfma_f32_16x16x32_bf16 {d}, {R(b+4*u)}, {R(b+32+4*(nb-u))}, {'0' if (j == 0 and u == 0) else d}")
                n += 1
                if n % 4 == 0:
                    for x in nxt[:3]: a(x)
                    nxt = nxt[3:]
        assert not nxt
    a(f"s_setprio 2\ns_lshl_b32 s8, s12, 12\ns_add_u32 s8, s8, {WS_Z}")
    for pr_ in range(4):
        zb = 96 + 4 * pr_
        for k in range(4): a(f"v_cvt_pk_bf16_f32 v{zb+k}, v{O+8*pr_+2*k}, v{O+8*pr_+2*k+1}")
        a(f"v_permlane32_swap_b32 v{zb}, v{zb+2}\nv_permlane32_swap_b32 v{zb+1}, v{zb+3}")
        a(f"buffer_store_dwordx4 {R(zb)}, v{V_ZS}, {W}, s8 offen offset:{1024*pr_} sc1")
    a(f"s_lshl_b32 s8, s12, 2\ns_add_u32 s8, s8, {WS_F3}\ns_waitcnt vmcnt(0)")
    flag_store(8, 6)
    a.label(l_cdone)
    lds_add(8, 1)
    a.label(l_aepi)
    stamp(9)
    a("s_setprio 2")
    XF, AF, AC = 8, 96, 64
    def o_reads(ks):
        b = AF + 20 * (ks % 8)
        for nb in range(5):
            for z in range(2): a(f"ds_read_b64_tr_b16 {R(b+4*nb+2*z,2)}, v{VT+z} offset:{ks*5120 + nb*32}")
    QRW, ZR, U = 8, 24, 64
    X40 = "s_mov_b32 exec_lo, -1\ns_mov_b32 exec_hi, 0xff"
    srd(S_A, P_AQ, ACT)
    a(X40)
    for e in range(8):
        a(f"s_movk_i32 s8, {(16*(e>>2) + 2*(e&3))*1280}")
        a(f"buffer_load_dwordx2 {R(QRW+2*e,2)}, v{AE}, {SR_(S_A)}, s8 offen")
    a(f"""
    s_mov_b64 exec, -1
    buffer_load_dwordx4 {R(64)}, v{PV+2}, {W}, s72 offen sc1
    buffer_load_dwordx4 {R(64)}, v{PV+2}, {W}, s72 offen offset:1024 sc1
    buffer_load_dwordx2 {R(64,2)}, v{PV+3}, {W}, s73 offen sc1
    buffer_load_dwordx2 {R(64,2)}, v{PV+3}, {W}, s73 offen offset:256 sc1
    v_mov_b32 v4, 0
    buffer_load_dword v64, v4, {W}, s74 offen sc1
    """)
    lds_wait(0, 2, "ne", 16)
    for ks in range(8): o_reads(ks)
    srd(S_C, P_OUT, 2 * ACT)
    def unp(dst, src, hi): a(f"v_and_b32 v{dst}, s14, v{src}" if hi else f"v_lshlrev_b32 v{dst}, 16, v{src}")
    def z_fetch(once):
        a(f"""
        s_lshl_b32 s11, s3, 7
        s_lshl_b32 s8, s5, 5
        s_add_u32 s11, s11, s8
        s_add_u32 s11, s11, {WS_Z}
        s_mov_b32 s14, {WS_F3}
        {X40}
        """)
        l = a.newlabel()
        poll(lambda: a(f"buffer_load_dwordx4 {R(40)}, v{AE+2}, {W}, s14 offen sc1"), [40, 41, 42, 43], 4, fail=l if once else None)
        stamp(11)
        for i in range(4):
            a(f"buffer_load_dwordx4 {R(ZR+4*i)}, v{AE+3}, {W}, s11 offen sc1")
            if i < 3: a("s_add_u32 s11, s11, 4096")
        a("s_mov_b32 s70, 1\ns_mov_b32 s14, 0xffff0000\ns_waitcnt vmcnt(0)")
        for e in range(8):
            for i in range(4):
                unp(U + i, QRW + 2 * e + i // 2, i % 2); unp(U + 4 + i, ZR + 4 * i + e // 2, e % 2)
            for i in range(4): a(f"v_mul_f32 v{U+i}, v{U+i}, v{U+4+i}")
            for i in (0, 2): a(f"v_cvt_pk_bf16_f32 v{QRW+2*e+i//2}, v{U+i}, v{U+i+1}")
            a(f"s_mov_b32 s8, {(16*(e>>2) + 2*(e&3))*2560}")
            a(f"buffer_store_dwordx2 {R(QRW+2*e,2)}, v{AE+1}, {SR_(S_C)}, s8 offen{OSFX}")
        a.label(l)
        a("s_mov_b64 exec, -1")
    if not E("NOAEPI"):
        a("s_mov_b32 s70, 0")
        lds_wait(16, 1, "lt", 8)
        a(f"s_setprio {E('PAE', '2')}")
        l_try, l_giveup = a.newlabel(), a.newlabel()
        a.label(l_try)
        a(f"s_sleep {E('ZS', '16')}")
        z_fetch(True)
        a(f"""
        s_cmp_eq_u32 s70, 1
        s_cbranch_scc1 {l_giveup}
        ds_read_b32 v4, v{VS} offset:16
        s_waitcnt lgkmcnt(0)
        v_readfirstlane_b32 s8, v4
        s_cmp_lg_u32 s8, 0
        s_cbranch_scc1 {l_try}
        """)
        a.label(l_giveup)
    a.label(l_svcend)
    fin_addr2(2)
    a("s_waitcnt vmcnt(0) lgkmcnt(0)")
    stamp(12)
    a("s_barrier   ; R")
    a(f"ds_read_b32 v5, v{VS} offset:8")
    OWN = O
    for j in range(2):
        for r in range(3): a(f"ds_read_b128 {R(OWN+12*j+4*r)}, v{PV+j} offset:{1024*r}")
    a(f"s_branch {l_R}")
    a.label(l_cg1)
    for n in range(5): wpat(VD + n, 64 * n, True)
    a(f"""
    s_sub_u32 s8, s5, 4
    s_mul_i32 s11, s8, 5120
    s_add_u32 s11, s11, {L_W}
    s_mul_i32 s10, s8, {32*1280}
    s_add_u32 s10, s10, s65
    s_mul_i32 s12, s66, {128*1280}
    """)
    tail_addr(True); hi_addr(); gemm_addr(1); fin_addr(); a('v_mov_b32 v55, -1\nv_mov_b32 v60, -1'); a(f"v_mov_b32 v{AE+1}, -1\nv_mov_b32 v{AE+2}, -1\nv_mov_b32 v{AE+3}, -1")
    got_args()
    if E("TLB"):
        M2 = 1 << 21
        pages = [(P_WQ, 0), (P_X, 0), (P_X, M2), (P_AK, 0), (P_AK, M2), (P_AV, 0), (P_AV, M2), (P_SH, 0),
                 (P_WS, M2), (P_WS, 2*M2), (P_WS, 3*M2), (P_WS, 4*M2), (P_WS, 5*M2), (P_SK, 0), (P_SK, M2), (P_SD, 0),
                 (P_WO, 0), (P_AQ, 0), (P_AQ, M2), (P_OUT, 0), (P_OUT, M2), (P_OUT, 2*M2)]
        for w in range(4):
            def t(w=w):
                for p_, o_ in pages[w::4]: a(f"s_mov_b32 s8, {o_}\ns_load_dword s13, s[{p_}:{p_+1}], s8")
            only(4 + w, t)
    srd(S_B, P_WQ, D * D * 2); srd(S_WS, P_WS, WS_END)
    if not E("TLB"): got_tag()
    a(f"s_setprio {E('PHI', '0')}\ns_barrier   ; b0")
    w_issue(0)
    stamp(1)
    a(f"s_waitcnt vmcnt({E('W1', '5')})"); w_issue(1); a("s_waitcnt vmcnt(5)")
    l = a.newlabel(); br_wave("eq", 7, l); w_issue(2); a.label(l)
    if E("TLB"): got_tag()
    q_path(1)
    for i in range(4): a(f"ds_read2_b64 {R(QM+4*i)}, v{QA+i} offset0:0 offset1:1")
    a(f"ds_read_b64 {R(QR,2)}, v{QA+4} offset:32\nds_read_b64 {R(QR+2,2)}, v{QA+5} offset:32")
    a(f"s_setprio 1\ns_movk_i32 s13, 8")
    for t in range(4): a(f"v_mfma_f32_32x32x16_bf16 {R(O+16*t,16)}, {R(KBH[-1]+10)}, {R(KBH[-1]+10)}, 0")
    l_fb, l_after = a.newlabel(), a.newlabel()
    def qk(t, kb, usec):
        return f"v_mfma_f32_32x32x16_bf16 {R(SR+16*t,16)}, {R(kb)}, {R(QM+4*t)}, {R(C+16*t,16) if usec else '0'}"
    def qr(p, kb):
        d = R(SR + 32 * p, 32)
        if E("QR8"): return "\n".join(f"v_mfma_f32_32x32x8_bf16 {R(SR+32*p+16*i,16)}, {R(kb+4,2)}, {R(QR+2*p,2)}, {R(SR+32*p+16*i,16)}" for i in range(2))
        if E("NOQR"): return "s_nop 0\ns_nop 0"
        return f"v_mfma_f32_32x32x4_2b_bf16 {d}, {R(kb+4,2)}, {R(QR+2*p,2)}, {d}"
    def pv(t, hf, vb):
        d = R(O + 16 * t, 16)
        if E("PVSWAP"): return f"v_mfma_f32_32x32x16_bf16 {d}, {R(SR+16*t+8*hf)}, {R(vb+6+4*hf)}, {d}"
        return f"v_mfma_f32_32x32x16_bf16 {d}, {R(vb+6+4*hf)}, {R(SR+16*t+8*hf)}, {d}"
    MP = [int(x) for x in E("MP", "16,8,12,20,26,36,4").split(",")]
    DEFER = MP[6] < 40
    LP = [MP[5]] * 4
    def phase(p, kq_, vcur, vprev, extra, usec):
        ta, tb = 2 * p, 2 * p + 1
        na, nb_ = 2 * (1 - p), 2 * (1 - p) + 1
        base, pbase = SR + 32 * p, SR + 32 * (1 - p)
        def cv(b, j):
            bb = b + 8 * (j // 4); k = j % 4
            return f"v_cvt_pk_bf16_f32 v{bb+k}, v{bb+2*k}, v{bb+2*k+1}"
        valu = []
        PAT = E("PAT", "eeeecc")
        for grp in range(8):
            ei = 0; cj = [2 * grp - 2, 2 * grp - 1]
            for ch in PAT:
                if ch == "e": valu.append(f"v_exp_f32 v{base+4*grp+ei}, v{base+4*grp+ei}"); ei += 1
                else:
                    j = cj.pop(0); valu.append(cv(base, j) if j >= 0 else cv(pbase, 16 + j))
        ins = dict(zip(MP, [[qk(na, kq_, usec)], [pv(nb_, 1, vprev)], [qk(nb_, kq_, usec)], [pv(ta, 0, vcur)],
               [qr(1 - p, kq_)], [pv(ta, 1, vcur)], [pv(nb_, 0, vprev) if DEFER else pv(tb, 0, vcur)]]))
        for k, v in extra.items():
            if k == "wait": ins[MP[3]] = v + ins[MP[3]]
            else: ins[k] = ins.get(k, []) + v
        for i, x in enumerate(valu):
            for y in ins.get(i, []): a(y)
            a(x)
        return [cv(base, 14), cv(base, 15)]
    def main_loop(kb, usec):
        nb = len(kb)
        a(f"s_waitcnt vmcnt({4 if E('LATEP') else 4*(nb-1)}) lgkmcnt(0)")
        stamp(8); rstamp(14)
        a(qk(0, kb[0], usec)); a(qk(1, kb[0], usec))
        for i in range(8): a(f"v_mov_b32 v{SR+56+i}, 0")
        for i in range(4): a(f"v_mov_b32 v{SR+48+i}, 0\nv_mov_b32 v{kb[-1]+6+i}, 0")
        a(qr(0, kb[0]))
        if usec or not E("LATEP"): a("s_nop 15\ns_nop 3")
        else: kv_prologue(kb, 1); a("s_nop 9")
        l_loop = a.newlabel()
        a(".p2align 6")
        a.label(l_loop)
        n0 = len(a.lines)
        for par in range(nb):
            cur, nxt, prv = kb[par], kb[(par + 1) % nb], kb[par - 1]
            lds_ = [f"buffer_load_dwordx4 {R(prv+6)}, v{AV}, {W}, s11 offen offset:{V0_OFF}{KVL}",
                    f"buffer_load_dwordx4 {R(prv+10)}, v{AV}, {W}, s11 offen offset:{V1_OFF}{KVL}",
                    f"buffer_load_dwordx4 {R(cur)}, v{AK1}, {W}, s11 offen offset:{TILE + K1_OFF}{KVL}",
                    f"buffer_load_dwordx2 {R(cur+4,2)}, v{AKR}, {W}, s11 offen offset:{TILE + KR_OFF}{KVL}"]
            ex = [{"wait": [f"s_waitcnt vmcnt({4*(nb-2) + sum(1 for p_ in LP if p_ < MP[3])})"]}, {}]
            for p_, l_ in zip(LP, lds_): ex[p_ // 48].setdefault(p_ % 48, []).append(l_)
            pm = max(LP)
            ex[pm // 48].setdefault(pm % 48, []).append(f"s_add_u32 s11, s11, {TILE}")
            if par == nb - 1:
                ex[0][pm % 48].append("s_sub_u32 s13, s13, 1")
                if not usec:
                    ex[1].setdefault(MP[5] - 3, []).append("v_mov_b32_e64 v4, s13")
                    ex[1].setdefault(MP[5], []).extend([f"ds_write_b32 v{VS}, v4 offset:16", f"ds_read_b32 v5, v{VS} offset:8"])
                ex[1].setdefault(MP[5], []).append("s_cmp_lg_u32 s13, 0")
            phase(0, cur, cur, prv, ex[0], usec)
            tail = phase(1, nxt, cur, cur, ex[1], usec)
        if not E("NOALIGN"):
            par_ = 0; last4 = None
            for i in range(n0, len(a.lines)):
                t = a.lines[i]
                small = t.startswith(("v_exp_f32 ", "v_mov_b32 ", "s_waitcnt", "s_sub_u32", "s_cmp_"))
                if small:
                    par_ ^= 1
                    if t.startswith("v_"): last4 = i
                elif par_ and last4 is not None and all(a.lines[j].startswith(("v_exp_f32 ", "v_mov_b32 ", "s_waitcnt", "s_sub_u32", "s_cmp_")) for j in range(last4, i)):
                    a.lines[last4] = a.lines[last4].replace(" ", "_e64 ", 1); par_ = 0
        a(f"s_cbranch_scc1 {l_loop}")
        if DEFER: a(pv(3, 0, kb[-1]))
        for x in tail: a(x)
        a(pv(3, 1, kb[-1]))
    main_loop(KBH, False)
    l_w, l_ok = a.newlabel(), a.newlabel()
    a(f"s_mov_b32 s96, {SPIN}")
    a.label(l_w)
    a(f"""
    s_waitcnt lgkmcnt(0)
    v_readfirstlane_b32 s8, v5
    s_and_b32 s9, s8, 0xff
    s_cmp_eq_u32 s9, 4
    s_cbranch_scc1 {l_ok}
    s_sleep 2
    ds_read_b32 v5, v{VS} offset:8
    s_sub_u32 s96, s96, 1
    s_cmp_lg_u32 s96, 0
    s_cbranch_scc1 {l_w}
    """)
    a.label(l_ok)
    a(f"s_bitcmp1_b32 s8, 8\ns_cbranch_scc1 {l_fb}")
    a.label(l_after)
    stamp(9); rstamp(15)
    for i in (1, 2, 3):
        for r in range(3): a(f"ds_write_b128 v{PV}, {R(O+16*i+4*r)} offset:{3072*(i-1) + 1024*r}")
    a("s_waitcnt lgkmcnt(0)")
    stamp(12)
    a("s_barrier   ; R")
    for r in range(3): a(f"ds_read_b128 {R(OWN+12+4*r)}, v{PV+1} offset:{1024*r}")
    a.label(l_R)
    a("s_waitcnt lgkmcnt(0)\nv_readfirstlane_b32 s71, v5")
    for r in (10, 8, 9, 0, 1, 2, 3, 4, 5, 6, 7): a(f"v_add_f32 v{OWN+r}, v{OWN+r}, v{OWN+12+r}")
    a(f"v_rcp_f32 v{OWN+10}, v{OWN+10}")
    for i in (8, 9, 0, 1, 2, 3, 4, 5, 6, 7): a(f"v_mul_f32 v{OWN+i}, v{OWN+i}, v{OWN+10}")
    PO = 88
    a(f"v_cvt_pk_bf16_f32 v{PO+4}, v{OWN+8}, v{OWN+9}\nv_cvt_pk_bf16_f32 v{PO+5}, v{OWN+8}, v{OWN+9}")
    for i in range(4): a(f"v_cvt_pk_bf16_f32 v{PO+i}, v{OWN+2*i}, v{OWN+2*i+1}")
    a(f"""
    v_permlane32_swap_b32 v{PO+4}, v{PO+5}
    s_waitcnt vmcnt(0)
    s_bitcmp1_b32 s71, 9
    s_cbranch_scc1 L_fast1
    buffer_store_dwordx4 {R(PO)}, v{PV+2}, {W}, s72 offen sc1
    s_mov_b32 exec_hi, 0
    buffer_store_dwordx2 {R(PO+4,2)}, v{PV+3}, {W}, s73 offen sc1
    s_branch L_fast2
    L_fast1:
    buffer_store_dwordx4 {R(PO)}, v{PV+2}, {W}, s72 offen{E('FSFX', ' nt')}
    s_mov_b32 exec_hi, 0
    buffer_store_dwordx2 {R(PO+4,2)}, v{PV+3}, {W}, s73 offen{E('FSFX', ' nt')}
    L_fast2:
    s_mov_b32 exec_hi, -1
    """)
    tstamp(1)
    srd(S_C, P_OUT, 2 * ACT)
    a(f"""
    s_lshl_b32 s12, s3, 1
    s_lshr_b32 s8, s77, 1
    s_add_u32 s12, s12, s8
    s_lshl_b32 s12, s12, 1
    s_add_u32 s12, s12, s76
    s_lshl_b32 s12, s12, 6
    s_add_u32 s12, s12, {WS_F4}
    v_lshl_add_u32 v4, v2, 2, s12
    s_lshl_b32 s8, s3, 8
    s_lshl_b32 s9, s4, 4
    s_add_u32 s8, s8, s9
    s_add_u32 s8, s8, {WS_F4}
    v_and_b32 v5, 3, v1
    v_lshl_add_u32 v5, v5, 2, s8
    v_bfe_u32 v6, v1, 2, 1
    v_lshl_add_u32 v5, v6, 7, v5
    s_mov_b32 s8, 0xffff0000
    s_mov_b32 s9, 0
    v_cndmask_b32 v4, v4, v5, s[8:9]
    v_lshlrev_b32 v5, 8, v3
    v_lshl_add_u32 v5, v2, 3, v5
    s_lshl_b32 s13, s3, 2
    s_add_u32 s13, s13, s77
    s_mul_i32 s13, s13, {OPB}
    s_add_u32 s13, s13, {WS_O}
    s_lshl_b32 s8, s76, 11
    s_add_u32 s15, s13, s8
    s_add_u32 s15, s15, 16384
    s_lshl_b32 s8, s76, 13
    s_add_u32 s13, s13, s8
    s_add_u32 s10, s13, 4096
    v_mov_b32 v6, s{TAG}
    v_mov_b32 v7, 0
    """)
    l = a.newlabel()
    br_wave("lt", 4, l)
    for ks in range(2): o_reads(ks)
    a.label(l)
    tstamp(2)
    a(f"""
    s_waitcnt vmcnt(0)
    s_mov_b64 exec, 1
    s_bitcmp1_b32 s71, 9
    s_cbranch_scc1 L_fast3
    buffer_store_dword v6, v7, {W}, s74 offen sc1
    s_branch L_fast4
    L_fast3:
    buffer_store_dword v6, v7, {W}, s74 offen
    L_fast4:
    s_mov_b64 exec, -1
    """)
    tstamp(3)
    if E("XBAR"): a("s_barrier")
    l, l2 = a.newlabel(), a.newlabel()
    br_wave("lt", 4, l)
    for ks in range(2, 6): o_reads(ks)
    a(f"s_branch {l2}")
    a.label(l)
    if not E("NOAEPI") and not E("NOSVC"):
        l3 = a.newlabel()
        a(f"s_cmp_eq_u32 s70, 1\ns_cbranch_scc1 {l3}")
        z_fetch(False)
        a.label(l3)
    a.label(l2)
    a(f"s_lshl_b32 s14, s64, 1\ns_add_u32 s14, s14, s65\ns_add_u32 s14, s14, 1280")
    tstamp(4)
    poll(lambda: a(f"buffer_load_dword v6, v4, {W}, 0 offen sc1"), [6], 1)
    tstamp(5)
    nld = []
    for ks in range(10):
        pr_, m = ks // 5, ks % 5
        if m < 4:
            a(f"buffer_load_dwordx4 {R(XF+4*ks)}, v{AK1}, {W}, s{10 if pr_ else 13} offen offset:{1024*m} sc1"); nld.append(1)
        else:
            for z in range(2): a(f"buffer_load_dwordx2 {R(XF+4*ks+2*z,2)}, v5, {W}, s15 offen offset:{1024*pr_ + 128*z} sc1")
            nld.append(2)
    l = a.newlabel()
    br_wave("lt", 4, l)
    for ks in range(6, 8): o_reads(ks)
    fin_addr2(1)
    a.label(l)
    tstamp(6)
    for ks in range(10):
        a(f"s_waitcnt vmcnt({sum(nld[ks+1:])})" + {0: " lgkmcnt(15)", 6: " lgkmcnt(15)", 8: " lgkmcnt(10)", 9: " lgkmcnt(0)"}.get(ks, ""))
        b = AF + 20 * (ks % 8)
        for nb in range(5):
            d = R(AC + 4 * nb)
            a(f"v_mfma_f32_16x16x32_bf16 {d}, {R(b+4*nb)}, {R(XF+4*ks)}, {'0' if ks == 0 else d}")
        if ks < 2: o_reads(8 + ks)
    tstamp(7)
    for nb in range(5): a(f"ds_write_b128 v54, {R(AC+4*nb)} offset:{64*nb}")
    a("s_waitcnt lgkmcnt(0)\ns_barrier")
    def fin_rd(i):
        b = 96 + 16 * i
        a(f"ds_read_b128 {R(b)}, v{FRD[i]}\nds_read_b128 {R(b+4)}, v{FRD[i]} offset:16")
        a(f"ds_read_b128 {R(b+8)}, v{FRD[i]} offset:{OKH}\nds_read_b128 {R(b+12)}, v{FRD[i]} offset:{OKH+16}")
    def fin_st(i):
        b = 96 + 16 * i
        for r in range(8): a(f"v_add_f32 v{b+r}, v{b+r}, v{b+8+r}")
        for r in range(4): a(f"v_cvt_pk_bf16_f32 v{b+8+r}, v{b+2*r}, v{b+2*r+1}")
        a(f"buffer_store_dwordx4 {R(b+8)}, v{FST[i]}, {SR_(S_C)}, s14 offen{OSFX}")
    l = a.newlabel()
    fin_rd(0)
    br_wave("ge", 2, l)
    fin_rd(1); a("s_waitcnt lgkmcnt(0)"); fin_st(1)
    a.label(l)
    a("s_waitcnt lgkmcnt(0)"); fin_st(0)
    a.label("L_fin")
    if STAMP:
        a(f"""
        s_memtime s[98:99]
        s_waitcnt lgkmcnt(0)
        s_mov_b32 s96, s98
        s_memrealtime s[98:99]
        s_waitcnt lgkmcnt(0)
        s_mov_b32 s97, s98
        s_add_u32 s72, s{P_WS}, {WS_STAMP}
        s_addc_u32 s73, s{P_WS+1}, 0
        s_mov_b32 s74, 0x40000
        s_mov_b32 s75, 0x20000
        s_lshl_b32 s76, s2, 3
        s_add_u32 s76, s76, s5
        s_lshl_b32 s76, s76, 7
        v_mov_b32 v2, 0
        """)
        for i in range(18): a(f"v_mov_b32 v3, s{80+i}\nbuffer_store_dword v3, v2, s[72:75], s76 offen offset:{4*i}")
    a.label("L_exit")
    a("s_endpgm")
    a.label(l_fb)
    FB = [28, 240]
    FB = [28, 114]
    a("s_waitcnt vmcnt(0)\ns_nop 15\ns_nop 3")
    raise_fb = True
    TB, M = 28, 36
    for j in range(4): a(f"v_mov_b32 v{M+j}, 0xff800000")
    a(f"s_mov_b32 s11, {WS_KV}\ns_mov_b32 s14, 64\ns_mov_b32 s13, 16")
    l_f = a.newlabel()
    a.label(l_f)
    loadK(TB, 0)
    a("s_waitcnt vmcnt(0)")
    for t in range(4): a(qk(t, TB, False))
    a(qr(0, TB)); a(qr(1, TB))
    for t in range(4):
        for i in range(8): a(f"v_max3_f32 v{M+t}, v{M+t}, v{SR+16*t+2*i}, v{SR+16*t+2*i+1}")
    a(f"s_add_u32 s11, s11, {TILE}\ns_sub_u32 s14, s14, 1\ns_cmp_lg_u32 s14, 0\ns_cbranch_scc1 {l_f}")
    for t in range(4):
        a(f"v_mov_b32 v{M+4}, v{M+t}\nv_permlane32_swap_b32 v{M+t}, v{M+4}\nv_max_f32 v{M+4}, v{M+4}, v{M+t}")
        for i in range(16): a(f"v_sub_f32 v{C+16*t+i}, 0, v{M+4}")
    a(f"v_mov_b32 v6, v{VT}\nv_mov_b32 v7, v{VT+1}")
    for i in range(4): a(f"v_mov_b32 v{52+i}, 0")
    for t in range(4): a(f"v_mfma_f32_32x32x16_bf16 {R(O+16*t,16)}, {R(52)}, {R(52)}, 0")
    kv_prologue([28, 42])
    main_loop([28, 42], True)
    a(f"s_waitcnt vmcnt(0)\nv_mov_b32 v{VT}, v6\nv_mov_b32 v{VT+1}, v7"); fin_addr(); a(f"s_nop 7\ns_nop 7\ns_branch {l_after}")
    return a.finalize(verbose=bool(E("VERB")))


DOC = """;
; ---------------------------------------------------------------------------------------------
; ---------------------------------------------------------------------------------------------
"""

def build():
    hdr = open(f"cdna_kernels/{NAME}.s.ref").read().split("; @launch")[0]
    k = NAME + "_kernel"
    body = build_kernel()
    return hdr + f"""; @launch grid=(256,1,1) block=(512,1,1) lds=163840
.amdgcn_target "amdgcn-amd-amdhsa--gfx950"
{DOC}.text
.globl {k}
.p2align 8
.type {k},@function
{k}:
{body}.section .rodata,"a"
.p2align 6
.amdhsa_kernel {k}
  .amdhsa_next_free_vgpr 256
  .amdhsa_next_free_sgpr 100
  .amdhsa_accum_offset 256
  .amdhsa_group_segment_fixed_size 0
  .amdhsa_kernarg_size 112
  .amdhsa_user_sgpr_count 2
  .amdhsa_user_sgpr_kernarg_segment_ptr 1
  .amdhsa_system_sgpr_workgroup_id_x 1
.end_amdhsa_kernel
"""

if __name__ == "__main__":
    path = sys.argv[1] if len(sys.argv) > 1 else "final.s"
    open(path, "w").write(build())
    print("wrote", path)
```

```python
import sys, math, struct, os
sys.path.insert(0, "gen")
from asmlib import Asm

NAME = "concat_heads__ssm_conv_h3__grouped_kv_mqa__prompt"
S, D, H, DH = 2048, 640, 32, 20
ACT = S * D * 2
WS_E, WS_F1, WS_F2, WS_F3, WS_F4 = 0, 1024, 4096, 12288, 16384
WS_KV = 32768
TILE = 2816
KR_OFF, K1_OFF, V0_OFF, V1_OFF = 0, 256, 1280, 2048
WS_O = 0x40000
OPB = 20480
WS_Z = WS_O + ACT
WS_XT = WS_Z + ACT
WS_END = WS_XT + 2 * ACT
WS_STAMP = 0x2000000
QSCALE = (DH ** -0.5) * math.log2(math.e)
E = os.environ.get
STAMP = E("STAMP", "0") == "1"
TAILST = E("TAILST")
SPIN = 1 << 17
OSFX = " " + E("OSFX", "nt")
KVSC = " sc1"
KVL = " sc1" if E("KVSC1") else ""

def f2u(x): return struct.unpack("<I", struct.pack("<f", x))[0]
P_AQ, P_AK, P_AV, P_SH, P_SK, P_SD, P_X, P_WQ, P_WK, P_WV, P_WO, P_OUT, P_DBG, P_WS = [16 + 2 * i for i in range(14)]
S_WS, S_A, S_B, S_C, S_D = 44, 48, 52, 56, 60
TAG = 78
def R(b, n=4): return f"v[{b}:{b+n-1}]"
def SR_(b): return f"s[{b}:{b+3}]"
W = SR_(S_WS)

L_W = 81920; GSLOT = 20480
L_WKV = 163840 - 25600
L_Q = 102400; QSTR = 176
L_STAT = L_Q + 64 * QSTR
L_RED = 113920
L_CONV = 113920; CVS = 15360
L_OUT = 102400
L_SK, L_SV, L_KT = 0, 16384, 27648
WO_LOW = 45

a = Asm()
def srd(r, ptr, nbytes, off=0):
    if off:
        a(f"s_add_u32 s{r}, s{ptr}, {off}\ns_addc_u32 s{r+1}, s{ptr+1}, 0")
    else:
        a(f"s_mov_b32 s{r}, s{ptr}\ns_mov_b32 s{r+1}, s{ptr+1}")
    a(f"s_mov_b32 s{r+2}, {nbytes}\ns_mov_b32 s{r+3}, 0x20000")
def _st(i, op="s_memtime"): a(f"{op} s[98:99]\ns_waitcnt lgkmcnt(0)\ns_mov_b32 s{80+i}, s98")
def stamp(i):
    if STAMP and not (TAILST and 1 <= i <= 7): _st(i)
def tstamp(i):
    if STAMP and TAILST: _st(i)
def rstamp(i):
    if STAMP: _st(i, "s_memrealtime")
def br_wave(op, n, lab): a(f"s_cmp_{op}_u32 s5, {n}\ns_cbranch_scc1 {lab}")
def poll(load_fn, tagregs, sleep=2, cnt="vmcnt", val=None, op="ne", skipfirst=False, fail=None):
    val = val or f"s{TAG}"
    l, d = a.newlabel(), a.newlabel()
    a(f"s_mov_b32 s96, {SPIN}")
    if skipfirst:
        l0 = a.newlabel(); a(f"s_branch {l0}")
    a.label(l)
    load_fn()
    if skipfirst: a.label(l0)
    a(f"s_waitcnt {cnt}(0)")
    for i, t in enumerate(tagregs):
        if i == 0: a(f"v_cmp_{op}_u32 s[8:9], {val}, v{t}")
        else: a(f"v_cmp_ne_u32 vcc, {val}, v{t}\ns_or_b64 s[8:9], s[8:9], vcc")
    if fail:
        a(f"s_cmp_eq_u64 s[8:9], 0\ns_cbranch_scc0 {fail}"); return
    a(f"""
    s_cmp_eq_u64 s[8:9], 0
    s_cbranch_scc1 {d}
    s_sleep {sleep}
    s_sub_u32 s96, s96, 1
    s_cmp_lg_u32 s96, 0
    s_cbranch_scc1 {l}
    """)
    a.label(d)
def flag_store(soff_sgpr, vt):
    a(f"v_mov_b32 v{vt}, s{TAG}\nv_mov_b32 v{vt+1}, 0")
    a(f"s_mov_b64 exec, 1")
    a(f"buffer_store_dword v{vt}, v{vt+1}, {W}, s{soff_sgpr} offen sc1")
    a(f"s_mov_b64 exec, -1")
def wpat(dst, qbase, x4):
    a(f"""
    v_add_u32 v4, {qbase}, v1
    v_mul_u32_u24 v5, 6554, v4
    v_lshrrev_b32 v5, 16, v5
    v_mul_u32_u24 v6, 10, v5
    v_sub_u32 v6, v4, v6
    """)
    if x4: a("v_lshrrev_b32 v7, 1, v5\nv_and_b32 v7, 4, v7\nv_xor_b32 v5, v5, v7")
    a(f"v_mul_u32_u24 v5, 1280, v5\nv_lshl_add_u32 v{dst}, v6, 4, v5")

def build_kernel():
    if STAMP: a("s_memtime s[80:81]\ns_memrealtime s[92:93]")
    a(f"""
    s_cmp_ge_u32 s2, 256
    s_cbranch_scc1 L_exit
    s_load_dwordx16 s[16:31], s[0:1], 0
    s_load_dwordx8 s[32:39], s[0:1], 64
    s_load_dwordx4 s[40:43], s[0:1], 96
    v_lshrrev_b32 v1, 6, v0
    s_and_b32 s7, s2, 7
    s_lshl_b32 s3, s7, 2
    s_lshr_b32 s4, s2, 3
    v_readfirstlane_b32 s5, v1
    s_and_b32 s6, s4, 3
    s_add_u32 s3, s3, s6          ; s3 = pb64
    s_lshr_b32 s4, s4, 2          ; s4 = hg
    v_and_b32 v1, 63, v0          ; lane
    v_and_b32 v2, 15, v1          ; p
    v_lshrrev_b32 v3, 4, v1       ; kg
    s_mul_i32 s64, s3, {64*1280}
    s_mul_i32 s65, s4, 160
    s_add_u32 s66, s6, s7
    s_mul_i32 s8, s66, 52
    s_lshr_b32 s8, s8, 8
    s_mul_i32 s8, s8, 5
    s_sub_u32 s66, s66, s8
    s_and_b32 s67, s4, 3          ; pbk
    """)
    VD, VXR, VTR, VQW, VEX = 28, 34, 36, 38, 46
    VKR, VK4, VK5 = 40, 42, 43
    ACC, GF = 64, 96
    QM, QR = 8, 24
    O, SR, C = 64, 128, 192
    KBH = [192, 206, 220, 234]
    AK1, AKR, AV = 62, 63, 61
    PV, QA, VS, VT, AE = 56, 176, 44, 52, 48
    B0, B1, PA, PB = 16, 20, 64, 68
    KT_W, KT_R, KT_G, KT_S, VW2 = 240, 241, 242, 243, 244
    VA, V_B, V_ZW, V_ZS, V_HD, V_F2 = 228, 232, 233, 234, 235, 236
    VWO = 224
    WRAW = [216, 220]
    L_EX = 32768
    PW = int(E('PW', '3'))
    def gwrap(sreg, step):
        a(f"s_add_u32 s{sreg}, s{sreg}, {step}\ns_cmp_ge_u32 s{sreg}, {5*step}\ns_cselect_b32 s{sreg}, 0, s{sreg}")
    def shift2(r, d): a(f"v_add_u32 v{r}, {d & 0xffffffff}, v{r}\nv_add_u32 v{r+1}, {d & 0xffffffff}, v{r+1}")
    def loadK(buf, off):
        a(f"buffer_load_dwordx4 {R(buf)}, v{AK1}, {W}, s11 offen offset:{off + K1_OFF}{KVSC}")
        a(f"buffer_load_dwordx2 {R(buf+4,2)}, v{AKR}, {W}, s11 offen offset:{off + KR_OFF}{KVSC}")
    def loadV(buf, off):
        a(f"buffer_load_dwordx4 {R(buf+6)}, v{AV}, {W}, s11 offen offset:{off + V0_OFF}{KVSC}")
        a(f"buffer_load_dwordx4 {R(buf+10)}, v{AV}, {W}, s11 offen offset:{off + V1_OFF}{KVSC}")
    def kv_prologue(kb, part=None):
        nb = len(kb)
        if part != 1:
            a("s_mov_b32 s11, s79")
            loadK(kb[0], 0)
        for j in range(nb - 1):
            if (part == 0 and j > 0) or (part == 1 and j == 0): continue
            loadV(kb[j], 0); loadK(kb[j + 1], TILE); a(f"s_add_u32 s11, s11, {TILE}")
    def tail_addr(hi):
        T = 192
        a(f"""
        s_and_b32 s76, s5, 1
        s_lshr_b32 s77, s5, 1
        v_lshlrev_b32 v{AK1}, 4, v1
        v_bfe_u32 v{T}, v1, 4, 1
        v_mul_u32_u24 v{T}, {OPB}, v{T}
        v_lshl_add_u32 v{PV+3}, v2, 3, v{T}
        v_lshl_add_u32 v{T}, v2, 4, v{T}
        v_lshrrev_b32 v{T+1}, 5, v1
        v_lshl_add_u32 v{PV+2}, v{T+1}, 8, v{T}
        s_lshl_b32 s8, s3, 2
        s_lshl_b32 s9, s76, 1
        s_add_u32 s8, s8, s9
        s_mul_i32 s8, s8, {OPB}
        s_add_u32 s8, s8, {WS_O}
        s_lshl_b32 s9, s4, 2
        s_add_u32 s9, s9, s77
        s_lshl_b32 s72, s9, 9
        s_add_u32 s72, s72, s8
        s_lshl_b32 s73, s9, 7
        s_add_u32 s73, s73, s8
        s_add_u32 s73, s73, 16384
        s_lshl_b32 s74, s3, 1
        s_add_u32 s74, s74, s76
        s_lshl_b32 s74, s74, 5
        s_add_u32 s74, s74, s9
        s_lshl_b32 s74, s74, 2
        s_add_u32 s74, s74, {WS_F4}
        """)
        for j, i in enumerate((0, 1) if hi else (2, 3)):
            a(f"""
            s_xor_b32 s8, s5, {2*i}
            s_and_b32 s8, s8, 3
            s_mul_i32 s8, s8, 9216
            s_add_u32 s8, s8, {L_RED + 3072*max(i-1, 0)}
            v_add_u32 v{PV+j}, s8, v{AK1}
            """)
    def hi_addr():
        T = 192
        a(f"""
        v_and_b32 v{T}, 31, v1
        v_lshlrev_b32 v{AKR}, 3, v{T}
        v_lshrrev_b32 v{T+2}, 3, v{T}
        v_and_b32 v{T+3}, 3, v{T}
        v_lshl_add_u32 v{T+2}, v{T+2}, 2, v{T+3}
        v_bfe_u32 v{T+3}, v{T}, 2, 1
        v_mad_u32_u24 v{T+3}, v{T+3}, 10, v{T+2}
        v_mad_u32_u24 v{T+3}, v{T+1}, 20, v{T+3}
        v_cmp_gt_u32 s[8:9], 10, v{T+2}
        v_cmp_lt_u32 vcc, 10, v{T+2}
        v_mov_b32 v{T+4}, 40
        v_cndmask_b32 v{T+3}, v{T+4}, v{T+3}, s[8:9]
        v_lshlrev_b32 v{AV}, 4, v{T+3}
        v_mov_b32 v{T+4}, 0x40000000
        v_cndmask_b32 v{AV}, v{AV}, v{T+4}, vcc
        s_and_b32 s8, s77, 1
        s_mul_i32 s79, s8, {32*TILE}
        s_add_u32 s79, s79, {WS_KV}
        s_mul_i32 s8, s76, {32*QSTR}
        s_add_u32 s8, s8, {L_Q}
        v_mul_u32_u24 v{T+2}, {QSTR}, v{T}
        v_add_u32 v{T+2}, s8, v{T+2}
        v_lshl_add_u32 v{T+3}, v{T+1}, 4, v{T+2}
        v_xor_b32 v{T+4}, s77, v{T+1}
        v_xor_b32 v{T+5}, 2, v{T+4}
        v_mad_u32_u24 v{QA+4}, v{T+4}, 40, v{T+2}
        v_mad_u32_u24 v{QA+5}, v{T+5}, 40, v{T+2}
        """)
        for i in range(4):
            a(f"s_xor_b32 s8, s77, {i}\ns_mul_i32 s8, s8, 40\nv_add_u32 v{QA+i}, s8, v{T+3}")
        for i in range(4): a(f"v_mov_b32 v{KBH[-1]+10+i}, 0")
    def lo_addr():
        T = 192
        a(f"""
        s_mul_i32 s68, s5, 4224
        s_add_u32 s68, s68, {L_KT}
        v_and_b32 v4, 7, v1
        v_mul_u32_u24 v{T}, 528, v4
        v_lshrrev_b32 v5, 3, v1
        v_sub_u32 v{T+1}, 7, v5
        v_bfe_u32 v{T+2}, v{T+1}, 1, 1
        v_lshl_add_u32 v{T}, v{T+2}, 7, v{T}
        v_lshrrev_b32 v{T+2}, 2, v{T+1}
        v_lshl_add_u32 v{T}, v{T+2}, 6, v{T}
        v_and_b32 v{T+2}, 1, v{T+1}
        v_lshl_add_u32 v{T}, v{T+2}, 5, v{T}
        v_add_u32 v{KT_W}, s68, v{T}
        v_lshrrev_b32 v{T+1}, 5, v1
        v_lshlrev_b32 v{T+2}, 4, v{T+1}
        v_add3_u32 v{KT_R}, v{AK1}, v{T+2}, s68
        v_lshlrev_b32 v{T+3}, 12, v5
        v_lshl_add_u32 v{KT_G}, v4, 4, v{T+3}
        v_mul_u32_u24 v{T+3}, 1280, v5
        v_lshl_add_u32 v{T+3}, v4, 2, v{T+3}
        s_lshl_b32 s8, s5, 5
        v_add_u32 v{KT_S}, s8, v{T+3}
        ; convolution
        s_mul_i32 s68, s5, {CVS}
        s_add_u32 s68, s68, {L_CONV}
        v_and_b32 v{T}, 31, v1
        v_lshlrev_b32 v{V_F2}, 2, v{T}
        v_lshlrev_b32 v{T+2}, 2, v2
        v_lshlrev_b32 v{T+3}, 4, v3
        v_sub_u32 v{T+3}, v{T+2}, v{T+3}
        v_add3_u32 v{VA}, v{T+3}, 48, s68
        v_add_u32 v{VA+1}, 1024, v{VA}
        v_add_u32 v{VA+2}, 2048, v{VA}
        v_add_u32 v{VA+3}, 3072, v{VA}
        v_lshrrev_b32 v{T+2}, 1, v2
        v_sub_u32 v{T+2}, 7, v{T+2}
        v_lshlrev_b32 v{T+2}, 6, v{T+2}
        v_and_b32 v{T+3}, 1, v2
        v_lshl_add_u32 v{T+2}, v{T+3}, 4, v{T+2}
        v_sub_u32 v{T+3}, 3, v3
        v_and_b32 v{T+4}, 1, v{T+3}
        v_lshl_add_u32 v{T+2}, v{T+4}, 5, v{T+2}
        v_lshrrev_b32 v{T+3}, 1, v{T+3}
        v_mul_u32_u24 v{T+3}, 5120, v{T+3}
        v_add3_u32 v{V_B}, v{T+2}, v{T+3}, s68
        v_lshrrev_b32 v{T+2}, 2, v2
        v_lshlrev_b32 v{T+2}, 7, v{T+2}
        v_lshl_add_u32 v{T+2}, v{T+1}, 9, v{T+2}
        v_and_b32 v{T+3}, 1, v3
        v_lshl_add_u32 v{T+2}, v{T+3}, 6, v{T+2}
        v_and_b32 v{T+3}, 3, v2
        v_lshl_add_u32 v{V_ZS}, v{T+3}, 4, v{T+2}
        v_mov_b32 v{V_ZW}, -1
        v_subrev_u32 v{V_HD}, 64, v{AK1}
        v_cmp_lt_u32 s[8:9], 19, v1
        v_cndmask_b32 v{T}, 0, 1, s[8:9]
        v_mul_u32_u24 v{T+1}, 20, v{T}
        v_sub_u32 v{T+1}, v1, v{T+1}
        s_lshl_b32 s8, s76, 5
        s_lshl_b32 s9, s77, 3
        s_add_u32 s8, s8, s9
        s_add_u32 s8, s8, 1
        v_sub_u32 v{T+2}, s8, v{T}
        v_mul_u32_u24 v{T+2}, 1280, v{T+2}
        v_add_u32 v{T+2}, s64, v{T+2}
        v_lshl_add_u32 v{T+3}, v{T+1}, 3, s65
        v_lshl_add_u32 v{AE+1}, v{T+2}, 1, v{T+3}
        v_add_u32 v{AE}, v{T+2}, v{T+3}
        v_lshlrev_b32 v{AE+2}, 1, v{T+3}
        v_lshlrev_b32 v{T+3}, 11, v{T+3}
        v_lshl_add_u32 v{AE+3}, v{T}, 4, v{T+3}
        """)
    def stage(ptr, halo, base):
        if E("NOSTG"): return
        srd(S_D, ptr, ACT)
        a(f"s_add_u32 s8, s64, s65\ns_sub_u32 s8, s8, {halo*1280}")
        for i in range(11):
            if i < 5:
                a(f"v_add_u32 v4, s8, v{VW2 + i}\ns_mov_b32 m0, {base + 1024*i}\nbuffer_load_dwordx4 v4, {SR_(S_D)}, 0 offen lds")
            else:
                if i % 5 == 0: a(f"s_add_u32 s8, s8, {32*1280}")
                if i == 5 and halo == 1 and E("STH"): a(f"s_waitcnt vmcnt({E('STH')})")
                a(f"s_mov_b32 m0, {base + 1024*i}\nbuffer_load_dwordx4 v{VW2 + i % 5}, {SR_(S_D)}, s8 offen lds")
    def sync_init():
        a(f"""
        v_mov_b32 v4, 0
        v_mov_b32 v5, 0
        v_mov_b32 v6, 0
        v_mov_b32 v7, 8
        ds_write_b64 v{VS}, v[4:5]
        ds_write_b32 v{VS}, v4 offset:8
        ds_write_b32 v{VS}, v7 offset:16
        """)
    def only(w, fn):
        l = a.newlabel(); br_wave("lg", w, l); fn(); a.label(l)
    def publish_kv():
        l_v2, l_stat = a.newlabel(), a.newlabel()
        a(f"v_mov_b32 v8, 0\ns_cmp_ge_u32 s4, 4\ns_cbranch_scc1 {l_v2}")
        for i in range(4): a(f"v_dot2c_f32_bf16 v8, v{PA+i}, v{PA+i}")
        a(f"""
        v_mov_b32 v9, v8
        v_permlane32_swap_b32 v8, v9
        v_add_f32 v8, v8, v9
        v_dot2c_f32_bf16 v8, v{PB}, v{PB}
        v_dot2c_f32_bf16 v8, v{PB+1}, v{PB+1}
        s_nop 2
        s_branch {l_stat}
        """)
        a.label(l_v2)
        for b in range(B0, B0 + 8, 2): a(f"v_max3_f32 v8, v8, |v{b}|, |v{b+1}|")
        a("""
        v_mov_b32 v9, v8
        v_permlane16_swap_b32 v8, v9
        v_max_f32 v8, v8, v9
        v_mov_b32 v9, v8
        v_permlane32_swap_b32 v8, v9
        v_max_f32 v8, v8, v9
        s_nop 1
        """)
        a.label(l_stat)
        for sh in (1, 2, 4, 8):
            a(f"v_max_f32_dpp v8, v8, v8 row_shr:{sh} row_mask:0xf bank_mask:0xf")
        a("v_readlane_b32 s69, v8, 15")
        a(f"""
        s_lshl_b32 s8, s3, 3
        s_add_u32 s8, s8, s4
        s_lshl_b32 s8, s8, 3
        s_getreg_b32 s9, hwreg(HW_REG_XCC_ID, 0, 4)
        s_andn2_b32 s69, s69, 15
        s_or_b32 s69, s69, s9
        v_mov_b32 v4, s69
        v_mov_b32 v5, s{TAG}
        v_mov_b32 v6, 0
        s_waitcnt vmcnt(0)
        s_mov_b64 exec, 1
        buffer_store_dwordx2 v[4:5], v6, {W}, s8 offen offset:{WS_F1} sc1
        s_mov_b64 exec, -1
        """)

    def gemm_addr(cg):
        a(f"""
        v_mov_b32 v{VS}, {L_STAT}
        s_and_b32 s6, s77, 1
        v_lshrrev_b32 v4, 1, v2
        v_xor_b32 v4, v4, v3
        v_lshlrev_b32 v5, 7, v2
        v_lshl_add_u32 v39, v4, 4, v5
        s_lshl_b32 s7, s76, 1
        s_add_u32 s7, s7, s6
        s_lshl_b32 s8, s7, 11
        s_lshl_b32 s9, s6, 6
        v_xor_b32 v4, s9, v39
        v_add_u32 v{VXR}, s8, v4
        v_xor_b32 v{VXR+1}, 0x800, v{VXR}
        v_bfe_u32 v4, v1, 2, 2
        v_lshl_add_u32 v4, v3, 3, v4
        v_and_b32 v5, 1, v3
        v_lshl_add_u32 v6, v5, 2, v4
        v_xor_b32 v7, 4, v6
        v_and_b32 v5, 3, v1
        v_lshlrev_b32 v5, 3, v5
        s_movk_i32 s9, 160
        v_mad_u32_u24 v6, v6, s9, v5
        v_mad_u32_u24 v7, v7, s9, v5
        s_mul_i32 s8, s6, 5120
        s_add_u32 s8, s8, {L_W + 96*cg}
        v_add_u32 v{VTR}, s8, v6
        v_add_u32 v{VTR+1}, s8, v7
        s_mul_i32 s8, s76, 51200
        v_add_u32 v{VT}, s8, v6
        v_add_u32 v{VT+1}, s8, v7
        s_mul_i32 s8, s7, {16*QSTR}
        s_add_u32 s8, s8, {L_Q + 96*cg}
        v_mul_u32_u24 v4, {QSTR}, v2
        v_lshl_add_u32 v4, v3, 3, v4
        v_add_u32 v{VQW}, s8, v4
        s_mul_i32 s8, s5, 3072
        s_add_u32 s8, s8, {L_EX}
        v_add_u32 v{VEX}, s8, v{AK1}
        s_xor_b32 s8, s5, 2
        s_mul_i32 s8, s8, 3072
        s_add_u32 s8, s8, {L_EX}
        v_add_u32 v{VEX+1}, s8, v{AK1}
        """)
    def got_args():
        a(f"s_waitcnt lgkmcnt(0)\ns_load_dword s{TAG}, s[{P_WS}:{P_WS+1}], {WS_E}")
        if STAMP: a("s_mov_b32 s93, s92")
    def got_tag():
        a(f"s_waitcnt lgkmcnt(0)\ns_mul_i32 s{TAG}, s{TAG}, 0x9E3779B1\ns_add_u32 s{TAG}, s{TAG}, 0x7F4A7C15")
    def x_issue(g):
        a(f"s_add_u32 s8, s10, s12\ns_add_u32 s9, s8, {8*1280}")
        for hs in range(2):
            for par in range(2):
                a(f"s_add_u32 m0, s11, {(2*g+hs)*8192 + 1024*par - 128*hs}")
                a(f"buffer_load_dwordx4 v{VD+par}, {SR_(S_A)}, s{8+par} offen offset:{128*hs} lds")
        if g < 4: gwrap(12, 256)
    def wkv_issue(g):
        a(f"s_mov_b32 m0, {L_WKV + 5120*g}")
        for i in range(4):
            a(f"buffer_load_dwordx4 v{AK1}, {SR_(S_C)}, s13 offen offset:{1024*i} lds")
        a(f"s_mov_b32 m0, {L_WKV + 5120*g + 4096}\ns_add_u32 s8, s13, 4096")
        a(f"buffer_load_dwordx4 v{AK1}, {SR_(S_C)}, s8 offen lds")
        if g < 4: gwrap(13, 5120)
    def w_issue(g):
        a(f"s_add_u32 s8, s10, s12")
        for n in range(5):
            a(f"s_add_u32 m0, s11, {(g % 4)*GSLOT + 1024*n}")
            a(f"buffer_load_dwordx4 v{VD+n}, {SR_(S_B)}, s8 offen lds")
        if g < 4: gwrap(12, 128 * 1280)
    def q_stage(nblk, gs, xb, wb, mid=None):
        steps = [(g, hs) for g in gs for hs in range(2)]
        per = 2 + 2 * nblk
        for n, (g, hs) in enumerate(steps):
            b = GF + 20 * n
            for pl in range(2): a(f"ds_read_b128 {R(b+4*pl)}, v{VXR+pl} offset:{(2*g + hs)*8192 - xb}")
            for nb in range(nblk):
                off = (g % 4) * GSLOT + hs * 10240 + nb * 32 - wb
                for z in range(2): a(f"ds_read_b64_tr_b16 {R(b+8+4*nb+2*z,2)}, v{VTR+z} offset:{off}")
        if mid: mid()
        for n in range(len(steps)):
            a(f"s_waitcnt lgkmcnt({min(15, per * (len(steps) - 1 - n))})")
            b = GF + 20 * n
            for nb in range(nblk):
                for pl in range(2):
                    d = R(ACC + 12 * pl + 4 * nb)
                    a(f"v_mfma_f32_16x16x32_bf16 {d}, {R(b+8+4*nb)}, {R(b+4*pl)}, {'0' if (gs[0] == 0 and n == 0) else d}")
    def ld1():
        a(f"buffer_load_dwordx4 v[8:11], v45, {W}, 0 offen offset:{WS_F1} sc1")
        a(f"buffer_load_dwordx4 v[12:15], v45, {W}, 0 offen offset:{WS_F1+16} sc1")
    def q_path(cg):
        nblk = 3 if cg == 0 else 2
        stamp(2)
        a("s_barrier")
        stamp(3)
        q_stage(nblk, [0], 0, 0, (lambda: (only(7, lambda: w_issue(2)), w_issue(3))) if cg else None)
        a(f"s_waitcnt vmcnt({10 if cg else 0})")
        a("s_barrier")
        q_stage(nblk, [1], 0, 0, (lambda: w_issue(4)) if cg else None)
        shift2(VTR, 2 * GSLOT)
        if cg: a("s_waitcnt vmcnt(5)")
        a("s_barrier   ; b3")
        stamp(4)
        q_stage(nblk, [2, 3], 0, 2 * GSLOT, None if cg else (lambda: only(PW, ld1)))
        shift2(VTR, -2 * GSLOT); shift2(VXR, 65536)
        if cg: a("s_waitcnt vmcnt(0)")
        else: only(PW, lambda: poll(ld1, [9, 11, 13, 15], 1, skipfirst=True)); only(2, sync_init)
        a("s_barrier")
        stamp(5)
        if not cg and E("INV"): only(2, lambda: a("buffer_inv sc1"))
        q_stage(nblk, [4], 65536, 0, (lambda: kv_prologue(KBH, None if E('PALL') else 0)) if cg else None)
        for nb in range(nblk): a(f"ds_write_b128 v{VEX}, {R(ACC+12+4*nb)} offset:{1024*nb}")
        if not cg and not E("NOSVC") and not E("LATEK"): only(3, lambda: (stage(P_AK, 4, L_SK), stage(P_AV, 1, L_SV) if E("EARLYV") else None))
        a(f"s_mov_b32 s8, 0xffff0000\ns_mov_b32 s9, {f2u(QSCALE)}")
        a("s_waitcnt lgkmcnt(0)\ns_barrier   ; bE")
        for nb in range(nblk): a(f"ds_read_b128 {R(ACC+12+4*nb)}, v{VEX+1} offset:{1024*nb}")
        if cg and not E("LATEP") and not E("PALL"): kv_prologue(KBH, 1)
        for nb in range(nblk):
            b = ACC + 4 * nb
            a(f"s_waitcnt lgkmcnt({min(nblk - 1, nblk - 1 - nb + nb)})" if nb == 0 else f"s_waitcnt lgkmcnt({nblk - 1})")
            for r in range(4): a(f"v_add_f32 v{b+r}, v{b+r}, v{b+12+r}")
            for r in range(4): a(f"v_mul_f32 v{b+r}, s9, v{b+r}")
            for p in range(2): a(f"v_cvt_pk_bf16_f32 v{88+2*nb+p}, v{b+2*p}, v{b+2*p+1}")
            a(f"ds_write_b64 v{VQW}, {R(88+2*nb,2)} offset:{32*nb}")
        if not cg and E("INV"): only(2, lambda: a("s_waitcnt vmcnt(0)"))
        a("s_waitcnt lgkmcnt(0)\ns_barrier   ; B_Q")
        stamp(7)
    OSTR = 336; OKH = 64 * OSTR
    FRD, FST = [94, 95], [60, 55]
    def fin_addr():
        a(f"""
        v_mul_u32_u24 v54, {OSTR}, v2
        v_lshl_add_u32 v54, v3, 4, v54
        s_mul_i32 s8, s77, {16*OSTR}
        s_mul_i32 s9, s76, {OKH}
        s_add_u32 s8, s8, s9
        s_add_u32 s8, s8, {L_OUT}
        v_add_u32 v54, s8, v54
        """)
    def fin_addr2(n):
        for i in range(n):
            a(f"""
            v_add_u32 v84, {512*i}, v0
            v_mul_u32_u24 v85, 6554, v84
            v_lshrrev_b32 v85, 16, v85
            v_mul_u32_u24 v86, 10, v85
            v_sub_u32 v86, v84, v86
            v_mul_u32_u24 v{FRD[i]}, {OSTR}, v85
            v_lshl_add_u32 v{FRD[i]}, v86, 5, v{FRD[i]}
            v_add_u32 v{FRD[i]}, {L_OUT}, v{FRD[i]}
            v_mul_u32_u24 v{FST[i]}, 2560, v85
            v_lshl_add_u32 v{FST[i]}, v86, 4, v{FST[i]}
            """)
    def lds_add(off, val):
        a(f"v_mov_b32 v4, {val}\ns_mov_b64 exec, 1\nds_add_u32 v{VS}, v4 offset:{off}\ns_mov_b64 exec, -1")
    def lds_wait(off, val, op, sleep):
        poll(lambda: a(f"ds_read_b32 v4, v{VS} offset:{off}"), [4], sleep, "lgkmcnt", str(val), op)
    l_cg1, l_R, l_x, l_lo1 = a.newlabel(), a.newlabel(), a.newlabel(), a.newlabel()
    br_wave("ge", 4, l_cg1)
    a(f"""
    v_lshrrev_b32 v4, 3, v1
    v_mul_u32_u24 v4, 1280, v4
    v_and_b32 v5, 7, v1
    v_xor_b32 v5, v5, v3
    v_lshl_add_u32 v{VD}, v5, 4, v4
    v_xor_b32 v{VD+1}, 64, v{VD}
    s_add_u32 s8, s67, s5
    s_and_b32 s8, s8, 3
    s_mul_i32 s10, s8, {16*1280}
    s_add_u32 s10, s10, s64
    s_lshl_b32 s11, s8, 11
    s_lshl_b32 s12, s66, 8
    s_mul_i32 s13, s66, 5120
    v_lshlrev_b32 v45, 5, v1
    """)
    tail_addr(False); gemm_addr(0); fin_addr()
    br_wave("lg", 0, l_x)
    a(f"""
    v_add_u32 v{VKR}, s11, v39
    v_xor_b32 v{VKR+1}, 64, v{VKR}
    v_bfe_u32 v4, v1, 2, 2
    v_lshl_add_u32 v4, v3, 3, v4
    v_mul_u32_u24 v4, 40, v4
    v_add_u32 v{VK4}, {L_WKV}, v4
    v_and_b32 v5, 3, v1
    v_lshl_add_u32 v{VK5}, v5, 3, v{VK4}
    """)
    for n in range(15): a(f"v_mov_b32 v{(VW2 + n) if n < 5 else (VWO + n - 5)}, -1")
    got_args()
    a(f"""
    s_cmp_ge_u32 s4, 4
    s_cselect_b32 s{S_C}, s{P_WV}, s{P_WK}
    s_cselect_b32 s{S_C+1}, s{P_WV+1}, s{P_WK+1}
    s_mov_b32 s{S_C+2}, 25600
    s_mov_b32 s{S_C+3}, 0x20000
    """)
    srd(S_A, P_X, ACT)
    KORD = E("KORD", "wx")
    if KORD == "wx":
        for g in range(5): wkv_issue(g)
        for g in range(5):
            x_issue(g)
            if str(g) == E("B0"): a("s_barrier")
        wv = [40 - 5 * g for g in range(5)]; xv = [16 - 4 * g for g in range(5)]
    else:
        for g in range(5): x_issue(g)
        for g in range(5): wkv_issue(g)
        wv = [20 - 5 * g for g in range(5)]; xv = [0] * 5
    if not E("B0"): a("s_barrier   ; b0")
    stamp(1)
    srd(S_WS, P_WS, WS_END)
    got_tag()
    WPF, XT_ = 96, 72
    for g in range(5):
        a(f"s_waitcnt vmcnt({wv[g]})")
        for s_ in range(4):
            ks = 4 * g + s_; b = WPF + 8 * ks
            a(f"ds_read_b64_tr_b16 {R(b,2)}, v{VK5} offset:{ks*1280}")
            a(f"ds_read_b64_tr_b16 {R(b+2,2)}, v{VK5} offset:{ks*1280+160}")
            a(f"ds_read_b64_tr_b16 {R(b+4,2)}, v{VK4} offset:{ks*1280+32}")
            a(f"ds_read_b64_tr_b16 {R(b+6,2)}, v{VK4} offset:{ks*1280+192}")
    a(f"""
    s_lshr_b32 s12, s67, 1
    s_lshl_b32 s14, s3, 1
    s_add_u32 s12, s12, s14
    s_mul_i32 s12, s12, {TILE}
    s_add_u32 s12, s12, {WS_KV}
    s_and_b32 s10, s67, 1
    """)
    def kvpart(isv):
        for g in range(5):
            if g == 4: shift2(VKR, 65536)
            a(f"s_waitcnt vmcnt({xv[g]})")
            for s_ in range(4): a(f"ds_read_b128 {R(XT_+4*s_)}, v{VKR+(s_&1)} offset:{((2*g + (s_>>1)) % 8) * 8192}")
            for s_ in range(4):
                a(f"s_waitcnt lgkmcnt({3-s_})")
                for blk in range(2):
                    d = R(B0 + 4 * blk); c = "0" if (g == 0 and s_ == 0) else d
                    w_, x_ = R(WPF + 8 * (4 * g + s_) + 4 * blk), R(XT_ + 4 * s_)
                    a(f"v_mfma_f32_16x16x32_bf16 {d}, {x_ if isv else w_}, {w_ if isv else x_}, {c}")
    def pack(b, dst, swap):
        a(f"""
        v_cvt_pk_bf16_f32 v{dst}, v{b}, v{b+1}
        v_cvt_pk_bf16_f32 v{dst+1}, v{b+2}, v{b+3}
        v_cvt_pk_bf16_f32 v{dst+2}, v{b}, v{b+1}
        v_cvt_pk_bf16_f32 v{dst+3}, v{b+2}, v{b+3}
        {swap} v{dst}, v{dst+2}
        {swap} v{dst+1}, v{dst+3}
        """)
    l_v, l_pub = a.newlabel(), a.newlabel()
    a(f"s_cmp_ge_u32 s4, 4\ns_cbranch_scc1 {l_v}")
    a(f"""
    s_lshl_b32 s10, s10, 4
    v_add_u32 v5, s10, v2
    v_lshrrev_b32 v6, 1, v3
    v_lshl_add_u32 v6, v6, 5, v5
    v_lshlrev_b32 v6, 4, v6
    v_lshlrev_b32 v5, 3, v5
    """)
    kvpart(False)
    pack(B0, PA, "v_permlane16_swap_b32")
    a(f"""
    v_cvt_pk_bf16_f32 v{PB}, v{B1}, v{B1+1}
    v_cvt_pk_bf16_f32 v{PB+1}, v{B1+2}, v{B1+3}
    s_mov_b32 exec_lo, 0xffff
    s_mov_b32 exec_hi, 0xffff
    buffer_store_dwordx4 {R(PA)}, v6, {W}, s12 offen offset:{K1_OFF} sc1
    s_mov_b64 exec, 0xffff
    buffer_store_dwordx2 {R(PB,2)}, v5, {W}, s12 offen offset:{KR_OFF} sc1
    s_mov_b64 exec, -1
    s_branch {l_pub}
    """)
    a.label(l_v)
    a(f"""
    s_mul_i32 s10, s10, {V1_OFF - V0_OFF}
    s_add_u32 s12, s12, s10
    v_and_b32 v5, 1, v3
    v_mul_u32_u24 v5, 20, v5
    v_add_u32 v6, v5, v2
    v_lshlrev_b32 v6, 4, v6
    v_cmp_lt_u32 s[14:15], 3, v2
    v_mov_b32 v10, 0x3f803f80
    """)
    kvpart(True)
    pack(B0, PA, "v_permlane32_swap_b32")
    pack(B1, PB, "v_permlane32_swap_b32")
    a(f"s_mov_b32 exec_hi, 0")
    a(f"buffer_store_dwordx4 {R(PA)}, v6, {W}, s12 offen offset:{V0_OFF} sc1")
    for i in range(4): a(f"v_cndmask_b32 v{12+i}, v{PB+i}, v10, s[14:15]")
    a(f"""
    s_mov_b32 exec_lo, 0x00ff000f
    buffer_store_dwordx4 v[12:15], v6, {W}, s12 offen offset:{V0_OFF + 256} sc1
    s_mov_b64 exec, -1
    """)
    a.label(l_pub)
    stamp(6)
    publish_kv()
    lo_addr()
    a(f"s_branch {l_lo1}")
    a("; ======== waves 1..3 ========")
    a.label(l_x)
    lo_addr()
    for n in range(5): wpat(VW2 + n, 64 * n, False)
    def wo_pat():
        for n in range(5):
            a(f"""
            v_add_u32 v4, {64*n}, v1
            v_mul_u32_u24 v5, 6554, v4
            v_lshrrev_b32 v5, 16, v5
            v_mul_u32_u24 v6, 10, v5
            v_sub_u32 v6, v4, v6
            v_lshlrev_b32 v6, 4, v6
            v_lshrrev_b32 v7, 1, v5
            v_and_b32 v7, 4, v7
            v_xor_b32 v5, v5, v7
            v_lshrrev_b32 v7, 3, v5
            v_lshl_add_u32 v4, v7, 1, v5
            v_mul_u32_u24 v4, 1280, v4
            v_add_u32 v{VWO+n}, v4, v6
            v_lshrrev_b32 v7, 1, v5
            v_lshl_add_u32 v4, v7, 3, v5
            v_add_u32 v4, 8, v4
            v_mul_u32_u24 v4, 1280, v4
            v_add_u32 v{VWO+5+n}, v4, v6
            """)
    for n in range(4): a(f"v_mov_b32 v{VWO+n}, -1")
    only(3, wo_pat)
    got_args()
    srd(S_A, P_X, ACT); srd(S_WS, P_WS, WS_END); srd(S_C, P_WK, 25600)
    l = a.newlabel()
    a(f"""
    v_lshlrev_b32 v4, 7, v1
    s_sub_u32 s8, s5, 1
    s_lshl_b32 s8, s8, 13
    s_cmp_ge_u32 s2, 8
    s_cbranch_scc1 {l}
    buffer_load_dword v5, v4, {W}, s8 offen sc1
    """)
    a.label(l)
    got_tag()
    a(f"s_setprio {E('PX', '0')}\ns_barrier   ; b0")
    for g in range(5): x_issue(g)
    a("s_setprio 0")
    stamp(1)
    a("s_waitcnt vmcnt(16)")
    a.label(l_lo1)
    q_path(0)
    l_svcend = a.newlabel()
    if E("NOSVC"):
        lds_add(8, 1); a(f"s_branch {l_svcend}")
    only(3, lambda: (stage(P_AK, 4, L_SK) if E("LATEK") else None, a(f"s_waitcnt vmcnt({E('STG', '6')})"), None if E("EARLYV") else stage(P_AV, 1, L_SV)))
    srd(S_D, P_SH, D * 8); srd(S_B, P_WO, D * D * 2)
    a(f"""
    s_setprio {E('PKVT', '2')}
    v_and_b32 v4, 7, v1
    v_lshlrev_b32 v4, 4, v4
    s_lshl_b32 s8, s5, 7
    s_lshl_b32 s9, s65, 2
    s_add_u32 s8, s8, s9
    buffer_load_dwordx4 {R(WRAW[0])}, v4, {SR_(S_D)}, s8 offen
    buffer_load_dwordx4 {R(WRAW[1])}, v4, {SR_(S_D)}, s9 offen offset:512
    s_mov_b32 s12, 0xffff0000
    """)
    def decide():
        a(f"v_mul_u32_u24 v4, {QSTR}, v1\nv_add_u32 v4, {L_Q}, v4")
        for i in range(10): a(f"ds_read_b128 {R(128+4*i)}, v4 offset:{16*i}")
        a(f"""
        s_getreg_b32 s9, hwreg(HW_REG_XCC_ID, 0, 4)
        v_xor_b32 v5, s9, v8
        v_xor_b32 v6, s9, v10
        v_or_b32 v5, v5, v6
        v_xor_b32 v6, s9, v12
        v_xor_b32 v7, s9, v14
        v_or3_b32 v5, v5, v6, v7
        v_and_b32 v5, 15, v5
        v_cmp_ne_u32 vcc, 0, v5
        s_lshl_b32 s8, s3, 1
        s_lshr_b64 s[10:11], vcc, s8
        v_max_f32 v8, v8, v10
        v_max3_f32 v8, v8, v12, v14
        s_mov_b32 s8, 0x55555555
        s_mov_b32 s9, 0x55555555
        v_cndmask_b32 v10, 0, v8, s[8:9]
        v_cndmask_b32 v11, v8, 0, s[8:9]
        """)
        for m in ("row_shr:1 row_mask:0xf", "row_shr:2 row_mask:0xf", "row_shr:4 row_mask:0xf", "row_shr:8 row_mask:0xf",
                  "row_bcast:15 row_mask:0xa", "row_bcast:31 row_mask:0xc"):
            a(f"v_max_f32_dpp v10, v10, v10 {m} bank_mask:0xf\nv_max_f32_dpp v11, v11, v11 {m} bank_mask:0xf")
        for j in range(4): a(f"v_mov_b32 v{12+j}, 0")
        a("v_readlane_b32 s14, v10, 63\nv_readlane_b32 s15, v11, 63\ns_waitcnt lgkmcnt(0)")
        for r in range(10):
            for j in range(4): a(f"v_dot2c_f32_bf16 v{12+j}, v{128+10*j+r}, v{128+10*j+r}")
        a(f"""
        v_max3_f32 v12, v12, v13, v14
        v_max_f32 v12, v12, v15
        v_mul_f32 v12, s14, v12
        v_cmp_nge_f32 vcc, {f2u(64.0*64.0)}, v12
        s_mov_b32 s8, 1
        s_cmp_lg_u64 vcc, 0
        s_cselect_b32 s8, 0x101, s8
        s_cmp_lt_u32 s15, {f2u(2.0**-28)}
        s_cselect_b32 s8, 0x101, s8
        s_cmp_gt_u32 s15, {f2u(2.0**50)}
        s_cselect_b32 s8, 0x101, s8
        s_and_b32 s10, s10, 3
        s_cselect_b32 s9, 0, {0 if E("NOFAST") else 0x200}
        s_or_b32 s8, s8, s9
        """)
        lds_add(8, "s8")
    only(PW, decide)
    l = a.newlabel()
    a(f"s_or_b32 s8, s2, s5\ns_cmp_lg_u32 s8, 0\ns_cbranch_scc1 {l}\ns_mov_b32 s8, {WS_E}")
    flag_store(8, 6)
    a.label(l)
    a("s_waitcnt vmcnt(0)")
    only(3, lambda: lds_add(0, 1))
    lds_wait(0, 1, "ne", 2)
    stamp(10)
    KRW, KU, VU, WU, KV, PK = 192, 128, 152, 170, 64, 84
    def kvt_compute(ps, pass_sgpr):
        if E("NOKVT"): return
        kr = KRW; vr = kr + 12; wr = WRAW[ps]
        for r in range(12): a(f"ds_read_b32 v{kr+r}, v{KT_S} offset:{L_SK + 160*r + 32*ps}")
        for r in range(9): a(f"ds_read_b32 v{vr+r}, v{KT_S} offset:{L_SV + 160*r + 32*ps}")
        for j in range(4):
            for c in range(2):
                src = wr + 2 * c + j // 2
                a(f"v_lshlrev_b32 v{WU+2*j+c}, 16, v{src}" if j % 2 == 0 else f"v_and_b32 v{WU+2*j+c}, s12, v{src}")
        a("s_waitcnt lgkmcnt(9)")
        for r in range(12): a(f"v_lshlrev_b32 v{KU+2*r}, 16, v{kr+r}\nv_and_b32 v{KU+2*r+1}, s12, v{kr+r}")
        for i in range(18): a(f"v_mul_f32 v{KV+i}, v{KU+i}, v{WU+6+(i&1)}")
        for j in (2, 1, 0):
            for i in range(18): a(f"v_fmac_f32 v{KV+i}, v{KU+i+2*(3-j)}, v{WU+2*j+(i&1)}")
        a("s_waitcnt lgkmcnt(0)")
        for r in range(9): a(f"v_lshlrev_b32 v{VU+2*r}, 16, v{vr+r}\nv_and_b32 v{VU+2*r+1}, s12, v{vr+r}")
        for i in range(18): a(f"v_mul_f32 v{KV+i}, v{KV+i}, v{VU+i}")
        for c in range(2):
            for cp in range(2):
                for d in range(4):
                    lo = 7 - cp - 2 * d; hi = lo - 1
                    a(f"v_cvt_pk_bf16_f32 v{PK+8*c+4*cp+d}, v{KV+2*(lo+1)+c}, v{KV+2*(hi+1)+c}")
                a(f"ds_write_b128 v{KT_W}, {R(PK+8*c+4*cp)} offset:{256*c + 16*cp}")
        for k in range(4): a(f"ds_read_b128 {R(PK+16+4*k)}, v{KT_R} offset:{1056*k}")
        a(f"""
        s_mul_i32 s8, s4, 80
        s_lshl_b32 s9, s{pass_sgpr}, 4
        s_add_u32 s8, s8, s9
        s_lshl_b32 s8, s8, 13
        s_sub_u32 s9, 31, s3
        s_lshl_b32 s9, s9, 7
        s_add_u32 s8, s8, s9
        s_add_u32 s8, s8, {WS_XT}
        """)
        for k in range(4):
            a(f"s_waitcnt lgkmcnt({3-k})")
            a(f"buffer_store_dwordx4 {R(PK+16+4*k)}, v{KT_G}, {W}, s8 offen sc1")
            if k < 3: a(f"s_add_u32 s8, s8, {4*8192}")
    def f2_flag(pass_sgpr):
        a(f"""
        s_mul_i32 s8, s4, 5
        s_add_u32 s8, s8, s{pass_sgpr}
        s_lshl_b32 s8, s8, 5
        s_add_u32 s8, s8, s3
        s_lshl_b32 s8, s8, 2
        s_add_u32 s8, s8, {WS_F2}
        """)
        flag_store(8, 6)
    kvt_compute(0, 5)
    l_conv, l_aepi, l_cdone = a.newlabel(), a.newlabel(), a.newlabel()
    br_wave("lg", 3, l_conv)
    a("s_mov_b32 s10, 4")
    kvt_compute(1, 10)
    a("s_waitcnt vmcnt(0)")
    f2_flag(10); f2_flag(5)
    a("s_setprio 0")
    stamp(8)
    def wo_loop(p0):
        a(f"s_add_u32 s8, s65, {p0*160*1280}\ns_mov_b32 s9, {p0*25600}")
        l = a.newlabel()
        a.label(l)
        for m in range(5):
            a(f"s_add_u32 s10, s8, {(40*1280*m) if m < 4 else 0}")
            for n in range(5):
                a(f"s_add_u32 m0, s9, {5120*m + 1024*n}")
                a(f"buffer_load_dwordx4 v{VWO + n + (5 if m == 4 else 0)}, {SR_(S_B)}, s10 offen lds")
            a(f"s_waitcnt vmcnt({E('WOV', '5')})")
        a(f"""
        s_add_u32 s8, s8, {160*1280}
        s_add_u32 s9, s9, 25600
        s_cmp_lt_u32 s9, {(p0+2)*25600}
        s_cbranch_scc1 {l}
        """)
    if not E("NOWO"):
        wo_loop(2)
        lds_wait(4, 3, "ne", 8)
        wo_loop(0)
    a("s_waitcnt vmcnt(0)")
    lds_add(0, 1)
    a(f"s_branch {l_aepi}")
    a.label(l_conv)
    lds_add(4, 1)
    a(f"""
    s_lshl_b32 s12, s5, 8
    s_add_u32 s12, s12, s2              ; channel
    s_min_u32 s13, s12, 639
    s_lshl_b32 s8, s13, 12
    s_add_u32 s{S_A}, s{P_SK}, s8
    s_addc_u32 s{S_A+1}, s{P_SK+1}, 0
    s_mov_b32 s{S_A+2}, 4096
    s_lshl_b32 s8, s13, 13
    s_add_u32 s8, s8, {WS_XT}
    s_add_u32 s{S_B}, s{P_WS}, s8
    s_addc_u32 s{S_B+1}, s{P_WS+1}, 0
    s_mov_b32 s{S_B+2}, 4096
    s_add_u32 s{S_C}, s{S_B}, 4096
    s_addc_u32 s{S_C+1}, s{S_B+1}, 0
    s_mov_b32 s{S_C+2}, 4096
    s_load_dword s14, s[{S_A}:{S_A+1}], 0
    s_lshr_b32 s8, s13, 1
    s_lshl_b32 s8, s8, 2
    s_load_dword s15, s[{P_SD}:{P_SD+1}], s8
    s_mul_i32 s8, s13, 52429
    s_lshr_b32 s8, s8, 22
    s_mul_i32 s9, s8, 80
    s_sub_u32 s9, s13, s9
    s_lshr_b32 s9, s9, 4
    s_mul_i32 s8, s8, 5
    s_add_u32 s8, s8, s9
    s_lshl_b32 s13, s8, 7
    s_add_u32 s13, s13, {WS_F2}
    s_waitcnt vmcnt(0)
    """)
    f2_flag(5)
    a(f"s_waitcnt lgkmcnt(0)\ns_cmp_ge_u32 s12, 640\ns_cbranch_scc1 {l_cdone}")
    if E("NOCONV"): a(f"s_branch {l_cdone}")
    a(f"s_mov_b32 m0, s68\nbuffer_load_dwordx4 v{V_HD}, {SR_(S_A)}, 0 offen lds")
    a(f"s_add_u32 m0, s68, 1024\ns_movk_i32 s8, 960")
    for i in range(4): a(f"buffer_load_dwordx4 v{AK1}, {SR_(S_A)}, s8 offen offset:{1024*i} lds")
    a(f"""
    s_bitcmp1_b32 s12, 0
    s_cselect_b32 s8, 0, 16
    s_lshl_b32 s15, s15, s8
    s_and_b32 s15, s15, 0xffff0000
    s_lshl_b32 s8, s14, 16
    v_mov_b32 v5, s8
    v_add_f32 v5, s15, v5
    v_cvt_pk_bf16_f32 v5, v5, v5
    v_mov_b32 v6, s68
    s_waitcnt vmcnt(0)
    ds_write_b16 v6, v5 offset:64
    """)
    lds_wait(16, int(E("PF2", "7")), "lt", 8)
    poll(lambda: a(f"buffer_load_dword v4, v{V_F2}, {W}, s13 offen sc1"), [4], int(E("F2S", "16")))
    stamp(8)
    a("s_movk_i32 s8, 4096")
    for cl_ in range(2):
        a(f"s_add_u32 m0, s68, {5120 + 5120*cl_}")
        for i in range(4): a(f"buffer_load_dwordx4 v{AK1}, {SR_(S_C if cl_ else S_B)}, 0 offen offset:{1024*i} sc1 lds")
        a(f"s_add_u32 m0, s68, {5120 + 5120*cl_ + 4096}")
        a(f"buffer_load_dwordx4 v{AK1}, {SR_(S_C if cl_ else S_B)}, s8 offen sc1 lds")
    a(f"s_waitcnt vmcnt(0)\ns_setprio {E('PCONV', '0')}")
    CB = [96, 160]
    def c_reads(j):
        b = CB[j & 1]; r = []
        for u in range(8):
            o = (4 + 512 * (u & 1) + 64 * j) // 4
            r.append(f"ds_read_b128 {R(b+32+4*u)}, v{V_B} offset:{5120 + (56 - 8*u + j)*64}")
            r.append(f"ds_read2_b32 {R(b+4*u,2)}, v{VA+u//2} offset0:{o} offset1:{o+1}")
            r.append(f"ds_read2_b32 {R(b+4*u+2,2)}, v{VA+u//2} offset0:{o+2} offset1:{o+3}")
        return r
    THR = dict(zip(range(2, 8), [int(x) for x in E("THR", "3,3,3,3,2,2").split(",")]))
    for x in c_reads(0): a(x)
    for j in range(8):
        nxt = c_reads(j + 1) if j < 7 else []
        if j + 1 in THR: nxt.append(f"ds_read_b32 v4, v{VS} offset:16")
        a("s_waitcnt lgkmcnt(0)")
        if j in THR:
            l = a.newlabel()
            a(f"v_readfirstlane_b32 s8, v4\ns_cmp_gt_u32 s8, {THR[j]}\ns_cbranch_scc1 {l}\ns_setprio 2")
            a.label(l)
        b = CB[j & 1]; n = 0
        order = [(u, nb) for u in range(8) for nb in range(u, 8)]
        if E("CORD") == "acc": order.sort(key=lambda x: (x[1], x[0]))
        if E("CORD") == "b": order.sort(key=lambda x: (x[1] - x[0], x[0]))
        seen = set()
        for u, nb in order:
            if True:
                d = R(O + 4 * nb)
                a(f"v_mfma_f32_16x16x32_bf16 {d}, {R(b+4*u)}, {R(b+32+4*(nb-u))}, {'0' if (j == 0 and nb not in seen) else d}")
                seen.add(nb)
                n += 1
                if n % 4 == 0:
                    for x in nxt[:3]: a(x)
                    nxt = nxt[3:]
        assert not nxt
    a(f"s_setprio 2\ns_lshl_b32 s8, s12, 12\ns_add_u32 s8, s8, {WS_Z}")
    for pr_ in range(4):
        zb = 96 + 4 * pr_
        for k in range(4): a(f"v_cvt_pk_bf16_f32 v{zb+k}, v{O+8*pr_+2*k}, v{O+8*pr_+2*k+1}")
        a(f"v_permlane32_swap_b32 v{zb}, v{zb+2}\nv_permlane32_swap_b32 v{zb+1}, v{zb+3}")
        a(f"buffer_store_dwordx4 {R(zb)}, v{V_ZS}, {W}, s8 offen offset:{1024*pr_} sc1")
    a(f"s_lshl_b32 s8, s12, 2\ns_add_u32 s8, s8, {WS_F3}\ns_waitcnt vmcnt(0)")
    flag_store(8, 6)
    a.label(l_cdone)
    lds_add(8, 1)
    a.label(l_aepi)
    stamp(9)
    a("s_setprio 2")
    XF, AF, AC = 8, 96, 64
    def o_reads(ks):
        b = AF + 20 * (ks % 8)
        for nb in range(5):
            for z in range(2): a(f"ds_read_b64_tr_b16 {R(b+4*nb+2*z,2)}, v{VT+z} offset:{ks*5120 + nb*32}")
    QRW, ZR, U = 8, 24, 64
    X40 = "s_mov_b32 exec_lo, -1\ns_mov_b32 exec_hi, 0xff"
    srd(S_A, P_AQ, ACT)
    a(X40)
    for e in range(8):
        a(f"s_movk_i32 s8, {(16*(e>>2) + 2*(e&3))*1280}")
        a(f"buffer_load_dwordx2 {R(QRW+2*e,2)}, v{AE}, {SR_(S_A)}, s8 offen")
    a(f"""
    s_mov_b64 exec, -1
    buffer_load_dwordx4 {R(64)}, v{PV+2}, {W}, s72 offen sc1
    buffer_load_dwordx4 {R(64)}, v{PV+2}, {W}, s72 offen offset:1024 sc1
    buffer_load_dwordx2 {R(64,2)}, v{PV+3}, {W}, s73 offen sc1
    buffer_load_dwordx2 {R(64,2)}, v{PV+3}, {W}, s73 offen offset:256 sc1
    v_mov_b32 v4, 0
    buffer_load_dword v64, v4, {W}, s74 offen sc1
    """)
    lds_wait(0, 2, "ne", 16)
    for ks in range(8): o_reads(ks)
    srd(S_C, P_OUT, 2 * ACT)
    def unp(dst, src, hi): a(f"v_and_b32 v{dst}, s14, v{src}" if hi else f"v_lshlrev_b32 v{dst}, 16, v{src}")
    def z_fetch(once):
        a(f"""
        s_lshl_b32 s11, s3, 7
        s_lshl_b32 s8, s5, 5
        s_add_u32 s11, s11, s8
        s_add_u32 s11, s11, {WS_Z}
        s_mov_b32 s14, {WS_F3}
        {X40}
        """)
        l = a.newlabel()
        poll(lambda: a(f"buffer_load_dwordx4 {R(40)}, v{AE+2}, {W}, s14 offen sc1"), [40, 41, 42, 43], 4, fail=l if once else None)
        stamp(11)
        for i in range(4):
            a(f"buffer_load_dwordx4 {R(ZR+4*i)}, v{AE+3}, {W}, s11 offen sc1")
            if i < 3: a("s_add_u32 s11, s11, 4096")
        a("s_mov_b32 s70, 1\ns_mov_b32 s14, 0xffff0000\ns_waitcnt vmcnt(0)")
        for e in range(8):
            for i in range(4):
                unp(U + i, QRW + 2 * e + i // 2, i % 2); unp(U + 4 + i, ZR + 4 * i + e // 2, e % 2)
            for i in range(4): a(f"v_mul_f32 v{U+i}, v{U+i}, v{U+4+i}")
            for i in (0, 2): a(f"v_cvt_pk_bf16_f32 v{QRW+2*e+i//2}, v{U+i}, v{U+i+1}")
            a(f"s_mov_b32 s8, {(16*(e>>2) + 2*(e&3))*2560}")
            a(f"buffer_store_dwordx2 {R(QRW+2*e,2)}, v{AE+1}, {SR_(S_C)}, s8 offen{OSFX}")
        a.label(l)
        a("s_mov_b64 exec, -1")
    if not E("NOAEPI"):
        a("s_mov_b32 s70, 0")
        lds_wait(16, 1, "lt", 8)
        a(f"s_setprio {E('PAE', '2')}")
        l_try, l_giveup = a.newlabel(), a.newlabel()
        a.label(l_try)
        a(f"s_sleep {E('ZS', '16')}")
        z_fetch(True)
        a(f"""
        s_cmp_eq_u32 s70, 1
        s_cbranch_scc1 {l_giveup}
        ds_read_b32 v4, v{VS} offset:16
        s_waitcnt lgkmcnt(0)
        v_readfirstlane_b32 s8, v4
        s_cmp_lg_u32 s8, 0
        s_cbranch_scc1 {l_try}
        """)
        a.label(l_giveup)
    a.label(l_svcend)
    fin_addr2(2)
    a("s_waitcnt vmcnt(0) lgkmcnt(0)")
    stamp(12)
    a("s_barrier   ; R")
    a(f"ds_read_b32 v5, v{VS} offset:8")
    OWN = O
    for j in range(2):
        for r in range(3): a(f"ds_read_b128 {R(OWN+12*j+4*r)}, v{PV+j} offset:{1024*r}")
    a(f"s_branch {l_R}")
    a.label(l_cg1)
    for n in range(5): wpat(VD + n, 64 * n, True)
    a(f"""
    s_sub_u32 s8, s5, 4
    s_mul_i32 s11, s8, 5120
    s_add_u32 s11, s11, {L_W}
    s_mul_i32 s10, s8, {32*1280}
    s_add_u32 s10, s10, s65
    s_mul_i32 s12, s66, {128*1280}
    """)
    tail_addr(True); hi_addr(); gemm_addr(1); fin_addr(); a('v_mov_b32 v55, -1\nv_mov_b32 v60, -1'); a(f"v_mov_b32 v{AE+1}, -1\nv_mov_b32 v{AE+2}, -1\nv_mov_b32 v{AE+3}, -1")
    got_args()
    if E("TLB"):
        M2 = 1 << 21
        pages = [(P_WQ, 0), (P_X, 0), (P_X, M2), (P_AK, 0), (P_AK, M2), (P_AV, 0), (P_AV, M2), (P_SH, 0),
                 (P_WS, M2), (P_WS, 2*M2), (P_WS, 3*M2), (P_WS, 4*M2), (P_WS, 5*M2), (P_SK, 0), (P_SK, M2), (P_SD, 0),
                 (P_WO, 0), (P_AQ, 0), (P_AQ, M2), (P_OUT, 0), (P_OUT, M2), (P_OUT, 2*M2)]
        for w in range(4):
            def t(w=w):
                for p_, o_ in pages[w::4]: a(f"s_mov_b32 s8, {o_}\ns_load_dword s13, s[{p_}:{p_+1}], s8")
            only(4 + w, t)
    srd(S_B, P_WQ, D * D * 2); srd(S_WS, P_WS, WS_END)
    if not E("TLB"): got_tag()
    a(f"s_setprio {E('PHI', '0')}\ns_barrier   ; b0")
    w_issue(0)
    stamp(1)
    a(f"s_waitcnt vmcnt({E('W1', '5')})"); w_issue(1); a("s_waitcnt vmcnt(5)")
    l = a.newlabel(); br_wave("eq", 7, l); w_issue(2); a.label(l)
    if E("TLB"): got_tag()
    q_path(1)
    for i in range(4): a(f"ds_read2_b64 {R(QM+4*i)}, v{QA+i} offset0:0 offset1:1")
    a(f"ds_read_b64 {R(QR,2)}, v{QA+4} offset:32\nds_read_b64 {R(QR+2,2)}, v{QA+5} offset:32")
    a(f"s_setprio 1\ns_movk_i32 s13, 8")
    for t in range(4): a(f"v_mfma_f32_32x32x16_bf16 {R(O+16*t,16)}, {R(KBH[-1]+10)}, {R(KBH[-1]+10)}, 0")
    l_fb, l_after = a.newlabel(), a.newlabel()
    def qk(t, kb, usec):
        return f"v_mfma_f32_32x32x16_bf16 {R(SR+16*t,16)}, {R(kb)}, {R(QM+4*t)}, {R(C+16*t,16) if usec else '0'}"
    def qr(p, kb):
        d = R(SR + 32 * p, 32)
        if E("QR8"): return "\n".join(f"v_mfma_f32_32x32x8_bf16 {R(SR+32*p+16*i,16)}, {R(kb+4,2)}, {R(QR+2*p,2)}, {R(SR+32*p+16*i,16)}" for i in range(2))
        if E("NOQR"): return "s_nop 0\ns_nop 0"
        return f"v_mfma_f32_32x32x4_2b_bf16 {d}, {R(kb+4,2)}, {R(QR+2*p,2)}, {d}"
    def pv(t, hf, vb):
        d = R(O + 16 * t, 16)
        if E("PVSWAP"): return f"v_mfma_f32_32x32x16_bf16 {d}, {R(SR+16*t+8*hf)}, {R(vb+6+4*hf)}, {d}"
        return f"v_mfma_f32_32x32x16_bf16 {d}, {R(vb+6+4*hf)}, {R(SR+16*t+8*hf)}, {d}"
    MP = [int(x) for x in E("MP", "16,8,12,20,26,36,4").split(",")]
    DEFER = MP[6] < 40
    LP = [MP[5]] * 4
    SHA = bool(E("SHA")); UO = [0, 2, 1, 3] if SHA else [0, 1, 2, 3]
    def phase(p, kq_, vcur, vprev, extra, usec):
        ta, tb = 2 * p, 2 * p + 1
        na, nb_ = 2 * (1 - p), 2 * (1 - p) + 1
        base, pbase = SR + 32 * p, SR + 32 * (1 - p)
        def cv(b, j):
            bb = b + 8 * UO[j // 4]; k = j % 4
            return f"v_cvt_pk_bf16_f32 v{bb+k}, v{bb+2*k}, v{bb+2*k+1}"
        valu = []
        PAT = E("PAT", "eeeecc")
        for grp in range(8):
            ei = 0; cj = [2 * grp - 2, 2 * grp - 1]
            for ch in PAT:
                if ch == "e": rr = base + 8 * UO[grp // 2] + 4 * (grp % 2) + ei; valu.append(f"v_exp_f32 v{rr}, v{rr}"); ei += 1
                else:
                    j = cj.pop(0); valu.append(cv(base, j) if j >= 0 else cv(pbase, 16 + j))
        ins = dict(zip(MP, [[qk(na, kq_, usec)], [pv(nb_, 1, vprev)], [qk(nb_, kq_, usec)], [pv(ta, 0, vcur)],
               [qr(1 - p, kq_)], [pv(tb, 0, vcur) if SHA else pv(ta, 1, vcur)], [pv(na, 1, vprev) if SHA else (pv(nb_, 0, vprev) if DEFER else pv(tb, 0, vcur))]]))
        for k, v in extra.items():
            if k == "wait": ins[MP[3]] = v + ins[MP[3]]
            else: ins[k] = ins.get(k, []) + v
        for i, x in enumerate(valu):
            for y in ins.get(i, []): a(y)
            a(x)
        return [cv(base, 14), cv(base, 15)]
    def main_loop(kb, usec):
        nb = len(kb)
        a(f"s_waitcnt vmcnt({4 if E('LATEP') else 4*(nb-1)}) lgkmcnt(0)")
        stamp(8); rstamp(14)
        a(qk(0, kb[0], usec)); a(qk(1, kb[0], usec))
        for i in range(8): a(f"v_mov_b32 v{SR+56+i}, 0")
        for i in range(4): a(f"v_mov_b32 v{SR+(40 if SHA else 48)+i}, 0\nv_mov_b32 v{kb[-1]+6+i}, 0")
        a(qr(0, kb[0]))
        if usec or not E("LATEP"): a("s_nop 15\ns_nop 3")
        else: kv_prologue(kb, 1); a("s_nop 9")
        l_loop = a.newlabel()
        a(".p2align 6")
        a.label(l_loop)
        n0 = len(a.lines)
        for par in range(nb):
            cur, nxt, prv = kb[par], kb[(par + 1) % nb], kb[par - 1]
            lds_ = [f"buffer_load_dwordx4 {R(prv+6)}, v{AV}, {W}, s11 offen offset:{V0_OFF}{KVL}",
                    f"buffer_load_dwordx4 {R(prv+10)}, v{AV}, {W}, s11 offen offset:{V1_OFF}{KVL}",
                    f"buffer_load_dwordx4 {R(cur)}, v{AK1}, {W}, s11 offen offset:{TILE + K1_OFF}{KVL}",
                    f"buffer_load_dwordx2 {R(cur+4,2)}, v{AKR}, {W}, s11 offen offset:{TILE + KR_OFF}{KVL}"]
            ex = [{"wait": [f"s_waitcnt vmcnt({4*(nb-2) + sum(1 for p_ in LP if p_ < MP[3])})"]}, {}]
            for p_, l_ in zip(LP, lds_): ex[p_ // 48].setdefault(p_ % 48, []).append(l_)
            pm = max(LP)
            ex[pm // 48].setdefault(pm % 48, []).append(f"s_add_u32 s11, s11, {TILE}")
            if par == nb - 1:
                ex[0][pm % 48].append("s_sub_u32 s13, s13, 1")
                if not usec:
                    ex[1].setdefault(MP[5] - 3, []).append("v_mov_b32_e64 v4, s13")
                    ex[1].setdefault(MP[5], []).extend([f"ds_write_b32 v{VS}, v4 offset:16", f"ds_read_b32 v5, v{VS} offset:8"])
                ex[1].setdefault(MP[5], []).append("s_cmp_lg_u32 s13, 0")
            phase(0, cur, cur, prv, ex[0], usec)
            tail = phase(1, nxt, cur, cur, ex[1], usec)
        if not E("NOALIGN"):
            par_ = 0; last4 = None
            for i in range(n0, len(a.lines)):
                t = a.lines[i]
                small = t.startswith(("v_exp_f32 ", "v_mov_b32 ", "s_waitcnt", "s_sub_u32", "s_cmp_"))
                if small:
                    par_ ^= 1
                    if t.startswith("v_"): last4 = i
                elif par_ and last4 is not None and all(a.lines[j].startswith(("v_exp_f32 ", "v_mov_b32 ", "s_waitcnt", "s_sub_u32", "s_cmp_")) for j in range(last4, i)):
                    a.lines[last4] = a.lines[last4].replace(" ", "_e64 ", 1); par_ = 0
        a(f"s_cbranch_scc1 {l_loop}")
        if DEFER: a(pv(2, 1, kb[-1]) if SHA else pv(3, 0, kb[-1]))
        for x in tail: a(x)
        a(pv(3, 1, kb[-1]))
    main_loop(KBH, False)
    l_w, l_ok = a.newlabel(), a.newlabel()
    a(f"s_mov_b32 s96, {SPIN}")
    a.label(l_w)
    a(f"""
    s_waitcnt lgkmcnt(0)
    v_readfirstlane_b32 s8, v5
    s_and_b32 s9, s8, 0xff
    s_cmp_eq_u32 s9, 4
    s_cbranch_scc1 {l_ok}
    s_sleep 2
    ds_read_b32 v5, v{VS} offset:8
    s_sub_u32 s96, s96, 1
    s_cmp_lg_u32 s96, 0
    s_cbranch_scc1 {l_w}
    """)
    a.label(l_ok)
    a(f"s_bitcmp1_b32 s8, 8\ns_cbranch_scc1 {l_fb}")
    a.label(l_after)
    stamp(9); rstamp(15)
    for i in (1, 2, 3):
        for r in range(3): a(f"ds_write_b128 v{PV}, {R(O+16*i+4*r)} offset:{3072*(i-1) + 1024*r}")
    a("s_waitcnt lgkmcnt(0)")
    stamp(12)
    a("s_barrier   ; R")
    for r in range(3): a(f"ds_read_b128 {R(OWN+12+4*r)}, v{PV+1} offset:{1024*r}")
    a.label(l_R)
    a("s_waitcnt lgkmcnt(0)\nv_readfirstlane_b32 s71, v5")
    for r in (10, 8, 9, 0, 1, 2, 3, 4, 5, 6, 7): a(f"v_add_f32 v{OWN+r}, v{OWN+r}, v{OWN+12+r}")
    a(f"v_rcp_f32 v{OWN+10}, v{OWN+10}")
    for i in (8, 9, 0, 1, 2, 3, 4, 5, 6, 7): a(f"v_mul_f32 v{OWN+i}, v{OWN+i}, v{OWN+10}")
    PO = 88
    a(f"v_cvt_pk_bf16_f32 v{PO+4}, v{OWN+8}, v{OWN+9}\nv_cvt_pk_bf16_f32 v{PO+5}, v{OWN+8}, v{OWN+9}")
    for i in range(4): a(f"v_cvt_pk_bf16_f32 v{PO+i}, v{OWN+2*i}, v{OWN+2*i+1}")
    a(f"""
    v_permlane32_swap_b32 v{PO+4}, v{PO+5}
    s_waitcnt vmcnt(0)
    s_bitcmp1_b32 s71, 9
    s_cbranch_scc1 L_fast1
    buffer_store_dwordx4 {R(PO)}, v{PV+2}, {W}, s72 offen sc1
    s_mov_b32 exec_hi, 0
    buffer_store_dwordx2 {R(PO+4,2)}, v{PV+3}, {W}, s73 offen sc1
    s_branch L_fast2
    L_fast1:
    buffer_store_dwordx4 {R(PO)}, v{PV+2}, {W}, s72 offen{E('FSFX', ' nt')}
    s_mov_b32 exec_hi, 0
    buffer_store_dwordx2 {R(PO+4,2)}, v{PV+3}, {W}, s73 offen{E('FSFX', ' nt')}
    L_fast2:
    s_mov_b32 exec_hi, -1
    """)
    tstamp(1)
    srd(S_C, P_OUT, 2 * ACT)
    a(f"""
    s_lshl_b32 s12, s3, 1
    s_lshr_b32 s8, s77, 1
    s_add_u32 s12, s12, s8
    s_lshl_b32 s12, s12, 1
    s_add_u32 s12, s12, s76
    s_lshl_b32 s12, s12, 6
    s_add_u32 s12, s12, {WS_F4}
    v_lshl_add_u32 v4, v2, 2, s12
    s_lshl_b32 s8, s3, 8
    s_lshl_b32 s9, s4, 4
    s_add_u32 s8, s8, s9
    s_add_u32 s8, s8, {WS_F4}
    v_and_b32 v5, 3, v1
    v_lshl_add_u32 v5, v5, 2, s8
    v_bfe_u32 v6, v1, 2, 1
    v_lshl_add_u32 v5, v6, 7, v5
    s_mov_b32 s8, 0xffff0000
    s_mov_b32 s9, 0
    v_cndmask_b32 v4, v4, v5, s[8:9]
    v_lshlrev_b32 v5, 8, v3
    v_lshl_add_u32 v5, v2, 3, v5
    s_lshl_b32 s13, s3, 2
    s_add_u32 s13, s13, s77
    s_mul_i32 s13, s13, {OPB}
    s_add_u32 s13, s13, {WS_O}
    s_lshl_b32 s8, s76, 11
    s_add_u32 s15, s13, s8
    s_add_u32 s15, s15, 16384
    s_lshl_b32 s8, s76, 13
    s_add_u32 s13, s13, s8
    s_add_u32 s10, s13, 4096
    v_mov_b32 v6, s{TAG}
    v_mov_b32 v7, 0
    """)
    l = a.newlabel()
    br_wave("lt", 4, l)
    for ks in range(2): o_reads(ks)
    a.label(l)
    tstamp(2)
    a(f"""
    s_waitcnt vmcnt(0)
    s_mov_b64 exec, 1
    s_bitcmp1_b32 s71, 9
    s_cbranch_scc1 L_fast3
    buffer_store_dword v6, v7, {W}, s74 offen sc1
    s_branch L_fast4
    L_fast3:
    buffer_store_dword v6, v7, {W}, s74 offen
    L_fast4:
    s_mov_b64 exec, -1
    """)
    tstamp(3)
    if E("XBAR"): a("s_barrier")
    l, l2 = a.newlabel(), a.newlabel()
    br_wave("lt", 4, l)
    for ks in range(2, 6): o_reads(ks)
    a(f"s_branch {l2}")
    a.label(l)
    if not E("NOAEPI") and not E("NOSVC"):
        l3 = a.newlabel()
        a(f"s_cmp_eq_u32 s70, 1\ns_cbranch_scc1 {l3}")
        z_fetch(False)
        a.label(l3)
    a.label(l2)
    a(f"s_lshl_b32 s14, s64, 1\ns_add_u32 s14, s14, s65\ns_add_u32 s14, s14, 1280")
    tstamp(4)
    poll(lambda: a(f"buffer_load_dword v6, v4, {W}, 0 offen sc1"), [6], 1)
    tstamp(5)
    nld = []
    for ks in range(10):
        pr_, m = ks // 5, ks % 5
        if m < 4:
            a(f"buffer_load_dwordx4 {R(XF+4*ks)}, v{AK1}, {W}, s{10 if pr_ else 13} offen offset:{1024*m} sc1"); nld.append(1)
        else:
            for z in range(2): a(f"buffer_load_dwordx2 {R(XF+4*ks+2*z,2)}, v5, {W}, s15 offen offset:{1024*pr_ + 128*z} sc1")
            nld.append(2)
    l = a.newlabel()
    br_wave("lt", 4, l)
    for ks in range(6, 8): o_reads(ks)
    fin_addr2(1)
    a.label(l)
    tstamp(6)
    for ks in range(10):
        a(f"s_waitcnt vmcnt({sum(nld[ks+1:])})" + {0: " lgkmcnt(15)", 6: " lgkmcnt(15)", 8: " lgkmcnt(10)", 9: " lgkmcnt(0)"}.get(ks, ""))
        b = AF + 20 * (ks % 8)
        for nb in range(5):
            d = R(AC + 4 * nb)
            a(f"v_mfma_f32_16x16x32_bf16 {d}, {R(b+4*nb)}, {R(XF+4*ks)}, {'0' if ks == 0 else d}")
        if ks < 2: o_reads(8 + ks)
    tstamp(7)
    for nb in range(5): a(f"ds_write_b128 v54, {R(AC+4*nb)} offset:{64*nb}")
    a("s_waitcnt lgkmcnt(0)\ns_barrier")
    def fin_rd(i):
        b = 96 + 16 * i
        a(f"ds_read_b128 {R(b)}, v{FRD[i]}\nds_read_b128 {R(b+4)}, v{FRD[i]} offset:16")
        a(f"ds_read_b128 {R(b+8)}, v{FRD[i]} offset:{OKH}\nds_read_b128 {R(b+12)}, v{FRD[i]} offset:{OKH+16}")
    def fin_st(i):
        b = 96 + 16 * i
        for r in range(8): a(f"v_add_f32 v{b+r}, v{b+r}, v{b+8+r}")
        for r in range(4): a(f"v_cvt_pk_bf16_f32 v{b+8+r}, v{b+2*r}, v{b+2*r+1}")
        a(f"buffer_store_dwordx4 {R(b+8)}, v{FST[i]}, {SR_(S_C)}, s14 offen{OSFX}")
    l = a.newlabel()
    fin_rd(0)
    br_wave("ge", 2, l)
    fin_rd(1); a("s_waitcnt lgkmcnt(0)"); fin_st(1)
    a.label(l)
    a("s_waitcnt lgkmcnt(0)"); fin_st(0)
    a.label("L_fin")
    if STAMP:
        a(f"""
        s_memtime s[98:99]
        s_waitcnt lgkmcnt(0)
        s_mov_b32 s96, s98
        s_memrealtime s[98:99]
        s_waitcnt lgkmcnt(0)
        s_mov_b32 s97, s98
        s_add_u32 s72, s{P_WS}, {WS_STAMP}
        s_addc_u32 s73, s{P_WS+1}, 0
        s_mov_b32 s74, 0x40000
        s_mov_b32 s75, 0x20000
        s_lshl_b32 s76, s2, 3
        s_add_u32 s76, s76, s5
        s_lshl_b32 s76, s76, 7
        v_mov_b32 v2, 0
        """)
        for i in range(18): a(f"v_mov_b32 v3, s{80+i}\nbuffer_store_dword v3, v2, s[72:75], s76 offen offset:{4*i}")
    a.label("L_exit")
    a("s_endpgm")
    a.label(l_fb)
    FB = [28, 240]
    FB = [28, 114]
    a("s_waitcnt vmcnt(0)\ns_nop 15\ns_nop 3")
    raise_fb = True
    TB, M = 28, 36
    for j in range(4): a(f"v_mov_b32 v{M+j}, 0xff800000")
    a(f"s_mov_b32 s11, {WS_KV}\ns_mov_b32 s14, 64\ns_mov_b32 s13, 16")
    l_f = a.newlabel()
    a.label(l_f)
    loadK(TB, 0)
    a("s_waitcnt vmcnt(0)")
    for t in range(4): a(qk(t, TB, False))
    a(qr(0, TB)); a(qr(1, TB))
    for t in range(4):
        for i in range(8): a(f"v_max3_f32 v{M+t}, v{M+t}, v{SR+16*t+2*i}, v{SR+16*t+2*i+1}")
    a(f"s_add_u32 s11, s11, {TILE}\ns_sub_u32 s14, s14, 1\ns_cmp_lg_u32 s14, 0\ns_cbranch_scc1 {l_f}")
    for t in range(4):
        a(f"v_mov_b32 v{M+4}, v{M+t}\nv_permlane32_swap_b32 v{M+t}, v{M+4}\nv_max_f32 v{M+4}, v{M+4}, v{M+t}")
        for i in range(16): a(f"v_sub_f32 v{C+16*t+i}, 0, v{M+4}")
    a(f"v_mov_b32 v6, v{VT}\nv_mov_b32 v7, v{VT+1}")
    for i in range(4): a(f"v_mov_b32 v{52+i}, 0")
    for t in range(4): a(f"v_mfma_f32_32x32x16_bf16 {R(O+16*t,16)}, {R(52)}, {R(52)}, 0")
    kv_prologue([28, 42])
    main_loop([28, 42], True)
    a(f"s_waitcnt vmcnt(0)\nv_mov_b32 v{VT}, v6\nv_mov_b32 v{VT+1}, v7"); fin_addr(); a(f"s_nop 7\ns_nop 7\ns_branch {l_after}")
    return a.finalize(verbose=bool(E("VERB")))


DOC = """;
; ---------------------------------------------------------------------------------------------
; ---------------------------------------------------------------------------------------------
"""

def build():
    hdr = open(f"cdna_kernels/{NAME}.s.ref").read().split("; @launch")[0]
    k = NAME + "_kernel"
    body = build_kernel()
    return hdr + f"""; @launch grid=(256,1,1) block=(512,1,1) lds=163840
.amdgcn_target "amdgcn-amd-amdhsa--gfx950"
{DOC}.text
.globl {k}
.p2align 8
.type {k},@function
{k}:
{body}.section .rodata,"a"
.p2align 6
.amdhsa_kernel {k}
  .amdhsa_next_free_vgpr 256
  .amdhsa_next_free_sgpr 100
  .amdhsa_accum_offset 256
  .amdhsa_group_segment_fixed_size 0
  .amdhsa_kernarg_size 112
  .amdhsa_user_sgpr_count 2
  .amdhsa_user_sgpr_kernarg_segment_ptr 1
  .amdhsa_system_sgpr_workgroup_id_x 1
.end_amdhsa_kernel
"""

if __name__ == "__main__":
    path = sys.argv[1] if len(sys.argv) > 1 else "final.s"
    open(path, "w").write(build())
    print("wrote", path)
```

```python
import sys, math, struct, os
sys.path.insert(0, "gen")
from asmlib import Asm

NAME = "concat_heads__ssm_conv_h3__grouped_kv_mqa__prompt"
S, D, H, DH = 2048, 640, 32, 20
ACT = S * D * 2
WS_E, WS_F1, WS_F2, WS_F3, WS_F4 = 0, 1024, 4096, 12288, 16384
WS_KV = 32768
TILE = 2816
KR_OFF, K1_OFF, V0_OFF, V1_OFF = 0, 256, 1280, 2048
WS_O = 0x40000
OPB = 20480
WS_Z = WS_O + ACT
WS_XT = WS_Z + ACT
WS_END = WS_XT + 2 * ACT
WS_STAMP = 0x2000000
QSCALE = (DH ** -0.5) * math.log2(math.e)
E = os.environ.get
STAMP = E("STAMP", "0") == "1"
TAILST = E("TAILST")
SPIN = 1 << 17
OSFX = " " + E("OSFX", "nt")
KVSC = " sc1"
KVL = " sc1" if E("KVSC1") else ""

def f2u(x): return struct.unpack("<I", struct.pack("<f", x))[0]
P_AQ, P_AK, P_AV, P_SH, P_SK, P_SD, P_X, P_WQ, P_WK, P_WV, P_WO, P_OUT, P_DBG, P_WS = [16 + 2 * i for i in range(14)]
S_WS, S_A, S_B, S_C, S_D = 44, 48, 52, 56, 60
TAG = 78
def R(b, n=4): return f"v[{b}:{b+n-1}]"
def SR_(b): return f"s[{b}:{b+3}]"
W = SR_(S_WS)

L_W = 81920; GSLOT = 20480
L_WKV = 163840 - 25600
L_Q = 102400; QSTR = 176
L_STAT = L_Q + 64 * QSTR
L_RED = 113920
L_CONV = 113920; CVS = 15360
L_OUT = 102400
L_SK, L_SV, L_KT = 0, 16384, 27648
WO_LOW = 45

a = Asm()
def srd(r, ptr, nbytes, off=0):
    if off:
        a(f"s_add_u32 s{r}, s{ptr}, {off}\ns_addc_u32 s{r+1}, s{ptr+1}, 0")
    else:
        a(f"s_mov_b32 s{r}, s{ptr}\ns_mov_b32 s{r+1}, s{ptr+1}")
    a(f"s_mov_b32 s{r+2}, {nbytes}\ns_mov_b32 s{r+3}, 0x20000")
def _st(i, op="s_memtime"): a(f"{op} s[98:99]\ns_waitcnt lgkmcnt(0)\ns_mov_b32 s{80+i}, s98")
def stamp(i):
    if STAMP and not (TAILST and 1 <= i <= 7): _st(i)
def tstamp(i):
    if STAMP and TAILST: _st(i)
def rstamp(i):
    if STAMP: _st(i, "s_memrealtime")
def br_wave(op, n, lab): a(f"s_cmp_{op}_u32 s5, {n}\ns_cbranch_scc1 {lab}")
def poll(load_fn, tagregs, sleep=2, cnt="vmcnt", val=None, op="ne", skipfirst=False, fail=None):
    val = val or f"s{TAG}"
    l, d = a.newlabel(), a.newlabel()
    a(f"s_mov_b32 s96, {SPIN}")
    if skipfirst:
        l0 = a.newlabel(); a(f"s_branch {l0}")
    a.label(l)
    load_fn()
    if skipfirst: a.label(l0)
    a(f"s_waitcnt {cnt}(0)")
    for i, t in enumerate(tagregs):
        if i == 0: a(f"v_cmp_{op}_u32 s[8:9], {val}, v{t}")
        else: a(f"v_cmp_ne_u32 vcc, {val}, v{t}\ns_or_b64 s[8:9], s[8:9], vcc")
    if fail:
        a(f"s_cmp_eq_u64 s[8:9], 0\ns_cbranch_scc0 {fail}"); return
    a(f"""
    s_cmp_eq_u64 s[8:9], 0
    s_cbranch_scc1 {d}
    s_sleep {sleep}
    s_sub_u32 s96, s96, 1
    s_cmp_lg_u32 s96, 0
    s_cbranch_scc1 {l}
    """)
    a.label(d)
def flag_store(soff_sgpr, vt):
    a(f"v_mov_b32 v{vt}, s{TAG}\nv_mov_b32 v{vt+1}, 0")
    a(f"s_mov_b64 exec, 1")
    a(f"buffer_store_dword v{vt}, v{vt+1}, {W}, s{soff_sgpr} offen sc1")
    a(f"s_mov_b64 exec, -1")
def wpat(dst, qbase, x4):
    a(f"""
    v_add_u32 v4, {qbase}, v1
    v_mul_u32_u24 v5, 6554, v4
    v_lshrrev_b32 v5, 16, v5
    v_mul_u32_u24 v6, 10, v5
    v_sub_u32 v6, v4, v6
    """)
    if x4: a("v_lshrrev_b32 v7, 1, v5\nv_and_b32 v7, 4, v7\nv_xor_b32 v5, v5, v7")
    a(f"v_mul_u32_u24 v5, 1280, v5\nv_lshl_add_u32 v{dst}, v6, 4, v5")

def build_kernel():
    if STAMP: a("s_memtime s[80:81]\ns_memrealtime s[92:93]")
    a(f"""
    s_cmp_ge_u32 s2, 256
    s_cbranch_scc1 L_exit
    s_load_dwordx16 s[16:31], s[0:1], 0
    s_load_dwordx8 s[32:39], s[0:1], 64
    s_load_dwordx4 s[40:43], s[0:1], 96
    v_lshrrev_b32 v1, 6, v0
    s_and_b32 s7, s2, 7
    s_lshl_b32 s3, s7, 2
    s_lshr_b32 s4, s2, 3
    v_readfirstlane_b32 s5, v1
    s_and_b32 s6, s4, 3
    s_add_u32 s3, s3, s6          ; s3 = pb64
    s_lshr_b32 s4, s4, 2          ; s4 = hg
    v_and_b32 v1, 63, v0          ; lane
    v_and_b32 v2, 15, v1          ; p
    v_lshrrev_b32 v3, 4, v1       ; kg
    s_mul_i32 s64, s3, {64*1280}
    s_mul_i32 s65, s4, 160
    s_add_u32 s66, s6, s7
    s_mul_i32 s8, s66, 52
    s_lshr_b32 s8, s8, 8
    s_mul_i32 s8, s8, 5
    s_sub_u32 s66, s66, s8
    s_and_b32 s67, s4, 3          ; pbk
    """)
    VD, VXR, VTR, VQW, VEX = 28, 34, 36, 38, 46
    VKR, VK4, VK5 = 40, 42, 43
    ACC, GF = 64, 96
    QM, QR = 8, 24
    O, SR, C = 64, 128, 192
    KBH = [192, 206, 220, 234]
    AK1, AKR, AV = 62, 63, 61
    PV, QA, VS, VT, AE = 56, 176, 44, 52, 48
    B0, B1, PA, PB = 16, 20, 64, 68
    KT_W, KT_R, KT_G, KT_S, VW2 = 240, 241, 242, 243, 244
    VA, V_B, V_ZW, V_ZS, V_HD, V_F2 = 228, 232, 233, 234, 235, 236
    VWO = 224
    WRAW = [216, 220]
    L_EX = 32768
    PW = int(E('PW', '1'))
    def gwrap(sreg, step):
        a(f"s_add_u32 s{sreg}, s{sreg}, {step}\ns_cmp_ge_u32 s{sreg}, {5*step}\ns_cselect_b32 s{sreg}, 0, s{sreg}")
    def shift2(r, d): a(f"v_add_u32 v{r}, {d & 0xffffffff}, v{r}\nv_add_u32 v{r+1}, {d & 0xffffffff}, v{r+1}")
    def loadK(buf, off):
        a(f"buffer_load_dwordx4 {R(buf)}, v{AK1}, {W}, s11 offen offset:{off + K1_OFF}{KVSC}")
        a(f"buffer_load_dwordx2 {R(buf+4,2)}, v{AKR}, {W}, s11 offen offset:{off + KR_OFF}{KVSC}")
    def loadV(buf, off):
        a(f"buffer_load_dwordx4 {R(buf+6)}, v{AV}, {W}, s11 offen offset:{off + V0_OFF}{KVSC}")
        a(f"buffer_load_dwordx4 {R(buf+10)}, v{AV}, {W}, s11 offen offset:{off + V1_OFF}{KVSC}")
    def kv_prologue(kb, part=None):
        nb = len(kb)
        if part != 1:
            a("s_mov_b32 s11, s79")
            loadK(kb[0], 0)
        for j in range(nb - 1):
            if (part == 0 and j > 0) or (part == 1 and j == 0): continue
            loadV(kb[j], 0); loadK(kb[j + 1], TILE); a(f"s_add_u32 s11, s11, {TILE}")
    def tail_addr(hi):
        T = 192
        a(f"""
        s_and_b32 s76, s5, 1
        s_lshr_b32 s77, s5, 1
        v_lshlrev_b32 v{AK1}, 4, v1
        v_bfe_u32 v{T}, v1, 4, 1
        v_mul_u32_u24 v{T}, {OPB}, v{T}
        v_lshl_add_u32 v{PV+3}, v2, 3, v{T}
        v_lshl_add_u32 v{T}, v2, 4, v{T}
        v_lshrrev_b32 v{T+1}, 5, v1
        v_lshl_add_u32 v{PV+2}, v{T+1}, 8, v{T}
        s_lshl_b32 s8, s3, 2
        s_lshl_b32 s9, s76, 1
        s_add_u32 s8, s8, s9
        s_mul_i32 s8, s8, {OPB}
        s_add_u32 s8, s8, {WS_O}
        s_lshl_b32 s9, s4, 2
        s_add_u32 s9, s9, s77
        s_lshl_b32 s72, s9, 9
        s_add_u32 s72, s72, s8
        s_lshl_b32 s73, s9, 7
        s_add_u32 s73, s73, s8
        s_add_u32 s73, s73, 16384
        s_lshl_b32 s74, s3, 1
        s_add_u32 s74, s74, s76
        s_lshl_b32 s74, s74, 5
        s_add_u32 s74, s74, s9
        s_lshl_b32 s74, s74, 2
        s_add_u32 s74, s74, {WS_F4}
        """)
        for j, i in enumerate((0, 1) if hi else (2, 3)):
            a(f"""
            s_xor_b32 s8, s5, {2*i}
            s_and_b32 s8, s8, 3
            s_mul_i32 s8, s8, 9216
            s_add_u32 s8, s8, {L_RED + 3072*max(i-1, 0)}
            v_add_u32 v{PV+j}, s8, v{AK1}
            """)
    def hi_addr():
        T = 192
        a(f"""
        v_and_b32 v{T}, 31, v1
        v_lshlrev_b32 v{AKR}, 3, v{T}
        v_lshrrev_b32 v{T+2}, 3, v{T}
        v_and_b32 v{T+3}, 3, v{T}
        v_lshl_add_u32 v{T+2}, v{T+2}, 2, v{T+3}
        v_bfe_u32 v{T+3}, v{T}, 2, 1
        v_mad_u32_u24 v{T+3}, v{T+3}, 10, v{T+2}
        v_mad_u32_u24 v{T+3}, v{T+1}, 20, v{T+3}
        v_cmp_gt_u32 s[8:9], 10, v{T+2}
        v_cmp_lt_u32 vcc, 10, v{T+2}
        v_mov_b32 v{T+4}, 40
        v_cndmask_b32 v{T+3}, v{T+4}, v{T+3}, s[8:9]
        v_lshlrev_b32 v{AV}, 4, v{T+3}
        v_mov_b32 v{T+4}, 0x40000000
        v_cndmask_b32 v{AV}, v{AV}, v{T+4}, vcc
        s_and_b32 s8, s77, 1
        s_mul_i32 s79, s8, {32*TILE}
        s_add_u32 s79, s79, {WS_KV}
        s_mul_i32 s8, s76, {32*QSTR}
        s_add_u32 s8, s8, {L_Q}
        v_mul_u32_u24 v{T+2}, {QSTR}, v{T}
        v_add_u32 v{T+2}, s8, v{T+2}
        v_lshl_add_u32 v{T+3}, v{T+1}, 4, v{T+2}
        v_xor_b32 v{T+4}, s77, v{T+1}
        v_xor_b32 v{T+5}, 2, v{T+4}
        v_mad_u32_u24 v{QA+4}, v{T+4}, 40, v{T+2}
        v_mad_u32_u24 v{QA+5}, v{T+5}, 40, v{T+2}
        """)
        for i in range(4):
            a(f"s_xor_b32 s8, s77, {i}\ns_mul_i32 s8, s8, 40\nv_add_u32 v{QA+i}, s8, v{T+3}")
        for i in range(4): a(f"v_mov_b32 v{KBH[-1]+10+i}, 0")
    def lo_addr():
        T = 192
        a(f"""
        s_mul_i32 s68, s5, 4224
        s_add_u32 s68, s68, {L_KT}
        v_and_b32 v4, 7, v1
        v_mul_u32_u24 v{T}, 528, v4
        v_lshrrev_b32 v5, 3, v1
        v_sub_u32 v{T+1}, 7, v5
        v_bfe_u32 v{T+2}, v{T+1}, 1, 1
        v_lshl_add_u32 v{T}, v{T+2}, 7, v{T}
        v_lshrrev_b32 v{T+2}, 2, v{T+1}
        v_lshl_add_u32 v{T}, v{T+2}, 6, v{T}
        v_and_b32 v{T+2}, 1, v{T+1}
        v_lshl_add_u32 v{T}, v{T+2}, 5, v{T}
        v_add_u32 v{KT_W}, s68, v{T}
        v_lshrrev_b32 v{T+1}, 5, v1
        v_lshlrev_b32 v{T+2}, 4, v{T+1}
        v_add3_u32 v{KT_R}, v{AK1}, v{T+2}, s68
        v_lshlrev_b32 v{T+3}, 12, v5
        v_lshl_add_u32 v{KT_G}, v4, 4, v{T+3}
        v_mul_u32_u24 v{T+3}, 1280, v5
        v_lshl_add_u32 v{T+3}, v4, 2, v{T+3}
        s_lshl_b32 s8, s5, 5
        v_add_u32 v{KT_S}, s8, v{T+3}
        ; convolution
        s_mul_i32 s68, s5, {CVS}
        s_add_u32 s68, s68, {L_CONV}
        v_and_b32 v{T}, 31, v1
        v_lshlrev_b32 v{V_F2}, 2, v{T}
        v_lshlrev_b32 v{T+2}, 2, v2
        v_lshlrev_b32 v{T+3}, 4, v3
        v_sub_u32 v{T+3}, v{T+2}, v{T+3}
        v_add3_u32 v{VA}, v{T+3}, 48, s68
        v_add_u32 v{VA+1}, 1024, v{VA}
        v_add_u32 v{VA+2}, 2048, v{VA}
        v_add_u32 v{VA+3}, 3072, v{VA}
        v_lshrrev_b32 v{T+2}, 1, v2
        v_sub_u32 v{T+2}, 7, v{T+2}
        v_lshlrev_b32 v{T+2}, 6, v{T+2}
        v_and_b32 v{T+3}, 1, v2
        v_lshl_add_u32 v{T+2}, v{T+3}, 4, v{T+2}
        v_sub_u32 v{T+3}, 3, v3
        v_and_b32 v{T+4}, 1, v{T+3}
        v_lshl_add_u32 v{T+2}, v{T+4}, 5, v{T+2}
        v_lshrrev_b32 v{T+3}, 1, v{T+3}
        v_mul_u32_u24 v{T+3}, 5120, v{T+3}
        v_add3_u32 v{V_B}, v{T+2}, v{T+3}, s68
        v_lshrrev_b32 v{T+2}, 2, v2
        v_lshlrev_b32 v{T+2}, 7, v{T+2}
        v_lshl_add_u32 v{T+2}, v{T+1}, 9, v{T+2}
        v_and_b32 v{T+3}, 1, v3
        v_lshl_add_u32 v{T+2}, v{T+3}, 6, v{T+2}
        v_and_b32 v{T+3}, 3, v2
        v_lshl_add_u32 v{V_ZS}, v{T+3}, 4, v{T+2}
        v_mov_b32 v{V_ZW}, -1
        v_subrev_u32 v{V_HD}, 64, v{AK1}
        v_cmp_lt_u32 s[8:9], 19, v1
        v_cndmask_b32 v{T}, 0, 1, s[8:9]
        v_mul_u32_u24 v{T+1}, 20, v{T}
        v_sub_u32 v{T+1}, v1, v{T+1}
        s_lshl_b32 s8, s76, 5
        s_lshl_b32 s9, s77, 3
        s_add_u32 s8, s8, s9
        s_add_u32 s8, s8, 1
        v_sub_u32 v{T+2}, s8, v{T}
        v_mul_u32_u24 v{T+2}, 1280, v{T+2}
        v_add_u32 v{T+2}, s64, v{T+2}
        v_lshl_add_u32 v{T+3}, v{T+1}, 3, s65
        v_lshl_add_u32 v{AE+1}, v{T+2}, 1, v{T+3}
        v_add_u32 v{AE}, v{T+2}, v{T+3}
        v_lshlrev_b32 v{AE+2}, 1, v{T+3}
        v_lshlrev_b32 v{T+3}, 11, v{T+3}
        v_lshl_add_u32 v{AE+3}, v{T}, 4, v{T+3}
        """)
    def stage(ptr, halo, base):
        if E("NOSTG"): return
        srd(S_D, ptr, ACT)
        a(f"s_add_u32 s8, s64, s65\ns_sub_u32 s8, s8, {halo*1280}")
        for i in range(11):
            if i < 5:
                a(f"v_add_u32 v4, s8, v{VW2 + i}\ns_mov_b32 m0, {base + 1024*i}\nbuffer_load_dwordx4 v4, {SR_(S_D)}, 0 offen lds")
            else:
                if i % 5 == 0: a(f"s_add_u32 s8, s8, {32*1280}")
                if i == 5 and halo == 1 and E("STH"): a(f"s_waitcnt vmcnt({E('STH')})")
                a(f"s_mov_b32 m0, {base + 1024*i}\nbuffer_load_dwordx4 v{VW2 + i % 5}, {SR_(S_D)}, s8 offen lds")
    def sync_init():
        a(f"""
        v_mov_b32 v4, 0
        v_mov_b32 v5, 0
        v_mov_b32 v6, 0
        v_mov_b32 v7, 8
        ds_write_b64 v{VS}, v[4:5]
        ds_write_b32 v{VS}, v4 offset:8
        ds_write_b32 v{VS}, v7 offset:16
        """)
    def only(w, fn):
        l = a.newlabel(); br_wave("lg", w, l); fn(); a.label(l)
    def publish_kv():
        l_v2, l_stat = a.newlabel(), a.newlabel()
        a(f"v_mov_b32 v8, 0\ns_cmp_ge_u32 s4, 4\ns_cbranch_scc1 {l_v2}")
        for i in range(4): a(f"v_dot2c_f32_bf16 v8, v{PA+i}, v{PA+i}")
        a(f"""
        v_mov_b32 v9, v8
        v_permlane32_swap_b32 v8, v9
        v_add_f32 v8, v8, v9
        v_dot2c_f32_bf16 v8, v{PB}, v{PB}
        v_dot2c_f32_bf16 v8, v{PB+1}, v{PB+1}
        s_nop 2
        s_branch {l_stat}
        """)
        a.label(l_v2)
        for b in range(B0, B0 + 8, 2): a(f"v_max3_f32 v8, v8, |v{b}|, |v{b+1}|")
        a("""
        v_mov_b32 v9, v8
        v_permlane16_swap_b32 v8, v9
        v_max_f32 v8, v8, v9
        v_mov_b32 v9, v8
        v_permlane32_swap_b32 v8, v9
        v_max_f32 v8, v8, v9
        s_nop 1
        """)
        a.label(l_stat)
        for sh in (1, 2, 4, 8):
            a(f"v_max_f32_dpp v8, v8, v8 row_shr:{sh} row_mask:0xf bank_mask:0xf")
        a("v_readlane_b32 s69, v8, 15")
        a(f"""
        s_lshl_b32 s8, s3, 3
        s_add_u32 s8, s8, s4
        s_lshl_b32 s8, s8, 3
        s_getreg_b32 s9, hwreg(HW_REG_XCC_ID, 0, 4)
        s_andn2_b32 s69, s69, 15
        s_or_b32 s69, s69, s9
        v_mov_b32 v4, s69
        v_mov_b32 v5, s{TAG}
        v_mov_b32 v6, 0
        s_waitcnt vmcnt(0)
        s_mov_b64 exec, 1
        buffer_store_dwordx2 v[4:5], v6, {W}, s8 offen offset:{WS_F1} sc1
        s_mov_b64 exec, -1
        """)

    def gemm_addr(cg):
        a(f"""
        v_mov_b32 v{VS}, {L_STAT}
        s_and_b32 s6, s77, 1
        v_lshrrev_b32 v4, 1, v2
        v_xor_b32 v4, v4, v3
        v_lshlrev_b32 v5, 7, v2
        v_lshl_add_u32 v39, v4, 4, v5
        s_lshl_b32 s7, s76, 1
        s_add_u32 s7, s7, s6
        s_lshl_b32 s8, s7, 11
        s_lshl_b32 s9, s6, 6
        v_xor_b32 v4, s9, v39
        v_add_u32 v{VXR}, s8, v4
        v_xor_b32 v{VXR+1}, 0x800, v{VXR}
        v_bfe_u32 v4, v1, 2, 2
        v_lshl_add_u32 v4, v3, 3, v4
        v_and_b32 v5, 1, v3
        v_lshl_add_u32 v6, v5, 2, v4
        v_xor_b32 v7, 4, v6
        v_and_b32 v5, 3, v1
        v_lshlrev_b32 v5, 3, v5
        s_movk_i32 s9, 160
        v_mad_u32_u24 v6, v6, s9, v5
        v_mad_u32_u24 v7, v7, s9, v5
        s_mul_i32 s8, s6, 5120
        s_add_u32 s8, s8, {L_W + 96*cg}
        v_add_u32 v{VTR}, s8, v6
        v_add_u32 v{VTR+1}, s8, v7
        s_mul_i32 s8, s76, 51200
        v_add_u32 v{VT}, s8, v6
        v_add_u32 v{VT+1}, s8, v7
        s_mul_i32 s8, s7, {16*QSTR}
        s_add_u32 s8, s8, {L_Q + 96*cg}
        v_mul_u32_u24 v4, {QSTR}, v2
        v_lshl_add_u32 v4, v3, 3, v4
        v_add_u32 v{VQW}, s8, v4
        s_mul_i32 s8, s5, 3072
        s_add_u32 s8, s8, {L_EX}
        v_add_u32 v{VEX}, s8, v{AK1}
        s_xor_b32 s8, s5, 2
        s_mul_i32 s8, s8, 3072
        s_add_u32 s8, s8, {L_EX}
        v_add_u32 v{VEX+1}, s8, v{AK1}
        """)
    def got_args():
        a(f"s_waitcnt lgkmcnt(0)\ns_load_dword s{TAG}, s[{P_WS}:{P_WS+1}], {WS_E}")
        if STAMP: a("s_mov_b32 s93, s92")
    def got_tag():
        a(f"s_waitcnt lgkmcnt(0)\ns_mul_i32 s{TAG}, s{TAG}, 0x9E3779B1\ns_add_u32 s{TAG}, s{TAG}, 0x7F4A7C15")
    def x_issue(g):
        a(f"s_add_u32 s8, s10, s12\ns_add_u32 s9, s8, {8*1280}")
        for hs in range(2):
            for par in range(2):
                a(f"s_add_u32 m0, s11, {(2*g+hs)*8192 + 1024*par - 128*hs}")
                a(f"buffer_load_dwordx4 v{VD+par}, {SR_(S_A)}, s{8+par} offen offset:{128*hs} lds")
        if g < 4: gwrap(12, 256)
    def wkv_issue(g):
        a(f"s_mov_b32 m0, {L_WKV + 5120*g}")
        for i in range(4):
            a(f"buffer_load_dwordx4 v{AK1}, {SR_(S_C)}, s13 offen offset:{1024*i} lds")
        a(f"s_mov_b32 m0, {L_WKV + 5120*g + 4096}\ns_add_u32 s8, s13, 4096")
        a(f"buffer_load_dwordx4 v{AK1}, {SR_(S_C)}, s8 offen lds")
        if g < 4: gwrap(13, 5120)
    def w_issue(g):
        a(f"s_add_u32 s8, s10, s12")
        for n in range(5):
            a(f"s_add_u32 m0, s11, {(g % 4)*GSLOT + 1024*n}")
            a(f"buffer_load_dwordx4 v{VD+n}, {SR_(S_B)}, s8 offen lds")
        if g < 4: gwrap(12, 128 * 1280)
    def q_stage(nblk, gs, xb, wb, mid=None):
        steps = [(g, hs) for g in gs for hs in range(2)]
        per = 2 + 2 * nblk
        for n, (g, hs) in enumerate(steps):
            b = GF + 20 * n
            for pl in range(2): a(f"ds_read_b128 {R(b+4*pl)}, v{VXR+pl} offset:{(2*g + hs)*8192 - xb}")
            for nb in range(nblk):
                off = (g % 4) * GSLOT + hs * 10240 + nb * 32 - wb
                for z in range(2): a(f"ds_read_b64_tr_b16 {R(b+8+4*nb+2*z,2)}, v{VTR+z} offset:{off}")
        if mid: mid()
        for n in range(len(steps)):
            a(f"s_waitcnt lgkmcnt({min(15, per * (len(steps) - 1 - n))})")
            b = GF + 20 * n
            for nb in range(nblk):
                for pl in range(2):
                    d = R(ACC + 12 * pl + 4 * nb)
                    a(f"v_mfma_f32_16x16x32_bf16 {d}, {R(b+8+4*nb)}, {R(b+4*pl)}, {'0' if (gs[0] == 0 and n == 0) else d}")
    def ld1():
        a(f"buffer_load_dwordx4 v[8:11], v45, {W}, 0 offen offset:{WS_F1} sc1")
        a(f"buffer_load_dwordx4 v[12:15], v45, {W}, 0 offen offset:{WS_F1+16} sc1")
    def q_path(cg):
        nblk = 3 if cg == 0 else 2
        stamp(2)
        a("s_barrier")
        stamp(3)
        q_stage(nblk, [0], 0, 0, (lambda: (only(7, lambda: w_issue(2)), w_issue(3))) if cg else None)
        a(f"s_waitcnt vmcnt({10 if cg else 0})")
        a("s_barrier")
        q_stage(nblk, [1], 0, 0, (lambda: w_issue(4)) if cg else None)
        shift2(VTR, 2 * GSLOT)
        if cg: a("s_waitcnt vmcnt(5)")
        a("s_barrier   ; b3")
        stamp(4)
        q_stage(nblk, [2, 3], 0, 2 * GSLOT, None if cg else (lambda: only(PW, ld1)))
        shift2(VTR, -2 * GSLOT); shift2(VXR, 65536)
        if cg: a("s_waitcnt vmcnt(0)")
        else: only(PW, lambda: poll(ld1, [9, 11, 13, 15], 1, skipfirst=True)); only(2, sync_init)
        a("s_barrier")
        stamp(5)
        if not cg and E("INV"): only(2, lambda: a("buffer_inv sc1"))
        q_stage(nblk, [4], 65536, 0, (lambda: kv_prologue(KBH, 0 if E('NOPALL') else None)) if cg else None)
        for nb in range(nblk): a(f"ds_write_b128 v{VEX}, {R(ACC+12+4*nb)} offset:{1024*nb}")
        if not cg and not E("NOSVC") and not E("LATEK"): only(3, lambda: (stage(P_AK, 4, L_SK), stage(P_AV, 1, L_SV) if E("EARLYV") else None))
        a(f"s_mov_b32 s8, 0xffff0000\ns_mov_b32 s9, {f2u(QSCALE)}")
        a("s_waitcnt lgkmcnt(0)\ns_barrier   ; bE")
        for nb in range(nblk): a(f"ds_read_b128 {R(ACC+12+4*nb)}, v{VEX+1} offset:{1024*nb}")
        if cg and not E("LATEP") and E("NOPALL"): kv_prologue(KBH, 1)
        for nb in range(nblk):
            b = ACC + 4 * nb
            a(f"s_waitcnt lgkmcnt({min(nblk - 1, nblk - 1 - nb + nb)})" if nb == 0 else f"s_waitcnt lgkmcnt({nblk - 1})")
            for r in range(4): a(f"v_add_f32 v{b+r}, v{b+r}, v{b+12+r}")
            for r in range(4): a(f"v_mul_f32 v{b+r}, s9, v{b+r}")
            for p in range(2): a(f"v_cvt_pk_bf16_f32 v{88+2*nb+p}, v{b+2*p}, v{b+2*p+1}")
            a(f"ds_write_b64 v{VQW}, {R(88+2*nb,2)} offset:{32*nb}")
        if not cg and E("INV"): only(2, lambda: a("s_waitcnt vmcnt(0)"))
        a("s_waitcnt lgkmcnt(0)\ns_barrier   ; B_Q")
        stamp(7)
    OSTR = 336; OKH = 64 * OSTR
    FRD, FST = [94, 95], [60, 55]
    def fin_addr():
        a(f"""
        v_mul_u32_u24 v54, {OSTR}, v2
        v_lshl_add_u32 v54, v3, 4, v54
        s_mul_i32 s8, s77, {16*OSTR}
        s_mul_i32 s9, s76, {OKH}
        s_add_u32 s8, s8, s9
        s_add_u32 s8, s8, {L_OUT}
        v_add_u32 v54, s8, v54
        """)
    def fin_addr2(n):
        for i in range(n):
            a(f"""
            v_add_u32 v84, {512*i}, v0
            v_mul_u32_u24 v85, 6554, v84
            v_lshrrev_b32 v85, 16, v85
            v_mul_u32_u24 v86, 10, v85
            v_sub_u32 v86, v84, v86
            v_mul_u32_u24 v{FRD[i]}, {OSTR}, v85
            v_lshl_add_u32 v{FRD[i]}, v86, 5, v{FRD[i]}
            v_add_u32 v{FRD[i]}, {L_OUT}, v{FRD[i]}
            v_mul_u32_u24 v{FST[i]}, 2560, v85
            v_lshl_add_u32 v{FST[i]}, v86, 4, v{FST[i]}
            """)
    def lds_add(off, val):
        a(f"v_mov_b32 v4, {val}\ns_mov_b64 exec, 1\nds_add_u32 v{VS}, v4 offset:{off}\ns_mov_b64 exec, -1")
    def lds_wait(off, val, op, sleep):
        poll(lambda: a(f"ds_read_b32 v4, v{VS} offset:{off}"), [4], sleep, "lgkmcnt", str(val), op)
    l_cg1, l_R, l_x, l_lo1 = a.newlabel(), a.newlabel(), a.newlabel(), a.newlabel()
    br_wave("ge", 4, l_cg1)
    a(f"""
    v_lshrrev_b32 v4, 3, v1
    v_mul_u32_u24 v4, 1280, v4
    v_and_b32 v5, 7, v1
    v_xor_b32 v5, v5, v3
    v_lshl_add_u32 v{VD}, v5, 4, v4
    v_xor_b32 v{VD+1}, 64, v{VD}
    s_add_u32 s8, s67, s5
    s_and_b32 s8, s8, 3
    s_mul_i32 s10, s8, {16*1280}
    s_add_u32 s10, s10, s64
    s_lshl_b32 s11, s8, 11
    s_lshl_b32 s12, s66, 8
    s_mul_i32 s13, s66, 5120
    v_lshlrev_b32 v45, 5, v1
    """)
    tail_addr(False); gemm_addr(0); fin_addr()
    br_wave("lg", 0, l_x)
    a(f"""
    v_add_u32 v{VKR}, s11, v39
    v_xor_b32 v{VKR+1}, 64, v{VKR}
    v_bfe_u32 v4, v1, 2, 2
    v_lshl_add_u32 v4, v3, 3, v4
    v_mul_u32_u24 v4, 40, v4
    v_add_u32 v{VK4}, {L_WKV}, v4
    v_and_b32 v5, 3, v1
    v_lshl_add_u32 v{VK5}, v5, 3, v{VK4}
    """)
    for n in range(15): a(f"v_mov_b32 v{(VW2 + n) if n < 5 else (VWO + n - 5)}, -1")
    got_args()
    a(f"""
    s_cmp_ge_u32 s4, 4
    s_cselect_b32 s{S_C}, s{P_WV}, s{P_WK}
    s_cselect_b32 s{S_C+1}, s{P_WV+1}, s{P_WK+1}
    s_mov_b32 s{S_C+2}, 25600
    s_mov_b32 s{S_C+3}, 0x20000
    """)
    srd(S_A, P_X, ACT)
    KORD = E("KORD", "wx")
    if KORD == "wx":
        for g in range(5): wkv_issue(g)
        for g in range(5):
            x_issue(g)
            if str(g) == E("B0"): a("s_barrier")
        wv = [40 - 5 * g for g in range(5)]; xv = [16 - 4 * g for g in range(5)]
    else:
        for g in range(5): x_issue(g)
        for g in range(5): wkv_issue(g)
        wv = [20 - 5 * g for g in range(5)]; xv = [0] * 5
    if not E("B0"): a("s_barrier   ; b0")
    stamp(1)
    srd(S_WS, P_WS, WS_END)
    got_tag()
    WPF, XT_ = 96, 72
    for g in range(5):
        a(f"s_waitcnt vmcnt({wv[g]})")
        for s_ in range(4):
            ks = 4 * g + s_; b = WPF + 8 * ks
            a(f"ds_read_b64_tr_b16 {R(b,2)}, v{VK5} offset:{ks*1280}")
            a(f"ds_read_b64_tr_b16 {R(b+2,2)}, v{VK5} offset:{ks*1280+160}")
            a(f"ds_read_b64_tr_b16 {R(b+4,2)}, v{VK4} offset:{ks*1280+32}")
            a(f"ds_read_b64_tr_b16 {R(b+6,2)}, v{VK4} offset:{ks*1280+192}")
    a(f"""
    s_lshr_b32 s12, s67, 1
    s_lshl_b32 s14, s3, 1
    s_add_u32 s12, s12, s14
    s_mul_i32 s12, s12, {TILE}
    s_add_u32 s12, s12, {WS_KV}
    s_and_b32 s10, s67, 1
    """)
    def kvpart(isv):
        for g in range(5):
            if g == 4: shift2(VKR, 65536)
            a(f"s_waitcnt vmcnt({xv[g]})")
            for s_ in range(4): a(f"ds_read_b128 {R(XT_+4*s_)}, v{VKR+(s_&1)} offset:{((2*g + (s_>>1)) % 8) * 8192}")
            for s_ in range(4):
                a(f"s_waitcnt lgkmcnt({3-s_})")
                for blk in range(2):
                    d = R(B0 + 4 * blk); c = "0" if (g == 0 and s_ == 0) else d
                    w_, x_ = R(WPF + 8 * (4 * g + s_) + 4 * blk), R(XT_ + 4 * s_)
                    a(f"v_mfma_f32_16x16x32_bf16 {d}, {x_ if isv else w_}, {w_ if isv else x_}, {c}")
    def pack(b, dst, swap):
        a(f"""
        v_cvt_pk_bf16_f32 v{dst}, v{b}, v{b+1}
        v_cvt_pk_bf16_f32 v{dst+1}, v{b+2}, v{b+3}
        v_cvt_pk_bf16_f32 v{dst+2}, v{b}, v{b+1}
        v_cvt_pk_bf16_f32 v{dst+3}, v{b+2}, v{b+3}
        {swap} v{dst}, v{dst+2}
        {swap} v{dst+1}, v{dst+3}
        """)
    l_v, l_pub = a.newlabel(), a.newlabel()
    a(f"s_cmp_ge_u32 s4, 4\ns_cbranch_scc1 {l_v}")
    a(f"""
    s_lshl_b32 s10, s10, 4
    v_add_u32 v5, s10, v2
    v_lshrrev_b32 v6, 1, v3
    v_lshl_add_u32 v6, v6, 5, v5
    v_lshlrev_b32 v6, 4, v6
    v_lshlrev_b32 v5, 3, v5
    """)
    kvpart(False)
    pack(B0, PA, "v_permlane16_swap_b32")
    a(f"""
    v_cvt_pk_bf16_f32 v{PB}, v{B1}, v{B1+1}
    v_cvt_pk_bf16_f32 v{PB+1}, v{B1+2}, v{B1+3}
    s_mov_b32 exec_lo, 0xffff
    s_mov_b32 exec_hi, 0xffff
    buffer_store_dwordx4 {R(PA)}, v6, {W}, s12 offen offset:{K1_OFF} sc1
    s_mov_b64 exec, 0xffff
    buffer_store_dwordx2 {R(PB,2)}, v5, {W}, s12 offen offset:{KR_OFF} sc1
    s_mov_b64 exec, -1
    s_branch {l_pub}
    """)
    a.label(l_v)
    a(f"""
    s_mul_i32 s10, s10, {V1_OFF - V0_OFF}
    s_add_u32 s12, s12, s10
    v_and_b32 v5, 1, v3
    v_mul_u32_u24 v5, 20, v5
    v_add_u32 v6, v5, v2
    v_lshlrev_b32 v6, 4, v6
    v_cmp_lt_u32 s[14:15], 3, v2
    v_mov_b32 v10, 0x3f803f80
    """)
    kvpart(True)
    pack(B0, PA, "v_permlane32_swap_b32")
    pack(B1, PB, "v_permlane32_swap_b32")
    a(f"s_mov_b32 exec_hi, 0")
    a(f"buffer_store_dwordx4 {R(PA)}, v6, {W}, s12 offen offset:{V0_OFF} sc1")
    for i in range(4): a(f"v_cndmask_b32 v{12+i}, v{PB+i}, v10, s[14:15]")
    a(f"""
    s_mov_b32 exec_lo, 0x00ff000f
    buffer_store_dwordx4 v[12:15], v6, {W}, s12 offen offset:{V0_OFF + 256} sc1
    s_mov_b64 exec, -1
    """)
    a.label(l_pub)
    stamp(6)
    publish_kv()
    lo_addr()
    a(f"s_branch {l_lo1}")
    a("; ======== waves 1..3 ========")
    a.label(l_x)
    lo_addr()
    for n in range(5): wpat(VW2 + n, 64 * n, False)
    def wo_pat():
        for n in range(5):
            a(f"""
            v_add_u32 v4, {64*n}, v1
            v_mul_u32_u24 v5, 6554, v4
            v_lshrrev_b32 v5, 16, v5
            v_mul_u32_u24 v6, 10, v5
            v_sub_u32 v6, v4, v6
            v_lshlrev_b32 v6, 4, v6
            v_lshrrev_b32 v7, 1, v5
            v_and_b32 v7, 4, v7
            v_xor_b32 v5, v5, v7
            v_lshrrev_b32 v7, 3, v5
            v_lshl_add_u32 v4, v7, 1, v5
            v_mul_u32_u24 v4, 1280, v4
            v_add_u32 v{VWO+n}, v4, v6
            v_lshrrev_b32 v7, 1, v5
            v_lshl_add_u32 v4, v7, 3, v5
            v_add_u32 v4, 8, v4
            v_mul_u32_u24 v4, 1280, v4
            v_add_u32 v{VWO+5+n}, v4, v6
            """)
    for n in range(4): a(f"v_mov_b32 v{VWO+n}, -1")
    only(3, wo_pat)
    got_args()
    srd(S_A, P_X, ACT); srd(S_WS, P_WS, WS_END); srd(S_C, P_WK, 25600)
    l = a.newlabel()
    a(f"""
    v_lshlrev_b32 v4, 7, v1
    s_sub_u32 s8, s5, 1
    s_lshl_b32 s8, s8, 13
    s_cmp_ge_u32 s2, 8
    s_cbranch_scc1 {l}
    buffer_load_dword v5, v4, {W}, s8 offen sc1
    """)
    a.label(l)
    got_tag()
    a(f"s_setprio {E('PX', '0')}\ns_barrier   ; b0")
    for g in range(5): x_issue(g)
    a("s_setprio 0")
    stamp(1)
    a("s_waitcnt vmcnt(16)")
    a.label(l_lo1)
    q_path(0)
    l_svcend = a.newlabel()
    if E("NOSVC"):
        lds_add(8, 1); a(f"s_branch {l_svcend}")
    only(3, lambda: (stage(P_AK, 4, L_SK) if E("LATEK") else None, a(f"s_waitcnt vmcnt({E('STG', '6')})"), None if E("EARLYV") else stage(P_AV, 1, L_SV)))
    srd(S_D, P_SH, D * 8); srd(S_B, P_WO, D * D * 2)
    a(f"""
    s_setprio {E('PKVT', '2')}
    v_and_b32 v4, 7, v1
    v_lshlrev_b32 v4, 4, v4
    s_lshl_b32 s8, s5, 7
    s_lshl_b32 s9, s65, 2
    s_add_u32 s8, s8, s9
    buffer_load_dwordx4 {R(WRAW[0])}, v4, {SR_(S_D)}, s8 offen
    buffer_load_dwordx4 {R(WRAW[1])}, v4, {SR_(S_D)}, s9 offen offset:512
    s_mov_b32 s12, 0xffff0000
    """)
    def decide():
        a(f"v_mul_u32_u24 v4, {QSTR}, v1\nv_add_u32 v4, {L_Q}, v4")
        for i in range(10): a(f"ds_read_b128 {R(128+4*i)}, v4 offset:{16*i}")
        a(f"""
        s_getreg_b32 s9, hwreg(HW_REG_XCC_ID, 0, 4)
        v_xor_b32 v5, s9, v8
        v_xor_b32 v6, s9, v10
        v_or_b32 v5, v5, v6
        v_xor_b32 v6, s9, v12
        v_xor_b32 v7, s9, v14
        v_or3_b32 v5, v5, v6, v7
        v_and_b32 v5, 15, v5
        v_cmp_ne_u32 vcc, 0, v5
        s_lshl_b32 s8, s3, 1
        s_lshr_b64 s[10:11], vcc, s8
        v_max_f32 v8, v8, v10
        v_max3_f32 v8, v8, v12, v14
        s_mov_b32 s8, 0x55555555
        s_mov_b32 s9, 0x55555555
        v_cndmask_b32 v10, 0, v8, s[8:9]
        v_cndmask_b32 v11, v8, 0, s[8:9]
        """)
        for m in ("row_shr:1 row_mask:0xf", "row_shr:2 row_mask:0xf", "row_shr:4 row_mask:0xf", "row_shr:8 row_mask:0xf",
                  "row_bcast:15 row_mask:0xa", "row_bcast:31 row_mask:0xc"):
            a(f"v_max_f32_dpp v10, v10, v10 {m} bank_mask:0xf\nv_max_f32_dpp v11, v11, v11 {m} bank_mask:0xf")
        for j in range(4): a(f"v_mov_b32 v{12+j}, 0")
        a("v_readlane_b32 s14, v10, 63\nv_readlane_b32 s15, v11, 63\ns_waitcnt lgkmcnt(0)")
        for r in range(10):
            for j in range(4): a(f"v_dot2c_f32_bf16 v{12+j}, v{128+10*j+r}, v{128+10*j+r}")
        a(f"""
        v_max3_f32 v12, v12, v13, v14
        v_max_f32 v12, v12, v15
        v_mul_f32 v12, s14, v12
        v_cmp_nge_f32 vcc, {f2u(64.0*64.0)}, v12
        s_mov_b32 s8, 1
        s_cmp_lg_u64 vcc, 0
        s_cselect_b32 s8, 0x101, s8
        s_cmp_lt_u32 s15, {f2u(2.0**-28)}
        s_cselect_b32 s8, 0x101, s8
        s_cmp_gt_u32 s15, {f2u(2.0**50)}
        s_cselect_b32 s8, 0x101, s8
        s_and_b32 s10, s10, 3
        s_cselect_b32 s9, 0, {0 if E("NOFAST") else 0x200}
        s_or_b32 s8, s8, s9
        """)
        lds_add(8, "s8")
    only(PW, decide)
    l = a.newlabel()
    a(f"s_or_b32 s8, s2, s5\ns_cmp_lg_u32 s8, 0\ns_cbranch_scc1 {l}\ns_mov_b32 s8, {WS_E}")
    flag_store(8, 6)
    a.label(l)
    a("s_waitcnt vmcnt(0)")
    only(3, lambda: lds_add(0, 1))
    lds_wait(0, 1, "ne", 2)
    stamp(10)
    KRW, KU, VU, WU, KV, PK = 192, 128, 152, 170, 64, 84
    def kvt_compute(ps, pass_sgpr):
        if E("NOKVT"): return
        kr = KRW; vr = kr + 12; wr = WRAW[ps]
        for r in range(12): a(f"ds_read_b32 v{kr+r}, v{KT_S} offset:{L_SK + 160*r + 32*ps}")
        for r in range(9): a(f"ds_read_b32 v{vr+r}, v{KT_S} offset:{L_SV + 160*r + 32*ps}")
        for j in range(4):
            for c in range(2):
                src = wr + 2 * c + j // 2
                a(f"v_lshlrev_b32 v{WU+2*j+c}, 16, v{src}" if j % 2 == 0 else f"v_and_b32 v{WU+2*j+c}, s12, v{src}")
        a("s_waitcnt lgkmcnt(9)")
        for r in range(12): a(f"v_lshlrev_b32 v{KU+2*r}, 16, v{kr+r}\nv_and_b32 v{KU+2*r+1}, s12, v{kr+r}")
        for i in range(18): a(f"v_mul_f32 v{KV+i}, v{KU+i}, v{WU+6+(i&1)}")
        for j in (2, 1, 0):
            for i in range(18): a(f"v_fmac_f32 v{KV+i}, v{KU+i+2*(3-j)}, v{WU+2*j+(i&1)}")
        a("s_waitcnt lgkmcnt(0)")
        for r in range(9): a(f"v_lshlrev_b32 v{VU+2*r}, 16, v{vr+r}\nv_and_b32 v{VU+2*r+1}, s12, v{vr+r}")
        for i in range(18): a(f"v_mul_f32 v{KV+i}, v{KV+i}, v{VU+i}")
        for c in range(2):
            for cp in range(2):
                for d in range(4):
                    lo = 7 - cp - 2 * d; hi = lo - 1
                    a(f"v_cvt_pk_bf16_f32 v{PK+8*c+4*cp+d}, v{KV+2*(lo+1)+c}, v{KV+2*(hi+1)+c}")
                a(f"ds_write_b128 v{KT_W}, {R(PK+8*c+4*cp)} offset:{256*c + 16*cp}")
        for k in range(4): a(f"ds_read_b128 {R(PK+16+4*k)}, v{KT_R} offset:{1056*k}")
        a(f"""
        s_mul_i32 s8, s4, 80
        s_lshl_b32 s9, s{pass_sgpr}, 4
        s_add_u32 s8, s8, s9
        s_lshl_b32 s8, s8, 13
        s_sub_u32 s9, 31, s3
        s_lshl_b32 s9, s9, 7
        s_add_u32 s8, s8, s9
        s_add_u32 s8, s8, {WS_XT}
        """)
        for k in range(4):
            a(f"s_waitcnt lgkmcnt({3-k})")
            a(f"buffer_store_dwordx4 {R(PK+16+4*k)}, v{KT_G}, {W}, s8 offen sc1")
            if k < 3: a(f"s_add_u32 s8, s8, {4*8192}")
    def f2_flag(pass_sgpr):
        a(f"""
        s_mul_i32 s8, s4, 5
        s_add_u32 s8, s8, s{pass_sgpr}
        s_lshl_b32 s8, s8, 5
        s_add_u32 s8, s8, s3
        s_lshl_b32 s8, s8, 2
        s_add_u32 s8, s8, {WS_F2}
        """)
        flag_store(8, 6)
    kvt_compute(0, 5)
    l_conv, l_aepi, l_cdone = a.newlabel(), a.newlabel(), a.newlabel()
    br_wave("lg", 3, l_conv)
    a("s_mov_b32 s10, 4")
    kvt_compute(1, 10)
    a("s_waitcnt vmcnt(0)")
    f2_flag(10); f2_flag(5)
    a("s_setprio 0")
    stamp(8)
    def wo_loop(p0):
        a(f"s_add_u32 s8, s65, {p0*160*1280}\ns_mov_b32 s9, {p0*25600}")
        l = a.newlabel()
        a.label(l)
        for m in range(5):
            a(f"s_add_u32 s10, s8, {(40*1280*m) if m < 4 else 0}")
            for n in range(5):
                a(f"s_add_u32 m0, s9, {5120*m + 1024*n}")
                a(f"buffer_load_dwordx4 v{VWO + n + (5 if m == 4 else 0)}, {SR_(S_B)}, s10 offen lds")
            a(f"s_waitcnt vmcnt({E('WOV', '3')})")
        a(f"""
        s_add_u32 s8, s8, {160*1280}
        s_add_u32 s9, s9, 25600
        s_cmp_lt_u32 s9, {(p0+2)*25600}
        s_cbranch_scc1 {l}
        """)
    if not E("NOWO"):
        wo_loop(2)
        lds_wait(4, 3, "ne", 8)
        wo_loop(0)
    a("s_waitcnt vmcnt(0)")
    lds_add(0, 1)
    a(f"s_branch {l_aepi}")
    a.label(l_conv)
    lds_add(4, 1)
    a(f"""
    s_lshl_b32 s12, s5, 8
    s_add_u32 s12, s12, s2              ; channel
    s_min_u32 s13, s12, 639
    s_lshl_b32 s8, s13, 12
    s_add_u32 s{S_A}, s{P_SK}, s8
    s_addc_u32 s{S_A+1}, s{P_SK+1}, 0
    s_mov_b32 s{S_A+2}, 4096
    s_lshl_b32 s8, s13, 13
    s_add_u32 s8, s8, {WS_XT}
    s_add_u32 s{S_B}, s{P_WS}, s8
    s_addc_u32 s{S_B+1}, s{P_WS+1}, 0
    s_mov_b32 s{S_B+2}, 4096
    s_add_u32 s{S_C}, s{S_B}, 4096
    s_addc_u32 s{S_C+1}, s{S_B+1}, 0
    s_mov_b32 s{S_C+2}, 4096
    s_load_dword s14, s[{S_A}:{S_A+1}], 0
    s_lshr_b32 s8, s13, 1
    s_lshl_b32 s8, s8, 2
    s_load_dword s15, s[{P_SD}:{P_SD+1}], s8
    s_mul_i32 s8, s13, 52429
    s_lshr_b32 s8, s8, 22
    s_mul_i32 s9, s8, 80
    s_sub_u32 s9, s13, s9
    s_lshr_b32 s9, s9, 4
    s_mul_i32 s8, s8, 5
    s_add_u32 s8, s8, s9
    s_lshl_b32 s13, s8, 7
    s_add_u32 s13, s13, {WS_F2}
    s_waitcnt vmcnt(0)
    """)
    f2_flag(5)
    a(f"s_waitcnt lgkmcnt(0)\ns_cmp_ge_u32 s12, 640\ns_cbranch_scc1 {l_cdone}")
    if E("NOCONV"): a(f"s_branch {l_cdone}")
    a(f"s_mov_b32 m0, s68\nbuffer_load_dwordx4 v{V_HD}, {SR_(S_A)}, 0 offen lds")
    a(f"s_add_u32 m0, s68, 1024\ns_movk_i32 s8, 960")
    for i in range(4): a(f"buffer_load_dwordx4 v{AK1}, {SR_(S_A)}, s8 offen offset:{1024*i} lds")
    a(f"""
    s_bitcmp1_b32 s12, 0
    s_cselect_b32 s8, 0, 16
    s_lshl_b32 s15, s15, s8
    s_and_b32 s15, s15, 0xffff0000
    s_lshl_b32 s8, s14, 16
    v_mov_b32 v5, s8
    v_add_f32 v5, s15, v5
    v_cvt_pk_bf16_f32 v5, v5, v5
    v_mov_b32 v6, s68
    s_waitcnt vmcnt(0)
    ds_write_b16 v6, v5 offset:64
    """)
    lds_wait(16, int(E("PF2", "7")), "lt", 8)
    poll(lambda: a(f"buffer_load_dword v4, v{V_F2}, {W}, s13 offen sc1"), [4], int(E("F2S", "16")))
    stamp(8)
    a("s_movk_i32 s8, 4096")
    for cl_ in range(2):
        a(f"s_add_u32 m0, s68, {5120 + 5120*cl_}")
        for i in range(4): a(f"buffer_load_dwordx4 v{AK1}, {SR_(S_C if cl_ else S_B)}, 0 offen offset:{1024*i} sc1 lds")
        a(f"s_add_u32 m0, s68, {5120 + 5120*cl_ + 4096}")
        a(f"buffer_load_dwordx4 v{AK1}, {SR_(S_C if cl_ else S_B)}, s8 offen sc1 lds")
    a(f"s_waitcnt vmcnt(0)\ns_setprio {E('PCONV', '0')}")
    CB = [96, 160]
    def c_reads(j):
        b = CB[j & 1]; r = []
        for u in range(8):
            o = (4 + 512 * (u & 1) + 64 * j) // 4
            r.append(f"ds_read_b128 {R(b+32+4*u)}, v{V_B} offset:{5120 + (56 - 8*u + j)*64}")
            r.append(f"ds_read2_b32 {R(b+4*u,2)}, v{VA+u//2} offset0:{o} offset1:{o+1}")
            r.append(f"ds_read2_b32 {R(b+4*u+2,2)}, v{VA+u//2} offset0:{o+2} offset1:{o+3}")
        return r
    THR = dict(zip(range(2, 8), [int(x) for x in E("THR", "3,3,3,3,2,2").split(",")]))
    for x in c_reads(0): a(x)
    for j in range(8):
        nxt = c_reads(j + 1) if j < 7 else []
        if j + 1 in THR: nxt.append(f"ds_read_b32 v4, v{VS} offset:16")
        a("s_waitcnt lgkmcnt(0)")
        if j in THR:
            l = a.newlabel()
            a(f"v_readfirstlane_b32 s8, v4\ns_cmp_gt_u32 s8, {THR[j]}\ns_cbranch_scc1 {l}\ns_setprio 2")
            a.label(l)
        b = CB[j & 1]; n = 0
        order = [(u, nb) for u in range(8) for nb in range(u, 8)]
        if E("CORD") == "acc": order.sort(key=lambda x: (x[1], x[0]))
        if E("CORD") == "b": order.sort(key=lambda x: (x[1] - x[0], x[0]))
        seen = set()
        for u, nb in order:
            if True:
                d = R(O + 4 * nb)
                a(f"v_mfma_f32_16x16x32_bf16 {d}, {R(b+4*u)}, {R(b+32+4*(nb-u))}, {'0' if (j == 0 and nb not in seen) else d}")
                seen.add(nb)
                n += 1
                if n % 4 == 0:
                    for x in nxt[:3]: a(x)
                    nxt = nxt[3:]
        assert not nxt
    a(f"s_setprio 2\ns_lshl_b32 s8, s12, 12\ns_add_u32 s8, s8, {WS_Z}")
    for pr_ in range(4):
        zb = 96 + 4 * pr_
        for k in range(4): a(f"v_cvt_pk_bf16_f32 v{zb+k}, v{O+8*pr_+2*k}, v{O+8*pr_+2*k+1}")
        a(f"v_permlane32_swap_b32 v{zb}, v{zb+2}\nv_permlane32_swap_b32 v{zb+1}, v{zb+3}")
        a(f"buffer_store_dwordx4 {R(zb)}, v{V_ZS}, {W}, s8 offen offset:{1024*pr_} sc1")
    a(f"s_lshl_b32 s8, s12, 2\ns_add_u32 s8, s8, {WS_F3}\ns_waitcnt vmcnt(0)")
    flag_store(8, 6)
    a.label(l_cdone)
    lds_add(8, 1)
    a.label(l_aepi)
    stamp(9)
    a("s_setprio 2")
    XF, AF, AC = 8, 96, 64
    def o_reads(ks):
        b = AF + 20 * (ks % 8)
        for nb in range(5):
            for z in range(2): a(f"ds_read_b64_tr_b16 {R(b+4*nb+2*z,2)}, v{VT+z} offset:{ks*5120 + nb*32}")
    QRW, ZR, U = 8, 24, 64
    X40 = "s_mov_b32 exec_lo, -1\ns_mov_b32 exec_hi, 0xff"
    srd(S_A, P_AQ, ACT)
    a(X40)
    for e in range(8):
        a(f"s_movk_i32 s8, {(16*(e>>2) + 2*(e&3))*1280}")
        a(f"buffer_load_dwordx2 {R(QRW+2*e,2)}, v{AE}, {SR_(S_A)}, s8 offen")
    a(f"""
    s_mov_b64 exec, -1
    buffer_load_dwordx4 {R(64)}, v{PV+2}, {W}, s72 offen sc1
    buffer_load_dwordx4 {R(64)}, v{PV+2}, {W}, s72 offen offset:1024 sc1
    buffer_load_dwordx2 {R(64,2)}, v{PV+3}, {W}, s73 offen sc1
    buffer_load_dwordx2 {R(64,2)}, v{PV+3}, {W}, s73 offen offset:256 sc1
    v_mov_b32 v4, 0
    buffer_load_dword v64, v4, {W}, s74 offen sc1
    """)
    lds_wait(0, 2, "ne", 16)
    for ks in range(8): o_reads(ks)
    srd(S_C, P_OUT, 2 * ACT)
    def unp(dst, src, hi): a(f"v_and_b32 v{dst}, s14, v{src}" if hi else f"v_lshlrev_b32 v{dst}, 16, v{src}")
    def z_fetch(once):
        a(f"""
        s_lshl_b32 s11, s3, 7
        s_lshl_b32 s8, s5, 5
        s_add_u32 s11, s11, s8
        s_add_u32 s11, s11, {WS_Z}
        s_mov_b32 s14, {WS_F3}
        {X40}
        """)
        l = a.newlabel()
        poll(lambda: a(f"buffer_load_dwordx4 {R(40)}, v{AE+2}, {W}, s14 offen sc1"), [40, 41, 42, 43], 4, fail=l if once else None)
        stamp(11)
        for i in range(4):
            a(f"buffer_load_dwordx4 {R(ZR+4*i)}, v{AE+3}, {W}, s11 offen sc1")
            if i < 3: a("s_add_u32 s11, s11, 4096")
        a("s_mov_b32 s70, 1\ns_mov_b32 s14, 0xffff0000\ns_waitcnt vmcnt(0)")
        for e in range(8):
            for i in range(4):
                unp(U + i, QRW + 2 * e + i // 2, i % 2); unp(U + 4 + i, ZR + 4 * i + e // 2, e % 2)
            for i in range(4): a(f"v_mul_f32 v{U+i}, v{U+i}, v{U+4+i}")
            for i in (0, 2): a(f"v_cvt_pk_bf16_f32 v{QRW+2*e+i//2}, v{U+i}, v{U+i+1}")
            a(f"s_mov_b32 s8, {(16*(e>>2) + 2*(e&3))*2560}")
            a(f"buffer_store_dwordx2 {R(QRW+2*e,2)}, v{AE+1}, {SR_(S_C)}, s8 offen{OSFX}")
        a.label(l)
        a("s_mov_b64 exec, -1")
    if not E("NOAEPI"):
        a("s_mov_b32 s70, 0")
        lds_wait(16, 1, "lt", 8)
        a(f"s_setprio {E('PAE', '2')}")
        l_try, l_giveup = a.newlabel(), a.newlabel()
        a.label(l_try)
        a(f"s_sleep {E('ZS', '16')}")
        z_fetch(True)
        a(f"""
        s_cmp_eq_u32 s70, 1
        s_cbranch_scc1 {l_giveup}
        ds_read_b32 v4, v{VS} offset:16
        s_waitcnt lgkmcnt(0)
        v_readfirstlane_b32 s8, v4
        s_cmp_lg_u32 s8, 0
        s_cbranch_scc1 {l_try}
        """)
        a.label(l_giveup)
    a.label(l_svcend)
    fin_addr2(2)
    a("s_waitcnt vmcnt(0) lgkmcnt(0)")
    stamp(12)
    a("s_barrier   ; R")
    a(f"ds_read_b32 v5, v{VS} offset:8")
    OWN = O
    for j in range(2):
        for r in range(3): a(f"ds_read_b128 {R(OWN+12*j+4*r)}, v{PV+j} offset:{1024*r}")
    a(f"s_branch {l_R}")
    a.label(l_cg1)
    for n in range(5): wpat(VD + n, 64 * n, True)
    a(f"""
    s_sub_u32 s8, s5, 4
    s_mul_i32 s11, s8, 5120
    s_add_u32 s11, s11, {L_W}
    s_mul_i32 s10, s8, {32*1280}
    s_add_u32 s10, s10, s65
    s_mul_i32 s12, s66, {128*1280}
    """)
    tail_addr(True); hi_addr(); gemm_addr(1); fin_addr(); a('v_mov_b32 v55, -1\nv_mov_b32 v60, -1'); a(f"v_mov_b32 v{AE+1}, -1\nv_mov_b32 v{AE+2}, -1\nv_mov_b32 v{AE+3}, -1")
    got_args()
    if E("TLB"):
        M2 = 1 << 21
        pages = [(P_WQ, 0), (P_X, 0), (P_X, M2), (P_AK, 0), (P_AK, M2), (P_AV, 0), (P_AV, M2), (P_SH, 0),
                 (P_WS, M2), (P_WS, 2*M2), (P_WS, 3*M2), (P_WS, 4*M2), (P_WS, 5*M2), (P_SK, 0), (P_SK, M2), (P_SD, 0),
                 (P_WO, 0), (P_AQ, 0), (P_AQ, M2), (P_OUT, 0), (P_OUT, M2), (P_OUT, 2*M2)]
        for w in range(4):
            def t(w=w):
                for p_, o_ in pages[w::4]: a(f"s_mov_b32 s8, {o_}\ns_load_dword s13, s[{p_}:{p_+1}], s8")
            only(4 + w, t)
    srd(S_B, P_WQ, D * D * 2); srd(S_WS, P_WS, WS_END)
    if not E("TLB"): got_tag()
    a(f"s_setprio {E('PHI', '0')}\ns_barrier   ; b0")
    w_issue(0)
    stamp(1)
    a(f"s_waitcnt vmcnt({E('W1', '5')})"); w_issue(1); a("s_waitcnt vmcnt(5)")
    l = a.newlabel(); br_wave("eq", 7, l); w_issue(2); a.label(l)
    if E("TLB"): got_tag()
    q_path(1)
    for i in range(4): a(f"ds_read2_b64 {R(QM+4*i)}, v{QA+i} offset0:0 offset1:1")
    a(f"ds_read_b64 {R(QR,2)}, v{QA+4} offset:32\nds_read_b64 {R(QR+2,2)}, v{QA+5} offset:32")
    a(f"s_setprio 1\ns_movk_i32 s13, 8")
    for t in range(4): a(f"v_mfma_f32_32x32x16_bf16 {R(O+16*t,16)}, {R(KBH[-1]+10)}, {R(KBH[-1]+10)}, 0")
    l_fb, l_after = a.newlabel(), a.newlabel()
    def qk(t, kb, usec):
        return f"v_mfma_f32_32x32x16_bf16 {R(SR+16*t,16)}, {R(kb)}, {R(QM+4*t)}, {R(C+16*t,16) if usec else '0'}"
    def qr(p, kb):
        d = R(SR + 32 * p, 32)
        if E("QR8"): return "\n".join(f"v_mfma_f32_32x32x8_bf16 {R(SR+32*p+16*i,16)}, {R(kb+4,2)}, {R(QR+2*p,2)}, {R(SR+32*p+16*i,16)}" for i in range(2))
        if E("NOQR"): return "s_nop 0\ns_nop 0"
        return f"v_mfma_f32_32x32x4_2b_bf16 {d}, {R(kb+4,2)}, {R(QR+2*p,2)}, {d}"
    def pv(t, hf, vb):
        d = R(O + 16 * t, 16)
        if E("PVSWAP"): return f"v_mfma_f32_32x32x16_bf16 {d}, {R(SR+16*t+8*hf)}, {R(vb+6+4*hf)}, {d}"
        return f"v_mfma_f32_32x32x16_bf16 {d}, {R(vb+6+4*hf)}, {R(SR+16*t+8*hf)}, {d}"
    MP = [int(x) for x in E("MP", "16,8,12,20,26,36,4").split(",")]
    DEFER = MP[6] < 40
    LP = [MP[5]] * 4
    SHA = bool(E("SHA")); UO = [0, 2, 1, 3] if SHA else [0, 1, 2, 3]
    def phase(p, kq_, vcur, vprev, extra, usec):
        ta, tb = 2 * p, 2 * p + 1
        na, nb_ = 2 * (1 - p), 2 * (1 - p) + 1
        base, pbase = SR + 32 * p, SR + 32 * (1 - p)
        def cv(b, j):
            bb = b + 8 * UO[j // 4]; k = j % 4
            return f"v_cvt_pk_bf16_f32 v{bb+k}, v{bb+2*k}, v{bb+2*k+1}"
        valu = []
        PAT = E("PAT", "eeeecc")
        for grp in range(8):
            ei = 0; cj = [2 * grp - 2, 2 * grp - 1]
            for ch in PAT:
                if ch == "e": rr = base + 8 * UO[grp // 2] + 4 * (grp % 2) + ei; valu.append(f"v_exp_f32 v{rr}, v{rr}"); ei += 1
                else:
                    j = cj.pop(0); valu.append(cv(base, j) if j >= 0 else cv(pbase, 16 + j))
        ins = dict(zip(MP, [[qk(na, kq_, usec)], [pv(nb_, 1, vprev)], [qk(nb_, kq_, usec)], [pv(ta, 0, vcur)],
               [qr(1 - p, kq_)], [pv(tb, 0, vcur) if SHA else pv(ta, 1, vcur)], [pv(na, 1, vprev) if SHA else (pv(nb_, 0, vprev) if DEFER else pv(tb, 0, vcur))]]))
        for k, v in extra.items():
            if k == "wait": ins[MP[3]] = v + ins[MP[3]]
            else: ins[k] = ins.get(k, []) + v
        for i, x in enumerate(valu):
            for y in ins.get(i, []): a(y)
            a(x)
        return [cv(base, 14), cv(base, 15)]
    def main_loop(kb, usec):
        nb = len(kb)
        a(f"s_waitcnt vmcnt({4 if E('LATEP') else 4*(nb-1)}) lgkmcnt(0)")
        stamp(8); rstamp(14)
        a(qk(0, kb[0], usec)); a(qk(1, kb[0], usec))
        for i in range(8): a(f"v_mov_b32 v{SR+56+i}, 0")
        for i in range(4): a(f"v_mov_b32 v{SR+(40 if SHA else 48)+i}, 0\nv_mov_b32 v{kb[-1]+6+i}, 0")
        a(qr(0, kb[0]))
        if usec or not E("LATEP"): a("s_nop 15\ns_nop 3")
        else: kv_prologue(kb, 1); a("s_nop 9")
        l_loop = a.newlabel()
        a(".p2align 6")
        a.label(l_loop)
        n0 = len(a.lines)
        for par in range(nb):
            cur, nxt, prv = kb[par], kb[(par + 1) % nb], kb[par - 1]
            lds_ = [f"buffer_load_dwordx4 {R(prv+6)}, v{AV}, {W}, s11 offen offset:{V0_OFF}{KVL}",
                    f"buffer_load_dwordx4 {R(prv+10)}, v{AV}, {W}, s11 offen offset:{V1_OFF}{KVL}",
                    f"buffer_load_dwordx4 {R(cur)}, v{AK1}, {W}, s11 offen offset:{TILE + K1_OFF}{KVL}",
                    f"buffer_load_dwordx2 {R(cur+4,2)}, v{AKR}, {W}, s11 offen offset:{TILE + KR_OFF}{KVL}"]
            ex = [{"wait": [f"s_waitcnt vmcnt({4*(nb-2) + sum(1 for p_ in LP if p_ < MP[3])})"]}, {}]
            for p_, l_ in zip(LP, lds_): ex[p_ // 48].setdefault(p_ % 48, []).append(l_)
            pm = max(LP)
            ex[pm // 48].setdefault(pm % 48, []).append(f"s_add_u32 s11, s11, {TILE}")
            if par == nb - 1:
                ex[0][pm % 48].append("s_sub_u32 s13, s13, 1")
                if not usec:
                    ex[1].setdefault(MP[5] - 3, []).append("v_mov_b32_e64 v4, s13")
                    ex[1].setdefault(MP[5], []).extend([f"ds_write_b32 v{VS}, v4 offset:16", f"ds_read_b32 v5, v{VS} offset:8"])
                ex[1].setdefault(MP[5], []).append("s_cmp_lg_u32 s13, 0")
            phase(0, cur, cur, prv, ex[0], usec)
            tail = phase(1, nxt, cur, cur, ex[1], usec)
        if not E("NOALIGN"):
            par_ = 0; last4 = None
            for i in range(n0, len(a.lines)):
                t = a.lines[i]
                small = t.startswith(("v_exp_f32 ", "v_mov_b32 ", "s_waitcnt", "s_sub_u32", "s_cmp_"))
                if small:
                    par_ ^= 1
                    if t.startswith("v_"): last4 = i
                elif par_ and last4 is not None and all(a.lines[j].startswith(("v_exp_f32 ", "v_mov_b32 ", "s_waitcnt", "s_sub_u32", "s_cmp_")) for j in range(last4, i)):
                    a.lines[last4] = a.lines[last4].replace(" ", "_e64 ", 1); par_ = 0
        a(f"s_cbranch_scc1 {l_loop}")
        if DEFER: a(pv(2, 1, kb[-1]) if SHA else pv(3, 0, kb[-1]))
        for x in tail: a(x)
        a(pv(3, 1, kb[-1]))
    main_loop(KBH, False)
    l_w, l_ok = a.newlabel(), a.newlabel()
    a(f"s_mov_b32 s96, {SPIN}")
    a.label(l_w)
    a(f"""
    s_waitcnt lgkmcnt(0)
    v_readfirstlane_b32 s8, v5
    s_and_b32 s9, s8, 0xff
    s_cmp_eq_u32 s9, 4
    s_cbranch_scc1 {l_ok}
    s_sleep 2
    ds_read_b32 v5, v{VS} offset:8
    s_sub_u32 s96, s96, 1
    s_cmp_lg_u32 s96, 0
    s_cbranch_scc1 {l_w}
    """)
    a.label(l_ok)
    a(f"s_bitcmp1_b32 s8, 8\ns_cbranch_scc1 {l_fb}")
    a.label(l_after)
    stamp(9); rstamp(15)
    for i in (1, 2, 3):
        for r in range(3): a(f"ds_write_b128 v{PV}, {R(O+16*i+4*r)} offset:{3072*(i-1) + 1024*r}")
    a("s_waitcnt lgkmcnt(0)")
    stamp(12)
    a("s_barrier   ; R")
    for r in range(3): a(f"ds_read_b128 {R(OWN+12+4*r)}, v{PV+1} offset:{1024*r}")
    a.label(l_R)
    a("s_waitcnt lgkmcnt(0)\nv_readfirstlane_b32 s71, v5")
    for r in (10, 8, 9, 0, 1, 2, 3, 4, 5, 6, 7): a(f"v_add_f32 v{OWN+r}, v{OWN+r}, v{OWN+12+r}")
    a(f"v_rcp_f32 v{OWN+10}, v{OWN+10}")
    for i in (8, 9, 0, 1, 2, 3, 4, 5, 6, 7): a(f"v_mul_f32 v{OWN+i}, v{OWN+i}, v{OWN+10}")
    PO = 88
    a(f"v_cvt_pk_bf16_f32 v{PO+4}, v{OWN+8}, v{OWN+9}\nv_cvt_pk_bf16_f32 v{PO+5}, v{OWN+8}, v{OWN+9}")
    for i in range(4): a(f"v_cvt_pk_bf16_f32 v{PO+i}, v{OWN+2*i}, v{OWN+2*i+1}")
    a(f"""
    v_permlane32_swap_b32 v{PO+4}, v{PO+5}
    s_waitcnt vmcnt(0)
    s_bitcmp1_b32 s71, 9
    s_cbranch_scc1 L_fast1
    buffer_store_dwordx4 {R(PO)}, v{PV+2}, {W}, s72 offen sc1
    s_mov_b32 exec_hi, 0
    buffer_store_dwordx2 {R(PO+4,2)}, v{PV+3}, {W}, s73 offen sc1
    s_branch L_fast2
    L_fast1:
    buffer_store_dwordx4 {R(PO)}, v{PV+2}, {W}, s72 offen{E('FSFX', ' nt')}
    s_mov_b32 exec_hi, 0
    buffer_store_dwordx2 {R(PO+4,2)}, v{PV+3}, {W}, s73 offen{E('FSFX', ' nt')}
    L_fast2:
    s_mov_b32 exec_hi, -1
    """)
    tstamp(1)
    srd(S_C, P_OUT, 2 * ACT)
    a(f"""
    s_lshl_b32 s12, s3, 1
    s_lshr_b32 s8, s77, 1
    s_add_u32 s12, s12, s8
    s_lshl_b32 s12, s12, 1
    s_add_u32 s12, s12, s76
    s_lshl_b32 s12, s12, 6
    s_add_u32 s12, s12, {WS_F4}
    v_lshl_add_u32 v4, v2, 2, s12
    s_lshl_b32 s8, s3, 8
    s_lshl_b32 s9, s4, 4
    s_add_u32 s8, s8, s9
    s_add_u32 s8, s8, {WS_F4}
    v_and_b32 v5, 3, v1
    v_lshl_add_u32 v5, v5, 2, s8
    v_bfe_u32 v6, v1, 2, 1
    v_lshl_add_u32 v5, v6, 7, v5
    s_mov_b32 s8, 0xffff0000
    s_mov_b32 s9, 0
    v_cndmask_b32 v4, v4, v5, s[8:9]
    v_lshlrev_b32 v5, 8, v3
    v_lshl_add_u32 v5, v2, 3, v5
    s_lshl_b32 s13, s3, 2
    s_add_u32 s13, s13, s77
    s_mul_i32 s13, s13, {OPB}
    s_add_u32 s13, s13, {WS_O}
    s_lshl_b32 s8, s76, 11
    s_add_u32 s15, s13, s8
    s_add_u32 s15, s15, 16384
    s_lshl_b32 s8, s76, 13
    s_add_u32 s13, s13, s8
    s_add_u32 s10, s13, 4096
    v_mov_b32 v6, s{TAG}
    v_mov_b32 v7, 0
    """)
    l = a.newlabel()
    br_wave("lt", 4, l)
    for ks in range(2): o_reads(ks)
    a.label(l)
    tstamp(2)
    a(f"""
    s_waitcnt vmcnt(0)
    s_mov_b64 exec, 1
    s_bitcmp1_b32 s71, 9
    s_cbranch_scc1 L_fast3
    buffer_store_dword v6, v7, {W}, s74 offen sc1
    s_branch L_fast4
    L_fast3:
    buffer_store_dword v6, v7, {W}, s74 offen
    L_fast4:
    s_mov_b64 exec, -1
    """)
    tstamp(3)
    if E("XBAR"): a("s_barrier")
    l, l2 = a.newlabel(), a.newlabel()
    br_wave("lt", 4, l)
    for ks in range(2, 6): o_reads(ks)
    a(f"s_branch {l2}")
    a.label(l)
    if not E("NOAEPI") and not E("NOSVC"):
        l3 = a.newlabel()
        a(f"s_cmp_eq_u32 s70, 1\ns_cbranch_scc1 {l3}")
        z_fetch(False)
        a.label(l3)
    a.label(l2)
    a(f"s_lshl_b32 s14, s64, 1\ns_add_u32 s14, s14, s65\ns_add_u32 s14, s14, 1280")
    tstamp(4)
    poll(lambda: a(f"buffer_load_dword v6, v4, {W}, 0 offen sc1"), [6], 1)
    tstamp(5)
    nld = []
    for ks in range(10):
        pr_, m = ks // 5, ks % 5
        if m < 4:
            a(f"buffer_load_dwordx4 {R(XF+4*ks)}, v{AK1}, {W}, s{10 if pr_ else 13} offen offset:{1024*m} sc1"); nld.append(1)
        else:
            for z in range(2): a(f"buffer_load_dwordx2 {R(XF+4*ks+2*z,2)}, v5, {W}, s15 offen offset:{1024*pr_ + 128*z} sc1")
            nld.append(2)
    l = a.newlabel()
    br_wave("lt", 4, l)
    for ks in range(6, 8): o_reads(ks)
    fin_addr2(1)
    a.label(l)
    tstamp(6)
    for ks in range(10):
        a(f"s_waitcnt vmcnt({sum(nld[ks+1:])})" + {0: " lgkmcnt(15)", 6: " lgkmcnt(15)", 8: " lgkmcnt(10)", 9: " lgkmcnt(0)"}.get(ks, ""))
        b = AF + 20 * (ks % 8)
        for nb in range(5):
            d = R(AC + 4 * nb)
            a(f"v_mfma_f32_16x16x32_bf16 {d}, {R(b+4*nb)}, {R(XF+4*ks)}, {'0' if ks == 0 else d}")
        if ks < 2: o_reads(8 + ks)
    tstamp(7)
    for nb in range(5): a(f"ds_write_b128 v54, {R(AC+4*nb)} offset:{64*nb}")
    a("s_waitcnt lgkmcnt(0)\ns_barrier")
    def fin_rd(i):
        b = 96 + 16 * i
        a(f"ds_read_b128 {R(b)}, v{FRD[i]}\nds_read_b128 {R(b+4)}, v{FRD[i]} offset:16")
        a(f"ds_read_b128 {R(b+8)}, v{FRD[i]} offset:{OKH}\nds_read_b128 {R(b+12)}, v{FRD[i]} offset:{OKH+16}")
    def fin_st(i):
        b = 96 + 16 * i
        for r in range(8): a(f"v_add_f32 v{b+r}, v{b+r}, v{b+8+r}")
        for r in range(4): a(f"v_cvt_pk_bf16_f32 v{b+8+r}, v{b+2*r}, v{b+2*r+1}")
        a(f"buffer_store_dwordx4 {R(b+8)}, v{FST[i]}, {SR_(S_C)}, s14 offen{OSFX}")
    l = a.newlabel()
    fin_rd(0)
    br_wave("ge", 2, l)
    fin_rd(1); a("s_waitcnt lgkmcnt(0)"); fin_st(1)
    a.label(l)
    a("s_waitcnt lgkmcnt(0)"); fin_st(0)
    a.label("L_fin")
    if STAMP:
        a(f"""
        s_memtime s[98:99]
        s_waitcnt lgkmcnt(0)
        s_mov_b32 s96, s98
        s_memrealtime s[98:99]
        s_waitcnt lgkmcnt(0)
        s_mov_b32 s97, s98
        s_add_u32 s72, s{P_WS}, {WS_STAMP}
        s_addc_u32 s73, s{P_WS+1}, 0
        s_mov_b32 s74, 0x40000
        s_mov_b32 s75, 0x20000
        s_lshl_b32 s76, s2, 3
        s_add_u32 s76, s76, s5
        s_lshl_b32 s76, s76, 7
        v_mov_b32 v2, 0
        """)
        for i in range(18): a(f"v_mov_b32 v3, s{80+i}\nbuffer_store_dword v3, v2, s[72:75], s76 offen offset:{4*i}")
    a.label("L_exit")
    a("s_endpgm")
    a.label(l_fb)
    FB = [28, 240]
    FB = [28, 114]
    a("s_waitcnt vmcnt(0)\ns_nop 15\ns_nop 3")
    raise_fb = True
    TB, M = 28, 36
    for j in range(4): a(f"v_mov_b32 v{M+j}, 0xff800000")
    a(f"s_mov_b32 s11, {WS_KV}\ns_mov_b32 s14, 64\ns_mov_b32 s13, 16")
    l_f = a.newlabel()
    a.label(l_f)
    loadK(TB, 0)
    a("s_waitcnt vmcnt(0)")
    for t in range(4): a(qk(t, TB, False))
    a(qr(0, TB)); a(qr(1, TB))
    for t in range(4):
        for i in range(8): a(f"v_max3_f32 v{M+t}, v{M+t}, v{SR+16*t+2*i}, v{SR+16*t+2*i+1}")
    a(f"s_add_u32 s11, s11, {TILE}\ns_sub_u32 s14, s14, 1\ns_cmp_lg_u32 s14, 0\ns_cbranch_scc1 {l_f}")
    for t in range(4):
        a(f"v_mov_b32 v{M+4}, v{M+t}\nv_permlane32_swap_b32 v{M+t}, v{M+4}\nv_max_f32 v{M+4}, v{M+4}, v{M+t}")
        for i in range(16): a(f"v_sub_f32 v{C+16*t+i}, 0, v{M+4}")
    a(f"v_mov_b32 v6, v{VT}\nv_mov_b32 v7, v{VT+1}")
    for i in range(4): a(f"v_mov_b32 v{52+i}, 0")
    for t in range(4): a(f"v_mfma_f32_32x32x16_bf16 {R(O+16*t,16)}, {R(52)}, {R(52)}, 0")
    kv_prologue([28, 42])
    main_loop([28, 42], True)
    a(f"s_waitcnt vmcnt(0)\nv_mov_b32 v{VT}, v6\nv_mov_b32 v{VT+1}, v7"); fin_addr(); a(f"s_nop 7\ns_nop 7\ns_branch {l_after}")
    return a.finalize(verbose=bool(E("VERB")))


DOC = """;
; ---------------------------------------------------------------------------------------------
; ---------------------------------------------------------------------------------------------
"""

def build():
    hdr = open(f"cdna_kernels/{NAME}.s.ref").read().split("; @launch")[0]
    k = NAME + "_kernel"
    body = build_kernel()
    return hdr + f"""; @launch grid=(256,1,1) block=(512,1,1) lds=163840
.amdgcn_target "amdgcn-amd-amdhsa--gfx950"
{DOC}.text
.globl {k}
.p2align 8
.type {k},@function
{k}:
{body}.section .rodata,"a"
.p2align 6
.amdhsa_kernel {k}
  .amdhsa_next_free_vgpr 256
  .amdhsa_next_free_sgpr 100
  .amdhsa_accum_offset 256
  .amdhsa_group_segment_fixed_size 0
  .amdhsa_kernarg_size 112
  .amdhsa_user_sgpr_count 2
  .amdhsa_user_sgpr_kernarg_segment_ptr 1
  .amdhsa_system_sgpr_workgroup_id_x 1
.end_amdhsa_kernel
"""

if __name__ == "__main__":
    path = sys.argv[1] if len(sys.argv) > 1 else "final.s"
    open(path, "w").write(build())
    print("wrote", path)
```

```python
import sys, math, struct, os
sys.path.insert(0, "gen")
from asmlib import Asm

NAME = "concat_heads__ssm_conv_h3__grouped_kv_mqa__prompt"
S, D, H, DH = 2048, 640, 32, 20
ACT = S * D * 2
WS_E, WS_F1, WS_F2, WS_F3, WS_F4 = 0, 1024, 4096, 12288, 16384
WS_KV = 32768
TILE = 2816
KR_OFF, K1_OFF, V0_OFF, V1_OFF = 0, 256, 1280, 2048
WS_O = 0x40000
OPB = 20480
WS_Z = WS_O + ACT
WS_XT = WS_Z + ACT
WS_END = WS_XT + 2 * ACT
WS_STAMP = 0x2000000
QSCALE = (DH ** -0.5) * math.log2(math.e)
E = os.environ.get
STAMP = E("STAMP", "0") == "1"
TAILST = E("TAILST")
SPIN = 1 << 17
OSFX = " " + E("OSFX", "nt")
KVSC = " sc1"
KVL = " sc1" if E("KVSC1") else ""

def f2u(x): return struct.unpack("<I", struct.pack("<f", x))[0]
P_AQ, P_AK, P_AV, P_SH, P_SK, P_SD, P_X, P_WQ, P_WK, P_WV, P_WO, P_OUT, P_DBG, P_WS = [16 + 2 * i for i in range(14)]
S_WS, S_A, S_B, S_C, S_D = 44, 48, 52, 56, 60
TAG = 78
def R(b, n=4): return f"v[{b}:{b+n-1}]"
def SR_(b): return f"s[{b}:{b+3}]"
W = SR_(S_WS)

L_W = 81920; GSLOT = 20480
L_WKV = 163840 - 25600
L_Q = 102400; QSTR = 176
L_STAT = L_Q + 64 * QSTR
L_RED = 113920
L_CONV = 113920; CVS = 15360
L_OUT = 102400
L_SK, L_SV, L_KT = 0, 16384, 27648
WO_LOW = 45

a = Asm()
def srd(r, ptr, nbytes, off=0):
    if off:
        a(f"s_add_u32 s{r}, s{ptr}, {off}\ns_addc_u32 s{r+1}, s{ptr+1}, 0")
    else:
        a(f"s_mov_b32 s{r}, s{ptr}\ns_mov_b32 s{r+1}, s{ptr+1}")
    a(f"s_mov_b32 s{r+2}, {nbytes}\ns_mov_b32 s{r+3}, 0x20000")
def _st(i, op="s_memtime"): a(f"{op} s[98:99]\ns_waitcnt lgkmcnt(0)\ns_mov_b32 s{80+i}, s98")
def stamp(i):
    if STAMP and not (TAILST and 1 <= i <= 7): _st(i)
def tstamp(i):
    if STAMP and TAILST: _st(i)
def rstamp(i):
    if STAMP: _st(i, "s_memrealtime")
def br_wave(op, n, lab): a(f"s_cmp_{op}_u32 s5, {n}\ns_cbranch_scc1 {lab}")
def poll(load_fn, tagregs, sleep=2, cnt="vmcnt", val=None, op="ne", skipfirst=False, fail=None):
    val = val or f"s{TAG}"
    l, d = a.newlabel(), a.newlabel()
    a(f"s_mov_b32 s96, {SPIN}")
    if skipfirst:
        l0 = a.newlabel(); a(f"s_branch {l0}")
    a.label(l)
    load_fn()
    if skipfirst: a.label(l0)
    a(f"s_waitcnt {cnt}(0)")
    for i, t in enumerate(tagregs):
        if i == 0: a(f"v_cmp_{op}_u32 s[8:9], {val}, v{t}")
        else: a(f"v_cmp_ne_u32 vcc, {val}, v{t}\ns_or_b64 s[8:9], s[8:9], vcc")
    if fail:
        a(f"s_cmp_eq_u64 s[8:9], 0\ns_cbranch_scc0 {fail}"); return
    a(f"""
    s_cmp_eq_u64 s[8:9], 0
    s_cbranch_scc1 {d}
    s_sleep {sleep}
    s_sub_u32 s96, s96, 1
    s_cmp_lg_u32 s96, 0
    s_cbranch_scc1 {l}
    """)
    a.label(d)
def flag_store(soff_sgpr, vt):
    a(f"v_mov_b32 v{vt}, s{TAG}\nv_mov_b32 v{vt+1}, 0")
    a(f"s_mov_b64 exec, 1")
    a(f"buffer_store_dword v{vt}, v{vt+1}, {W}, s{soff_sgpr} offen sc1")
    a(f"s_mov_b64 exec, -1")
def wpat(dst, qbase, x4):
    a(f"""
    v_add_u32 v4, {qbase}, v1
    v_mul_u32_u24 v5, 6554, v4
    v_lshrrev_b32 v5, 16, v5
    v_mul_u32_u24 v6, 10, v5
    v_sub_u32 v6, v4, v6
    """)
    if x4: a("v_lshrrev_b32 v7, 1, v5\nv_and_b32 v7, 4, v7\nv_xor_b32 v5, v5, v7")
    a(f"v_mul_u32_u24 v5, 1280, v5\nv_lshl_add_u32 v{dst}, v6, 4, v5")

def build_kernel():
    if STAMP: a("s_memtime s[80:81]\ns_memrealtime s[92:93]")
    a(f"""
    s_cmp_ge_u32 s2, 256
    s_cbranch_scc1 L_exit
    s_load_dwordx16 s[16:31], s[0:1], 0
    s_load_dwordx8 s[32:39], s[0:1], 64
    s_load_dwordx4 s[40:43], s[0:1], 96
    v_lshrrev_b32 v1, 6, v0
    s_and_b32 s7, s2, 7
    s_lshl_b32 s3, s7, 2
    s_lshr_b32 s4, s2, 3
    v_readfirstlane_b32 s5, v1
    s_and_b32 s6, s4, 3
    s_add_u32 s3, s3, s6          ; s3 = pb64
    s_lshr_b32 s4, s4, 2          ; s4 = hg
    v_and_b32 v1, 63, v0          ; lane
    v_and_b32 v2, 15, v1          ; p
    v_lshrrev_b32 v3, 4, v1       ; kg
    s_mul_i32 s64, s3, {64*1280}
    s_mul_i32 s65, s4, 160
    s_add_u32 s66, s6, s7
    s_mul_i32 s8, s66, 52
    s_lshr_b32 s8, s8, 8
    s_mul_i32 s8, s8, 5
    s_sub_u32 s66, s66, s8
    s_and_b32 s67, s4, 3          ; pbk
    """)
    VD, VXR, VTR, VQW, VEX = 28, 34, 36, 38, 46
    VKR, VK4, VK5 = 40, 42, 43
    ACC, GF = 64, 96
    QM, QR = 8, 24
    O, SR, C = 64, 128, 192
    KBH = [192, 206, 220, 234]
    AK1, AKR, AV = 62, 63, 61
    PV, QA, VS, VT, AE = 56, 176, 44, 52, 48
    B0, B1, PA, PB = 16, 20, 64, 68
    KT_W, KT_R, KT_G, KT_S, VW2 = 240, 241, 242, 243, 244
    VA, V_B, V_ZW, V_ZS, V_HD, V_F2 = 228, 232, 233, 234, 235, 236
    VWO = 224
    WRAW = [216, 220]
    L_EX = 32768
    PW = int(E('PW', '1'))
    def gwrap(sreg, step):
        a(f"s_add_u32 s{sreg}, s{sreg}, {step}\ns_cmp_ge_u32 s{sreg}, {5*step}\ns_cselect_b32 s{sreg}, 0, s{sreg}")
    def shift2(r, d): a(f"v_add_u32 v{r}, {d & 0xffffffff}, v{r}\nv_add_u32 v{r+1}, {d & 0xffffffff}, v{r+1}")
    def loadK(buf, off):
        a(f"buffer_load_dwordx4 {R(buf)}, v{AK1}, {W}, s11 offen offset:{off + K1_OFF}{KVSC}")
        a(f"buffer_load_dwordx2 {R(buf+4,2)}, v{AKR}, {W}, s11 offen offset:{off + KR_OFF}{KVSC}")
    def loadV(buf, off):
        a(f"buffer_load_dwordx4 {R(buf+6)}, v{AV}, {W}, s11 offen offset:{off + V0_OFF}{KVSC}")
        a(f"buffer_load_dwordx4 {R(buf+10)}, v{AV}, {W}, s11 offen offset:{off + V1_OFF}{KVSC}")
    def kv_prologue(kb, part=None):
        nb = len(kb)
        if part != 1:
            a("s_mov_b32 s11, s79")
            loadK(kb[0], 0)
        for j in range(nb - 1):
            if (part == 0 and j > 0) or (part == 1 and j == 0): continue
            loadV(kb[j], 0); loadK(kb[j + 1], TILE); a(f"s_add_u32 s11, s11, {TILE}")
    def tail_addr(hi):
        T = 192
        a(f"""
        s_and_b32 s76, s5, 1
        s_lshr_b32 s77, s5, 1
        v_lshlrev_b32 v{AK1}, 4, v1
        v_bfe_u32 v{T}, v1, 4, 1
        v_mul_u32_u24 v{T}, {OPB}, v{T}
        v_lshl_add_u32 v{PV+3}, v2, 3, v{T}
        v_lshl_add_u32 v{T}, v2, 4, v{T}
        v_lshrrev_b32 v{T+1}, 5, v1
        v_lshl_add_u32 v{PV+2}, v{T+1}, 8, v{T}
        s_lshl_b32 s8, s3, 2
        s_lshl_b32 s9, s76, 1
        s_add_u32 s8, s8, s9
        s_mul_i32 s8, s8, {OPB}
        s_add_u32 s8, s8, {WS_O}
        s_lshl_b32 s9, s4, 2
        s_add_u32 s9, s9, s77
        s_lshl_b32 s72, s9, 9
        s_add_u32 s72, s72, s8
        s_lshl_b32 s73, s9, 7
        s_add_u32 s73, s73, s8
        s_add_u32 s73, s73, 16384
        s_lshl_b32 s74, s3, 1
        s_add_u32 s74, s74, s76
        s_lshl_b32 s74, s74, 5
        s_add_u32 s74, s74, s9
        s_lshl_b32 s74, s74, 2
        s_add_u32 s74, s74, {WS_F4}
        """)
        for j, i in enumerate((0, 1) if hi else (2, 3)):
            a(f"""
            s_xor_b32 s8, s5, {2*i}
            s_and_b32 s8, s8, 3
            s_mul_i32 s8, s8, 9216
            s_add_u32 s8, s8, {L_RED + 3072*max(i-1, 0)}
            v_add_u32 v{PV+j}, s8, v{AK1}
            """)
    def hi_addr():
        T = 192
        a(f"""
        v_and_b32 v{T}, 31, v1
        v_lshlrev_b32 v{AKR}, 3, v{T}
        v_lshrrev_b32 v{T+2}, 3, v{T}
        v_and_b32 v{T+3}, 3, v{T}
        v_lshl_add_u32 v{T+2}, v{T+2}, 2, v{T+3}
        v_bfe_u32 v{T+3}, v{T}, 2, 1
        v_mad_u32_u24 v{T+3}, v{T+3}, 10, v{T+2}
        v_mad_u32_u24 v{T+3}, v{T+1}, 20, v{T+3}
        v_cmp_gt_u32 s[8:9], 10, v{T+2}
        v_cmp_lt_u32 vcc, 10, v{T+2}
        v_mov_b32 v{T+4}, 40
        v_cndmask_b32 v{T+3}, v{T+4}, v{T+3}, s[8:9]
        v_lshlrev_b32 v{AV}, 4, v{T+3}
        v_mov_b32 v{T+4}, 0x40000000
        v_cndmask_b32 v{AV}, v{AV}, v{T+4}, vcc
        s_and_b32 s8, s77, 1
        s_mul_i32 s79, s8, {32*TILE}
        s_add_u32 s79, s79, {WS_KV}
        s_mul_i32 s8, s76, {32*QSTR}
        s_add_u32 s8, s8, {L_Q}
        v_mul_u32_u24 v{T+2}, {QSTR}, v{T}
        v_add_u32 v{T+2}, s8, v{T+2}
        v_lshl_add_u32 v{T+3}, v{T+1}, 4, v{T+2}
        v_xor_b32 v{T+4}, s77, v{T+1}
        v_xor_b32 v{T+5}, 2, v{T+4}
        v_mad_u32_u24 v{QA+4}, v{T+4}, 40, v{T+2}
        v_mad_u32_u24 v{QA+5}, v{T+5}, 40, v{T+2}
        """)
        for i in range(4):
            a(f"s_xor_b32 s8, s77, {i}\ns_mul_i32 s8, s8, 40\nv_add_u32 v{QA+i}, s8, v{T+3}")
        for i in range(4): a(f"v_mov_b32 v{KBH[-1]+10+i}, 0")
    def lo_addr():
        T = 192
        a(f"""
        s_mul_i32 s68, s5, 4224
        s_add_u32 s68, s68, {L_KT}
        v_and_b32 v4, 7, v1
        v_mul_u32_u24 v{T}, 528, v4
        v_lshrrev_b32 v5, 3, v1
        v_sub_u32 v{T+1}, 7, v5
        v_bfe_u32 v{T+2}, v{T+1}, 1, 1
        v_lshl_add_u32 v{T}, v{T+2}, 7, v{T}
        v_lshrrev_b32 v{T+2}, 2, v{T+1}
        v_lshl_add_u32 v{T}, v{T+2}, 6, v{T}
        v_and_b32 v{T+2}, 1, v{T+1}
        v_lshl_add_u32 v{T}, v{T+2}, 5, v{T}
        v_add_u32 v{KT_W}, s68, v{T}
        v_lshrrev_b32 v{T+1}, 5, v1
        v_lshlrev_b32 v{T+2}, 4, v{T+1}
        v_add3_u32 v{KT_R}, v{AK1}, v{T+2}, s68
        v_lshlrev_b32 v{T+3}, 12, v5
        v_lshl_add_u32 v{KT_G}, v4, 4, v{T+3}
        v_mul_u32_u24 v{T+3}, 1280, v5
        v_lshl_add_u32 v{T+3}, v4, 2, v{T+3}
        s_lshl_b32 s8, s5, 5
        v_add_u32 v{KT_S}, s8, v{T+3}
        ; convolution
        s_mul_i32 s68, s5, {CVS}
        s_add_u32 s68, s68, {L_CONV}
        v_and_b32 v{T}, 31, v1
        v_lshlrev_b32 v{V_F2}, 2, v{T}
        v_lshlrev_b32 v{T+2}, 2, v2
        v_lshlrev_b32 v{T+3}, 4, v3
        v_sub_u32 v{T+3}, v{T+2}, v{T+3}
        v_add3_u32 v{VA}, v{T+3}, 48, s68
        v_add_u32 v{VA+1}, 1024, v{VA}
        v_add_u32 v{VA+2}, 2048, v{VA}
        v_add_u32 v{VA+3}, 3072, v{VA}
        v_lshrrev_b32 v{T+2}, 1, v2
        v_sub_u32 v{T+2}, 7, v{T+2}
        v_lshlrev_b32 v{T+2}, 6, v{T+2}
        v_and_b32 v{T+3}, 1, v2
        v_lshl_add_u32 v{T+2}, v{T+3}, 4, v{T+2}
        v_sub_u32 v{T+3}, 3, v3
        v_and_b32 v{T+4}, 1, v{T+3}
        v_lshl_add_u32 v{T+2}, v{T+4}, 5, v{T+2}
        v_lshrrev_b32 v{T+3}, 1, v{T+3}
        v_mul_u32_u24 v{T+3}, 5120, v{T+3}
        v_add3_u32 v{V_B}, v{T+2}, v{T+3}, s68
        v_lshrrev_b32 v{T+2}, 2, v2
        v_lshlrev_b32 v{T+2}, 7, v{T+2}
        v_lshl_add_u32 v{T+2}, v{T+1}, 9, v{T+2}
        v_and_b32 v{T+3}, 1, v3
        v_lshl_add_u32 v{T+2}, v{T+3}, 6, v{T+2}
        v_and_b32 v{T+3}, 3, v2
        v_lshl_add_u32 v{V_ZS}, v{T+3}, 4, v{T+2}
        v_mov_b32 v{V_ZW}, -1
        v_subrev_u32 v{V_HD}, 64, v{AK1}
        v_cmp_lt_u32 s[8:9], 19, v1
        v_cndmask_b32 v{T}, 0, 1, s[8:9]
        v_mul_u32_u24 v{T+1}, 20, v{T}
        v_sub_u32 v{T+1}, v1, v{T+1}
        s_lshl_b32 s8, s76, 5
        s_lshl_b32 s9, s77, 3
        s_add_u32 s8, s8, s9
        s_add_u32 s8, s8, 1
        v_sub_u32 v{T+2}, s8, v{T}
        v_mul_u32_u24 v{T+2}, 1280, v{T+2}
        v_add_u32 v{T+2}, s64, v{T+2}
        v_lshl_add_u32 v{T+3}, v{T+1}, 3, s65
        v_lshl_add_u32 v{AE+1}, v{T+2}, 1, v{T+3}
        v_add_u32 v{AE}, v{T+2}, v{T+3}
        v_lshlrev_b32 v{AE+2}, 1, v{T+3}
        v_lshlrev_b32 v{T+3}, 11, v{T+3}
        v_lshl_add_u32 v{AE+3}, v{T}, 4, v{T+3}
        """)
    def stage(ptr, halo, base):
        if E("NOSTG"): return
        srd(S_D, ptr, ACT)
        a(f"s_add_u32 s8, s64, s65\ns_sub_u32 s8, s8, {halo*1280}")
        for i in range(11):
            if i < 5:
                a(f"v_add_u32 v4, s8, v{VW2 + i}\ns_mov_b32 m0, {base + 1024*i}\nbuffer_load_dwordx4 v4, {SR_(S_D)}, 0 offen lds")
            else:
                if i % 5 == 0: a(f"s_add_u32 s8, s8, {32*1280}")
                if i == 5 and halo == 1 and E("STH"): a(f"s_waitcnt vmcnt({E('STH')})")
                a(f"s_mov_b32 m0, {base + 1024*i}\nbuffer_load_dwordx4 v{VW2 + i % 5}, {SR_(S_D)}, s8 offen lds")
    def sync_init():
        a(f"""
        v_mov_b32 v4, 0
        v_mov_b32 v5, 0
        v_mov_b32 v6, 0
        v_mov_b32 v7, 8
        ds_write_b64 v{VS}, v[4:5]
        ds_write_b32 v{VS}, v4 offset:8
        ds_write_b32 v{VS}, v7 offset:16
        """)
    def only(w, fn):
        l = a.newlabel(); br_wave("lg", w, l); fn(); a.label(l)
    def publish_kv():
        l_v2, l_stat = a.newlabel(), a.newlabel()
        a(f"v_mov_b32 v8, 0\ns_cmp_ge_u32 s4, 4\ns_cbranch_scc1 {l_v2}")
        for i in range(4): a(f"v_dot2c_f32_bf16 v8, v{PA+i}, v{PA+i}")
        a(f"""
        v_mov_b32 v9, v8
        v_permlane32_swap_b32 v8, v9
        v_add_f32 v8, v8, v9
        v_dot2c_f32_bf16 v8, v{PB}, v{PB}
        v_dot2c_f32_bf16 v8, v{PB+1}, v{PB+1}
        s_nop 2
        s_branch {l_stat}
        """)
        a.label(l_v2)
        for b in range(B0, B0 + 8, 2): a(f"v_max3_f32 v8, v8, |v{b}|, |v{b+1}|")
        a("""
        v_mov_b32 v9, v8
        v_permlane16_swap_b32 v8, v9
        v_max_f32 v8, v8, v9
        v_mov_b32 v9, v8
        v_permlane32_swap_b32 v8, v9
        v_max_f32 v8, v8, v9
        s_nop 1
        """)
        a.label(l_stat)
        for sh in (1, 2, 4, 8):
            a(f"v_max_f32_dpp v8, v8, v8 row_shr:{sh} row_mask:0xf bank_mask:0xf")
        a("v_readlane_b32 s69, v8, 15")
        a(f"""
        s_lshl_b32 s8, s3, 3
        s_add_u32 s8, s8, s4
        s_lshl_b32 s8, s8, 3
        s_getreg_b32 s9, hwreg(HW_REG_XCC_ID, 0, 4)
        s_andn2_b32 s69, s69, 15
        s_or_b32 s69, s69, s9
        v_mov_b32 v4, s69
        v_mov_b32 v5, s{TAG}
        v_mov_b32 v6, 0
        s_waitcnt vmcnt(0)
        s_mov_b64 exec, 1
        buffer_store_dwordx2 v[4:5], v6, {W}, s8 offen offset:{WS_F1} sc1
        s_mov_b64 exec, -1
        """)

    def gemm_addr(cg):
        a(f"""
        v_mov_b32 v{VS}, {L_STAT}
        s_and_b32 s6, s77, 1
        v_lshrrev_b32 v4, 1, v2
        v_xor_b32 v4, v4, v3
        v_lshlrev_b32 v5, 7, v2
        v_lshl_add_u32 v39, v4, 4, v5
        s_lshl_b32 s7, s76, 1
        s_add_u32 s7, s7, s6
        s_lshl_b32 s8, s7, 11
        s_lshl_b32 s9, s6, 6
        v_xor_b32 v4, s9, v39
        v_add_u32 v{VXR}, s8, v4
        v_xor_b32 v{VXR+1}, 0x800, v{VXR}
        v_bfe_u32 v4, v1, 2, 2
        v_lshl_add_u32 v4, v3, 3, v4
        v_and_b32 v5, 1, v3
        v_lshl_add_u32 v6, v5, 2, v4
        v_xor_b32 v7, 4, v6
        v_and_b32 v5, 3, v1
        v_lshlrev_b32 v5, 3, v5
        s_movk_i32 s9, 160
        v_mad_u32_u24 v6, v6, s9, v5
        v_mad_u32_u24 v7, v7, s9, v5
        s_mul_i32 s8, s6, 5120
        s_add_u32 s8, s8, {L_W + 96*cg}
        v_add_u32 v{VTR}, s8, v6
        v_add_u32 v{VTR+1}, s8, v7
        s_mul_i32 s8, s76, 51200
        v_add_u32 v{VT}, s8, v6
        v_add_u32 v{VT+1}, s8, v7
        s_mul_i32 s8, s7, {16*QSTR}
        s_add_u32 s8, s8, {L_Q + 96*cg}
        v_mul_u32_u24 v4, {QSTR}, v2
        v_lshl_add_u32 v4, v3, 3, v4
        v_add_u32 v{VQW}, s8, v4
        s_mul_i32 s8, s5, 3072
        s_add_u32 s8, s8, {L_EX}
        v_add_u32 v{VEX}, s8, v{AK1}
        s_xor_b32 s8, s5, 2
        s_mul_i32 s8, s8, 3072
        s_add_u32 s8, s8, {L_EX}
        v_add_u32 v{VEX+1}, s8, v{AK1}
        """)
    def got_args():
        a(f"s_waitcnt lgkmcnt(0)\ns_load_dword s{TAG}, s[{P_WS}:{P_WS+1}], {WS_E}")
        if STAMP: a("s_mov_b32 s93, s92")
    def got_tag():
        a(f"s_waitcnt lgkmcnt(0)\ns_mul_i32 s{TAG}, s{TAG}, 0x9E3779B1\ns_add_u32 s{TAG}, s{TAG}, 0x7F4A7C15")
    def x_issue(g):
        a(f"s_add_u32 s8, s10, s12\ns_add_u32 s9, s8, {8*1280}")
        for hs in range(2):
            for par in range(2):
                a(f"s_add_u32 m0, s11, {(2*g+hs)*8192 + 1024*par - 128*hs}")
                a(f"buffer_load_dwordx4 v{VD+par}, {SR_(S_A)}, s{8+par} offen offset:{128*hs} lds")
        if g < 4: gwrap(12, 256)
    def wkv_issue(g):
        a(f"s_mov_b32 m0, {L_WKV + 5120*g}")
        for i in range(4):
            a(f"buffer_load_dwordx4 v{AK1}, {SR_(S_C)}, s13 offen offset:{1024*i} lds")
        a(f"s_mov_b32 m0, {L_WKV + 5120*g + 4096}\ns_add_u32 s8, s13, 4096")
        a(f"buffer_load_dwordx4 v{AK1}, {SR_(S_C)}, s8 offen lds")
        if g < 4: gwrap(13, 5120)
    def w_issue(g):
        a(f"s_add_u32 s8, s10, s12")
        for n in range(5):
            a(f"s_add_u32 m0, s11, {(g % 4)*GSLOT + 1024*n}")
            a(f"buffer_load_dwordx4 v{VD+n}, {SR_(S_B)}, s8 offen lds")
        if g < 4: gwrap(12, 128 * 1280)
    def q_stage(nblk, gs, xb, wb, mid=None):
        steps = [(g, hs) for g in gs for hs in range(2)]
        per = 2 + 2 * nblk
        for n, (g, hs) in enumerate(steps):
            b = GF + 20 * n
            for pl in range(2): a(f"ds_read_b128 {R(b+4*pl)}, v{VXR+pl} offset:{(2*g + hs)*8192 - xb}")
            for nb in range(nblk):
                off = (g % 4) * GSLOT + hs * 10240 + nb * 32 - wb
                for z in range(2): a(f"ds_read_b64_tr_b16 {R(b+8+4*nb+2*z,2)}, v{VTR+z} offset:{off}")
        if mid: mid()
        for n in range(len(steps)):
            a(f"s_waitcnt lgkmcnt({min(15, per * (len(steps) - 1 - n))})")
            b = GF + 20 * n
            for nb in range(nblk):
                for pl in range(2):
                    d = R(ACC + 12 * pl + 4 * nb)
                    a(f"v_mfma_f32_16x16x32_bf16 {d}, {R(b+8+4*nb)}, {R(b+4*pl)}, {'0' if (gs[0] == 0 and n == 0) else d}")
    def ld1():
        a(f"buffer_load_dwordx4 v[8:11], v45, {W}, 0 offen offset:{WS_F1} sc1")
        a(f"buffer_load_dwordx4 v[12:15], v45, {W}, 0 offen offset:{WS_F1+16} sc1")
    def q_path(cg):
        nblk = 3 if cg == 0 else 2
        stamp(2)
        a("s_barrier")
        stamp(3)
        q_stage(nblk, [0], 0, 0, (lambda: (only(7, lambda: w_issue(2)), w_issue(3))) if cg else None)
        a(f"s_waitcnt vmcnt({10 if cg else 0})")
        a("s_barrier")
        q_stage(nblk, [1], 0, 0, (lambda: w_issue(4)) if cg else None)
        shift2(VTR, 2 * GSLOT)
        if cg: a("s_waitcnt vmcnt(5)")
        a("s_barrier   ; b3")
        stamp(4)
        q_stage(nblk, [2, 3], 0, 2 * GSLOT, None if cg else (lambda: only(PW, ld1)))
        shift2(VTR, -2 * GSLOT); shift2(VXR, 65536)
        if cg: a("s_waitcnt vmcnt(0)")
        else: only(PW, lambda: poll(ld1, [9, 11, 13, 15], 1, skipfirst=True)); only(2, sync_init)
        a("s_barrier")
        stamp(5)
        if not cg and E("INV"): only(2, lambda: a("buffer_inv sc1"))
        q_stage(nblk, [4], 65536, 0, (lambda: kv_prologue(KBH, 0 if (E('NOPALL') or E('P2')) else None)) if cg else None)
        for nb in range(nblk): a(f"ds_write_b128 v{VEX}, {R(ACC+12+4*nb)} offset:{1024*nb}")
        if not cg and not E("NOSVC") and not E("LATEK"): only(3, lambda: (stage(P_AK, 4, L_SK), stage(P_AV, 1, L_SV) if E("EARLYV") else None))
        a(f"s_mov_b32 s8, 0xffff0000\ns_mov_b32 s9, {f2u(QSCALE)}")
        a("s_waitcnt lgkmcnt(0)\ns_barrier   ; bE")
        for nb in range(nblk): a(f"ds_read_b128 {R(ACC+12+4*nb)}, v{VEX+1} offset:{1024*nb}")
        if cg and not E("LATEP") and E("NOPALL"): kv_prologue(KBH, 1)
        for nb in range(nblk):
            b = ACC + 4 * nb
            a(f"s_waitcnt lgkmcnt({min(nblk - 1, nblk - 1 - nb + nb)})" if nb == 0 else f"s_waitcnt lgkmcnt({nblk - 1})")
            for r in range(4): a(f"v_add_f32 v{b+r}, v{b+r}, v{b+12+r}")
            for r in range(4): a(f"v_mul_f32 v{b+r}, s9, v{b+r}")
            for p in range(2): a(f"v_cvt_pk_bf16_f32 v{88+2*nb+p}, v{b+2*p}, v{b+2*p+1}")
            a(f"ds_write_b64 v{VQW}, {R(88+2*nb,2)} offset:{32*nb}")
        if not cg and E("INV"): only(2, lambda: a("s_waitcnt vmcnt(0)"))
        a("s_waitcnt lgkmcnt(0)\ns_barrier   ; B_Q")
        stamp(7)
    OSTR = 336; OKH = 64 * OSTR
    FRD, FST = [94, 95], [60, 55]
    def fin_addr():
        a(f"""
        v_mul_u32_u24 v54, {OSTR}, v2
        v_lshl_add_u32 v54, v3, 4, v54
        s_mul_i32 s8, s77, {16*OSTR}
        s_mul_i32 s9, s76, {OKH}
        s_add_u32 s8, s8, s9
        s_add_u32 s8, s8, {L_OUT}
        v_add_u32 v54, s8, v54
        """)
    def fin_addr2(n):
        for i in range(n):
            a(f"""
            v_add_u32 v84, {512*i}, v0
            v_mul_u32_u24 v85, 6554, v84
            v_lshrrev_b32 v85, 16, v85
            v_mul_u32_u24 v86, 10, v85
            v_sub_u32 v86, v84, v86
            v_mul_u32_u24 v{FRD[i]}, {OSTR}, v85
            v_lshl_add_u32 v{FRD[i]}, v86, 5, v{FRD[i]}
            v_add_u32 v{FRD[i]}, {L_OUT}, v{FRD[i]}
            v_mul_u32_u24 v{FST[i]}, 2560, v85
            v_lshl_add_u32 v{FST[i]}, v86, 4, v{FST[i]}
            """)
    def lds_add(off, val):
        a(f"v_mov_b32 v4, {val}\ns_mov_b64 exec, 1\nds_add_u32 v{VS}, v4 offset:{off}\ns_mov_b64 exec, -1")
    def lds_wait(off, val, op, sleep):
        poll(lambda: a(f"ds_read_b32 v4, v{VS} offset:{off}"), [4], sleep, "lgkmcnt", str(val), op)
    l_cg1, l_R, l_x, l_lo1 = a.newlabel(), a.newlabel(), a.newlabel(), a.newlabel()
    br_wave("ge", 4, l_cg1)
    a(f"""
    v_lshrrev_b32 v4, 3, v1
    v_mul_u32_u24 v4, 1280, v4
    v_and_b32 v5, 7, v1
    v_xor_b32 v5, v5, v3
    v_lshl_add_u32 v{VD}, v5, 4, v4
    v_xor_b32 v{VD+1}, 64, v{VD}
    s_add_u32 s8, s67, s5
    s_and_b32 s8, s8, 3
    s_mul_i32 s10, s8, {16*1280}
    s_add_u32 s10, s10, s64
    s_lshl_b32 s11, s8, 11
    s_lshl_b32 s12, s66, 8
    s_mul_i32 s13, s66, 5120
    v_lshlrev_b32 v45, 5, v1
    """)
    tail_addr(False); gemm_addr(0); fin_addr()
    br_wave("lg", 0, l_x)
    a(f"""
    v_add_u32 v{VKR}, s11, v39
    v_xor_b32 v{VKR+1}, 64, v{VKR}
    v_bfe_u32 v4, v1, 2, 2
    v_lshl_add_u32 v4, v3, 3, v4
    v_mul_u32_u24 v4, 40, v4
    v_add_u32 v{VK4}, {L_WKV}, v4
    v_and_b32 v5, 3, v1
    v_lshl_add_u32 v{VK5}, v5, 3, v{VK4}
    """)
    for n in range(15): a(f"v_mov_b32 v{(VW2 + n) if n < 5 else (VWO + n - 5)}, -1")
    got_args()
    a(f"""
    s_cmp_ge_u32 s4, 4
    s_cselect_b32 s{S_C}, s{P_WV}, s{P_WK}
    s_cselect_b32 s{S_C+1}, s{P_WV+1}, s{P_WK+1}
    s_mov_b32 s{S_C+2}, 25600
    s_mov_b32 s{S_C+3}, 0x20000
    """)
    srd(S_A, P_X, ACT)
    KORD = E("KORD", "wx")
    if KORD == "wx":
        for g in range(5): wkv_issue(g)
        for g in range(5):
            x_issue(g)
            if str(g) == E("B0"): a("s_barrier")
        wv = [40 - 5 * g for g in range(5)]; xv = [16 - 4 * g for g in range(5)]
    else:
        for g in range(5): x_issue(g)
        for g in range(5): wkv_issue(g)
        wv = [20 - 5 * g for g in range(5)]; xv = [0] * 5
    if not E("B0"): a("s_barrier   ; b0")
    stamp(1)
    srd(S_WS, P_WS, WS_END)
    got_tag()
    WPF, XT_ = 96, 72
    for g in range(5):
        a(f"s_waitcnt vmcnt({wv[g]})")
        for s_ in range(4):
            ks = 4 * g + s_; b = WPF + 8 * ks
            a(f"ds_read_b64_tr_b16 {R(b,2)}, v{VK5} offset:{ks*1280}")
            a(f"ds_read_b64_tr_b16 {R(b+2,2)}, v{VK5} offset:{ks*1280+160}")
            a(f"ds_read_b64_tr_b16 {R(b+4,2)}, v{VK4} offset:{ks*1280+32}")
            a(f"ds_read_b64_tr_b16 {R(b+6,2)}, v{VK4} offset:{ks*1280+192}")
    a(f"""
    s_lshr_b32 s12, s67, 1
    s_lshl_b32 s14, s3, 1
    s_add_u32 s12, s12, s14
    s_mul_i32 s12, s12, {TILE}
    s_add_u32 s12, s12, {WS_KV}
    s_and_b32 s10, s67, 1
    """)
    def kvpart(isv):
        for g in range(5):
            if g == 4: shift2(VKR, 65536)
            a(f"s_waitcnt vmcnt({xv[g]})")
            for s_ in range(4): a(f"ds_read_b128 {R(XT_+4*s_)}, v{VKR+(s_&1)} offset:{((2*g + (s_>>1)) % 8) * 8192}")
            for s_ in range(4):
                a(f"s_waitcnt lgkmcnt({3-s_})")
                for blk in range(2):
                    d = R(B0 + 4 * blk); c = "0" if (g == 0 and s_ == 0) else d
                    w_, x_ = R(WPF + 8 * (4 * g + s_) + 4 * blk), R(XT_ + 4 * s_)
                    a(f"v_mfma_f32_16x16x32_bf16 {d}, {x_ if isv else w_}, {w_ if isv else x_}, {c}")
    def pack(b, dst, swap):
        a(f"""
        v_cvt_pk_bf16_f32 v{dst}, v{b}, v{b+1}
        v_cvt_pk_bf16_f32 v{dst+1}, v{b+2}, v{b+3}
        v_cvt_pk_bf16_f32 v{dst+2}, v{b}, v{b+1}
        v_cvt_pk_bf16_f32 v{dst+3}, v{b+2}, v{b+3}
        {swap} v{dst}, v{dst+2}
        {swap} v{dst+1}, v{dst+3}
        """)
    l_v, l_pub = a.newlabel(), a.newlabel()
    a(f"s_cmp_ge_u32 s4, 4\ns_cbranch_scc1 {l_v}")
    a(f"""
    s_lshl_b32 s10, s10, 4
    v_add_u32 v5, s10, v2
    v_lshrrev_b32 v6, 1, v3
    v_lshl_add_u32 v6, v6, 5, v5
    v_lshlrev_b32 v6, 4, v6
    v_lshlrev_b32 v5, 3, v5
    """)
    kvpart(False)
    pack(B0, PA, "v_permlane16_swap_b32")
    a(f"""
    v_cvt_pk_bf16_f32 v{PB}, v{B1}, v{B1+1}
    v_cvt_pk_bf16_f32 v{PB+1}, v{B1+2}, v{B1+3}
    s_mov_b32 exec_lo, 0xffff
    s_mov_b32 exec_hi, 0xffff
    buffer_store_dwordx4 {R(PA)}, v6, {W}, s12 offen offset:{K1_OFF} sc1
    s_mov_b64 exec, 0xffff
    buffer_store_dwordx2 {R(PB,2)}, v5, {W}, s12 offen offset:{KR_OFF} sc1
    s_mov_b64 exec, -1
    s_branch {l_pub}
    """)
    a.label(l_v)
    a(f"""
    s_mul_i32 s10, s10, {V1_OFF - V0_OFF}
    s_add_u32 s12, s12, s10
    v_and_b32 v5, 1, v3
    v_mul_u32_u24 v5, 20, v5
    v_add_u32 v6, v5, v2
    v_lshlrev_b32 v6, 4, v6
    v_cmp_lt_u32 s[14:15], 3, v2
    v_mov_b32 v10, 0x3f803f80
    """)
    kvpart(True)
    pack(B0, PA, "v_permlane32_swap_b32")
    pack(B1, PB, "v_permlane32_swap_b32")
    a(f"s_mov_b32 exec_hi, 0")
    a(f"buffer_store_dwordx4 {R(PA)}, v6, {W}, s12 offen offset:{V0_OFF} sc1")
    for i in range(4): a(f"v_cndmask_b32 v{12+i}, v{PB+i}, v10, s[14:15]")
    a(f"""
    s_mov_b32 exec_lo, 0x00ff000f
    buffer_store_dwordx4 v[12:15], v6, {W}, s12 offen offset:{V0_OFF + 256} sc1
    s_mov_b64 exec, -1
    """)
    a.label(l_pub)
    stamp(6)
    publish_kv()
    lo_addr()
    a(f"s_branch {l_lo1}")
    a("; ======== waves 1..3 ========")
    a.label(l_x)
    lo_addr()
    for n in range(5): wpat(VW2 + n, 64 * n, False)
    def wo_pat():
        for n in range(5):
            a(f"""
            v_add_u32 v4, {64*n}, v1
            v_mul_u32_u24 v5, 6554, v4
            v_lshrrev_b32 v5, 16, v5
            v_mul_u32_u24 v6, 10, v5
            v_sub_u32 v6, v4, v6
            v_lshlrev_b32 v6, 4, v6
            v_lshrrev_b32 v7, 1, v5
            v_and_b32 v7, 4, v7
            v_xor_b32 v5, v5, v7
            v_lshrrev_b32 v7, 3, v5
            v_lshl_add_u32 v4, v7, 1, v5
            v_mul_u32_u24 v4, 1280, v4
            v_add_u32 v{VWO+n}, v4, v6
            v_lshrrev_b32 v7, 1, v5
            v_lshl_add_u32 v4, v7, 3, v5
            v_add_u32 v4, 8, v4
            v_mul_u32_u24 v4, 1280, v4
            v_add_u32 v{VWO+5+n}, v4, v6
            """)
    for n in range(4): a(f"v_mov_b32 v{VWO+n}, -1")
    only(3, wo_pat)
    got_args()
    srd(S_A, P_X, ACT); srd(S_WS, P_WS, WS_END); srd(S_C, P_WK, 25600)
    l = a.newlabel()
    a(f"""
    v_lshlrev_b32 v4, 7, v1
    s_sub_u32 s8, s5, 1
    s_lshl_b32 s8, s8, 13
    s_cmp_ge_u32 s2, 8
    s_cbranch_scc1 {l}
    buffer_load_dword v5, v4, {W}, s8 offen sc1
    """)
    a.label(l)
    got_tag()
    a(f"s_setprio {E('PX', '0')}\ns_barrier   ; b0")
    for g in range(5): x_issue(g)
    a("s_setprio 0")
    stamp(1)
    a("s_waitcnt vmcnt(16)")
    a.label(l_lo1)
    q_path(0)
    l_svcend = a.newlabel()
    if E("NOSVC"):
        lds_add(8, 1); a(f"s_branch {l_svcend}")
    if not E('STGLATE'):
        only(3, lambda: (stage(P_AK, 4, L_SK) if E("LATEK") else None, a(f"s_waitcnt vmcnt({E('STG', '6')})"), None if E("EARLYV") else stage(P_AV, 1, L_SV)))
    srd(S_D, P_SH, D * 8); srd(S_B, P_WO, D * D * 2)
    a(f"""
    s_setprio {E('PKVT', '2')}
    v_and_b32 v4, 7, v1
    v_lshlrev_b32 v4, 4, v4
    s_lshl_b32 s8, s5, 7
    s_lshl_b32 s9, s65, 2
    s_add_u32 s8, s8, s9
    buffer_load_dwordx4 {R(WRAW[0])}, v4, {SR_(S_D)}, s8 offen
    buffer_load_dwordx4 {R(WRAW[1])}, v4, {SR_(S_D)}, s9 offen offset:512
    s_mov_b32 s12, 0xffff0000
    """)
    def decide():
        a(f"v_mul_u32_u24 v4, {QSTR}, v1\nv_add_u32 v4, {L_Q}, v4")
        for i in range(10): a(f"ds_read_b128 {R(128+4*i)}, v4 offset:{16*i}")
        a(f"""
        s_getreg_b32 s9, hwreg(HW_REG_XCC_ID, 0, 4)
        v_xor_b32 v5, s9, v8
        v_xor_b32 v6, s9, v10
        v_or_b32 v5, v5, v6
        v_xor_b32 v6, s9, v12
        v_xor_b32 v7, s9, v14
        v_or3_b32 v5, v5, v6, v7
        v_and_b32 v5, 15, v5
        v_cmp_ne_u32 vcc, 0, v5
        s_lshl_b32 s8, s3, 1
        s_lshr_b64 s[10:11], vcc, s8
        v_max_f32 v8, v8, v10
        v_max3_f32 v8, v8, v12, v14
        s_mov_b32 s8, 0x55555555
        s_mov_b32 s9, 0x55555555
        v_cndmask_b32 v10, 0, v8, s[8:9]
        v_cndmask_b32 v11, v8, 0, s[8:9]
        """)
        for m in ("row_shr:1 row_mask:0xf", "row_shr:2 row_mask:0xf", "row_shr:4 row_mask:0xf", "row_shr:8 row_mask:0xf",
                  "row_bcast:15 row_mask:0xa", "row_bcast:31 row_mask:0xc"):
            a(f"v_max_f32_dpp v10, v10, v10 {m} bank_mask:0xf\nv_max_f32_dpp v11, v11, v11 {m} bank_mask:0xf")
        for j in range(4): a(f"v_mov_b32 v{12+j}, 0")
        a("v_readlane_b32 s14, v10, 63\nv_readlane_b32 s15, v11, 63\ns_waitcnt lgkmcnt(0)")
        for r in range(10):
            for j in range(4): a(f"v_dot2c_f32_bf16 v{12+j}, v{128+10*j+r}, v{128+10*j+r}")
        a(f"""
        v_max3_f32 v12, v12, v13, v14
        v_max_f32 v12, v12, v15
        v_mul_f32 v12, s14, v12
        v_cmp_nge_f32 vcc, {f2u(64.0*64.0)}, v12
        s_mov_b32 s8, 1
        s_cmp_lg_u64 vcc, 0
        s_cselect_b32 s8, 0x101, s8
        s_cmp_lt_u32 s15, {f2u(2.0**-28)}
        s_cselect_b32 s8, 0x101, s8
        s_cmp_gt_u32 s15, {f2u(2.0**50)}
        s_cselect_b32 s8, 0x101, s8
        s_and_b32 s10, s10, 3
        s_cselect_b32 s9, 0, {0 if E("NOFAST") else 0x200}
        s_or_b32 s8, s8, s9
        """)
        lds_add(8, "s8")
    only(PW, decide)
    if E('STGLATE'):
        only(3, lambda: (stage(P_AK, 4, L_SK) if E("LATEK") else None, a(f"s_waitcnt vmcnt({E('STG', '6')})"), None if E("EARLYV") else stage(P_AV, 1, L_SV)))
    l = a.newlabel()
    a(f"s_or_b32 s8, s2, s5\ns_cmp_lg_u32 s8, 0\ns_cbranch_scc1 {l}\ns_mov_b32 s8, {WS_E}")
    flag_store(8, 6)
    a.label(l)
    a("s_waitcnt vmcnt(0)")
    only(3, lambda: lds_add(0, 1))
    lds_wait(0, 1, "ne", 2)
    stamp(10)
    KRW, KU, VU, WU, KV, PK = 192, 128, 152, 170, 64, 84
    def kvt_compute(ps, pass_sgpr):
        if E("NOKVT"): return
        kr = KRW; vr = kr + 12; wr = WRAW[ps]
        for r in range(12): a(f"ds_read_b32 v{kr+r}, v{KT_S} offset:{L_SK + 160*r + 32*ps}")
        for r in range(9): a(f"ds_read_b32 v{vr+r}, v{KT_S} offset:{L_SV + 160*r + 32*ps}")
        for j in range(4):
            for c in range(2):
                src = wr + 2 * c + j // 2
                a(f"v_lshlrev_b32 v{WU+2*j+c}, 16, v{src}" if j % 2 == 0 else f"v_and_b32 v{WU+2*j+c}, s12, v{src}")
        a("s_waitcnt lgkmcnt(9)")
        for r in range(12): a(f"v_lshlrev_b32 v{KU+2*r}, 16, v{kr+r}\nv_and_b32 v{KU+2*r+1}, s12, v{kr+r}")
        for i in range(18): a(f"v_mul_f32 v{KV+i}, v{KU+i}, v{WU+6+(i&1)}")
        for j in (2, 1, 0):
            for i in range(18): a(f"v_fmac_f32 v{KV+i}, v{KU+i+2*(3-j)}, v{WU+2*j+(i&1)}")
        a("s_waitcnt lgkmcnt(0)")
        for r in range(9): a(f"v_lshlrev_b32 v{VU+2*r}, 16, v{vr+r}\nv_and_b32 v{VU+2*r+1}, s12, v{vr+r}")
        for i in range(18): a(f"v_mul_f32 v{KV+i}, v{KV+i}, v{VU+i}")
        for c in range(2):
            for cp in range(2):
                for d in range(4):
                    lo = 7 - cp - 2 * d; hi = lo - 1
                    a(f"v_cvt_pk_bf16_f32 v{PK+8*c+4*cp+d}, v{KV+2*(lo+1)+c}, v{KV+2*(hi+1)+c}")
                a(f"ds_write_b128 v{KT_W}, {R(PK+8*c+4*cp)} offset:{256*c + 16*cp}")
        for k in range(4): a(f"ds_read_b128 {R(PK+16+4*k)}, v{KT_R} offset:{1056*k}")
        a(f"""
        s_mul_i32 s8, s4, 80
        s_lshl_b32 s9, s{pass_sgpr}, 4
        s_add_u32 s8, s8, s9
        s_lshl_b32 s8, s8, 13
        s_sub_u32 s9, 31, s3
        s_lshl_b32 s9, s9, 7
        s_add_u32 s8, s8, s9
        s_add_u32 s8, s8, {WS_XT}
        """)
        for k in range(4):
            a(f"s_waitcnt lgkmcnt({3-k})")
            a(f"buffer_store_dwordx4 {R(PK+16+4*k)}, v{KT_G}, {W}, s8 offen sc1")
            if k < 3: a(f"s_add_u32 s8, s8, {4*8192}")
    def f2_flag(pass_sgpr):
        a(f"""
        s_mul_i32 s8, s4, 5
        s_add_u32 s8, s8, s{pass_sgpr}
        s_lshl_b32 s8, s8, 5
        s_add_u32 s8, s8, s3
        s_lshl_b32 s8, s8, 2
        s_add_u32 s8, s8, {WS_F2}
        """)
        flag_store(8, 6)
    kvt_compute(0, 5)
    l_conv, l_aepi, l_cdone = a.newlabel(), a.newlabel(), a.newlabel()
    br_wave("lg", 3, l_conv)
    a("s_mov_b32 s10, 4")
    kvt_compute(1, 10)
    a("s_waitcnt vmcnt(0)")
    f2_flag(10); f2_flag(5)
    a("s_setprio 0")
    stamp(8)
    def wo_loop(p0):
        a(f"s_add_u32 s8, s65, {p0*160*1280}\ns_mov_b32 s9, {p0*25600}")
        l = a.newlabel()
        a.label(l)
        for m in range(5):
            a(f"s_add_u32 s10, s8, {(40*1280*m) if m < 4 else 0}")
            for n in range(5):
                a(f"s_add_u32 m0, s9, {5120*m + 1024*n}")
                a(f"buffer_load_dwordx4 v{VWO + n + (5 if m == 4 else 0)}, {SR_(S_B)}, s10 offen lds")
            a(f"s_waitcnt vmcnt({E('WOV', '2')})")
        a(f"""
        s_add_u32 s8, s8, {160*1280}
        s_add_u32 s9, s9, 25600
        s_cmp_lt_u32 s9, {(p0+2)*25600}
        s_cbranch_scc1 {l}
        """)
    if not E("NOWO"):
        wo_loop(2)
        lds_wait(4, 3, "ne", 8)
        wo_loop(0)
    a("s_waitcnt vmcnt(0)")
    lds_add(0, 1)
    a(f"s_branch {l_aepi}")
    a.label(l_conv)
    lds_add(4, 1)
    a(f"""
    s_lshl_b32 s12, s5, 8
    s_add_u32 s12, s12, s2              ; channel
    s_min_u32 s13, s12, 639
    s_lshl_b32 s8, s13, 12
    s_add_u32 s{S_A}, s{P_SK}, s8
    s_addc_u32 s{S_A+1}, s{P_SK+1}, 0
    s_mov_b32 s{S_A+2}, 4096
    s_lshl_b32 s8, s13, 13
    s_add_u32 s8, s8, {WS_XT}
    s_add_u32 s{S_B}, s{P_WS}, s8
    s_addc_u32 s{S_B+1}, s{P_WS+1}, 0
    s_mov_b32 s{S_B+2}, 4096
    s_add_u32 s{S_C}, s{S_B}, 4096
    s_addc_u32 s{S_C+1}, s{S_B+1}, 0
    s_mov_b32 s{S_C+2}, 4096
    s_load_dword s14, s[{S_A}:{S_A+1}], 0
    s_lshr_b32 s8, s13, 1
    s_lshl_b32 s8, s8, 2
    s_load_dword s15, s[{P_SD}:{P_SD+1}], s8
    s_mul_i32 s8, s13, 52429
    s_lshr_b32 s8, s8, 22
    s_mul_i32 s9, s8, 80
    s_sub_u32 s9, s13, s9
    s_lshr_b32 s9, s9, 4
    s_mul_i32 s8, s8, 5
    s_add_u32 s8, s8, s9
    s_lshl_b32 s13, s8, 7
    s_add_u32 s13, s13, {WS_F2}
    s_waitcnt vmcnt(0)
    """)
    f2_flag(5)
    a(f"s_waitcnt lgkmcnt(0)\ns_cmp_ge_u32 s12, 640\ns_cbranch_scc1 {l_cdone}")
    if E("NOCONV"): a(f"s_branch {l_cdone}")
    a(f"s_mov_b32 m0, s68\nbuffer_load_dwordx4 v{V_HD}, {SR_(S_A)}, 0 offen lds")
    a(f"s_add_u32 m0, s68, 1024\ns_movk_i32 s8, 960")
    for i in range(4): a(f"buffer_load_dwordx4 v{AK1}, {SR_(S_A)}, s8 offen offset:{1024*i} lds")
    a(f"""
    s_bitcmp1_b32 s12, 0
    s_cselect_b32 s8, 0, 16
    s_lshl_b32 s15, s15, s8
    s_and_b32 s15, s15, 0xffff0000
    s_lshl_b32 s8, s14, 16
    v_mov_b32 v5, s8
    v_add_f32 v5, s15, v5
    v_cvt_pk_bf16_f32 v5, v5, v5
    v_mov_b32 v6, s68
    s_waitcnt vmcnt(0)
    ds_write_b16 v6, v5 offset:64
    """)
    lds_wait(16, int(E("PF2", "7")), "lt", 8)
    poll(lambda: a(f"buffer_load_dword v4, v{V_F2}, {W}, s13 offen sc1"), [4], int(E("F2S", "24")))
    stamp(8)
    a("s_movk_i32 s8, 4096")
    for cl_ in range(2):
        a(f"s_add_u32 m0, s68, {5120 + 5120*cl_}")
        for i in range(4): a(f"buffer_load_dwordx4 v{AK1}, {SR_(S_C if cl_ else S_B)}, 0 offen offset:{1024*i} sc1 lds")
        a(f"s_add_u32 m0, s68, {5120 + 5120*cl_ + 4096}")
        a(f"buffer_load_dwordx4 v{AK1}, {SR_(S_C if cl_ else S_B)}, s8 offen sc1 lds")
    a(f"s_waitcnt vmcnt(0)\ns_setprio {E('PCONV', '0')}")
    CB = [96, 160]
    def c_reads(j):
        b = CB[j & 1]; r = []
        for u in range(8):
            o = (4 + 512 * (u & 1) + 64 * j) // 4
            r.append(f"ds_read_b128 {R(b+32+4*u)}, v{V_B} offset:{5120 + (56 - 8*u + j)*64}")
            r.append(f"ds_read2_b32 {R(b+4*u,2)}, v{VA+u//2} offset0:{o} offset1:{o+1}")
            r.append(f"ds_read2_b32 {R(b+4*u+2,2)}, v{VA+u//2} offset0:{o+2} offset1:{o+3}")
        return r
    THR = dict(zip(range(2, 8), [int(x) for x in E("THR", "3,3,3,3,2,2").split(",")]))
    for x in c_reads(0): a(x)
    for j in range(8):
        nxt = c_reads(j + 1) if j < 7 else []
        if j + 1 in THR: nxt.append(f"ds_read_b32 v4, v{VS} offset:16")
        a("s_waitcnt lgkmcnt(0)")
        if j in THR:
            l = a.newlabel()
            a(f"v_readfirstlane_b32 s8, v4\ns_cmp_gt_u32 s8, {THR[j]}\ns_cbranch_scc1 {l}\ns_setprio 2")
            a.label(l)
        b = CB[j & 1]; n = 0
        order = [(u, nb) for u in range(8) for nb in range(u, 8)]
        if E("CORD") == "acc": order.sort(key=lambda x: (x[1], x[0]))
        if E("CORD") == "b": order.sort(key=lambda x: (x[1] - x[0], x[0]))
        seen = set()
        for u, nb in order:
            if True:
                d = R(O + 4 * nb)
                a(f"v_mfma_f32_16x16x32_bf16 {d}, {R(b+4*u)}, {R(b+32+4*(nb-u))}, {'0' if (j == 0 and nb not in seen) else d}")
                seen.add(nb)
                n += 1
                if n % 4 == 0:
                    for x in nxt[:3]: a(x)
                    nxt = nxt[3:]
        assert not nxt
    a(f"s_setprio 2\ns_lshl_b32 s8, s12, 12\ns_add_u32 s8, s8, {WS_Z}")
    for pr_ in range(4):
        zb = 96 + 4 * pr_
        for k in range(4): a(f"v_cvt_pk_bf16_f32 v{zb+k}, v{O+8*pr_+2*k}, v{O+8*pr_+2*k+1}")
        a(f"v_permlane32_swap_b32 v{zb}, v{zb+2}\nv_permlane32_swap_b32 v{zb+1}, v{zb+3}")
        a(f"buffer_store_dwordx4 {R(zb)}, v{V_ZS}, {W}, s8 offen offset:{1024*pr_} sc1")
    a(f"s_lshl_b32 s8, s12, 2\ns_add_u32 s8, s8, {WS_F3}\ns_waitcnt vmcnt(0)")
    flag_store(8, 6)
    a.label(l_cdone)
    lds_add(8, 1)
    a.label(l_aepi)
    stamp(9)
    a("s_setprio 2")
    XF, AF, AC = 8, 96, 64
    def o_reads(ks):
        b = AF + 20 * (ks % 8)
        for nb in range(5):
            for z in range(2): a(f"ds_read_b64_tr_b16 {R(b+4*nb+2*z,2)}, v{VT+z} offset:{ks*5120 + nb*32}")
    QRW, ZR, U = 8, 24, 64
    X40 = "s_mov_b32 exec_lo, -1\ns_mov_b32 exec_hi, 0xff"
    srd(S_A, P_AQ, ACT)
    a(X40)
    for e in range(8):
        a(f"s_movk_i32 s8, {(16*(e>>2) + 2*(e&3))*1280}")
        a(f"buffer_load_dwordx2 {R(QRW+2*e,2)}, v{AE}, {SR_(S_A)}, s8 offen")
    a(f"""
    s_mov_b64 exec, -1
    buffer_load_dwordx4 {R(64)}, v{PV+2}, {W}, s72 offen sc1
    buffer_load_dwordx4 {R(64)}, v{PV+2}, {W}, s72 offen offset:1024 sc1
    buffer_load_dwordx2 {R(64,2)}, v{PV+3}, {W}, s73 offen sc1
    buffer_load_dwordx2 {R(64,2)}, v{PV+3}, {W}, s73 offen offset:256 sc1
    v_mov_b32 v4, 0
    buffer_load_dword v64, v4, {W}, s74 offen sc1
    """)
    lds_wait(0, 2, "ne", 16)
    for ks in range(8): o_reads(ks)
    srd(S_C, P_OUT, 2 * ACT)
    def unp(dst, src, hi): a(f"v_and_b32 v{dst}, s14, v{src}" if hi else f"v_lshlrev_b32 v{dst}, 16, v{src}")
    def z_fetch(once):
        a(f"""
        s_lshl_b32 s11, s3, 7
        s_lshl_b32 s8, s5, 5
        s_add_u32 s11, s11, s8
        s_add_u32 s11, s11, {WS_Z}
        s_mov_b32 s14, {WS_F3}
        {X40}
        """)
        l = a.newlabel()
        poll(lambda: a(f"buffer_load_dwordx4 {R(40)}, v{AE+2}, {W}, s14 offen sc1"), [40, 41, 42, 43], 4, fail=l if once else None)
        stamp(11)
        for i in range(4):
            a(f"buffer_load_dwordx4 {R(ZR+4*i)}, v{AE+3}, {W}, s11 offen sc1")
            if i < 3: a("s_add_u32 s11, s11, 4096")
        a("s_mov_b32 s70, 1\ns_mov_b32 s14, 0xffff0000\ns_waitcnt vmcnt(0)")
        for e in range(8):
            for i in range(4):
                unp(U + i, QRW + 2 * e + i // 2, i % 2); unp(U + 4 + i, ZR + 4 * i + e // 2, e % 2)
            for i in range(4): a(f"v_mul_f32 v{U+i}, v{U+i}, v{U+4+i}")
            for i in (0, 2): a(f"v_cvt_pk_bf16_f32 v{QRW+2*e+i//2}, v{U+i}, v{U+i+1}")
            a(f"s_mov_b32 s8, {(16*(e>>2) + 2*(e&3))*2560}")
            a(f"buffer_store_dwordx2 {R(QRW+2*e,2)}, v{AE+1}, {SR_(S_C)}, s8 offen{OSFX}")
        a.label(l)
        a("s_mov_b64 exec, -1")
    if not E("NOAEPI"):
        a("s_mov_b32 s70, 0")
        lds_wait(16, 1, "lt", 8)
        a(f"s_setprio {E('PAE', '2')}")
        l_try, l_giveup = a.newlabel(), a.newlabel()
        a.label(l_try)
        a(f"s_sleep {E('ZS', '16')}")
        z_fetch(True)
        a(f"""
        s_cmp_eq_u32 s70, 1
        s_cbranch_scc1 {l_giveup}
        ds_read_b32 v4, v{VS} offset:16
        s_waitcnt lgkmcnt(0)
        v_readfirstlane_b32 s8, v4
        s_cmp_lg_u32 s8, 0
        s_cbranch_scc1 {l_try}
        """)
        a.label(l_giveup)
    a.label(l_svcend)
    fin_addr2(2)
    a("s_waitcnt vmcnt(0) lgkmcnt(0)")
    stamp(12)
    a("s_barrier   ; R")
    a(f"ds_read_b32 v5, v{VS} offset:8")
    OWN = O
    for j in range(2):
        for r in range(3): a(f"ds_read_b128 {R(OWN+12*j+4*r)}, v{PV+j} offset:{1024*r}")
    a(f"s_branch {l_R}")
    a.label(l_cg1)
    for n in range(5): wpat(VD + n, 64 * n, True)
    a(f"""
    s_sub_u32 s8, s5, 4
    s_mul_i32 s11, s8, 5120
    s_add_u32 s11, s11, {L_W}
    s_mul_i32 s10, s8, {32*1280}
    s_add_u32 s10, s10, s65
    s_mul_i32 s12, s66, {128*1280}
    """)
    tail_addr(True); hi_addr(); gemm_addr(1); fin_addr(); a('v_mov_b32 v55, -1\nv_mov_b32 v60, -1'); a(f"v_mov_b32 v{AE+1}, -1\nv_mov_b32 v{AE+2}, -1\nv_mov_b32 v{AE+3}, -1")
    got_args()
    if E("TLB"):
        M2 = 1 << 21
        pages = [(P_WQ, 0), (P_X, 0), (P_X, M2), (P_AK, 0), (P_AK, M2), (P_AV, 0), (P_AV, M2), (P_SH, 0),
                 (P_WS, M2), (P_WS, 2*M2), (P_WS, 3*M2), (P_WS, 4*M2), (P_WS, 5*M2), (P_SK, 0), (P_SK, M2), (P_SD, 0),
                 (P_WO, 0), (P_AQ, 0), (P_AQ, M2), (P_OUT, 0), (P_OUT, M2), (P_OUT, 2*M2)]
        for w in range(4):
            def t(w=w):
                for p_, o_ in pages[w::4]: a(f"s_mov_b32 s8, {o_}\ns_load_dword s13, s[{p_}:{p_+1}], s8")
            only(4 + w, t)
    srd(S_B, P_WQ, D * D * 2); srd(S_WS, P_WS, WS_END)
    if not E("TLB"): got_tag()
    a(f"s_setprio {E('PHI', '0')}\ns_barrier   ; b0")
    w_issue(0)
    stamp(1)
    a(f"s_waitcnt vmcnt({E('W1', '5')})"); w_issue(1); a("s_waitcnt vmcnt(5)")
    l = a.newlabel(); br_wave("eq", 7, l); w_issue(2); a.label(l)
    if E("TLB"): got_tag()
    q_path(1)
    for i in range(4): a(f"ds_read2_b64 {R(QM+4*i)}, v{QA+i} offset0:0 offset1:1")
    a(f"ds_read_b64 {R(QR,2)}, v{QA+4} offset:32\nds_read_b64 {R(QR+2,2)}, v{QA+5} offset:32")
    a(f"s_setprio 1\ns_movk_i32 s13, 8")
    if E("P2"): kv_prologue(KBH, 1)
    for t in range(4): a(f"v_mfma_f32_32x32x16_bf16 {R(O+16*t,16)}, {R(KBH[-1]+10)}, {R(KBH[-1]+10)}, 0")
    l_fb, l_after = a.newlabel(), a.newlabel()
    def qk(t, kb, usec):
        return f"v_mfma_f32_32x32x16_bf16 {R(SR+16*t,16)}, {R(kb)}, {R(QM+4*t)}, {R(C+16*t,16) if usec else '0'}"
    def qr(p, kb):
        d = R(SR + 32 * p, 32)
        if E("QR8"): return "\n".join(f"v_mfma_f32_32x32x8_bf16 {R(SR+32*p+16*i,16)}, {R(kb+4,2)}, {R(QR+2*p,2)}, {R(SR+32*p+16*i,16)}" for i in range(2))
        if E("NOQR"): return "s_nop 0\ns_nop 0"
        return f"v_mfma_f32_32x32x4_2b_bf16 {d}, {R(kb+4,2)}, {R(QR+2*p,2)}, {d}"
    def pv(t, hf, vb):
        d = R(O + 16 * t, 16)
        if E("PVSWAP"): return f"v_mfma_f32_32x32x16_bf16 {d}, {R(SR+16*t+8*hf)}, {R(vb+6+4*hf)}, {d}"
        return f"v_mfma_f32_32x32x16_bf16 {d}, {R(vb+6+4*hf)}, {R(SR+16*t+8*hf)}, {d}"
    MP = [int(x) for x in E("MP", "16,8,12,20,26,36,4").split(",")]
    DEFER = MP[6] < 40
    LP = [MP[5]] * 4
    SHA = bool(E("SHA")); UO = [0, 2, 1, 3] if SHA else [0, 1, 2, 3]
    def phase(p, kq_, vcur, vprev, extra, usec):
        ta, tb = 2 * p, 2 * p + 1
        na, nb_ = 2 * (1 - p), 2 * (1 - p) + 1
        base, pbase = SR + 32 * p, SR + 32 * (1 - p)
        def cv(b, j):
            bb = b + 8 * UO[j // 4]; k = j % 4
            return f"v_cvt_pk_bf16_f32 v{bb+k}, v{bb+2*k}, v{bb+2*k+1}"
        valu = []
        PAT = E("PAT", "eeeecc")
        for grp in range(8):
            ei = 0; cj = [2 * grp - 2, 2 * grp - 1]
            for ch in PAT:
                if ch == "e": rr = base + 8 * UO[grp // 2] + 4 * (grp % 2) + ei; valu.append(f"v_exp_f32 v{rr}, v{rr}"); ei += 1
                else:
                    j = cj.pop(0); valu.append(cv(base, j) if j >= 0 else cv(pbase, 16 + j))
        ins = dict(zip(MP, [[qk(na, kq_, usec)], [pv(nb_, 1, vprev)], [qk(nb_, kq_, usec)], [pv(ta, 0, vcur)],
               [qr(1 - p, kq_)], [pv(tb, 0, vcur) if SHA else pv(ta, 1, vcur)], [pv(na, 1, vprev) if SHA else (pv(nb_, 0, vprev) if DEFER else pv(tb, 0, vcur))]]))
        for k, v in extra.items():
            if k == "wait": ins[MP[3]] = v + ins[MP[3]]
            else: ins[k] = ins.get(k, []) + v
        for i, x in enumerate(valu):
            for y in ins.get(i, []): a(y)
            a(x)
        return [cv(base, 14), cv(base, 15)]
    def main_loop(kb, usec):
        nb = len(kb)
        a(f"s_waitcnt vmcnt({4 if E('LATEP') else 4*(nb-1)}) lgkmcnt(0)")
        stamp(8); rstamp(14)
        a(qk(0, kb[0], usec)); a(qk(1, kb[0], usec))
        for i in range(8): a(f"v_mov_b32 v{SR+56+i}, 0")
        for i in range(4): a(f"v_mov_b32 v{SR+(40 if SHA else 48)+i}, 0\nv_mov_b32 v{kb[-1]+6+i}, 0")
        a(qr(0, kb[0]))
        if usec or not E("LATEP"): a("s_nop 15\ns_nop 3")
        else: kv_prologue(kb, 1); a("s_nop 9")
        l_loop = a.newlabel()
        a(".p2align 6")
        a.label(l_loop)
        n0 = len(a.lines)
        for par in range(nb):
            cur, nxt, prv = kb[par], kb[(par + 1) % nb], kb[par - 1]
            lds_ = [f"buffer_load_dwordx4 {R(prv+6)}, v{AV}, {W}, s11 offen offset:{V0_OFF}{KVL}",
                    f"buffer_load_dwordx4 {R(prv+10)}, v{AV}, {W}, s11 offen offset:{V1_OFF}{KVL}",
                    f"buffer_load_dwordx4 {R(cur)}, v{AK1}, {W}, s11 offen offset:{TILE + K1_OFF}{KVL}",
                    f"buffer_load_dwordx2 {R(cur+4,2)}, v{AKR}, {W}, s11 offen offset:{TILE + KR_OFF}{KVL}"]
            ex = [{"wait": [f"s_waitcnt vmcnt({4*(nb-2) + sum(1 for p_ in LP if p_ < MP[3])})"]}, {}]
            for p_, l_ in zip(LP, lds_): ex[p_ // 48].setdefault(p_ % 48, []).append(l_)
            pm = max(LP)
            ex[pm // 48].setdefault(pm % 48, []).append(f"s_add_u32 s11, s11, {TILE}")
            if par == nb - 1:
                ex[0][pm % 48].append("s_sub_u32 s13, s13, 1")
                if not usec:
                    ex[1].setdefault(MP[5] - 3, []).append("v_mov_b32_e64 v4, s13")
                    ex[1].setdefault(MP[5], []).extend([f"ds_write_b32 v{VS}, v4 offset:16", f"ds_read_b32 v5, v{VS} offset:8"])
                ex[1].setdefault(MP[5], []).append("s_cmp_lg_u32 s13, 0")
            phase(0, cur, cur, prv, ex[0], usec)
            tail = phase(1, nxt, cur, cur, ex[1], usec)
        if not E("NOALIGN"):
            par_ = 0; last4 = None
            for i in range(n0, len(a.lines)):
                t = a.lines[i]
                small = t.startswith(("v_exp_f32 ", "v_mov_b32 ", "s_waitcnt", "s_sub_u32", "s_cmp_"))
                if small:
                    par_ ^= 1
                    if t.startswith("v_"): last4 = i
                elif par_ and last4 is not None and all(a.lines[j].startswith(("v_exp_f32 ", "v_mov_b32 ", "s_waitcnt", "s_sub_u32", "s_cmp_")) for j in range(last4, i)):
                    a.lines[last4] = a.lines[last4].replace(" ", "_e64 ", 1); par_ = 0
        a(f"s_cbranch_scc1 {l_loop}")
        if DEFER: a(pv(2, 1, kb[-1]) if SHA else pv(3, 0, kb[-1]))
        for x in tail: a(x)
        a(pv(3, 1, kb[-1]))
    main_loop(KBH, False)
    l_w, l_ok = a.newlabel(), a.newlabel()
    a(f"s_mov_b32 s96, {SPIN}")
    a.label(l_w)
    a(f"""
    s_waitcnt lgkmcnt(0)
    v_readfirstlane_b32 s8, v5
    s_and_b32 s9, s8, 0xff
    s_cmp_eq_u32 s9, 4
    s_cbranch_scc1 {l_ok}
    s_sleep 2
    ds_read_b32 v5, v{VS} offset:8
    s_sub_u32 s96, s96, 1
    s_cmp_lg_u32 s96, 0
    s_cbranch_scc1 {l_w}
    """)
    a.label(l_ok)
    a(f"s_bitcmp1_b32 s8, 8\ns_cbranch_scc1 {l_fb}")
    a.label(l_after)
    stamp(9); rstamp(15)
    for i in (1, 2, 3):
        for r in range(3): a(f"ds_write_b128 v{PV}, {R(O+16*i+4*r)} offset:{3072*(i-1) + 1024*r}")
    a("s_waitcnt lgkmcnt(0)")
    stamp(12)
    a("s_barrier   ; R")
    for r in range(3): a(f"ds_read_b128 {R(OWN+12+4*r)}, v{PV+1} offset:{1024*r}")
    a.label(l_R)
    a("s_waitcnt lgkmcnt(0)\nv_readfirstlane_b32 s71, v5")
    for r in (10, 8, 9, 0, 1, 2, 3, 4, 5, 6, 7): a(f"v_add_f32 v{OWN+r}, v{OWN+r}, v{OWN+12+r}")
    a(f"v_rcp_f32 v{OWN+10}, v{OWN+10}")
    for i in (8, 9, 0, 1, 2, 3, 4, 5, 6, 7): a(f"v_mul_f32 v{OWN+i}, v{OWN+i}, v{OWN+10}")
    PO = 88
    a(f"v_cvt_pk_bf16_f32 v{PO+4}, v{OWN+8}, v{OWN+9}\nv_cvt_pk_bf16_f32 v{PO+5}, v{OWN+8}, v{OWN+9}")
    for i in range(4): a(f"v_cvt_pk_bf16_f32 v{PO+i}, v{OWN+2*i}, v{OWN+2*i+1}")
    a(f"""
    v_permlane32_swap_b32 v{PO+4}, v{PO+5}
    s_waitcnt vmcnt(0)
    s_bitcmp1_b32 s71, 9
    s_cbranch_scc1 L_fast1
    buffer_store_dwordx4 {R(PO)}, v{PV+2}, {W}, s72 offen sc1
    s_mov_b32 exec_hi, 0
    buffer_store_dwordx2 {R(PO+4,2)}, v{PV+3}, {W}, s73 offen sc1
    s_branch L_fast2
    L_fast1:
    buffer_store_dwordx4 {R(PO)}, v{PV+2}, {W}, s72 offen{E('FSFX', ' nt')}
    s_mov_b32 exec_hi, 0
    buffer_store_dwordx2 {R(PO+4,2)}, v{PV+3}, {W}, s73 offen{E('FSFX', ' nt')}
    L_fast2:
    s_mov_b32 exec_hi, -1
    """)
    tstamp(1)
    srd(S_C, P_OUT, 2 * ACT)
    a(f"""
    s_lshl_b32 s12, s3, 1
    s_lshr_b32 s8, s77, 1
    s_add_u32 s12, s12, s8
    s_lshl_b32 s12, s12, 1
    s_add_u32 s12, s12, s76
    s_lshl_b32 s12, s12, 6
    s_add_u32 s12, s12, {WS_F4}
    v_lshl_add_u32 v4, v2, 2, s12
    s_lshl_b32 s8, s3, 8
    s_lshl_b32 s9, s4, 4
    s_add_u32 s8, s8, s9
    s_add_u32 s8, s8, {WS_F4}
    v_and_b32 v5, 3, v1
    v_lshl_add_u32 v5, v5, 2, s8
    v_bfe_u32 v6, v1, 2, 1
    v_lshl_add_u32 v5, v6, 7, v5
    s_mov_b32 s8, 0xffff0000
    s_mov_b32 s9, 0
    v_cndmask_b32 v4, v4, v5, s[8:9]
    v_lshlrev_b32 v5, 8, v3
    v_lshl_add_u32 v5, v2, 3, v5
    s_lshl_b32 s13, s3, 2
    s_add_u32 s13, s13, s77
    s_mul_i32 s13, s13, {OPB}
    s_add_u32 s13, s13, {WS_O}
    s_lshl_b32 s8, s76, 11
    s_add_u32 s15, s13, s8
    s_add_u32 s15, s15, 16384
    s_lshl_b32 s8, s76, 13
    s_add_u32 s13, s13, s8
    s_add_u32 s10, s13, 4096
    v_mov_b32 v6, s{TAG}
    v_mov_b32 v7, 0
    """)
    l = a.newlabel()
    br_wave("lt", 4, l)
    for ks in range(2): o_reads(ks)
    a.label(l)
    tstamp(2)
    a(f"""
    s_waitcnt vmcnt(0)
    s_mov_b64 exec, 1
    s_bitcmp1_b32 s71, 9
    s_cbranch_scc1 L_fast3
    buffer_store_dword v6, v7, {W}, s74 offen sc1
    s_branch L_fast4
    L_fast3:
    buffer_store_dword v6, v7, {W}, s74 offen
    L_fast4:
    s_mov_b64 exec, -1
    """)
    tstamp(3)
    if E("XBAR"): a("s_barrier")
    l, l2 = a.newlabel(), a.newlabel()
    br_wave("lt", 4, l)
    for ks in range(2, 6): o_reads(ks)
    a(f"s_branch {l2}")
    a.label(l)
    if not E("NOAEPI") and not E("NOSVC"):
        l3 = a.newlabel()
        a(f"s_cmp_eq_u32 s70, 1\ns_cbranch_scc1 {l3}")
        z_fetch(False)
        a.label(l3)
    a.label(l2)
    a(f"s_lshl_b32 s14, s64, 1\ns_add_u32 s14, s14, s65\ns_add_u32 s14, s14, 1280")
    tstamp(4)
    poll(lambda: a(f"buffer_load_dword v6, v4, {W}, 0 offen sc1"), [6], 1)
    tstamp(5)
    nld = []
    for ks in range(10):
        pr_, m = ks // 5, ks % 5
        if m < 4:
            a(f"buffer_load_dwordx4 {R(XF+4*ks)}, v{AK1}, {W}, s{10 if pr_ else 13} offen offset:{1024*m} sc1"); nld.append(1)
        else:
            for z in range(2): a(f"buffer_load_dwordx2 {R(XF+4*ks+2*z,2)}, v5, {W}, s15 offen offset:{1024*pr_ + 128*z} sc1")
            nld.append(2)
    l = a.newlabel()
    br_wave("lt", 4, l)
    for ks in range(6, 8): o_reads(ks)
    fin_addr2(1)
    a.label(l)
    tstamp(6)
    for ks in range(10):
        a(f"s_waitcnt vmcnt({sum(nld[ks+1:])})" + {0: " lgkmcnt(15)", 6: " lgkmcnt(15)", 8: " lgkmcnt(10)", 9: " lgkmcnt(0)"}.get(ks, ""))
        b = AF + 20 * (ks % 8)
        for nb in range(5):
            d = R(AC + 4 * nb)
            a(f"v_mfma_f32_16x16x32_bf16 {d}, {R(b+4*nb)}, {R(XF+4*ks)}, {'0' if ks == 0 else d}")
        if ks < 2: o_reads(8 + ks)
    tstamp(7)
    for nb in range(5): a(f"ds_write_b128 v54, {R(AC+4*nb)} offset:{64*nb}")
    a("s_waitcnt lgkmcnt(0)\ns_barrier")
    def fin_rd(i):
        b = 96 + 16 * i
        a(f"ds_read_b128 {R(b)}, v{FRD[i]}\nds_read_b128 {R(b+4)}, v{FRD[i]} offset:16")
        a(f"ds_read_b128 {R(b+8)}, v{FRD[i]} offset:{OKH}\nds_read_b128 {R(b+12)}, v{FRD[i]} offset:{OKH+16}")
    def fin_st(i):
        b = 96 + 16 * i
        for r in range(8): a(f"v_add_f32 v{b+r}, v{b+r}, v{b+8+r}")
        for r in range(4): a(f"v_cvt_pk_bf16_f32 v{b+8+r}, v{b+2*r}, v{b+2*r+1}")
        a(f"buffer_store_dwordx4 {R(b+8)}, v{FST[i]}, {SR_(S_C)}, s14 offen{OSFX}")
    l = a.newlabel()
    fin_rd(0)
    br_wave("ge", 2, l)
    fin_rd(1); a("s_waitcnt lgkmcnt(0)"); fin_st(1)
    a.label(l)
    a("s_waitcnt lgkmcnt(0)"); fin_st(0)
    a.label("L_fin")
    if STAMP:
        a(f"""
        s_memtime s[98:99]
        s_waitcnt lgkmcnt(0)
        s_mov_b32 s96, s98
        s_memrealtime s[98:99]
        s_waitcnt lgkmcnt(0)
        s_mov_b32 s97, s98
        s_add_u32 s72, s{P_WS}, {WS_STAMP}
        s_addc_u32 s73, s{P_WS+1}, 0
        s_mov_b32 s74, 0x40000
        s_mov_b32 s75, 0x20000
        s_lshl_b32 s76, s2, 3
        s_add_u32 s76, s76, s5
        s_lshl_b32 s76, s76, 7
        v_mov_b32 v2, 0
        """)
        for i in range(18): a(f"v_mov_b32 v3, s{80+i}\nbuffer_store_dword v3, v2, s[72:75], s76 offen offset:{4*i}")
    a.label("L_exit")
    a("s_endpgm")
    a.label(l_fb)
    FB = [28, 240]
    FB = [28, 114]
    a("s_waitcnt vmcnt(0)\ns_nop 15\ns_nop 3")
    raise_fb = True
    TB, M = 28, 36
    for j in range(4): a(f"v_mov_b32 v{M+j}, 0xff800000")
    a(f"s_mov_b32 s11, {WS_KV}\ns_mov_b32 s14, 64\ns_mov_b32 s13, 16")
    l_f = a.newlabel()
    a.label(l_f)
    loadK(TB, 0)
    a("s_waitcnt vmcnt(0)")
    for t in range(4): a(qk(t, TB, False))
    a(qr(0, TB)); a(qr(1, TB))
    for t in range(4):
        for i in range(8): a(f"v_max3_f32 v{M+t}, v{M+t}, v{SR+16*t+2*i}, v{SR+16*t+2*i+1}")
    a(f"s_add_u32 s11, s11, {TILE}\ns_sub_u32 s14, s14, 1\ns_cmp_lg_u32 s14, 0\ns_cbranch_scc1 {l_f}")
    for t in range(4):
        a(f"v_mov_b32 v{M+4}, v{M+t}\nv_permlane32_swap_b32 v{M+t}, v{M+4}\nv_max_f32 v{M+4}, v{M+4}, v{M+t}")
        for i in range(16): a(f"v_sub_f32 v{C+16*t+i}, 0, v{M+4}")
    a(f"v_mov_b32 v6, v{VT}\nv_mov_b32 v7, v{VT+1}")
    for i in range(4): a(f"v_mov_b32 v{52+i}, 0")
    for t in range(4): a(f"v_mfma_f32_32x32x16_bf16 {R(O+16*t,16)}, {R(52)}, {R(52)}, 0")
    kv_prologue([28, 42])
    main_loop([28, 42], True)
    a(f"s_waitcnt vmcnt(0)\nv_mov_b32 v{VT}, v6\nv_mov_b32 v{VT+1}, v7"); fin_addr(); a(f"s_nop 7\ns_nop 7\ns_branch {l_after}")
    return a.finalize(verbose=bool(E("VERB")))


DOC = """;
; ---------------------------------------------------------------------------------------------
; ---------------------------------------------------------------------------------------------
"""

def build():
    hdr = open(f"cdna_kernels/{NAME}.s.ref").read().split("; @launch")[0]
    k = NAME + "_kernel"
    body = build_kernel()
    return hdr + f"""; @launch grid=(256,1,1) block=(512,1,1) lds=163840
.amdgcn_target "amdgcn-amd-amdhsa--gfx950"
{DOC}.text
.globl {k}
.p2align 8
.type {k},@function
{k}:
{body}.section .rodata,"a"
.p2align 6
.amdhsa_kernel {k}
  .amdhsa_next_free_vgpr 256
  .amdhsa_next_free_sgpr 100
  .amdhsa_accum_offset 256
  .amdhsa_group_segment_fixed_size 0
  .amdhsa_kernarg_size 112
  .amdhsa_user_sgpr_count 2
  .amdhsa_user_sgpr_kernarg_segment_ptr 1
  .amdhsa_system_sgpr_workgroup_id_x 1
.end_amdhsa_kernel
"""

if __name__ == "__main__":
    path = sys.argv[1] if len(sys.argv) > 1 else "final.s"
    open(path, "w").write(build())
    print("wrote", path)
```
